```python
import torch

def _softmax(x, axis=-1):
    return torch.softmax(x, dim=axis)

def _gelu(x):
    return torch.nn.functional.gelu(x, approximate='tanh')

def _silu(x):
    return torch.nn.functional.silu(x)

def _sigmoid(x):
    return torch.sigmoid(x)

def _layernorm(x, axis=-1, eps=1e-05):
    m = x.mean(dim=axis, keepdim=True)
    v = x.var(dim=axis, keepdim=True, unbiased=False)
    return (x - m) / torch.sqrt(v + eps)

def _scatter_add(tgt, idx, src, axis=0):
    return tgt.clone().index_add_(axis, idx, src)

def _segment_sum(src, seg, n):
    out = torch.zeros((n,) + src.shape[1:], dtype=src.dtype)
    return out.index_add_(0, seg, src)

def _pad(x, pw):
    flat = tuple((v for pair in reversed(pw) for v in pair))
    return torch.nn.functional.pad(x, flat)
kernel_name = 'adaLN_cond__mha_block_cached__swiglu_ffn__decode'

def setup_inputs():

    _w = lambda a: (lambda t: t.to(torch.bfloat16) if t.is_floating_point() else t)(torch.as_tensor(a))

    def _A_setup():
        B, Sq, D = (8, 1, 512)
        H, Sk, Dh = (32, 4096, 128)
        return {'x': _w((lambda *s: torch.randn(*s, dtype=torch.bfloat16) * 0.1)(B, Sq, D)), 'k_cache': _w((lambda *s: torch.randn(*s, dtype=torch.bfloat16) * 0.8)(B, H, Sk, Dh)), 'v_cache': _w((lambda *s: torch.randn(*s, dtype=torch.bfloat16) * 1.6)(B, H, Sk, Dh)), 'wq': _w((lambda *s: torch.randn(*s, dtype=torch.bfloat16) * 0.8)(D, H * Dh) * D ** (-0.5)), 'wo': _w((lambda *s: torch.randn(*s, dtype=torch.bfloat16) * 1.6)(H * Dh, D) * (H * Dh) ** (-0.5))}
    _A_in = _A_setup()

    def _B_setup():
        B, S, D, F = (8, 1, 512, 1376)
        return {'x': _w((lambda *s: torch.randn(*s, dtype=torch.bfloat16) * 0.1)(B, S, D)), 'w_gate': _w((lambda *s: torch.randn(*s, dtype=torch.bfloat16) * 0.1)(D, F)), 'w_up': _w((lambda *s: torch.randn(*s, dtype=torch.bfloat16) * 0.1)(D, F)), 'w_down': _w((lambda *s: torch.randn(*s, dtype=torch.bfloat16) * 0.1)(F, D))}
    _B_in = _B_setup()
    return {'A_x': _A_in['x'], 'A_k_cache': _A_in['k_cache'], 'A_v_cache': _A_in['v_cache'], 'A_wq': _A_in['wq'], 'A_wo': _A_in['wo'], 'B_x': _B_in['x'], 'B_w_gate': _B_in['w_gate'], 'B_w_up': _B_in['w_up'], 'B_w_down': _B_in['w_down'], 'c': _w((lambda *s: torch.randn(*s, dtype=torch.bfloat16) * 0.8)(8, 512) * 8.0), 'w_mod': _w((lambda *s: torch.randn(*s, dtype=torch.bfloat16) * 0.8)(512, 6 * 512) * 512 ** (-0.5) * 8.0)}

def reference(A_x, A_k_cache, A_v_cache, A_wq, A_wo, B_x, B_w_gate, B_w_up, B_w_down, c, w_mod):

    def _A_ref(x, k_cache, v_cache, wq, wo):
        B, Sq, D = x.shape
        H, Dh = (32, 128)
        q = (lambda x, *d: x.permute(*d))((x @ wq).reshape(B, Sq, H, Dh), 0, 2, 1, 3)
        scores = torch.einsum('bhqd,bhkd->bhqk', q, k_cache) * Dh ** (-0.5)
        p = _softmax(scores, axis=-1)
        o = torch.einsum('bhqk,bhkd->bhqd', p, v_cache)
        return (lambda x, *d: x.permute(*d))(o, 0, 2, 1, 3).reshape(B, Sq, H * Dh) @ wo

    def _B_ref(x, w_gate, w_up, w_down):
        g = _silu(x @ w_gate)
        u = x @ w_up
        return g * u @ w_down
    x = A_x
    mod = (_silu(c) @ w_mod).reshape(c.shape[0], 6, 1, -1)
    sa, ca, ga, sb, cb, gb = (mod[:, 0].clone(), mod[:, 1].clone(), mod[:, 2].clone(), mod[:, 3].clone(), mod[:, 4].clone(), mod[:, 5].clone())
    h = _layernorm(x, axis=-1) * (1 + ca) + sa
    x = x + ga * _A_ref(h, A_k_cache, A_v_cache, A_wq, A_wo)
    h = _layernorm(x, axis=-1) * (1 + cb) + sb
    x = x + gb * _B_ref(h, B_w_gate, B_w_up, B_w_down)
    return x
```

```python
import re

TRANS = ('v_exp_f32', 'v_log_f32', 'v_rcp_f32', 'v_rsq_f32', 'v_sqrt_f32', 'v_sin_f32', 'v_cos_f32')

def _regs(tok):
    tok = tok.strip()
    tok = tok.lstrip('-')
    m = re.fullmatch(r'abs\((.*)\)', tok)
    if m: tok = m.group(1)
    m = re.fullmatch(r'\|(.*)\|', tok)
    if m: tok = m.group(1)
    m = re.fullmatch(r'([vsa])(\d+)', tok)
    if m: return {(m.group(1), int(m.group(2)))}
    m = re.fullmatch(r'([vsa])\[(\d+):(\d+)\]', tok)
    if m: return {(m.group(1), i) for i in range(int(m.group(2)), int(m.group(3)) + 1)}
    if tok in ('vcc', 'vcc_lo', 'vcc_hi'): return {('vcc', 0)}
    if tok in ('exec', 'exec_lo', 'exec_hi'): return {('exec', 0)}
    if tok == 'm0': return {('m0', 0)}
    return set()

class Ins:
    __slots__ = ('text', 'op', 'rd', 'wr', 'kind', 'dpp', 'srcc', 'ab', 'states', 'lanesel', 'storedata', 'lds_dma')
    def __init__(self, text):
        self.text = text
        t = text.split(';')[0].strip()
        parts = t.split(None, 1)
        self.op = op = parts[0]
        rest = parts[1] if len(parts) > 1 else ''
        ops = []; depth = 0; cur = ''
        for ch in rest:
            if ch in '[(': depth += 1
            if ch in '])': depth -= 1
            if ch == ',' and depth == 0:
                ops.append(cur.strip()); cur = ''
            else: cur += ch
        if cur.strip(): ops.append(cur.strip())
        mods = ''
        if ops:
            lp = ops[-1].split(None, 1)
            ops[-1] = lp[0]
            mods = lp[1] if len(lp) > 1 else ''
        self.rd = set(); self.wr = set(); self.dpp = False; self.srcc = set(); self.ab = set()
        self.states = 1; self.lanesel = set(); self.storedata = set(); self.lds_dma = False
        R = [_regs(o) for o in ops]
        if op == 's_nop':
            self.kind = 'nop'; self.states = int(ops[0], 0) + 1; return
        if op.startswith('v_mfma'):
            self.kind = 'mfma'; self.wr = R[0]; self.ab = R[1] | R[2]; self.srcc = R[3]; self.rd = self.ab | self.srcc; return
        if op.startswith('v_'):
            self.kind = 'valu'
            self.dpp = ('_dpp' in op) or any(k in mods for k in ('row_', 'quad_perm', 'wave_'))
            if op.startswith('v_permlane'):
                self.kind = 'permlane'; self.wr = R[0] | R[1]; self.rd = R[0] | R[1]; return
            if op.startswith('v_cmp'):
                self.wr = R[0]; self.rd = set().union(*R[1:]); return
            if op.startswith('v_readlane') or op.startswith('v_readfirstlane'):
                self.kind = 'readlane'; self.wr = R[0]; self.rd = R[1]
                if len(R) > 2: self.lanesel = R[2]; self.rd = self.rd | R[2]
                return
            if op.startswith('v_writelane'):
                self.wr = R[0]; self.rd = R[0] | R[1] | R[2]; self.lanesel = R[2]; return
            if op.startswith(('v_add_co', 'v_sub_co', 'v_addc_co', 'v_subb_co', 'v_subrev_co')):
                self.wr = R[0] | R[1]; self.rd = set().union(*R[2:]); return
            self.wr = R[0]; self.rd = set().union(*R[1:]) if len(R) > 1 else set()
            if op.startswith(('v_dot2c', 'v_fmac', 'v_pk_fmac')):
                self.rd = self.rd | R[0]
            if op.startswith('v_cndmask') and len(R) == 3:
                self.rd = self.rd | {('vcc', 0)}
            if self.dpp:
                self.rd = self.rd | R[0]
            if op.startswith('v_dot'):
                self.kind = 'dot'
                if op.startswith('v_dot2c'):
                    self.srcc = R[0]; self.ab = R[1] | R[2]
                else:
                    self.srcc = R[3]; self.ab = R[1] | R[2]
            elif op.split('_e32')[0].split('_e64')[0] in TRANS:
                self.kind = 'trans'
            return
        if op.startswith(('buffer_', 'global_')):
            self.kind = 'vmem'
            lds = re.search(r'\blds\b', mods) is not None or 'load_lds' in op
            self.lds_dma = lds
            if op in ('buffer_wbl2', 'buffer_inv'): return
            if 'load' in op and not lds:
                self.wr = R[0]; self.rd = set().union(*R[1:])
            elif lds:
                self.rd = set().union(*R) | {('m0', 0)}
            elif 'store' in op:
                self.rd = set().union(*R)
                d = R[0] if op.startswith('buffer') else R[1]
                if 'x3' in op or 'x4' in op: self.storedata = d
            else:
                self.rd = set().union(*R)
                if 'sc0' in mods.split(): self.wr = R[0]
                if 'cmpswap_x2' in op: self.storedata = R[0]
            return
        if op.startswith('ds_'):
            self.kind = 'ds'
            if op.startswith(('ds_read', 'ds_bpermute', 'ds_permute', 'ds_swizzle')) or '_rtn' in op:
                self.wr = R[0]; self.rd = set().union(*R[1:])
            else:
                self.rd = set().union(*R)
            return
        if op.startswith('s_'):
            self.kind = 'salu'
            if op.startswith(('s_cmp', 's_cbranch', 's_branch', 's_waitcnt', 's_barrier', 's_endpgm', 's_sleep', 's_setprio', 's_bitcmp')):
                self.rd = set().union(*R) if R else set()
            else:
                self.wr = R[0] if R else set(); self.rd = set().union(*R[1:]) if len(R) > 1 else set()
                if 'saveexec' in op: self.wr = self.wr | {('exec', 0)}
            return
        raise ValueError('unknown instruction: ' + text)

    def is_valu(self):
        return self.kind in ('valu', 'dot', 'trans', 'permlane', 'readlane')

def mfma_passes(op):
    if '32x32x16' in op or '32x32x8' in op: return 8
    if '16x16x32' in op or '16x16x16' in op: return 4
    raise ValueError(op)

def need(p, c):
    n = 0
    pv = {r for r in p.wr if r[0] in 'va'}
    ps = {r for r in p.wr if r[0] in ('s', 'vcc')}
    if p.kind == 'mfma':
        ps_ = mfma_passes(p.op)
        t_valu = {4: 8, 8: 12}[ps_]; t_ov = {4: 6, 8: 10}[ps_]
        if c.kind == 'mfma':
            if pv & c.ab: n = max(n, t_valu)
            if pv & c.srcc:
                if not (c.srcc == pv and mfma_passes(c.op) == ps_): n = max(n, t_ov)
            elif pv & c.wr: n = max(n, t_ov)
        else:
            if (pv & c.rd) or (pv & c.wr): n = max(n, t_valu)
        if c.is_valu() and (p.srcc & c.wr): n = max(n, {4: 3, 8: 7}[ps_])
        return n
    if p.is_valu():
        if c.kind == 'mfma' and (pv & c.rd): n = max(n, 2)
        if c.is_valu() and c.dpp and (pv & c.rd): n = max(n, 2)
        if c.kind == 'permlane' and (pv & c.rd): n = max(n, 2)
        if p.kind == 'trans' and (c.is_valu() or c.kind == 'mfma') and (pv & c.rd): n = max(n, 1)
        if c.kind == 'readlane' and (pv & c.rd): n = max(n, 1)
        if c.is_valu() and (ps & c.rd): n = max(n, 2)
        if c.is_valu() and (ps & c.lanesel): n = max(n, 4)
        if c.kind == 'vmem' and (ps & c.rd): n = max(n, 5)
        if p.kind == 'dot':
            same = (c.kind == 'dot' and c.op.replace('_dpp', '').replace('_e32', '') == p.op.replace('_dpp', '').replace('_e32', ''))
            if same:
                if pv & c.ab: n = max(n, 3)
            elif (pv & c.rd) or (pv & c.wr):
                if c.kind != 'salu': n = max(n, 3)
        if ('exec', 0) in p.wr: n = max(n, 5)
    if p.kind == 'salu' and ('m0', 0) in p.wr and c.lds_dma: n = max(n, 1)
    if p.storedata and (p.storedata & c.wr): n = max(n, 2)
    return n

class Asm:
    def __init__(self):
        self.items = []
        self._uid = 0
    def __call__(self, text):
        for line in text.strip().split('\n'):
            line = line.strip()
            if not line or line.startswith(';'):
                continue
            self.items.append(('i', Ins(line)))
    def label(self, name, fence=True):
        self.items.append(('l', name))
        if fence:
            self.items.append(('i', Ins('s_nop 7')))
            self.items.append(('i', Ins('s_nop 3')))
    def raw(self, text):
        self.items.append(('r', text))
    def comment(self, text):
        self.items.append(('r', '  ; ' + text))
    def uid(self, base):
        self._uid += 1
        return f'{base}_{self._uid}'
    def text(self):
        out = []; hist = []
        for kind, it in self.items:
            if kind == 'r': out.append(it); continue
            if kind == 'l': out.append(it + ':'); continue
            dist = 0; req = 0
            for p in reversed(hist):
                r = need(p, it) - dist
                if r > req: req = r
                dist += p.states
                if dist >= 20: break
            while req > 0:
                k = min(req, 16)
                nop = Ins(f's_nop {k-1}')
                out.append('  ' + nop.text + '   ; auto'); hist.append(nop); req -= k
            out.append('  ' + it.text); hist.append(it)
            if len(hist) > 40: hist = hist[-40:]
        return '\n'.join(out) + '\n'
```

```python
import sys, struct
from asmlib import Asm

NAME = 'adaLN_cond__mha_block_cached__swiglu_ffn__decode_kernel'

def f32(x):
    return '0x%08x' % struct.unpack('<I', struct.pack('<f', x))[0]

L2E = 1.4426950408889634
WS_GEN = 0
WS_MOD = 0x1000
WS_X1 = 0x20000
WS_ACT = 0x28000
WS_WOP = 0x100000
WS_DBG = 0x400000
WS_SIZE = 0x40000000
L_CNT = 0x0
L_MX = 0x40
L_QP = 0x100
L_OP = 0x900
L_RED = 0x1100
L_H2 = 0x3100; H2S = 1040
L_SC = 0x5200
L_STG = 0x9400; STGW = 12288
LDS_SIZE = L_STG + 4 * STGW
NF1 = 86
F2_BASE = 96
SPIN_MAX = 400000

def gen(dbg=False, W=16, kpol='nt', wpol='', stamps=False, gate=True):
    a = Asm()
    hdr = open('adaLN_cond__mha_block_cached__swiglu_ffn__decode.s.ref').read().split('\n')
    for l in hdr:
        if l.startswith('; @launch'): break
        a.raw(l)
    a.raw(f'; @launch grid=(256,1,1) block=(512,1,1) lds={LDS_SIZE}')
    a.raw('.amdgcn_target "amdgcn-amd-amdhsa--gfx950"')
    a.raw('.text')
    a.raw(f'.globl {NAME}')
    a.raw('.p2align 8')
    a.raw(f'.type {NAME},@function')
    a.raw(f'{NAME}:')

    def srd(d, p, size):
        a(f's_mov_b32 s{d}, s{p}')
        a(f's_mov_b32 s{d+1}, s{p+1}')
        a(f's_mov_b32 s{d+2}, {size}')
        a(f's_mov_b32 s{d+3}, 0x00020000')

    def rnd1(x, t):
        a(f'v_cvt_pk_bf16_f32 v{t}, v{x}, v{x}')
        a(f'v_lshlrev_b32 v{x}, 16, v{t}')
    def rnd2(x, y, t):
        a(f'v_cvt_pk_bf16_f32 v{t}, v{x}, v{y}')
        a(f'v_lshlrev_b32 v{x}, 16, v{t}')
        a(f'v_and_b32 v{y}, 0xffff0000, v{t}')
    def unpack(lo, hi, src):
        a(f'v_lshlrev_b32 v{lo}, 16, v{src}')
        a(f'v_and_b32 v{hi}, 0xffff0000, v{src}')
    def wave_reduce(op, regs, tmps):
        for ctl in ('quad_perm:[1,0,3,2]', 'quad_perm:[2,3,0,1]', 'row_half_mirror', 'row_mirror'):
            for r in regs:
                a(f'{op}_dpp v{r}, v{r}, v{r} {ctl} row_mask:0xf bank_mask:0xf')
        for sw in ('v_permlane16_swap_b32', 'v_permlane32_swap_b32'):
            for r, t in zip(regs, tmps): a(f'v_mov_b32 v{t}, v{r}')
            for r, t in zip(regs, tmps): a(f'{sw} v{r}, v{t}')
            for r, t in zip(regs, tmps): a(f'{op} v{r}, v{r}, v{t}')
    def greduce8(acc):
        for e in range(4): a(f'v_permlane32_swap_b32 v{acc+e}, v{acc+e+4}')
        for e in range(4): a(f'v_add_f32 v{acc+e}, v{acc+e}, v{acc+e+4}')
        for e in range(2): a(f'v_permlane16_swap_b32 v{acc+e}, v{acc+e+2}')
        for e in range(2): a(f'v_add_f32 v{acc+e}, v{acc+e}, v{acc+e+2}')
    def silu(x, t, t2, t3):
        a(f'v_mul_f32 v{t}, {f32(-L2E)}, v{x}')
        a(f'v_exp_f32 v{t}, v{t}')
        a(f'v_add_f32 v{t}, 1.0, v{t}')
        a(f'v_min_f32 v{t}, 0x7f7fffff, v{t}')
        a(f'v_rcp_f32 v{t2}, v{t}')
        a(f'v_mul_f32 v{t3}, v{x}, v{t2}')
        a(f'v_fma_f32 v{x}, -v{t3}, v{t}, v{x}')
        a(f'v_fma_f32 v{x}, v{x}, v{t2}, v{t3}')
    def stamp(idx, sreg_srd, vtmp, stmp):
        if not stamps: return
        a(f's_memrealtime s[{stmp}:{stmp+1}]')
        a('s_waitcnt lgkmcnt(0)')
        a(f'v_mov_b32 v{vtmp}, s{stmp}')
        a(f'v_mov_b32 v{vtmp+1}, s{stmp+1}')
        a(f's_lshl_b32 s{stmp}, s2, 3')
        a(f's_add_u32 s{stmp}, s{stmp}, s3')
        a(f's_lshl_b32 s{stmp}, s{stmp}, 7')
        a(f's_add_u32 s{stmp}, s{stmp}, {WS_DBG + 0x100000 + idx*8}')
        a(f'v_mov_b32 v{vtmp+2}, 0')
        a(f'buffer_store_dwordx2 v[{vtmp}:{vtmp+1}], v{vtmp+2}, s[{sreg_srd}:{sreg_srd+3}], s{stmp} offen')

    a('s_cmp_ge_u32 s2, 256')
    a('s_cbranch_scc1 L_end')
    a('s_load_dwordx16 s[16:31], s[0:1], 0')
    a('s_load_dwordx8 s[32:39], s[0:1], 64')
    a('s_load_dwordx4 s[40:43], s[0:1], 96')
    a('v_lshrrev_b32 v1, 6, v0')
    a('v_readfirstlane_b32 s3, v1')
    a('v_and_b32 v0, 63, v0')
    a('v_lshlrev_b32 v1, 4, v0')
    a('s_cmp_ge_u32 s3, 4')
    a('s_cbranch_scc1 L_service')

    Q = 4; P = 8; ACC = 24; TMP = 32; VMAX = 40; VT0 = 41; VT1 = 42; PP0 = 43; PP1 = 44; VSC = 2; VI = 45; VG = 46; VT2 = 47; VT3 = 48
    RING = 64; EXA = 128; EXB = 192
    IS = 44; SOFF = 56; CNT = 57; BASE = 58; M1 = 60; M2 = 62; SELLO = 64; SELHI = 65; SCALE = 66; STMP = 68
    a('s_lshl_b32 s58, s2, 20')
    a('s_lshl_b32 s59, s3, 12')
    a('s_add_u32 s58, s58, s59')
    a('s_mov_b32 s56, s58')
    a(f's_mov_b32 s{M1}, 0xaaaaaaaa'); a(f's_mov_b32 s{M1+1}, 0xaaaaaaaa')
    a(f's_mov_b32 s{M2}, 0xcccccccc'); a(f's_mov_b32 s{M2+1}, 0xcccccccc')
    a(f's_mov_b32 s{SELLO}, 0x05040100'); a(f's_mov_b32 s{SELHI}, 0x07060302')
    a(f's_mov_b32 s{SCALE}, {f32(128 ** -0.5)}')
    a(f's_lshl_b32 s59, s3, 12')
    a(f's_add_u32 s59, s59, {L_SC}')
    a(f'v_lshlrev_b32 v{VSC}, 2, v0')
    a(f'v_add_u32 v{VSC}, s59, v{VSC}')
    a(f'v_and_b32 v{VI}, 15, v0')
    a(f'v_lshrrev_b32 v{VG}, 4, v0')
    a(f'v_mov_b32 v{VMAX}, 0xff800000')
    a('s_waitcnt lgkmcnt(0)')
    srd(IS, 18, 0x10000000)
    srd(48, 40, 256)
    srd(52, 42, WS_SIZE)
    stamp(0, 52, TMP, STMP)

    def issue(base, j):
        r = base + 4 * j
        a(f'buffer_load_dwordx4 v[{r}:{r+3}], v1, s[{IS}:{IS+3}], s{SOFF} offen offset:{(j % 4) * 1024} {kpol}')
        if j % 4 == 3:
            a(f's_add_u32 s{SOFF}, s{SOFF}, 16384')

    nst = 1 if stamps else 0
    n = 0
    for base in (EXA, EXB, RING):
        for j in range(16):
            if n == 8:
                a('s_barrier')
            if n >= W:
                a(f's_waitcnt vmcnt({W-1})')
            issue(base, j); n += 1
    a('s_barrier')
    a(f'v_lshlrev_b32 v{VT0}, 5, v{VI}')
    for w in range(4):
        a(f'ds_read_b128 v[{P+8*(w%2)}:{P+8*(w%2)+3}], v{VT0} offset:{L_QP + w*512}')
        a(f'ds_read_b128 v[{P+8*(w%2)+4}:{P+8*(w%2)+7}], v{VT0} offset:{L_QP + w*512 + 16}')
        if w == 1:
            a('s_waitcnt lgkmcnt(0)')
            for e in range(8): a(f'v_add_f32 v{ACC+e}, v{P+e}, v{P+8+e}')
    a('s_waitcnt lgkmcnt(0)')
    for e in range(8): a(f'v_add_f32 v{P+e}, v{P+e}, v{P+8+e}')
    for e in range(8): a(f'v_add_f32 v{ACC+e}, v{ACC+e}, v{P+e}')
    for c in range(4): a(f'v_cvt_pk_bf16_f32 v{Q+c}, v{ACC+2*c}, v{ACC+2*c+1}')
    if dbg:
        a(f's_lshl_b32 s{STMP}, s2, 8')
        a(f's_add_u32 s{STMP}, s{STMP}, {WS_DBG}')
        a(f'v_lshlrev_b32 v{VT0}, 4, v{VI}')
        a(f'buffer_store_dwordx4 v[{Q}:{Q+3}], v{VT0}, s[52:55], s{STMP} offen')
        a('s_waitcnt vmcnt(0)')
    stamp(1, 52, TMP, STMP)
    if stamps: a('s_waitcnt vmcnt(0)')

    def kbatch(base, reissue, wait, sc_off):
        def l1(j):
            a(f'v_add_f32_dpp v{P+j-1}, v{P+j-1}, v{P+j-1} row_ror:8 row_mask:0xf bank_mask:0x3')
            a(f'v_add_f32_dpp v{P+j-1}, v{P+j}, v{P+j} row_ror:8 row_mask:0xf bank_mask:0xc')
        def l2(q):
            x = P + 4*q; y = P + 4*q + 2
            a(f'v_add_f32_dpp v{x}, v{x}, v{x} row_shl:4 row_mask:0xf bank_mask:0x5')
            a(f'v_add_f32_dpp v{x}, v{y}, v{y} row_shr:4 row_mask:0xf bank_mask:0xa')
        for j in range(16):
            r = base + 4*j
            if wait is not None:
                a(f's_waitcnt vmcnt({wait})')
            a(f'v_dot2_f32_bf16 v{P+j}, v{r}, v{Q}, 0')
            for c in range(1, 4):
                a(f'v_dot2_f32_bf16 v{P+j}, v{r+c}, v{Q+c}, v{P+j}')
            if reissue: issue(base, j)
            if j >= 2 and j % 2 == 0: l1(j-1)
            if j >= 5 and j % 4 == 1: l2((j-5)//4)
        l1(15)
        l2(3)
        U = [P, P+4, P+8, P+12]
        for u in U: a(f'v_add_f32_dpp v{u}, v{u}, v{u} quad_perm:[2,3,0,1] row_mask:0xf bank_mask:0xf')
        a(f'v_cndmask_b32 v{U[0]}, v{U[0]}, v{U[1]}, s[{M2}:{M2+1}]')
        a(f'v_cndmask_b32 v{U[2]}, v{U[2]}, v{U[3]}, s[{M2}:{M2+1}]')
        for u in (U[0], U[2]): a(f'v_add_f32_dpp v{u}, v{u}, v{u} quad_perm:[1,0,3,2] row_mask:0xf bank_mask:0xf')
        a(f'v_cndmask_b32 v{VT0}, v{U[0]}, v{U[2]}, s[{M1}:{M1+1}]')
        rnd1(VT0, VT1)
        a(f'v_mul_f32 v{VT0}, s{SCALE}, v{VT0}')
        rnd1(VT0, VT1)
        a(f'v_max_f32 v{VMAX}, v{VMAX}, v{VT0}')
        a(f'ds_write_b32 v{VSC}, v{VT0} offset:{sc_off}')

    kbatch(RING, True, 15, 2*256)
    kbatch(EXA, False, None, 0)
    kbatch(EXB, False, None, 256)
    a(f'v_add_u32 v{VT2}, {3*256}, v{VSC}')
    a(f's_mov_b32 s{CNT}, 13')
    a.label('L_kloop')
    a(f's_cmp_eq_u32 s{CNT}, 1')
    a(f's_cselect_b32 s{IS}, s20, s{IS}')
    a(f's_cselect_b32 s{IS+1}, s21, s{IS+1}')
    a(f's_cselect_b32 s{SOFF}, s{BASE}, s{SOFF}')
    VSC_save = VSC
    VSC = VT2
    kbatch(RING, True, 15, 0)
    VSC = VSC_save
    a(f'v_add_u32 v{VT2}, 256, v{VT2}')
    a(f's_sub_u32 s{CNT}, s{CNT}, 1')
    a(f's_cmp_lg_u32 s{CNT}, 0')
    a('s_cbranch_scc1 L_kloop')
    for j in range(16): issue(EXA, j)
    stamp(2, 52, TMP, STMP) if False else None
    a('s_waitcnt lgkmcnt(0)')
    for t in range(0, 16, 2):
        a(f'ds_read2st64_b32 v[{P+t}:{P+t+1}], v{VSC} offset0:{t} offset1:{t+1}')
    wave_reduce('v_max_f32', [VMAX], [VT0])
    a('s_waitcnt lgkmcnt(0)')
    for t in range(16): a(f'v_sub_f32 v{P+t}, v{P+t}, v{VMAX}')
    for t in range(16): a(f'v_mul_f32 v{P+t}, {f32(L2E)}, v{P+t}')
    for t in range(16): a(f'v_exp_f32 v{P+t}, v{P+t}')
    for t in range(8): a(f'v_add_f32 v{TMP+t}, v{P+t}, v{P+8+t}')
    for t in range(4): a(f'v_add_f32 v{TMP+t}, v{TMP+t}, v{TMP+4+t}')
    for t in range(2): a(f'v_add_f32 v{TMP+t}, v{TMP+t}, v{TMP+2+t}')
    a(f'v_add_f32 v{VT0}, v{TMP}, v{TMP+1}')
    assert VT0 == VMAX + 1
    wave_reduce('v_add_f32', [VT0], [VT1])
    a(f's_lshl_b32 s59, s3, 3')
    a(f'v_mov_b32 v{VT1}, s59')
    a(f'ds_write_b64 v{VT1}, v[{VMAX}:{VMAX+1}] offset:{L_MX}')
    a('s_waitcnt lgkmcnt(0)')
    a('s_barrier')
    a(f'v_mov_b32 v{VT1}, 0')
    a(f'ds_read_b128 v[{TMP}:{TMP+3}], v{VT1} offset:{L_MX}')
    a(f'ds_read_b128 v[{TMP+4}:{TMP+7}], v{VT1} offset:{L_MX+16}')
    a('s_waitcnt lgkmcnt(0)')
    a(f'v_max_f32 v{VT1}, v{TMP}, v{TMP+2}')
    a(f'v_max3_f32 v{VT1}, v{VT1}, v{TMP+4}, v{TMP+6}')
    for k in range(4): a(f'v_sub_f32 v{TMP+2*k}, v{TMP+2*k}, v{VT1}')
    a(f'v_sub_f32 v{VT3}, v{VMAX}, v{VT1}')
    for k in range(4): a(f'v_mul_f32 v{TMP+2*k}, {f32(L2E)}, v{TMP+2*k}')
    a(f'v_mul_f32 v{VT3}, {f32(L2E)}, v{VT3}')
    for k in range(4): a(f'v_exp_f32 v{TMP+2*k}, v{TMP+2*k}')
    a(f'v_exp_f32 v{VT3}, v{VT3}')
    a(f'v_mul_f32 v{VT0}, v{TMP}, v{TMP+1}')
    for k in range(1, 4): a(f'v_fmac_f32 v{VT0}, v{TMP+2*k}, v{TMP+2*k+1}')
    a(f'v_rcp_f32 v{VT0}, v{VT0}')
    a(f'v_mul_f32 v{VT3}, v{VT3}, v{VT0}')
    for t in range(16): a(f'v_mul_f32 v{P+t}, v{P+t}, v{VT3}')
    for half in range(2):
        for t in range(8): a(f'v_mov_b32_dpp v{TMP+t}, v{P+8*half+t} row_ror:8 row_mask:0xf bank_mask:0xf')
        for t in range(8): a(f'v_cvt_pk_bf16_f32 v{P+8*half+t}, v{P+8*half+t}, v{TMP+t}')
    for t in range(0, 16, 2):
        a(f'ds_write2st64_b32 v{VSC}, v{P+t}, v{P+t+1} offset0:{t} offset1:{t+1}')
    for e in range(8): a(f'v_mov_b32 v{ACC+e}, 0')

    def bl(m): return 4*(m & 1) + 2*((m >> 1) & 1) + (m >> 2)
    def vbatch(base, reissue, waits, pp):
        for m in range(8):
            A = base + 8*m; Bq = A + 4
            if waits is not None:
                a(f's_waitcnt vmcnt({waits(m)})')
            for c in range(4):
                a(f'v_perm_b32 v{TMP+2*c}, v{Bq+c}, v{A+c}, s{SELLO}')
                a(f'v_perm_b32 v{TMP+2*c+1}, v{Bq+c}, v{A+c}, s{SELHI}')
            if reissue:
                issue(base, 2*m); issue(base, 2*m+1)
            for e in range(8):
                a(f'v_dot2c_f32_bf16_dpp v{ACC+e}, v{pp}, v{TMP+e} row_newbcast:{bl(m)} row_mask:0xf bank_mask:0xf')
    vbatch(RING, True, lambda m: 30, P+0)
    a('s_waitcnt vmcnt(16)')
    vbatch(EXA, False, None, P+1)
    a(f'v_add_u32 v{VT2}, {3*256}, v{VSC}')
    a(f'v_mov_b32 v{PP0}, v{P+2}')
    a(f's_mov_b32 s{CNT}, 13')
    a.label('L_vloop')
    a(f'ds_read_b32 v{PP1}, v{VT2}')
    a(f'v_add_u32 v{VT2}, 256, v{VT2}')
    vbatch(RING, True, lambda m: 14, PP0)
    a('s_waitcnt lgkmcnt(0)')
    a(f'v_mov_b32 v{PP0}, v{PP1}')
    a(f's_sub_u32 s{CNT}, s{CNT}, 1')
    a(f's_cmp_lg_u32 s{CNT}, 0')
    a('s_cbranch_scc1 L_vloop')
    extra = 0
    if gate:
        lab = a.uid('L_nogate')
        a('s_cmp_lg_u32 s3, 0')
        a(f's_cbranch_scc1 {lab}')
        a(f'v_mov_b32 v{VT0}, 1')
        a(f'v_mov_b32 v{VT1}, 0')
        a('s_mov_b64 exec, 1')
        a(f'buffer_atomic_add v{VT0}, v{VT1}, s[48:51], 0 offen')
        a('s_mov_b64 exec, -1')
        a.label(lab)
        extra = 1
    vbatch(RING, False, lambda m: 14 - 2*m, PP0)
    greduce8(ACC)
    a(f'v_lshlrev_b32 v{VT0}, 5, v{VI}')
    a(f'v_lshl_add_u32 v{VT0}, v{VG}, 3, v{VT0}')
    a(f's_lshl_b32 s59, s3, 9')
    a(f'v_add_u32 v{VT0}, s59, v{VT0}')
    a(f'ds_write_b64 v{VT0}, v[{ACC}:{ACC+1}] offset:{L_OP}')
    a('s_waitcnt lgkmcnt(0)')
    a('s_barrier')
    stamp(2, 52, TMP, STMP)
    a('s_endpgm')

    a.label('L_service')
    SX = 44; SW = 48; SWS = 52; SC = 56; SST = 60; SOUT = 64; SDBG = 68
    WV = 72
    SB = 73; SH = 74; T0 = 75; T1 = 76; T2 = 77; T3 = 78; TAG = 80; SPIN = 81; SELLO = 82; SELHI = 83; LO32 = 84; STGB = 86; T4 = 87; STMP = 88
    VI = 2; VG = 3; VA = 4; VB = 5; VC = 6; VD = 7
    GENV = 8
    XR = 12
    XP = 16
    CF = 20
    XF = 28
    MEAN = 36; DEN = 37; RDEN = 38; U0 = 39; U1 = 40; U2 = 41; U3 = 42; HP = 43
    ACC = 44
    D1 = 52; D2 = 56; D3 = 60; D4 = 64
    RD = 68
    BF = 76
    SPARE = 127
    WR = 128
    a(f's_sub_u32 s{WV}, s3, 4')
    a(f's_lshr_b32 s{SB}, s2, 5')
    a(f's_and_b32 s{SH}, s2, 31')
    a(f'v_and_b32 v{VI}, 15, v0')
    a(f'v_lshrrev_b32 v{VG}, 4, v0')
    a(f's_mov_b32 s{SELLO}, 0x05040100'); a(f's_mov_b32 s{SELHI}, 0x07060302')
    a(f's_mov_b32 s{LO32}, -1'); a(f's_mov_b32 s{LO32+1}, 0')
    a(f's_mul_i32 s{STGB}, s{WV}, {STGW}')
    a(f's_add_u32 s{STGB}, s{STGB}, {L_STG}')
    a(f'v_mov_b32 v{VA}, 0')
    a(f'ds_write_b32 v{VA}, v{VA} offset:{L_CNT}')
    a('s_waitcnt lgkmcnt(0)')
    srd(SX, 16, 8192); srd(SW, 22, 512*4096*2); srd(SWS, 42, WS_SIZE); srd(SC, 34, 8192)
    srd(SST, 36, 512*3072*2); srd(SOUT, 38, 8192); srd(SDBG, 40, 256)
    a(f'buffer_load_dword v{GENV}, v{VA}, s[{SWS}:{SWS+3}], 0 offen offset:{WS_GEN} sc1')
    a('s_cmp_ge_u32 s2, 192')
    a('s_cbranch_scc1 L_nomodload')
    a(f's_and_b32 s{T0}, s2, 7')
    a(f's_lshl_b32 s{T0}, s{T0}, 2')
    a(f's_lshr_b32 s{T1}, s2, 3')
    a(f's_and_b32 s{T1}, s{T1}, 3')
    a(f's_add_u32 s{T0}, s{T0}, s{T1}')
    a(f's_lshl_b32 s{T1}, s{SB}, 5')
    a(f's_add_u32 s{T1}, s{T1}, s{T0}')
    a(f's_lshl_b32 s{T1}, s{T1}, 5')
    a(f's_mul_i32 s{T2}, s{WV}, {128*6144}')
    a(f's_add_u32 s{T1}, s{T1}, s{T2}')
    a(f'v_and_b32 v{VA}, 7, v0')
    a(f'v_lshlrev_b32 v{VA}, 10, v{VA}')
    a(f'v_bfe_u32 v{VB}, v0, 3, 1')
    a(f'v_lshl_add_u32 v{VA}, v{VB}, 7, v{VA}')
    a(f'v_lshl_add_u32 v{VA}, v{VG}, 4, v{VA}')
    a(f's_lshl_b32 s{T2}, s{WV}, 8')
    a(f'buffer_load_dwordx4 v[{CF}:{CF+3}], v{VA}, s[{SC}:{SC+3}], s{T2} offen')
    a(f'buffer_load_dwordx4 v[{CF+4}:{CF+7}], v{VA}, s[{SC}:{SC+3}], s{T2} offen offset:64')
    a(f'v_lshrrev_b32 v{VB}, 1, v0')
    a(f'v_mul_u32_u24 v{VB}, 6144, v{VB}')
    a(f'v_and_b32 v{VC}, 1, v0')
    a(f'v_lshl_add_u32 v{VB}, v{VC}, 4, v{VB}')
    for s in range(4):
        a(f's_add_u32 m0, s{STGB}, {s*1024}')
        a(f'buffer_load_dwordx4 v{VB}, s[{SST}:{SST+3}], s{T1} offen {wpol} lds')
        if s < 3: a(f's_add_u32 s{T1}, s{T1}, {32*6144}')
    a.label('L_nomodload')
    a(f's_lshl_b32 s{T2}, s{SB}, 10')
    a(f'buffer_load_dwordx4 v[{XR}:{XR+3}], v1, s[{SX}:{SX+3}], s{T2} offen')
    a(f'v_lshlrev_b32 v{VA}, 4, v{VI}')
    a(f'v_lshl_add_u32 v{VA}, v{VG}, 2, v{VA}')
    a(f's_lshl_b32 s{T3}, s{WV}, 8')
    a(f's_add_u32 s{T2}, s{T2}, s{T3}')
    a(f'buffer_load_dword v{XP}, v{VA}, s[{SX}:{SX+3}], s{T2} offen')
    a(f'v_lshlrev_b32 v{VA}, 4, v{VI}')
    a(f'v_lshl_add_u32 v{VA}, v{VG}, 14, v{VA}')
    a(f's_lshl_b32 s{T2}, s{WV}, 20')
    a(f's_lshl_b32 s{T3}, s{SH}, 8')
    a(f's_add_u32 s{T2}, s{T2}, s{T3}')
    for j in range(32):
        r = WR + 4*j
        a(f'buffer_load_dwordx4 v[{r}:{r+3}], v{VA}, s[{SW}:{SW+3}], s{T2} offen {wpol}')
        if j < 31: a(f's_add_u32 s{T2}, s{T2}, {8192 if j % 2 == 0 else 7*8192}')
    a('s_barrier')
    a('s_cmp_ge_u32 s2, 192')
    a('s_cbranch_scc1 L_nomod')
    a('s_waitcnt vmcnt(38)')
    a(f'v_readfirstlane_b32 s{TAG}, v{GENV}')
    a(f's_add_u32 s{TAG}, s{TAG}, 0x5bd1e995')
    for r in range(8):
        unpack(XF, XF+1, CF+r)
        silu(XF, XF+2, XF+4, XF+6); silu(XF+1, XF+3, XF+5, XF+7)
        a(f'v_cvt_pk_bf16_f32 v{CF+r}, v{XF}, v{XF+1}')

    def tr_addr(v):
        a(f'v_lshrrev_b32 v{v}, 2, v{VI}')
        a(f'v_lshlrev_b32 v{v}, 5, v{v}')
        a(f'v_lshl_add_u32 v{v}, v{VG}, 8, v{v}')
        a(f'v_and_b32 v{VD}, 3, v{VI}')
        a(f'v_lshl_add_u32 v{v}, v{VD}, 3, v{v}')
        a(f'v_add_u32 v{v}, s{STGB}, v{v}')
    def tr_read(dst, v, ks):
        a(f'ds_read_b64_tr_b16 v[{dst}:{dst+1}], v{v} offset:{ks*1024}')
        a(f'ds_read_b64_tr_b16 v[{dst+2}:{dst+3}], v{v} offset:{ks*1024+128}')
    def mf(d, A, Bf, first):
        c = '0' if first else f'v[{d}:{d+3}]'
        a(f'v_mfma_f32_16x16x32_bf16 v[{d}:{d+3}], v[{A}:{A+3}], v[{Bf}:{Bf+3}], {c}')
    def sel_halves(dst, d1, d2):
        for r in range(4):
            a(f'v_cndmask_b32 v{dst+r}, v{d2+r}, v{d1+r}, s[{LO32}:{LO32+1}]')
    def red_addr(v):
        a(f'v_and_b32 v{v}, 7, v0')
        a(f'v_lshlrev_b32 v{v}, 5, v{v}')
        a(f'v_lshrrev_b32 v{VD}, 5, v0')
        a(f'v_lshl_add_u32 v{v}, v{VD}, 8, v{v}')
        a(f'v_bfe_u32 v{VD}, v0, 3, 2')
        a(f'v_lshl_add_u32 v{v}, v{VD}, 2, v{v}')
    def red_sum(dst, v, off, scratch):
        a(f'v_add_u32 v{VD}, {off}, v{v}')
        k = 0
        for w in range(4):
            for hf in range(2):
                o = (w*1024 + hf*512) // 4
                if o + 4 > 255:
                    pass
                k += 1
        for w in range(4):
            for hf in range(2):
                r = scratch + 2*(2*w + hf)
                a(f'ds_read2_b32 v[{r}:{r+1}], v{VD} offset0:{hf*128} offset1:{hf*128+4}')
            if w < 3: a(f'v_add_u32 v{VD}, 1024, v{VD}')
        a('s_waitcnt lgkmcnt(0)')
        for st in (8, 4):
            for k in range(st): a(f'v_add_f32 v{scratch+k}, v{scratch+k}, v{scratch+k+st}')
        a(f'v_add_f32 v{dst}, v{scratch}, v{scratch+2}')
        a(f'v_add_f32 v{dst+1}, v{scratch+1}, v{scratch+3}')

    tr_addr(VA)
    a('s_waitcnt vmcnt(34)')
    for s in range(4): tr_read(BF + 4*s, VA, s)
    a('s_waitcnt lgkmcnt(0)')
    mf(D1, CF, BF, True); mf(D2, CF, BF+8, True)
    mf(D1, CF+4, BF+4, False); mf(D2, CF+4, BF+12, False)
    sel_halves(RD, D1, D2)
    a(f's_lshl_b32 s{T2}, s{WV}, 10')
    a(f'v_add_u32 v{VB}, s{T2}, v1')
    a(f'ds_write_b128 v{VB}, v[{RD}:{RD+3}] offset:{L_RED}')
    a(f'v_mov_b32 v{VC}, 0')
    a(f'v_mov_b32 v{VB}, 1')
    a('s_mov_b64 exec, 1')
    a(f'ds_add_rtn_u32 v{VB}, v{VC}, v{VB} offset:{L_CNT}')
    a('s_mov_b64 exec, -1')
    a('s_waitcnt lgkmcnt(0)')
    a(f'v_readfirstlane_b32 s{T2}, v{VB}')
    a(f's_cmp_lg_u32 s{T2}, 3')
    a('s_cbranch_scc1 L_moddone')
    red_addr(VA)
    red_sum(U0, VA, L_RED, BF)
    a(f'v_cvt_pk_bf16_f32 v{RD}, v{U0}, v{U1}')
    a(f'v_mov_b32 v{RD+1}, s{TAG}')
    a(f's_lshl_b32 s{T2}, s{SB}, 2')
    a(f's_lshr_b32 s{T2}, 0x532410, s{T2}')
    a(f's_and_b32 s{T3}, s{T2}, 1')
    a(f's_lshl_b32 s{T3}, s{T3}, 3')
    a(f's_bfe_u32 s{T2}, s{T2}, 0x30001')
    a(f's_lshl_b32 s{T2}, s{T2}, 15')
    a(f's_add_u32 s{T2}, s{T2}, s{T3}')
    a(f's_lshl_b32 s{T3}, s{T0}, 7')
    a(f's_add_u32 s{T2}, s{T2}, s{T3}')
    a(f's_add_u32 s{T2}, s{T2}, {WS_MOD}')
    a(f'v_lshrrev_b32 v{VA}, 3, v0')
    a(f'v_lshlrev_b32 v{VA}, 12, v{VA}')
    a(f'v_and_b32 v{VB}, 7, v0')
    a(f'v_lshl_add_u32 v{VA}, v{VB}, 4, v{VA}')
    a(f'buffer_store_dwordx2 v[{RD}:{RD+1}], v{VA}, s[{SWS}:{SWS+3}], s{T2} offen sc1')
    a('s_branch L_moddone')
    a.label('L_nomod')
    a('s_waitcnt vmcnt(34)')
    a(f'v_readfirstlane_b32 s{TAG}, v{GENV}')
    a(f's_add_u32 s{TAG}, s{TAG}, 0x5bd1e995')
    a.label('L_moddone')
    a('s_waitcnt vmcnt(32)')

    def ln_stats(vals, mean, den, rden, t0, t1):
        R = len(vals)
        for r in range(R):
            v = vals[r]
            a(f'v_add_f32 v{mean[r]}, v{v[0]}, v{v[1]}')
            for k in range(2, len(v)): a(f'v_add_f32 v{mean[r]}, v{mean[r]}, v{v[k]}')
        wave_reduce('v_add_f32', mean, t0)
        for r in range(R): a(f'v_mul_f32 v{mean[r]}, {f32(1/512)}, v{mean[r]}')
        for r in range(R):
            v = vals[r]
            for k in range(len(v)):
                a(f'v_sub_f32 v{t0[r]}, v{v[k]}, v{mean[r]}')
                if k == 0: a(f'v_mul_f32 v{den[r]}, v{t0[r]}, v{t0[r]}')
                else: a(f'v_fmac_f32 v{den[r]}, v{t0[r]}, v{t0[r]}')
        wave_reduce('v_add_f32', den, t0)
        for r in range(R):
            a(f'v_mul_f32 v{den[r]}, {f32(1/512)}, v{den[r]}')
            rnd2(mean[r], den[r], t0[r])
            a(f'v_add_f32 v{den[r]}, {f32(1e-5)}, v{den[r]}')
            rnd1(den[r], t0[r])
            a(f'v_sqrt_f32 v{den[r]}, v{den[r]}')
            rnd1(den[r], t0[r])
            a(f'v_rcp_f32 v{rden[r]}, v{den[r]}')
    def ln_norm2(x, y, mean, den, rden, t0, t1, t2):
        a(f'v_sub_f32 v{x}, v{x}, v{mean}')
        a(f'v_sub_f32 v{y}, v{y}, v{mean}')
        rnd2(x, y, t0)
        a(f'v_mul_f32 v{t0}, v{x}, v{rden}')
        a(f'v_mul_f32 v{t1}, v{y}, v{rden}')
        a(f'v_fma_f32 v{x}, -v{t0}, v{den}, v{x}')
        a(f'v_fma_f32 v{y}, -v{t1}, v{den}, v{y}')
        a(f'v_fma_f32 v{x}, v{x}, v{rden}, v{t0}')
        a(f'v_fma_f32 v{y}, v{y}, v{rden}, v{t1}')
        rnd2(x, y, t0)
    def modulate2(x, y, c1pair, spair, t0, t1, t2, out):
        unpack(t0, t1, c1pair)
        a(f'v_mul_f32 v{x}, v{x}, v{t0}')
        a(f'v_mul_f32 v{y}, v{y}, v{t1}')
        rnd2(x, y, t2)
        unpack(t0, t1, spair)
        a(f'v_add_f32 v{x}, v{x}, v{t0}')
        a(f'v_add_f32 v{y}, v{y}, v{t1}')
        a(f'v_cvt_pk_bf16_f32 v{out}, v{x}, v{y}')
    def one_plus(pair, t0, t1):
        unpack(t0, t1, pair)
        a(f'v_add_f32 v{t0}, 1.0, v{t0}')
        a(f'v_add_f32 v{t1}, 1.0, v{t1}')
        a(f'v_cvt_pk_bf16_f32 v{pair}, v{t0}, v{t1}')

    for r in range(4): unpack(XF+2*r, XF+2*r+1, XR+r)
    ln_stats([[XF+k for k in range(8)]], [MEAN], [DEN], [RDEN], [U0], [U1])
    unpack(U2, U3, XP)
    ln_norm2(U2, U3, MEAN, DEN, RDEN, U0, U1, HP)

    def permute_weights(wait_fn):
        wmap = []
        free = SPARE
        for m in range(16):
            A = WR + 8*m; Bq = A + 4
            w = wait_fn(m)
            if w is not None: a(f's_waitcnt vmcnt({w})')
            row = [None]*8
            for c in range(4):
                a(f'v_perm_b32 v{free}, v{Bq+c}, v{A+c}, s{SELLO}')
                a(f'v_perm_b32 v{Bq+c}, v{Bq+c}, v{A+c}, s{SELHI}')
                row[2*c] = free; row[2*c+1] = Bq + c
                free = A + c
            wmap.append(row)
        return wmap, free
    def gemv(wmap, vec):
        for e in range(8): a(f'v_mov_b32 v{ACC+e}, 0')
        for m in range(16):
            for e in range(8):
                a(f'v_dot2c_f32_bf16_dpp v{ACC+e}, v{vec}, v{wmap[m][e]} row_newbcast:{m} row_mask:0xf bank_mask:0xf')
        greduce8(ACC)
    def poll(name, loads, tagregs, sleep=1, maskreg=None):
        a(f's_mov_b32 s{SPIN}, 0')
        a.label(name)
        for l in loads: a(l)
        a('s_waitcnt vmcnt(0)')
        a(f'v_xor_b32 v{VD}, s{TAG}, v{tagregs[0]}')
        for t in tagregs[1:]:
            a(f'v_bitop3_b32 v{VD}, v{t}, s{TAG}, v{VD} bitop3:0xbe')
        if maskreg is not None:
            a(f'v_and_b32 v{VD}, v{maskreg}, v{VD}')
        a(f'v_cmp_ne_u32 vcc, 0, v{VD}')
        a(f's_cbranch_vccz {name}_ok')
        a(f's_add_u32 s{SPIN}, s{SPIN}, 1')
        a(f's_cmp_lt_u32 s{SPIN}, {SPIN_MAX}')
        a(f's_cbranch_scc0 {name}_ok')
        if sleep: a(f's_sleep {sleep}')
        a(f's_branch {name}')
        a.label(name + '_ok')

    wmap, _ = permute_weights(lambda m: 30 - 2*m)
    a(f'v_lshlrev_b32 v{VA}, 6, v{VI}')
    a(f'v_lshl_add_u32 v{VA}, v{VG}, 4, v{VA}')
    a(f's_lshl_b32 s{T2}, s{SB}, 12')
    a(f's_lshl_b32 s{T3}, s{WV}, 10')
    a(f's_add_u32 s{T2}, s{T2}, s{T3}')
    a(f's_add_u32 s{T2}, s{T2}, {WS_MOD}')
    stamp(0, SWS, RD+4, STMP)
    poll('L_poll_sa', [f'buffer_load_dwordx4 v[{RD}:{RD+3}], v{VA}, s[{SWS}:{SWS+3}], s{T2} offen sc1'], [RD+1, RD+3])
    one_plus(RD+2, U0, U1)
    modulate2(U2, U3, RD+2, RD, U0, U1, VD, HP)
    gemv(wmap, HP)
    a(f'v_lshlrev_b32 v{VA}, 5, v{VI}')
    a(f'v_lshl_add_u32 v{VA}, v{VG}, 3, v{VA}')
    a(f's_lshl_b32 s{T2}, s{WV}, 9')
    a(f'v_add_u32 v{VB}, s{T2}, v{VA}')
    a(f'ds_write_b64 v{VB}, v[{ACC}:{ACC+1}] offset:{L_QP}')
    a('s_waitcnt lgkmcnt(0)')
    a('s_barrier')
    stamp(1, SWS, RD+4, STMP)

    srd(SW, 24, 4096*512*2)
    a(f'v_lshlrev_b32 v{VA}, 4, v{VI}')
    a(f'v_lshl_add_u32 v{VA}, v{VG}, 11, v{VA}')
    a(f's_lshl_b32 s{T2}, s{SH}, 17')
    a(f's_lshl_b32 s{T3}, s{WV}, 8')
    a(f's_add_u32 s{T2}, s{T2}, s{T3}')
    for j in range(32):
        r = WR + 4*j
        a(f'buffer_load_dwordx4 v[{r}:{r+3}], v{VA}, s[{SW}:{SW+3}], s{T2} offen offset:{(j%2)*1024} {wpol}')
        if j % 2 == 1 and j < 31: a(f's_add_u32 s{T2}, s{T2}, 8192')
    wmap, _ = permute_weights(lambda m: 30 - 2*m)
    a(f's_cmp_lt_u32 s2, {NF1}')
    a('s_cbranch_scc0 L_nof1w')
    a(f'v_lshrrev_b32 v{VB}, 1, v0')
    a(f'v_mul_u32_u24 v{VB}, 2752, v{VB}')
    a(f'v_and_b32 v{VC}, 1, v0')
    a(f'v_lshl_add_u32 v{VB}, v{VC}, 4, v{VB}')
    for which, p in enumerate((28, 30)):
        srd(SST, p, 512*1376*2)
        a(f's_mul_i32 s{T1}, s{WV}, {128*2752}')
        a(f's_lshl_b32 s{T2}, s2, 5')
        a(f's_add_u32 s{T1}, s{T1}, s{T2}')
        for s in range(4):
            a(f's_add_u32 m0, s{STGB}, {(which*4+s)*1024}')
            a(f'buffer_load_dwordx4 v{VB}, s[{SST}:{SST+3}], s{T1} offen {wpol} lds')
            if s < 3: a(f's_add_u32 s{T1}, s{T1}, {32*2752}')
    tr_addr(VA)
    a('s_waitcnt vmcnt(0)')
    for s in range(8): tr_read(BF + 4*s, VA, s)
    SBR = BF + 32; C1R = BF + 40
    G = 8
    a(f'v_lshlrev_b32 v{VA}, 5, v0')
    a(f's_lshl_b32 s{T2}, s{WV}, 13')
    a(f's_add_u32 s{T2}, s{T2}, {WS_MOD + 32768}')
    for rr in range(2):
        loads = []; tags = []
        for hf in range(2):
            for k in range(2):
                r = 8 + 4*(2*hf + k)
                loads.append(f'buffer_load_dwordx4 v[{r}:{r+3}], v{VA}, s[{SWS}:{SWS+3}], s{T2} offen offset:{hf*2048 + k*16} sc1')
                tags += [r+1, r+3]
        poll(f'L_poll_sb{rr}', loads, tags, sleep=8)
        for q in range(4):
            a(f'v_mov_b32 v{SBR+4*rr+q}, v{8+4*q}')
            one_plus(8+4*q+2, U0, U1)
            a(f'v_mov_b32 v{C1R+4*rr+q}, v{8+4*q+2}')
        if rr == 0: a(f's_add_u32 s{T2}, s{T2}, 4096')
    a('s_waitcnt lgkmcnt(0)')
    a('s_branch L_wdone')
    a.label('L_nof1w')
    a(f's_sub_u32 s{T0}, s2, {F2_BASE}')
    a(f's_cmp_lt_u32 s{T0}, 32')
    a('s_cbranch_scc0 L_wdone')
    srd(SST, 32, 1376*512*2)
    a(f'v_lshrrev_b32 v{VB}, 1, v0')
    a(f'v_lshlrev_b32 v{VB}, 10, v{VB}')
    a(f'v_and_b32 v{VC}, 1, v0')
    a(f'v_lshl_add_u32 v{VB}, v{VC}, 4, v{VB}')
    a(f's_mul_i32 s{T3}, s{WV}, 12')
    a(f's_lshl_b32 s{T2}, s{T0}, 5')
    for s in range(12):
        a(f's_add_u32 s{T1}, s{T3}, {s}')
        a(f's_min_u32 s{T1}, s{T1}, 42')
        a(f's_lshl_b32 s{T1}, s{T1}, 15')
        a(f's_add_u32 s{T1}, s{T1}, s{T2}')
        a(f's_add_u32 m0, s{STGB}, {s*1024}')
        a(f'buffer_load_dwordx4 v{VB}, s[{SST}:{SST+3}], s{T1} offen {wpol} lds')
    tr_addr(VA)
    a('s_waitcnt vmcnt(0)')
    for s in range(12): tr_read(BF + 4*s, VA, s)
    GBP = 125
    a(f'v_lshrrev_b32 v{VA}, 3, v0')
    a(f'v_lshlrev_b32 v{VA}, 12, v{VA}')
    a(f'v_and_b32 v{VB}, 7, v0')
    a(f'v_lshl_add_u32 v{VA}, v{VB}, 4, v{VA}')
    a(f's_lshl_b32 s{T2}, s{T0}, 7')
    a(f's_add_u32 s{T2}, s{T2}, {WS_MOD + 65536 + 8}')
    poll('L_poll_gb', [f'buffer_load_dwordx2 v[8:9], v{VA}, s[{SWS}:{SWS+3}], s{T2} offen sc1'], [9], sleep=8)
    a(f'v_mov_b32 v{GBP}, v8')
    a('s_waitcnt lgkmcnt(0)')
    a.label('L_wdone')
    GAP = 124; XR1 = 126
    a(f'v_and_b32 v{VB}, 7, v0')
    a(f'v_lshlrev_b32 v{VA}, 4, v{VB}')
    a(f's_lshl_b32 s{T2}, s{SB}, 12')
    a(f's_lshl_b32 s{T3}, s{SH}, 7')
    a(f's_add_u32 s{T2}, s{T2}, s{T3}')
    a(f's_add_u32 s{T2}, s{T2}, {WS_MOD + 65536}')
    poll('L_poll_ga', [f'buffer_load_dwordx2 v[8:9], v{VA}, s[{SWS}:{SWS+3}], s{T2} offen sc1'], [9], sleep=8)
    a(f'v_mov_b32 v{GAP}, v8')
    a(f'v_lshlrev_b32 v{VA}, 2, v{VB}')
    a(f's_lshl_b32 s{T2}, s{SB}, 10')
    a(f's_lshl_b32 s{T3}, s{SH}, 5')
    a(f's_add_u32 s{T2}, s{T2}, s{T3}')
    a(f'buffer_load_dword v{XR1}, v{VA}, s[{SX}:{SX+3}], s{T2} offen')
    a(f'v_lshlrev_b32 v{VA}, 5, v{VI}')
    a(f'v_lshl_add_u32 v{VA}, v{VG}, 3, v{VA}')
    a(f'v_lshrrev_b32 v{VB}, 1, v{VI}')
    a(f'v_lshlrev_b32 v{VB}, 12, v{VB}')
    a(f'v_and_b32 v{VC}, 1, v{VI}')
    a(f'v_lshl_add_u32 v{VB}, v{VC}, 6, v{VB}')
    a(f'v_lshl_add_u32 v{VB}, v{VG}, 4, v{VB}')
    a(f's_lshl_b32 s{T4}, s{SB}, 17')
    a(f's_lshl_b32 s{T3}, s{WV}, 15')
    a(f's_add_u32 s{T4}, s{T4}, s{T3}')
    a(f's_lshl_b32 s{T3}, s{SH}, 7')
    a(f's_add_u32 s{T4}, s{T4}, s{T3}')
    a(f's_add_u32 s{T4}, s{T4}, {WS_WOP}')
    a('s_waitcnt vmcnt(0)')
    a('s_barrier')
    a('s_barrier')
    for w in range(4):
        a(f'ds_read_b64 v[{RD+2*w}:{RD+2*w+1}], v{VA} offset:{L_OP + w*512}')
    a('s_waitcnt lgkmcnt(0)')
    for k in range(4): a(f'v_add_f32 v{RD+k}, v{RD+k}, v{RD+k+4}')
    for k in range(2): a(f'v_add_f32 v{RD+k}, v{RD+k}, v{RD+k+2}')
    a(f'v_cvt_pk_bf16_f32 v{HP}, v{RD}, v{RD+1}')
    if dbg:
        a(f's_lshl_b32 s{T2}, s2, 8')
        a(f's_add_u32 s{T2}, s{T2}, {WS_DBG + 0x10000}')
        a(f'v_lshrrev_b32 v{VC}, 1, v{VA}')
        a(f'buffer_store_dword v{HP}, v{VC}, s[{SWS}:{SWS+3}], s{T2} offen')
    gemv(wmap, HP)
    a(f'v_mov_b32 v{RD}, v{ACC}')
    a(f'v_mov_b32 v{RD+1}, s{TAG}')
    a(f'v_mov_b32 v{RD+2}, v{ACC+1}')
    a(f'v_mov_b32 v{RD+3}, s{TAG}')
    a(f'buffer_store_dwordx4 v[{RD}:{RD+3}], v{VB}, s[{SWS}:{SWS+3}], s{T4} offen sc1')
    stamp(2, SWS, 8, STMP)
    a(f's_cmp_lt_u32 s2, {NF1}')
    a('s_cbranch_scc1 L_gate')
    a(f's_sub_u32 s{T0}, s2, {F2_BASE}')
    a(f's_cmp_lt_u32 s{T0}, 32')
    a('s_cbranch_scc1 L_gate')
    a(f's_cmp_eq_u32 s{WV}, 0')
    a('s_cbranch_scc1 L_gate')
    a('s_endpgm')
    a.label('L_gate')
    if gate:
        a(f's_mov_b32 s{SPIN}, 0')
        a(f'v_mov_b32 v{VA}, 0')
        a.label('L_gate_poll')
        a(f'buffer_load_dword v8, v{VA}, s[{SDBG}:{SDBG+3}], 0 offen sc1')
        a('s_waitcnt vmcnt(0)')
        a(f'v_readfirstlane_b32 s{T2}, v8')
        a(f's_cmp_ge_u32 s{T2}, 256')
        a('s_cbranch_scc1 L_gate_ok')
        a(f's_add_u32 s{SPIN}, s{SPIN}, 1')
        a(f's_cmp_lt_u32 s{SPIN}, {SPIN_MAX}')
        a('s_cbranch_scc0 L_gate_ok')
        a('s_sleep 4')
        a('s_branch L_gate_poll')
        a.label('L_gate_ok')
    a(f's_cmp_lg_u32 s{WV}, 0')
    a('s_cbranch_scc1 L_r1done')
    a(f's_lshl_b32 s{T2}, s2, 12')
    a(f's_add_u32 s{T2}, s{T2}, {WS_WOP}')
    loads = [f'buffer_load_dwordx4 v[{8+4*j}:{8+4*j+3}], v1, s[{SWS}:{SWS+3}], s{T2} offen offset:{j*1024} sc1' for j in range(4)]
    poll('L_poll_wop', loads, [9, 11, 13, 15, 17, 19, 21, 23])
    for k, r in enumerate((8, 10)):
        a(f'v_add_f32 v{r}, v{r}, v{r+4}')
        a(f'v_add_f32 v{r+8}, v{r+8}, v{r+12}')
        a(f'v_add_f32 v{U0+k}, v{r}, v{r+8}')
    for k in range(2): a(f'v_add_f32_dpp v{U0+k}, v{U0+k}, v{U0+k} row_ror:8 row_mask:0xf bank_mask:0xf')
    for sw in ('v_permlane16_swap_b32', 'v_permlane32_swap_b32'):
        for k in range(2): a(f'v_mov_b32 v{U2+k}, v{U0+k}')
        for k in range(2): a(f'{sw} v{U0+k}, v{U2+k}')
        for k in range(2): a(f'v_add_f32 v{U0+k}, v{U0+k}, v{U2+k}')
    rnd2(U0, U1, VD)
    modulate2(U0, U1, GAP, XR1, U2, U3, VD, RD)
    a(f'v_mov_b32 v{RD+1}, s{TAG}')
    a(f'v_lshlrev_b32 v{VA}, 3, v0')
    a(f's_lshl_b32 s{T2}, s2, 6')
    a(f's_add_u32 s{T2}, s{T2}, {WS_X1}')
    a('s_mov_b64 exec, 0xff')
    a(f'buffer_store_dwordx2 v[{RD}:{RD+1}], v{VA}, s[{SWS}:{SWS+3}], s{T2} offen sc1')
    a('s_mov_b64 exec, -1')
    stamp(3, SWS, 8, STMP)
    a.label('L_r1done')
    a(f's_cmp_lt_u32 s2, {NF1}')
    a('s_cbranch_scc0 L_notf1')
    a(f's_lshl_b32 s{T2}, s{WV}, 12')
    a(f's_add_u32 s{T2}, s{T2}, {WS_X1}')
    loads = [f'buffer_load_dwordx4 v[{8+4*j}:{8+4*j+3}], v1, s[{SWS}:{SWS+3}], s{T2} offen offset:{j*1024} sc1' for j in range(4)]
    poll('L_poll_x1', loads, [9, 11, 13, 15, 17, 19, 21, 23])
    XV = WR
    for rr in range(2):
        for q in range(4):
            src = 8 + 4*(2*rr + q//2) + 2*(q % 2)
            unpack(XV + 8*rr + 2*q, XV + 8*rr + 2*q + 1, src)
    M_ = [WR+16, WR+17]; D_ = [WR+18, WR+19]; R_ = [WR+20, WR+21]; Ta = [WR+22, WR+23]; Tb = [WR+24, WR+25]; Tc = [WR+26, WR+27]
    ln_stats([[XV+8*rr+k for k in range(8)] for rr in range(2)], M_, D_, R_, Ta, Tb)
    HO = WR + 28
    for rr in range(2):
        for q in range(4):
            x = XV + 8*rr + 2*q
            ln_norm2(x, x+1, M_[rr], D_[rr], R_[rr], Ta[rr], Tb[rr], Tc[rr])
            modulate2(x, x+1, C1R+4*rr+q, SBR+4*rr+q, Ta[rr], Tb[rr], Tc[rr], HO+4*rr+q)
    a(f's_mul_i32 s{T2}, s{WV}, {2*H2S}')
    a(f'v_lshlrev_b32 v{VA}, 3, v0')
    a(f'v_add_u32 v{VA}, s{T2}, v{VA}')
    for rr in range(2):
        for hf in range(2):
            r = HO + 4*rr + 2*hf
            a(f'ds_write_b64 v{VA}, v[{r}:{r+1}] offset:{L_H2 + rr*H2S + hf*512}')
    a(f'v_and_b32 v{VA}, 7, v0')
    a(f'v_mul_u32_u24 v{VA}, {H2S}, v{VA}')
    a(f'v_bfe_u32 v{VB}, v0, 3, 1')
    a(f'v_lshl_add_u32 v{VA}, v{VB}, 7, v{VA}')
    a(f'v_lshl_add_u32 v{VA}, v{VG}, 4, v{VA}')
    a(f's_lshl_b32 s{T2}, s{WV}, 8')
    a(f'v_add_u32 v{VA}, s{T2}, v{VA}')
    a('s_waitcnt lgkmcnt(0)')
    a('s_barrier')
    a(f'ds_read_b128 v[{CF}:{CF+3}], v{VA} offset:{L_H2}')
    a(f'ds_read_b128 v[{CF+4}:{CF+7}], v{VA} offset:{L_H2+64}')
    a(f's_lshl_b32 s{T2}, s{WV}, 10')
    a(f'v_add_u32 v{VB}, s{T2}, v1')
    a('s_waitcnt lgkmcnt(0)')
    mf(D1, CF, BF, True); mf(D2, CF, BF+8, True); mf(D3, CF, BF+16, True); mf(D4, CF, BF+24, True)
    mf(D1, CF+4, BF+4, False); mf(D2, CF+4, BF+12, False); mf(D3, CF+4, BF+20, False); mf(D4, CF+4, BF+28, False)
    sel_halves(RD, D1, D2); sel_halves(RD+4, D3, D4)
    a(f'ds_write_b128 v{VB}, v[{RD}:{RD+3}] offset:{L_RED}')
    a(f'ds_write_b128 v{VB}, v[{RD+4}:{RD+7}] offset:{L_RED+4096}')
    a('s_waitcnt lgkmcnt(0)')
    a('s_barrier')
    a(f's_cmp_lg_u32 s{WV}, 0')
    a('s_cbranch_scc1 L_end')
    red_addr(VA)
    red_sum(U0, VA, L_RED, WR)
    red_sum(U2, VA, L_RED+4096, WR+16)
    rnd2(U0, U1, VD); rnd2(U2, U3, VD)
    silu(U0, VB, WR, WR+1); silu(U1, VC, WR+2, WR+3)
    rnd2(U0, U1, VD)
    a(f'v_mul_f32 v{U0}, v{U0}, v{U2}')
    a(f'v_mul_f32 v{U1}, v{U1}, v{U3}')
    a(f'v_cvt_pk_bf16_f32 v{RD}, v{U0}, v{U1}')
    a(f'v_mov_b32 v{RD+1}, s{TAG}')
    a(f'v_lshrrev_b32 v{VA}, 3, v0')
    a(f'v_mul_u32_u24 v{VA}, 5504, v{VA}')
    a(f'v_and_b32 v{VB}, 7, v0')
    a(f'v_lshl_add_u32 v{VA}, v{VB}, 3, v{VA}')
    a(f's_lshl_b32 s{T2}, s2, 6')
    a(f's_add_u32 s{T2}, s{T2}, {WS_ACT}')
    a(f'buffer_store_dwordx2 v[{RD}:{RD+1}], v{VA}, s[{SWS}:{SWS+3}], s{T2} offen sc1')
    stamp(4, SWS, 8, STMP)
    a('s_endpgm')
    a.label('L_notf1')
    a(f's_sub_u32 s{T0}, s2, {F2_BASE}')
    a(f's_cmp_lt_u32 s{T0}, 32')
    a('s_cbranch_scc0 L_end')
    a(f'v_and_b32 v{VA}, 7, v0')
    a(f'v_mul_u32_u24 v{VA}, 5504, v{VA}')
    a(f'v_lshl_add_u32 v{VA}, v{VG}, 5, v{VA}')
    a(f'v_bfe_u32 v{VB}, v0, 3, 1')
    a(f's_mul_i32 s{T3}, s{WV}, 12')
    a(f'v_add_u32 v{VB}, s{T3}, v{VB}')
    AD = 8
    VM = 14
    for u in range(6):
        a(f'v_add_u32 v{VC}, {2*u}, v{VB}')
        a(f'v_cmp_gt_u32 vcc, 43, v{VC}')
        a(f'v_cndmask_b32 v{VM+u}, 0, -1, vcc')
        a(f'v_min_u32 v{VC}, 42, v{VC}')
        a(f'v_lshl_add_u32 v{AD+u}, v{VC}, 7, v{VA}')
    a(f's_mov_b32 s{T2}, {WS_ACT}')
    loads = []; tags = []
    for u in range(6):
        for k in range(2):
            r = WR + 8*u + 4*k
            loads.append(f'buffer_load_dwordx4 v[{r}:{r+3}], v{AD+u}, s[{SWS}:{SWS+3}], s{T2} offen offset:{16*k} sc1')
            tags += [r+1, r+3]
    a(f'v_lshrrev_b32 v{U2}, 3, v0')
    a(f'v_lshlrev_b32 v{U2}, 11, v{U2}')
    a(f'v_and_b32 v{U3}, 7, v0')
    a(f'v_lshl_add_u32 v{U2}, v{U3}, 3, v{U2}')
    a(f's_lshl_b32 s{T1}, s{T0}, 6')
    a(f's_add_u32 s{T1}, s{T1}, {WS_X1}')
    X1R = WR + 48
    loads.append(f'buffer_load_dwordx2 v[{X1R}:{X1R+1}], v{U2}, s[{SWS}:{SWS+3}], s{T1} offen sc1')
    tags.append(X1R+1)
    poll('L_poll_act', loads, tags)
    AF = WR + 64
    for u in range(6):
        for k in range(4):
            a(f'v_and_b32 v{AF+4*u+k}, v{VM+u}, v{WR+8*u+2*k}')
    for u in range(6):
        mf(D1, AF+4*u, BF+8*u, u == 0); mf(D2, AF+4*u, BF+8*u+4, u == 0)
    sel_halves(RD, D1, D2)
    a(f's_lshl_b32 s{T2}, s{WV}, 10')
    a(f'v_add_u32 v{VB}, s{T2}, v1')
    a(f'ds_write_b128 v{VB}, v[{RD}:{RD+3}] offset:{L_RED}')
    a('s_waitcnt lgkmcnt(0)')
    a('s_barrier')
    a(f's_cmp_lg_u32 s{WV}, 0')
    a('s_cbranch_scc1 L_end')
    red_addr(VA)
    red_sum(U0, VA, L_RED, WR)
    rnd2(U0, U1, VD)
    modulate2(U0, U1, GBP, X1R, U2, U3, VD, RD)
    a(f'v_lshrrev_b32 v{VA}, 3, v0')
    a(f'v_lshlrev_b32 v{VA}, 10, v{VA}')
    a(f'v_and_b32 v{VB}, 7, v0')
    a(f'v_lshl_add_u32 v{VA}, v{VB}, 2, v{VA}')
    a(f's_lshl_b32 s{T2}, s{T0}, 5')
    a(f'buffer_store_dword v{RD}, v{VA}, s[{SOUT}:{SOUT+3}], s{T2} offen')
    stamp(5, SWS, 8, STMP)
    a(f's_cmp_lg_u32 s{T0}, 0')
    a('s_cbranch_scc1 L_end')
    a(f's_sub_u32 s{T2}, s{TAG}, {0x5bd1e995 - 1}')
    a(f'v_mov_b32 v{VB}, s{T2}')
    a(f'v_mov_b32 v{VA}, 0')
    a('s_mov_b64 exec, 1')
    a(f'buffer_store_dword v{VB}, v{VA}, s[{SWS}:{SWS+3}], 0 offen offset:{WS_GEN} sc1')
    a.label('L_end', fence=False)
    a('s_endpgm')
    a.raw('.section .rodata,"a"')
    a.raw('.p2align 6')
    a.raw(f'.amdhsa_kernel {NAME}')
    a.raw('  .amdhsa_next_free_vgpr 256')
    a.raw('  .amdhsa_next_free_sgpr 96')
    a.raw('  .amdhsa_accum_offset 256')
    a.raw('  .amdhsa_group_segment_fixed_size 0')
    a.raw('  .amdhsa_kernarg_size 112')
    a.raw('  .amdhsa_user_sgpr_count 2')
    a.raw('  .amdhsa_user_sgpr_kernarg_segment_ptr 1')
    a.raw('  .amdhsa_system_sgpr_workgroup_id_x 1')
    a.raw('  .amdhsa_float_denorm_mode_32 3')
    a.raw('.end_amdhsa_kernel')
    return a.text()

if __name__ == '__main__':
    import json
    out = sys.argv[1] if len(sys.argv) > 1 else 'adaLN_cond__mha_block_cached__swiglu_ffn__decode.s'
    kw = json.loads(sys.argv[2]) if len(sys.argv) > 2 else {}
    open(out, 'w').write(gen(**kw))
    print('wrote', out)
```

```python
import sys, struct
from asmlib import Asm

NAME = 'adaLN_cond__mha_block_cached__swiglu_ffn__decode_kernel'

def f32(x):
    return '0x%08x' % struct.unpack('<I', struct.pack('<f', x))[0]

L2E = 1.4426950408889634
WS_GEN = 0
WS_MOD = 0x1000
WS_X1 = 0x20000
WS_ACT = 0x28000
WS_HEAD = 0x38000
WS_WOP = 0x100000
WS_P = 0x200000
WS_SLOT = 0x800000
WS_DBG = 0x2000000
WS_SIZE = 0x40000000
L_CNT = 0x0
L_MX = 0x40
L_QP = 0x100
L_OP = 0x900
L_RED = 0x1100
L_H2 = 0x3100; H2S = 1040
L_SC = 0x5200
L_OS = 0x9200
L_STG = 0x9A00; STGW = 12288
LDS_SIZE = L_STG + 4 * STGW
NF1 = 86
F2_BASE = 96
SPIN_MAX = 100000
NSH = 32
TAGC = 0x5bd1e995

def gen(dbg=False, W=6, VW=4, W0=6, nA=4, kpol='nt', wpol='nt', stamps=False, gate=False, notail=False,
        gsleep=4, b0wq=0, sprio=2, mprio=3, boost=2, sboost=3, n0=0, WQ=32, SW_=2,
        wqpol=None, wopol=None, mpol=None, fpol=None, nopre=False, pre=None):
    wqpol = wpol if wqpol is None else wqpol; wopol = wpol if wopol is None else wopol
    mpol = wpol if mpol is None else mpol; fpol = wpol if fpol is None else fpol
    a = Asm()
    hdr = open('adaLN_cond__mha_block_cached__swiglu_ffn__decode.s.ref').read().split('\n')
    for l in hdr:
        if l.startswith('; @launch'): break
        a.raw(l)
    a.raw(f'; @launch grid=(256,1,1) block=(512,1,1) lds={LDS_SIZE}')
    a.raw('.amdgcn_target "amdgcn-amd-amdhsa--gfx950"')
    a.raw('.text')
    a.raw(f'.globl {NAME}')
    a.raw('.p2align 8')
    a.raw(f'.type {NAME},@function')
    a.raw(f'{NAME}:')

    def srd(d, p, size):
        a(f's_mov_b32 s{d}, s{p}')
        a(f's_mov_b32 s{d+1}, s{p+1}')
        a(f's_mov_b32 s{d+2}, {size}')
        a(f's_mov_b32 s{d+3}, 0x00020000')

    def rnd1(x, t):
        a(f'v_cvt_pk_bf16_f32 v{t}, v{x}, v{x}')
        a(f'v_lshlrev_b32 v{x}, 16, v{t}')
    def rnd2(x, y, t):
        a(f'v_cvt_pk_bf16_f32 v{t}, v{x}, v{y}')
        a(f'v_lshlrev_b32 v{x}, 16, v{t}')
        a(f'v_and_b32 v{y}, 0xffff0000, v{t}')
    def unpack(lo, hi, src):
        a(f'v_lshlrev_b32 v{lo}, 16, v{src}')
        a(f'v_and_b32 v{hi}, 0xffff0000, v{src}')
    def wave_reduce(op, regs, tmps):
        for ctl in ('quad_perm:[1,0,3,2]', 'quad_perm:[2,3,0,1]', 'row_half_mirror', 'row_mirror'):
            for r in regs:
                a(f'{op}_dpp v{r}, v{r}, v{r} {ctl} row_mask:0xf bank_mask:0xf')
        for sw in ('v_permlane16_swap_b32', 'v_permlane32_swap_b32'):
            for r, t in zip(regs, tmps): a(f'v_mov_b32 v{t}, v{r}')
            for r, t in zip(regs, tmps): a(f'{sw} v{r}, v{t}')
            for r, t in zip(regs, tmps): a(f'{op} v{r}, v{r}, v{t}')
    def greduce8(acc):
        for e in range(4): a(f'v_permlane32_swap_b32 v{acc+e}, v{acc+e+4}')
        for e in range(4): a(f'v_add_f32 v{acc+e}, v{acc+e}, v{acc+e+4}')
        for e in range(2): a(f'v_permlane16_swap_b32 v{acc+e}, v{acc+e+2}')
        for e in range(2): a(f'v_add_f32 v{acc+e}, v{acc+e}, v{acc+e+2}')
    def silu(x, t, t2, t3):
        a(f'v_mul_f32 v{t}, {f32(-L2E)}, v{x}')
        a(f'v_exp_f32 v{t}, v{t}')
        a(f'v_add_f32 v{t}, 1.0, v{t}')
        a(f'v_min_f32 v{t}, 0x7f7fffff, v{t}')
        a(f'v_rcp_f32 v{t2}, v{t}')
        a(f'v_mul_f32 v{t3}, v{x}, v{t2}')
        a(f'v_fma_f32 v{x}, -v{t3}, v{t}, v{x}')
        a(f'v_fma_f32 v{x}, v{x}, v{t2}, v{t3}')
    STP = 92
    def stamp(idx):
        if not stamps: return
        a(f's_memrealtime s[{STP}:{STP+1}]')
        a('s_waitcnt lgkmcnt(0)')
        a(f's_mov_b32 s{4+idx}, s{STP}')
    def finish(ws_srd, vt):
        if stamps:
            a('s_mov_b64 exec, -1')
            a(f'v_mov_b32 v{vt}, 0')
            for k in range(12):
                a(f'v_writelane_b32 v{vt}, s{4+k}, {k}')
            a(f's_lshl_b32 s{STP}, s2, 3')
            a(f's_add_u32 s{STP}, s{STP}, s3')
            a(f's_lshl_b32 s{STP}, s{STP}, 6')
            a(f's_add_u32 s{STP}, s{STP}, {WS_DBG + 0x100000}')
            a(f'v_lshlrev_b32 v{vt+1}, 2, v0')
            a('s_mov_b64 exec, 0xffff')
            a(f'buffer_store_dword v{vt}, v{vt+1}, s[{ws_srd}:{ws_srd+3}], s{STP} offen')
        a('s_endpgm')

    def mf(d, A, Bf, first):
        c = '0' if first else f'v[{d}:{d+3}]'
        a(f'v_mfma_f32_16x16x32_bf16 v[{d}:{d+3}], v[{A}:{A+3}], v[{Bf}:{Bf+3}], {c}')
    def tr_read(dst, v, ks):
        a(f'ds_read_b64_tr_b16 v[{dst}:{dst+1}], v{v} offset:{ks*1024}')
        a(f'ds_read_b64_tr_b16 v[{dst+2}:{dst+3}], v{v} offset:{ks*1024+128}')

    class Ctx:
        pass
    def tr_addr(c, v):
        a(f'v_lshrrev_b32 v{v}, 2, v{c.VI}')
        a(f'v_lshlrev_b32 v{v}, 5, v{v}')
        a(f'v_lshl_add_u32 v{v}, v{c.VG}, 8, v{v}')
        a(f'v_and_b32 v{c.VD}, 3, v{c.VI}')
        a(f'v_lshl_add_u32 v{v}, v{c.VD}, 3, v{v}')
        a(f'v_add_u32 v{v}, s{c.STGB}, v{v}')
    def sel_halves(c, dst, d1, d2):
        for r in range(4):
            a(f'v_cndmask_b32 v{dst+r}, v{d2+r}, v{d1+r}, s[{c.LO32}:{c.LO32+1}]')
    def red_addr(c, v):
        a(f'v_and_b32 v{v}, 7, v0')
        a(f'v_lshlrev_b32 v{v}, 5, v{v}')
        a(f'v_lshrrev_b32 v{c.VD}, 5, v0')
        a(f'v_lshl_add_u32 v{v}, v{c.VD}, 8, v{v}')
        a(f'v_bfe_u32 v{c.VD}, v0, 3, 2')
        a(f'v_lshl_add_u32 v{v}, v{c.VD}, 2, v{v}')
    def red_sum(c, dst, v, off, scratch):
        a(f'v_add_u32 v{c.VD}, {off}, v{v}')
        for w in range(4):
            for hf in range(2):
                r = scratch + 2*(2*w + hf)
                a(f'ds_read2_b32 v[{r}:{r+1}], v{c.VD} offset0:{hf*128} offset1:{hf*128+4}')
            if w < 3: a(f'v_add_u32 v{c.VD}, 1024, v{c.VD}')
        a('s_waitcnt lgkmcnt(0)')
        for st in (8, 4):
            for k in range(st): a(f'v_add_f32 v{scratch+k}, v{scratch+k}, v{scratch+k+st}')
        a(f'v_add_f32 v{dst}, v{scratch}, v{scratch+2}')
        a(f'v_add_f32 v{dst+1}, v{scratch+1}, v{scratch+3}')

    def mod_issue(c):
        a(f's_and_b32 s{c.T0}, s{c.WG}, 7')
        a(f's_lshl_b32 s{c.T0}, s{c.T0}, 2')
        a(f's_lshr_b32 s{c.T1}, s{c.WG}, 3')
        a(f's_and_b32 s{c.T1}, s{c.T1}, 3')
        a(f's_add_u32 s{c.T0}, s{c.T0}, s{c.T1}')
        a(f's_and_b32 s{c.T1}, s{c.WG}, 0xe0')
        a(f's_add_u32 s{c.T1}, s{c.T1}, s{c.T0}')
        a(f's_lshl_b32 s{c.T1}, s{c.T1}, 5')
        a(f's_mul_i32 s{c.T2}, s{c.WV}, {128*6144}')
        a(f's_add_u32 s{c.T1}, s{c.T1}, s{c.T2}')
        a(f'v_and_b32 v{c.VA}, 7, v0')
        a(f'v_lshlrev_b32 v{c.VA}, 10, v{c.VA}')
        a(f'v_bfe_u32 v{c.VB}, v0, 3, 1')
        a(f'v_lshl_add_u32 v{c.VA}, v{c.VB}, 7, v{c.VA}')
        a(f'v_lshl_add_u32 v{c.VA}, v{c.VG}, 4, v{c.VA}')
        a(f's_lshl_b32 s{c.T2}, s{c.WV}, 8')
        a(f'buffer_load_dwordx4 v[{c.CF}:{c.CF+3}], v{c.VA}, s[{c.SC}:{c.SC+3}], s{c.T2} offen')
        a(f'buffer_load_dwordx4 v[{c.CF+4}:{c.CF+7}], v{c.VA}, s[{c.SC}:{c.SC+3}], s{c.T2} offen offset:64')
        a(f'v_lshrrev_b32 v{c.VB}, 1, v0')
        a(f'v_mul_u32_u24 v{c.VB}, 6144, v{c.VB}')
        a(f'v_and_b32 v{c.VC}, 1, v0')
        a(f'v_lshl_add_u32 v{c.VB}, v{c.VC}, 4, v{c.VB}')
        for s in range(4):
            a(f's_add_u32 m0, s{c.STGB}, {s*1024}')
            if c.paced: a('s_waitcnt vmcnt(0)')
            a(f'buffer_load_dwordx4 v{c.VB}, s[{c.SM}:{c.SM+3}], s{c.T1} offen {mpol} lds')
            if s < 3: a(f's_add_u32 s{c.T1}, s{c.T1}, {32*6144}')
    def mod_compute(c, younger, cnt_off, done, st=None):
        a(f's_waitcnt vmcnt({younger + 4})')
        if st: stamp(st[0])
        if c.GENV is not None:
            a(f'v_readfirstlane_b32 s{c.TAG}, v{c.GENV}')
            a(f's_add_u32 s{c.TAG}, s{c.TAG}, {TAGC}')
        XF = c.XF
        for r in range(8):
            unpack(XF, XF+1, c.CF+r)
            silu(XF, XF+2, XF+4, XF+6); silu(XF+1, XF+3, XF+5, XF+7)
            a(f'v_cvt_pk_bf16_f32 v{c.CF+r}, v{XF}, v{XF+1}')
        tr_addr(c, c.VA)
        a(f's_waitcnt vmcnt({younger})')
        if st: stamp(st[1])
        BF = c.BF
        for s in range(4): tr_read(BF + 4*s, c.VA, s)
        a('s_waitcnt lgkmcnt(0)')
        mf(c.D1, c.CF, BF, True); mf(c.D2, c.CF, BF+8, True)
        mf(c.D1, c.CF+4, BF+4, False); mf(c.D2, c.CF+4, BF+12, False)
        sel_halves(c, c.RD, c.D1, c.D2)
        a(f's_lshl_b32 s{c.T2}, s{c.WV}, 10')
        a(f'v_add_u32 v{c.VB}, s{c.T2}, v1')
        a(f'ds_write_b128 v{c.VB}, v[{c.RD}:{c.RD+3}] offset:{L_RED}')
        a(f'v_mov_b32 v{c.VC}, 0')
        a(f'v_mov_b32 v{c.VB}, 1')
        a('s_mov_b64 exec, 1')
        a(f'ds_add_rtn_u32 v{c.VB}, v{c.VC}, v{c.VB} offset:{cnt_off}')
        a('s_mov_b64 exec, -1')
        a('s_waitcnt lgkmcnt(0)')
        a(f'v_readfirstlane_b32 s{c.T2}, v{c.VB}')
        a(f's_cmp_lg_u32 s{c.T2}, 3')
        a(f's_cbranch_scc1 {done}')
        red_addr(c, c.VA)
        red_sum(c, c.U0, c.VA, L_RED, BF)
        a(f'v_cvt_pk_bf16_f32 v{c.RD}, v{c.U0}, v{c.U0+1}')
        a(f'v_mov_b32 v{c.RD+1}, s{c.TAG}')
        a(f's_lshr_b32 s{c.T2}, s{c.WG}, 5')
        a(f's_lshl_b32 s{c.T2}, s{c.T2}, 2')
        a(f's_lshr_b32 s{c.T2}, 0x532410, s{c.T2}')
        a(f's_and_b32 s{c.T3}, s{c.T2}, 1')
        a(f's_lshl_b32 s{c.T3}, s{c.T3}, 3')
        a(f's_bfe_u32 s{c.T2}, s{c.T2}, 0x30001')
        a(f's_lshl_b32 s{c.T2}, s{c.T2}, 15')
        a(f's_add_u32 s{c.T2}, s{c.T2}, s{c.T3}')
        a(f's_lshl_b32 s{c.T3}, s{c.T0}, 7')
        a(f's_add_u32 s{c.T2}, s{c.T2}, s{c.T3}')
        a(f's_add_u32 s{c.T2}, s{c.T2}, {WS_MOD}')
        a(f'v_lshrrev_b32 v{c.VA}, 3, v0')
        a(f'v_lshlrev_b32 v{c.VA}, 12, v{c.VA}')
        a(f'v_and_b32 v{c.VB}, 7, v0')
        a(f'v_lshl_add_u32 v{c.VA}, v{c.VB}, 4, v{c.VA}')
        a(f'buffer_store_dwordx2 v[{c.RD}:{c.RD+1}], v{c.VA}, s[{c.SWS}:{c.SWS+3}], s{c.T2} offen sc1')

    a('s_cmp_ge_u32 s2, 256')
    a('s_cbranch_scc1 L_end')
    a('s_load_dwordx16 s[16:31], s[0:1], 0')
    a('s_load_dwordx8 s[32:39], s[0:1], 64')
    a('s_load_dwordx4 s[40:43], s[0:1], 96')
    if stamps:
        for k in range(12): a(f's_mov_b32 s{4+k}, 0')
    a('v_lshrrev_b32 v1, 6, v0')
    a('v_readfirstlane_b32 s3, v1')
    a('v_and_b32 v0, 63, v0')
    a('v_lshlrev_b32 v1, 4, v0')
    a('s_cmp_ge_u32 s3, 4')
    a('s_cbranch_scc1 L_service')

    Q = 4; Pq = 8; ACC = 24; TMP = 32; VMAX = 40; VT0 = 41; VT1 = 42; PP0 = 43; PP1 = 44; VSC = 2; VI = 45; VG = 46; VT2 = 47; VT3 = 48
    GENV = 3
    TK = 50; PN = 52; VPA = 54; VSA = 55; FL = 56; VZ = 60; VHA = 61
    RING = 64; EXA = 128; EXB = 192
    IS = 44; SWS = 52; SOFF = 56; CNT = 57; BASE = 58; M1 = 60; M2 = 62; SELLO = 64; SELHI = 65; SCALE = 66; TAG = 67
    SHD = 70; SLOTC = 71; SLOTN = 72; FIRST = 73; T0 = 74; T1 = 75; T2 = 76; T3 = 77; STGB = 78; SPIN = 79
    SC = 80; SM = 84; LO32 = 88
    HOME = 48; STEP = 49; QUIT = 50; ESPIN = 51
    P_ = Pq
    a('s_lshl_b32 s58, s2, 20')
    a('s_lshl_b32 s59, s3, 12')
    a('s_add_u32 s58, s58, s59')
    a('s_mov_b32 s56, s58')
    a(f'v_mov_b32 v{VZ}, 0')
    a(f'v_and_b32 v{VI}, 15, v0')
    a(f'v_lshrrev_b32 v{VG}, 4, v0')
    a(f's_mul_i32 s{STGB}, s3, {STGW}')
    a(f's_add_u32 s{STGB}, s{STGB}, {L_STG}')
    a('s_waitcnt lgkmcnt(0)')
    srd(SWS, 42, WS_SIZE)
    a(f'buffer_load_dword v{GENV}, v{VZ}, s[{SWS}:{SWS+3}], 0 offen offset:{WS_GEN} sc1')
    srd(IS, 18, 0x10000000)
    srd(SC, 34, 8192)
    srd(SM, 36, 512*3072*2)
    stamp(0)
    cs = Ctx()
    cs.VI = VI; cs.VG = VG; cs.VA = RING; cs.VB = RING+1; cs.VC = RING+2; cs.VD = RING+3
    cs.CF = RING+4; cs.XF = RING+12; cs.BF = RING+20; cs.D1 = RING+36; cs.D2 = RING+40; cs.RD = RING+44; cs.U0 = RING+48
    cs.T0 = T0; cs.T1 = T1; cs.T2 = T2; cs.T3 = T3; cs.WV = 3; cs.STGB = STGB; cs.SC = SC; cs.SM = SM; cs.SWS = SWS
    cs.LO32 = LO32; cs.TAG = TAG; cs.GENV = GENV; cs.WG = 2; cs.paced = False
    a('s_cmp_ge_u32 s2, 64')
    a('s_cbranch_scc1 L_s_noissue')
    if mprio: a(f's_setprio {mprio}')
    mod_issue(cs)
    a.label('L_s_noissue', fence=False)

    def issue(base, j):
        r = base + 4 * j
        a(f'buffer_load_dwordx4 v[{r}:{r+3}], v1, s[{IS}:{IS+3}], s{SOFF} offen offset:{(j % 4) * 1024} {kpol}')
        if j % 4 == 3:
            a(f's_add_u32 s{SOFF}, s{SOFF}, 16384')

    seq = [(base, j) for base in (EXA, EXB, RING) for j in range(16)]
    for n in range(nA): issue(*seq[n])
    a(f's_mov_b32 s{M1}, 0xaaaaaaaa'); a(f's_mov_b32 s{M1+1}, 0xaaaaaaaa')
    a(f's_mov_b32 s{M2}, 0xcccccccc'); a(f's_mov_b32 s{M2+1}, 0xcccccccc')
    a(f's_mov_b32 s{SELLO}, 0x05040100'); a(f's_mov_b32 s{SELHI}, 0x07060302')
    a(f's_mov_b32 s{SCALE}, {f32(128 ** -0.5)}')
    a(f's_mov_b32 s{LO32}, -1'); a(f's_mov_b32 s{LO32+1}, 0')
    a(f's_lshl_b32 s59, s3, 12')
    a(f's_add_u32 s59, s59, {L_SC}')
    a(f'v_lshlrev_b32 v{VSC}, 2, v0')
    a(f'v_add_u32 v{VSC}, s59, v{VSC}')
    a(f'v_mov_b32 v{VMAX}, 0xff800000')
    a('s_barrier')
    a('s_cmp_ge_u32 s2, 64')
    a('s_cbranch_scc1 L_s_moddone')
    mod_compute(cs, nA, L_CNT, 'L_s_moddone', st=(3, 4))
    a.label('L_s_moddone')
    if mprio: a('s_setprio 0')
    stamp(5)
    for n in range(nA, 48):
        Wn = W0 if n < n0 else W
        if n >= Wn and n < 48 - boost:
            a(f's_waitcnt vmcnt({Wn-1})')
        issue(*seq[n])
    a(f'v_readfirstlane_b32 s{TAG}, v{GENV}')
    a(f's_add_u32 s{TAG}, s{TAG}, {TAGC}')
    stamp(6)
    a('s_barrier')
    a(f'v_lshlrev_b32 v{VT0}, 5, v{VI}')
    for w in range(4):
        a(f'ds_read_b128 v[{P_+8*(w%2)}:{P_+8*(w%2)+3}], v{VT0} offset:{L_QP + w*512}')
        a(f'ds_read_b128 v[{P_+8*(w%2)+4}:{P_+8*(w%2)+7}], v{VT0} offset:{L_QP + w*512 + 16}')
        if w == 1:
            a('s_waitcnt lgkmcnt(0)')
            for e in range(8): a(f'v_add_f32 v{ACC+e}, v{P_+e}, v{P_+8+e}')
    a('s_waitcnt lgkmcnt(0)')
    for e in range(8): a(f'v_add_f32 v{P_+e}, v{P_+e}, v{P_+8+e}')
    for e in range(8): a(f'v_add_f32 v{ACC+e}, v{ACC+e}, v{P_+e}')
    for c in range(4): a(f'v_cvt_pk_bf16_f32 v{Q+c}, v{ACC+2*c}, v{ACC+2*c+1}')
    if dbg:
        a(f's_lshl_b32 s{T0}, s2, 8')
        a(f's_add_u32 s{T0}, s{T0}, {WS_DBG}')
        a(f'v_lshlrev_b32 v{VT0}, 4, v{VI}')
        a(f'buffer_store_dwordx4 v[{Q}:{Q+3}], v{VT0}, s[{SWS}:{SWS+3}], s{T0} offen')
        a('s_waitcnt vmcnt(0)')
    stamp(1)

    def ksteps(base, PB, reissue, wait, vsc, sc_off, t0, t1):
        def l1(j):
            a(f'v_add_f32_dpp v{PB+j-1}, v{PB+j-1}, v{PB+j-1} row_ror:8 row_mask:0xf bank_mask:0x3')
            a(f'v_add_f32_dpp v{PB+j-1}, v{PB+j}, v{PB+j} row_ror:8 row_mask:0xf bank_mask:0xc')
        def l2(q):
            x = PB + 4*q; y = PB + 4*q + 2
            a(f'v_add_f32_dpp v{x}, v{x}, v{x} row_shl:4 row_mask:0xf bank_mask:0x5')
            a(f'v_add_f32_dpp v{x}, v{y}, v{y} row_shr:4 row_mask:0xf bank_mask:0xa')
        def step(j):
            r = base + 4*j
            if wait is not None:
                a(f's_waitcnt vmcnt({wait})')
            a(f'v_dot2_f32_bf16 v{PB+j}, v{r}, v{Q}, 0')
            for c in range(1, 4):
                a(f'v_dot2_f32_bf16 v{PB+j}, v{r+c}, v{Q+c}, v{PB+j}')
            if reissue: issue(base, j)
            if j >= 2 and j % 2 == 0: l1(j-1)
            if j >= 5 and j % 4 == 1: l2((j-5)//4)
        def epi():
            l1(15)
            l2(3)
            U = [PB, PB+4, PB+8, PB+12]
            for u in U: a(f'v_add_f32_dpp v{u}, v{u}, v{u} quad_perm:[2,3,0,1] row_mask:0xf bank_mask:0xf')
            a(f'v_cndmask_b32 v{U[0]}, v{U[0]}, v{U[1]}, s[{M2}:{M2+1}]')
            a(f'v_cndmask_b32 v{U[2]}, v{U[2]}, v{U[3]}, s[{M2}:{M2+1}]')
            for u in (U[0], U[2]): a(f'v_add_f32_dpp v{u}, v{u}, v{u} quad_perm:[1,0,3,2] row_mask:0xf bank_mask:0xf')
            a(f'v_cndmask_b32 v{t0}, v{U[0]}, v{U[2]}, s[{M1}:{M1+1}]')
            rnd1(t0, t1)
            a(f'v_mul_f32 v{t0}, s{SCALE}, v{t0}')
            rnd1(t0, t1)
            a(f'v_max_f32 v{VMAX}, v{VMAX}, v{t0}')
            a(f'ds_write_b32 v{vsc}, v{t0} offset:{sc_off}')
        return [lambda j=j: step(j) for j in range(16)] + [epi]
    P2 = ACC
    for it, ex in enumerate((EXA, EXB)):
        s1 = ksteps(RING, P_, True, W-1, VSC, (2+it)*256, VT0, VT1)
        s2 = ksteps(ex, P2, False, None, VSC, it*256, PP0, PP1)
        for j in range(16):
            s1[j](); s2[j]()
        s1[16](); s2[16]()
    a(f'v_add_u32 v{VT2}, {4*256}, v{VSC}')
    a(f's_mov_b32 s{CNT}, 12')
    a.label('L_kloop')
    a(f's_cmp_eq_u32 s{CNT}, 1')
    a(f's_cselect_b32 s{IS}, s20, s{IS}')
    a(f's_cselect_b32 s{IS+1}, s21, s{IS+1}')
    a(f's_cselect_b32 s{SOFF}, s{BASE}, s{SOFF}')
    for f in ksteps(RING, P_, True, W-1, VT2, 0, VT0, VT1): f()
    a(f'v_add_u32 v{VT2}, 256, v{VT2}')
    a(f's_sub_u32 s{CNT}, s{CNT}, 1')
    a(f's_cmp_lg_u32 s{CNT}, 0')
    a('s_cbranch_scc1 L_kloop')
    stamp(7)
    vq = [(EXA, j) for j in range(16)] + [(EXB, j) for j in range(16)]
    def pi(n=1, paced=True):
        for _ in range(n):
            if not vq: return
            if paced: a(f's_waitcnt vmcnt({W-1})')
            issue(*vq.pop(0))
    pi()
    a('s_waitcnt lgkmcnt(0)')
    for t in range(0, 16, 2):
        a(f'ds_read2st64_b32 v[{P_+t}:{P_+t+1}], v{VSC} offset0:{t} offset1:{t+1}')
    wave_reduce('v_max_f32', [VMAX], [VT0])
    pi()
    a('s_waitcnt lgkmcnt(0)')
    for t in range(16): a(f'v_sub_f32 v{P_+t}, v{P_+t}, v{VMAX}')
    for t in range(16): a(f'v_mul_f32 v{P_+t}, {f32(L2E)}, v{P_+t}')
    pi()
    for t in range(16): a(f'v_exp_f32 v{P_+t}, v{P_+t}')
    pi()
    for t in range(8): a(f'v_add_f32 v{TMP+t}, v{P_+t}, v{P_+8+t}')
    for t in range(4): a(f'v_add_f32 v{TMP+t}, v{TMP+t}, v{TMP+4+t}')
    for t in range(2): a(f'v_add_f32 v{TMP+t}, v{TMP+t}, v{TMP+2+t}')
    a(f'v_add_f32 v{VT0}, v{TMP}, v{TMP+1}')
    assert VT0 == VMAX + 1
    wave_reduce('v_add_f32', [VT0], [VT1])
    a(f's_lshl_b32 s59, s3, 3')
    a(f'v_mov_b32 v{VT1}, s59')
    a(f'ds_write_b64 v{VT1}, v[{VMAX}:{VMAX+1}] offset:{L_MX}')
    a(f'v_mov_b32 v{VT1}, 1')
    a('s_waitcnt lgkmcnt(0)')
    a('s_mov_b64 exec, 1')
    a(f'ds_add_u32 v{VZ}, v{VT1} offset:{L_CNT+12}')
    a('s_mov_b64 exec, -1')
    pi(12)
    pi(sboost, paced=False)
    a(f's_mov_b32 s{SPIN}, 0')
    a.label('L_b2')
    a(f'ds_read_b32 v{VT1}, v{VZ} offset:{L_CNT+12}')
    a('s_waitcnt lgkmcnt(0)')
    a(f'v_readfirstlane_b32 s{T0}, v{VT1}')
    a(f's_cmp_ge_u32 s{T0}, 4')
    a('s_cbranch_scc1 L_b2_ok')
    a(f's_add_u32 s{SPIN}, s{SPIN}, 1')
    a(f's_cmp_lt_u32 s{SPIN}, {SPIN_MAX*8}')
    a('s_cbranch_scc0 L_b2_ok')
    a('s_sleep 1')
    a('s_branch L_b2')
    a.label('L_b2_ok')
    a(f'ds_read_b128 v[{TMP}:{TMP+3}], v{VZ} offset:{L_MX}')
    a(f'ds_read_b128 v[{TMP+4}:{TMP+7}], v{VZ} offset:{L_MX+16}')
    a('s_waitcnt lgkmcnt(0)')
    a(f'v_max_f32 v{VT1}, v{TMP}, v{TMP+2}')
    a(f'v_max3_f32 v{VT1}, v{VT1}, v{TMP+4}, v{TMP+6}')
    for k in range(4): a(f'v_sub_f32 v{TMP+2*k}, v{TMP+2*k}, v{VT1}')
    a(f'v_sub_f32 v{VT3}, v{VMAX}, v{VT1}')
    for k in range(4): a(f'v_mul_f32 v{TMP+2*k}, {f32(L2E)}, v{TMP+2*k}')
    a(f'v_mul_f32 v{VT3}, {f32(L2E)}, v{VT3}')
    for k in range(4): a(f'v_exp_f32 v{TMP+2*k}, v{TMP+2*k}')
    a(f'v_exp_f32 v{VT3}, v{VT3}')
    a(f'v_mul_f32 v{VT0}, v{TMP}, v{TMP+1}')
    for k in range(1, 4): a(f'v_fmac_f32 v{VT0}, v{TMP+2*k}, v{TMP+2*k+1}')
    a(f'v_rcp_f32 v{VT0}, v{VT0}')
    a(f'v_mul_f32 v{VT3}, v{VT3}, v{VT0}')
    pi()
    for t in range(16): a(f'v_mul_f32 v{P_+t}, v{P_+t}, v{VT3}')
    for half in range(2):
        for t in range(8): a(f'v_mov_b32_dpp v{TMP+t}, v{P_+8*half+t} row_ror:8 row_mask:0xf bank_mask:0xf')
        for t in range(8): a(f'v_cvt_pk_bf16_f32 v{P_+8*half+t}, v{P_+8*half+t}, v{TMP+t}')
        pi()
    for t in range(4, 16, 2):
        a(f'ds_write2st64_b32 v{VSC}, v{P_+t}, v{P_+t+1} offset0:{t} offset1:{t+1}')
    for e in range(8): a(f'v_mov_b32 v{ACC+e}, 0')

    def bl(m): return 4*(m & 1) + 2*((m >> 1) & 1) + (m >> 2)
    def vstep(base, m, reissue, wait, pp, mid=None):
        A = base + 8*m; Bq = A + 4
        if wait is not None:
            a(f's_waitcnt vmcnt({wait})')
        for c in range(4):
            a(f'v_perm_b32 v{TMP+2*c}, v{Bq+c}, v{A+c}, s{SELLO}')
            a(f'v_perm_b32 v{TMP+2*c+1}, v{Bq+c}, v{A+c}, s{SELHI}')
        if reissue:
            issue(base, 2*m); issue(base, 2*m+1)
        if mid: mid()
        for e in range(8):
            a(f'v_dot2c_f32_bf16_dpp v{ACC+e}, v{pp}, v{TMP+e} row_newbcast:{bl(m)} row_mask:0xf bank_mask:0xf')
    def static_flush():
        a(f'v_lshlrev_b32 v{VT0}, 5, v{VI}')
        a(f'v_lshl_add_u32 v{VT0}, v{VG}, 3, v{VT0}')
        a(f's_lshl_b32 s59, s3, 9')
        a(f'v_add_u32 v{VT0}, s59, v{VT0}')
        a(f'ds_write_b64 v{VT0}, v[{ACC}:{ACC+1}] offset:{L_OP}')
        a(f'v_mov_b32 v{VT1}, 1')
        a('s_waitcnt lgkmcnt(0)')
        a('s_mov_b64 exec, 1')
        a(f'ds_add_u32 v{VZ}, v{VT1} offset:{L_CNT+8}')
        a('s_mov_b64 exec, -1')
        stamp(8)

    nleft = len(vq)
    assert 1 <= nleft <= 16, nleft
    for m in range(8):
        k = (nleft*(m+1))//8 - (nleft*m)//8
        if m == 0: a(f's_waitcnt vmcnt({16 - nleft})')
        vstep(EXA, m, False, None, P_+1, mid=(lambda k=k: pi(k)))
    assert not vq
    for m in range(8): vstep(RING, m, True, VW, P_+0)
    a(f'v_add_u32 v{VT2}, {5*256}, v{VSC}')
    for m in range(8):
        vstep(RING, m, True, VW, P_+3)
        vstep(EXB, m, False, None, P_+2)
    a(f'v_mov_b32 v{PP0}, v{P_+4}')
    a(f's_mov_b32 s{CNT}, 11')
    a.label('L_vloop')
    a(f'ds_read_b32 v{PP1}, v{VT2}')
    a(f'v_add_u32 v{VT2}, 256, v{VT2}')
    for m in range(8): vstep(RING, m, True, VW, PP0)
    a('s_waitcnt lgkmcnt(0)')
    a(f'v_mov_b32 v{PP0}, v{PP1}')
    a(f's_sub_u32 s{CNT}, s{CNT}, 1')
    a(f's_cmp_lg_u32 s{CNT}, 0')
    a('s_cbranch_scc1 L_vloop')
    for m in range(8): vstep(RING, m, False, 14 - 2*m, PP0)
    greduce8(ACC)
    static_flush()
    if gate:
        lab = a.uid('L_nogate')
        a('s_cmp_lg_u32 s3, 0')
        a(f's_cbranch_scc1 {lab}')
        srd(SC, 40, 256)
        a('s_mov_b64 exec, 1')
        a(f'buffer_atomic_add v{VT1}, v{VZ}, s[{SC}:{SC+3}], 0 offen')
        a('s_mov_b64 exec, -1')
        a.label(lab)
    a('s_waitcnt lgkmcnt(0)')
    stamp(2)
    finish(SWS, TMP)

    a.label('L_service')
    SX = 44; SW = 48; SWS = 52; SC = 56; SST = 60; SOUT = 64; SDBG = 68
    WV = 72
    SB = 73; SH = 74; T0 = 75; T1 = 76; T2 = 77; T3 = 78; TAG = 80; SPIN = 81; SELLO = 82; SELHI = 83; LO32 = 84; STGB = 86; T4 = 87
    F1T = 88; F2T = 89; T5 = 90; T6 = 91
    VI = 2; VG = 3; VA = 4; VB = 5; VC = 6; VD = 7
    GENV = 8
    XR = 12; XP = 16; CF = 20; XF = 28
    MEAN = 36; DEN = 37; RDEN = 38; U0 = 39; U1 = 40; U2 = 41; U3 = 42; HP = 43
    ACC = 44
    D1 = 52; D2 = 56; D3 = 60; D4 = 64
    RD = 68
    BF = 76
    SPARE = 127
    WR = 128
    cv = Ctx()
    cv.VI = VI; cv.VG = VG; cv.VA = VA; cv.VB = VB; cv.VC = VC; cv.VD = VD
    cv.CF = CF; cv.XF = XF; cv.BF = BF; cv.D1 = D1; cv.D2 = D2; cv.RD = RD; cv.U0 = U0
    cv.T0 = T0; cv.T1 = T1; cv.T2 = T2; cv.T3 = T3; cv.WV = WV; cv.STGB = STGB; cv.SC = SC; cv.SM = SST; cv.SWS = SWS
    cv.LO32 = LO32; cv.TAG = TAG; cv.GENV = None; cv.WG = T4; cv.paced = SW_ < 8
    if sprio: a(f's_setprio {sprio}')
    a(f's_sub_u32 s{WV}, s3, 4')
    a(f's_lshr_b32 s{SB}, s2, 5')
    a(f's_and_b32 s{SH}, s2, 31')
    a(f's_and_b32 s{T0}, s2, 7')
    a(f's_lshr_b32 s{T1}, s2, 3')
    a(f's_mul_i32 s{F1T}, s{T0}, 11')
    a(f's_add_u32 s{F1T}, s{F1T}, s{T1}')
    a(f's_cmp_lt_u32 s2, 88')
    a(f's_cselect_b32 s{F1T}, s{F1T}, 255')
    a(f's_lshl_b32 s{F2T}, s{T0}, 2')
    a(f's_add_u32 s{F2T}, s{F2T}, s{T1}')
    a(f's_sub_u32 s{F2T}, s{F2T}, {F2_BASE//8}')
    a(f's_sub_u32 s{T1}, s2, {F2_BASE}')
    a(f's_cmp_lt_u32 s{T1}, 32')
    a(f's_cselect_b32 s{F2T}, s{F2T}, 255')
    a(f'v_and_b32 v{VI}, 15, v0')
    a(f'v_lshrrev_b32 v{VG}, 4, v0')
    a(f'v_mov_b32 v{VA}, 0')
    a(f'v_lshlrev_b32 v{VB}, 2, v{VI}')
    a(f'ds_write_b32 v{VB}, v{VA} offset:{L_CNT}')
    a(f's_mov_b32 s{SELLO}, 0x05040100'); a(f's_mov_b32 s{SELHI}, 0x07060302')
    a(f's_mov_b32 s{LO32}, -1'); a(f's_mov_b32 s{LO32+1}, 0')
    a(f's_mul_i32 s{STGB}, s{WV}, {STGW}')
    a(f's_add_u32 s{STGB}, s{STGB}, {L_STG}')
    a('s_waitcnt lgkmcnt(0)')
    srd(SWS, 42, WS_SIZE); srd(SX, 16, 8192); srd(SW, 22, 512*4096*2)
    a(f'buffer_load_dword v{GENV}, v{VA}, s[{SWS}:{SWS+3}], 0 offen offset:{WS_GEN} sc1')
    a(f's_lshl_b32 s{T2}, s{SB}, 10')
    a(f'buffer_load_dwordx4 v[{XR}:{XR+3}], v1, s[{SX}:{SX+3}], s{T2} offen')
    a(f'v_lshlrev_b32 v{VA}, 4, v{VI}')
    a(f'v_lshl_add_u32 v{VA}, v{VG}, 2, v{VA}')
    a(f's_lshl_b32 s{T3}, s{WV}, 8')
    a(f's_add_u32 s{T2}, s{T2}, s{T3}')
    a(f'buffer_load_dword v{XP}, v{VA}, s[{SX}:{SX+3}], s{T2} offen')
    a(f'v_lshlrev_b32 v{VA}, 4, v{VI}')
    a(f'v_lshl_add_u32 v{VA}, v{VG}, 14, v{VA}')
    a(f's_lshl_b32 s{T2}, s{WV}, 20')
    a(f's_lshl_b32 s{T3}, s{SH}, 8')
    a(f's_add_u32 s{T2}, s{T2}, s{T3}')
    for j in range(32):
        if j == b0wq: a('s_barrier')
        if j >= WQ: a(f's_waitcnt vmcnt({WQ-1})')
        r = WR + 4*j
        a(f'buffer_load_dwordx4 v[{r}:{r+3}], v{VA}, s[{SW}:{SW+3}], s{T2} offen {wqpol}')
        if j < 31: a(f's_add_u32 s{T2}, s{T2}, {8192 if j % 2 == 0 else 7*8192}')
    srd(SC, 34, 8192); srd(SST, 36, 512*3072*2); srd(SOUT, 38, 8192); srd(SDBG, 40, 256)
    stamp(6)
    a('s_waitcnt vmcnt(32)')
    stamp(7)
    a(f'v_readfirstlane_b32 s{TAG}, v{GENV}')
    a(f's_add_u32 s{TAG}, s{TAG}, {TAGC}')

    def ln_stats(vals, mean, den, rden, t0, t1):
        R = len(vals)
        for r in range(R):
            v = vals[r]
            a(f'v_add_f32 v{mean[r]}, v{v[0]}, v{v[1]}')
            for k in range(2, len(v)): a(f'v_add_f32 v{mean[r]}, v{mean[r]}, v{v[k]}')
        wave_reduce('v_add_f32', mean, t0)
        for r in range(R): a(f'v_mul_f32 v{mean[r]}, {f32(1/512)}, v{mean[r]}')
        for r in range(R):
            v = vals[r]
            for k in range(len(v)):
                a(f'v_sub_f32 v{t0[r]}, v{v[k]}, v{mean[r]}')
                if k == 0: a(f'v_mul_f32 v{den[r]}, v{t0[r]}, v{t0[r]}')
                else: a(f'v_fmac_f32 v{den[r]}, v{t0[r]}, v{t0[r]}')
        wave_reduce('v_add_f32', den, t0)
        for r in range(R):
            a(f'v_mul_f32 v{den[r]}, {f32(1/512)}, v{den[r]}')
            rnd2(mean[r], den[r], t0[r])
            a(f'v_add_f32 v{den[r]}, {f32(1e-5)}, v{den[r]}')
            rnd1(den[r], t0[r])
            a(f'v_sqrt_f32 v{den[r]}, v{den[r]}')
            rnd1(den[r], t0[r])
            a(f'v_rcp_f32 v{rden[r]}, v{den[r]}')
    def ln_norm2(x, y, mean, den, rden, t0, t1, t2):
        a(f'v_sub_f32 v{x}, v{x}, v{mean}')
        a(f'v_sub_f32 v{y}, v{y}, v{mean}')
        rnd2(x, y, t0)
        a(f'v_mul_f32 v{t0}, v{x}, v{rden}')
        a(f'v_mul_f32 v{t1}, v{y}, v{rden}')
        a(f'v_fma_f32 v{x}, -v{t0}, v{den}, v{x}')
        a(f'v_fma_f32 v{y}, -v{t1}, v{den}, v{y}')
        a(f'v_fma_f32 v{x}, v{x}, v{rden}, v{t0}')
        a(f'v_fma_f32 v{y}, v{y}, v{rden}, v{t1}')
        rnd2(x, y, t0)
    def modulate2(x, y, c1pair, spair, t0, t1, t2, out):
        unpack(t0, t1, c1pair)
        a(f'v_mul_f32 v{x}, v{x}, v{t0}')
        a(f'v_mul_f32 v{y}, v{y}, v{t1}')
        rnd2(x, y, t2)
        unpack(t0, t1, spair)
        a(f'v_add_f32 v{x}, v{x}, v{t0}')
        a(f'v_add_f32 v{y}, v{y}, v{t1}')
        a(f'v_cvt_pk_bf16_f32 v{out}, v{x}, v{y}')
    def one_plus(pair, t0, t1):
        unpack(t0, t1, pair)
        a(f'v_add_f32 v{t0}, 1.0, v{t0}')
        a(f'v_add_f32 v{t1}, 1.0, v{t1}')
        a(f'v_cvt_pk_bf16_f32 v{pair}, v{t0}, v{t1}')

    for r in range(4): unpack(XF+2*r, XF+2*r+1, XR+r)
    ln_stats([[XF+k for k in range(8)]], [MEAN], [DEN], [RDEN], [U0], [U1])
    unpack(U2, U3, XP)
    ln_norm2(U2, U3, MEAN, DEN, RDEN, U0, U1, HP)
    stamp(9)

    def permute_weights(wait_fn):
        wmap = []
        free = SPARE
        for m in range(16):
            A = WR + 8*m; Bq = A + 4
            w = wait_fn(m)
            if w is not None: a(f's_waitcnt vmcnt({w})')
            row = [None]*8
            for c in range(4):
                a(f'v_perm_b32 v{free}, v{Bq+c}, v{A+c}, s{SELLO}')
                a(f'v_perm_b32 v{Bq+c}, v{Bq+c}, v{A+c}, s{SELHI}')
                row[2*c] = free; row[2*c+1] = Bq + c
                free = A + c
            wmap.append(row)
        return wmap, free
    def gemv(wmap, vec):
        for e in range(8): a(f'v_mov_b32 v{ACC+e}, 0')
        for m in range(16):
            for e in range(8):
                a(f'v_dot2c_f32_bf16_dpp v{ACC+e}, v{vec}, v{wmap[m][e]} row_newbcast:{m} row_mask:0xf bank_mask:0xf')
        greduce8(ACC)
    def poll(name, loads, tagregs, sleep=1, maskreg=None):
        a(f's_mov_b32 s{SPIN}, 0')
        a.label(name)
        for l in loads: a(l)
        a('s_waitcnt vmcnt(0)')
        a(f'v_xor_b32 v{VD}, s{TAG}, v{tagregs[0]}')
        for t in tagregs[1:]:
            a(f'v_bitop3_b32 v{VD}, v{t}, s{TAG}, v{VD} bitop3:0xbe')
        if maskreg is not None:
            a(f'v_and_b32 v{VD}, v{maskreg}, v{VD}')
        a(f'v_cmp_ne_u32 vcc, 0, v{VD}')
        a(f's_cbranch_vccz {name}_ok')
        a(f's_add_u32 s{SPIN}, s{SPIN}, 1')
        a(f's_cmp_lt_u32 s{SPIN}, {SPIN_MAX}')
        a(f's_cbranch_scc0 {name}_ok')
        if sleep: a(f's_sleep {sleep}')
        a(f's_branch {name}')
        a.label(name + '_ok')
    def lds_wait(name, off_v, off, val, sleep):
        a(f's_mov_b32 s{SPIN}, 0')
        a.label(name)
        a(f'ds_read_b32 v{VD}, v{off_v} offset:{off}')
        a('s_waitcnt lgkmcnt(0)')
        a(f'v_readfirstlane_b32 s{T2}, v{VD}')
        a(f's_cmp_ge_u32 s{T2}, {val}')
        a(f's_cbranch_scc1 {name}_ok')
        a(f's_add_u32 s{SPIN}, s{SPIN}, 1')
        a(f's_cmp_lt_u32 s{SPIN}, {SPIN_MAX*4}')
        a(f's_cbranch_scc0 {name}_ok')
        if sleep: a(f's_sleep {sleep}')
        a(f's_branch {name}')
        a.label(name + '_ok')

    wmap, _ = permute_weights(lambda m: 30 - 2*m)
    a(f'v_lshlrev_b32 v{VA}, 6, v{VI}')
    a(f'v_lshl_add_u32 v{VA}, v{VG}, 4, v{VA}')
    a(f's_lshl_b32 s{T2}, s{SB}, 12')
    a(f's_lshl_b32 s{T3}, s{WV}, 10')
    a(f's_add_u32 s{T2}, s{T2}, s{T3}')
    a(f's_add_u32 s{T2}, s{T2}, {WS_MOD}')
    stamp(0)
    poll('L_poll_sa', [f'buffer_load_dwordx4 v[{RD}:{RD+3}], v{VA}, s[{SWS}:{SWS+3}], s{T2} offen sc1'], [RD+1, RD+3])
    stamp(10)
    one_plus(RD+2, U0, U1)
    modulate2(U2, U3, RD+2, RD, U0, U1, VD, HP)
    gemv(wmap, HP)
    a(f'v_lshlrev_b32 v{VA}, 5, v{VI}')
    a(f'v_lshl_add_u32 v{VA}, v{VG}, 3, v{VA}')
    a(f's_lshl_b32 s{T2}, s{WV}, 9')
    a(f'v_add_u32 v{VB}, s{T2}, v{VA}')
    a(f'ds_write_b64 v{VB}, v[{ACC}:{ACC+1}] offset:{L_QP}')
    a('s_waitcnt lgkmcnt(0)')
    a('s_barrier')
    stamp(1)

    if nopre:
        stamp(11)
        finish(SWS, 8)
    srd(SW, 24, 4096*512*2)
    a(f'v_lshlrev_b32 v{VA}, 4, v{VI}')
    a(f'v_lshl_add_u32 v{VA}, v{VG}, 11, v{VA}')
    a(f's_lshl_b32 s{T2}, s{SH}, 17')
    if pre is not None and pre & 8: a(f's_mov_b32 s{T2}, 0')
    a(f's_lshl_b32 s{T3}, s{WV}, 8')
    a(f's_add_u32 s{T2}, s{T2}, s{T3}')
    for j in range(32 if (pre is None or pre & 2) else 0):
        if j >= SW_: a(f's_waitcnt vmcnt({SW_-1})')
        r = WR + 4*j
        a(f'buffer_load_dwordx4 v[{r}:{r+3}], v{VA}, s[{SW}:{SW+3}], s{T2} offen offset:{(j%2)*1024} {wopol}')
        if j % 2 == 1 and j < 31: a(f's_add_u32 s{T2}, s{T2}, 8192')
    wmap, _ = permute_weights(lambda m: 30 - 2*m)
    a(f's_sub_u32 s{T4}, s2, 64')
    a(f's_cmp_lt_u32 s2, {128 if (pre is None or pre & 1) else 256}')
    a('s_cbranch_scc1 L_v_moddone')
    mod_issue(cv)
    mod_compute(cv, 0, L_CNT+4, 'L_v_moddone')
    a.label('L_v_moddone')

    if pre is not None and not pre & 4:
        stamp(11)
        finish(SWS, 8)
    a(f's_cmp_lt_u32 s{F1T}, {NF1}')
    a('s_cbranch_scc0 L_nof1w')
    a(f'v_lshrrev_b32 v{VB}, 1, v0')
    a(f'v_mul_u32_u24 v{VB}, 2752, v{VB}')
    a(f'v_and_b32 v{VC}, 1, v0')
    a(f'v_lshl_add_u32 v{VB}, v{VC}, 4, v{VB}')
    for which, p in enumerate((28, 30)):
        srd(SST, p, 512*1376*2)
        a(f's_mul_i32 s{T1}, s{WV}, {128*2752}')
        a(f's_lshl_b32 s{T2}, s{F1T}, 5')
        a(f's_add_u32 s{T1}, s{T1}, s{T2}')
        for s in range(4):
            a(f's_add_u32 m0, s{STGB}, {(which*4+s)*1024}')
            if SW_ < 8: a('s_waitcnt vmcnt(0)')
            a(f'buffer_load_dwordx4 v{VB}, s[{SST}:{SST+3}], s{T1} offen {fpol} lds')
            if s < 3: a(f's_add_u32 s{T1}, s{T1}, {32*2752}')
    tr_addr(cv, VA)
    a('s_waitcnt vmcnt(0)')
    for s in range(8): tr_read(BF + 4*s, VA, s)
    if pre is not None:
        stamp(11)
        finish(SWS, 8)
    SBR = BF + 32; C1R = BF + 40
    a(f'v_lshlrev_b32 v{VA}, 5, v0')
    a(f's_lshl_b32 s{T2}, s{WV}, 13')
    a(f's_add_u32 s{T2}, s{T2}, {WS_MOD + 32768}')
    for rr in range(2):
        loads = []; tags = []
        for hf in range(2):
            for k in range(2):
                r = 8 + 4*(2*hf + k)
                loads.append(f'buffer_load_dwordx4 v[{r}:{r+3}], v{VA}, s[{SWS}:{SWS+3}], s{T2} offen offset:{hf*2048 + k*16} sc1')
                tags += [r+1, r+3]
        poll(f'L_poll_sb{rr}', loads, tags, sleep=32)
        for q in range(4):
            a(f'v_mov_b32 v{SBR+4*rr+q}, v{8+4*q}')
            one_plus(8+4*q+2, U0, U1)
            a(f'v_mov_b32 v{C1R+4*rr+q}, v{8+4*q+2}')
        if rr == 0: a(f's_add_u32 s{T2}, s{T2}, 4096')
    a('s_waitcnt lgkmcnt(0)')
    a('s_branch L_wdone')
    a.label('L_nof1w')
    a(f's_mov_b32 s{T0}, s{F2T}')
    a(f's_cmp_lt_u32 s{T0}, 32')
    a('s_cbranch_scc0 L_wdone')
    srd(SST, 32, 1376*512*2)
    a(f'v_lshrrev_b32 v{VB}, 1, v0')
    a(f'v_lshlrev_b32 v{VB}, 10, v{VB}')
    a(f'v_and_b32 v{VC}, 1, v0')
    a(f'v_lshl_add_u32 v{VB}, v{VC}, 4, v{VB}')
    a(f's_mul_i32 s{T3}, s{WV}, 12')
    a(f's_lshl_b32 s{T2}, s{T0}, 5')
    for s in range(12):
        a(f's_add_u32 s{T1}, s{T3}, {s}')
        a(f's_min_u32 s{T1}, s{T1}, 42')
        a(f's_lshl_b32 s{T1}, s{T1}, 15')
        a(f's_add_u32 s{T1}, s{T1}, s{T2}')
        a(f's_add_u32 m0, s{STGB}, {s*1024}')
        if SW_ < 8: a('s_waitcnt vmcnt(0)')
        a(f'buffer_load_dwordx4 v{VB}, s[{SST}:{SST+3}], s{T1} offen {fpol} lds')
    tr_addr(cv, VA)
    a('s_waitcnt vmcnt(0)')
    for s in range(12): tr_read(BF + 4*s, VA, s)
    if pre is not None:
        stamp(11)
        finish(SWS, 8)
    GBP = 125
    a(f'v_lshrrev_b32 v{VA}, 3, v0')
    a(f'v_lshlrev_b32 v{VA}, 12, v{VA}')
    a(f'v_and_b32 v{VB}, 7, v0')
    a(f'v_lshl_add_u32 v{VA}, v{VB}, 4, v{VA}')
    a(f's_lshl_b32 s{T2}, s{T0}, 7')
    a(f's_add_u32 s{T2}, s{T2}, {WS_MOD + 65536 + 8}')
    poll('L_poll_gb', [f'buffer_load_dwordx2 v[8:9], v{VA}, s[{SWS}:{SWS+3}], s{T2} offen sc1'], [9], sleep=32)
    a(f'v_mov_b32 v{GBP}, v8')
    a('s_waitcnt lgkmcnt(0)')
    a.label('L_wdone')
    if pre is not None:
        stamp(11)
        finish(SWS, 8)
    GAP = 124; XR1 = 126
    a(f'v_and_b32 v{VB}, 7, v0')
    a(f'v_lshlrev_b32 v{VA}, 4, v{VB}')
    a(f's_lshl_b32 s{T2}, s{SB}, 12')
    a(f's_lshl_b32 s{T3}, s{SH}, 7')
    a(f's_add_u32 s{T2}, s{T2}, s{T3}')
    a(f's_add_u32 s{T2}, s{T2}, {WS_MOD + 65536}')
    poll('L_poll_ga', [f'buffer_load_dwordx2 v[8:9], v{VA}, s[{SWS}:{SWS+3}], s{T2} offen sc1'], [9], sleep=32)
    a(f'v_mov_b32 v{GAP}, v8')
    a(f'v_lshlrev_b32 v{VA}, 2, v{VB}')
    a(f's_lshl_b32 s{T2}, s{SB}, 10')
    a(f's_lshl_b32 s{T3}, s{SH}, 5')
    a(f's_add_u32 s{T2}, s{T2}, s{T3}')
    a(f'buffer_load_dword v{XR1}, v{VA}, s[{SX}:{SX+3}], s{T2} offen')
    a(f'v_lshlrev_b32 v{VA}, 5, v{VI}')
    a(f'v_lshl_add_u32 v{VA}, v{VG}, 3, v{VA}')
    a(f'v_lshrrev_b32 v{VB}, 1, v{VI}')
    a(f'v_lshlrev_b32 v{VB}, 12, v{VB}')
    a(f'v_and_b32 v{VC}, 1, v{VI}')
    a(f'v_lshl_add_u32 v{VB}, v{VC}, 6, v{VB}')
    a(f'v_lshl_add_u32 v{VB}, v{VG}, 4, v{VB}')
    a(f's_lshl_b32 s{T4}, s{SB}, 17')
    a(f's_lshl_b32 s{T3}, s{WV}, 15')
    a(f's_add_u32 s{T4}, s{T4}, s{T3}')
    a(f's_lshl_b32 s{T3}, s{SH}, 7')
    a(f's_add_u32 s{T4}, s{T4}, s{T3}')
    a(f's_add_u32 s{T4}, s{T4}, {WS_WOP}')
    a('s_waitcnt vmcnt(0)')
    stamp(11)
    a(f'v_mov_b32 v{VC}, 0')
    lds_wait('L_w_stat', VC, L_CNT+8, 4, 1)
    stamp(8)
    LO = L_OP
    for w in range(4):
        a(f'ds_read_b64 v[{RD+2*w}:{RD+2*w+1}], v{VA} offset:{LO + w*512}')
    a('s_waitcnt lgkmcnt(0)')
    for k in range(4): a(f'v_add_f32 v{RD+k}, v{RD+k}, v{RD+k+4}')
    for k in range(2): a(f'v_add_f32 v{RD+k}, v{RD+k}, v{RD+k+2}')
    a(f'v_cvt_pk_bf16_f32 v{HP}, v{RD}, v{RD+1}')
    if dbg:
        a(f's_lshl_b32 s{T2}, s2, 8')
        a(f's_add_u32 s{T2}, s{T2}, {WS_DBG + 0x10000}')
        a(f'v_lshrrev_b32 v{VC}, 1, v{VA}')
        a(f'buffer_store_dword v{HP}, v{VC}, s[{SWS}:{SWS+3}], s{T2} offen')
    gemv(wmap, HP)
    a(f'v_mov_b32 v{RD}, v{ACC}')
    a(f'v_mov_b32 v{RD+1}, s{TAG}')
    a(f'v_mov_b32 v{RD+2}, v{ACC+1}')
    a(f'v_mov_b32 v{RD+3}, s{TAG}')
    a(f'buffer_store_dwordx4 v[{RD}:{RD+3}], v{VB}, s[{SWS}:{SWS+3}], s{T4} offen sc1')
    stamp(2)
    if notail: finish(SWS, 8)
    a(f's_cmp_lt_u32 s{F1T}, {NF1}')
    a('s_cbranch_scc1 L_gate')
    a(f's_mov_b32 s{T0}, s{F2T}')
    a(f's_cmp_lt_u32 s{T0}, 32')
    a('s_cbranch_scc1 L_gate')
    a(f's_cmp_eq_u32 s{WV}, 0')
    a('s_cbranch_scc1 L_gate')
    a('s_branch L_fin')
    a.label('L_gate')
    if gate:
        a(f's_mov_b32 s{SPIN}, 0')
        a(f'v_mov_b32 v{VA}, 0')
        a.label('L_gate_poll')
        a(f'buffer_load_dword v8, v{VA}, s[{SDBG}:{SDBG+3}], 0 offen sc1')
        a('s_waitcnt vmcnt(0)')
        a(f'v_readfirstlane_b32 s{T2}, v8')
        a(f's_cmp_ge_u32 s{T2}, 256')
        a('s_cbranch_scc1 L_gate_ok')
        a(f's_add_u32 s{SPIN}, s{SPIN}, 1')
        a(f's_cmp_lt_u32 s{SPIN}, {SPIN_MAX}')
        a('s_cbranch_scc0 L_gate_ok')
        a(f's_sleep {gsleep}')
        a('s_branch L_gate_poll')
        a.label('L_gate_ok')
    a(f's_cmp_lg_u32 s{WV}, 0')
    a('s_cbranch_scc1 L_r1done')
    a(f's_lshl_b32 s{T2}, s2, 12')
    a(f's_add_u32 s{T2}, s{T2}, {WS_WOP}')
    loads = [f'buffer_load_dwordx4 v[{8+4*j}:{8+4*j+3}], v1, s[{SWS}:{SWS+3}], s{T2} offen offset:{j*1024} sc1' for j in range(4)]
    poll('L_poll_wop', loads, [9, 11, 13, 15, 17, 19, 21, 23])
    for k, r in enumerate((8, 10)):
        a(f'v_add_f32 v{r}, v{r}, v{r+4}')
        a(f'v_add_f32 v{r+8}, v{r+8}, v{r+12}')
        a(f'v_add_f32 v{U0+k}, v{r}, v{r+8}')
    for k in range(2): a(f'v_add_f32_dpp v{U0+k}, v{U0+k}, v{U0+k} row_ror:8 row_mask:0xf bank_mask:0xf')
    for sw in ('v_permlane16_swap_b32', 'v_permlane32_swap_b32'):
        for k in range(2): a(f'v_mov_b32 v{U2+k}, v{U0+k}')
        for k in range(2): a(f'{sw} v{U0+k}, v{U2+k}')
        for k in range(2): a(f'v_add_f32 v{U0+k}, v{U0+k}, v{U2+k}')
    rnd2(U0, U1, VD)
    modulate2(U0, U1, GAP, XR1, U2, U3, VD, RD)
    a(f'v_mov_b32 v{RD+1}, s{TAG}')
    a(f'v_lshlrev_b32 v{VA}, 3, v0')
    a(f's_lshl_b32 s{T2}, s2, 6')
    a(f's_add_u32 s{T2}, s{T2}, {WS_X1}')
    a('s_mov_b64 exec, 0xff')
    a(f'buffer_store_dwordx2 v[{RD}:{RD+1}], v{VA}, s[{SWS}:{SWS+3}], s{T2} offen sc1')
    a('s_mov_b64 exec, -1')
    stamp(3)
    a.label('L_r1done')
    a(f's_cmp_lt_u32 s{F1T}, {NF1}')
    a('s_cbranch_scc0 L_notf1')
    a(f's_lshl_b32 s{T2}, s{WV}, 12')
    a(f's_add_u32 s{T2}, s{T2}, {WS_X1}')
    loads = [f'buffer_load_dwordx4 v[{8+4*j}:{8+4*j+3}], v1, s[{SWS}:{SWS+3}], s{T2} offen offset:{j*1024} sc1' for j in range(4)]
    poll('L_poll_x1', loads, [9, 11, 13, 15, 17, 19, 21, 23])
    XV = WR
    for rr in range(2):
        for q in range(4):
            src = 8 + 4*(2*rr + q//2) + 2*(q % 2)
            unpack(XV + 8*rr + 2*q, XV + 8*rr + 2*q + 1, src)
    M_ = [WR+16, WR+17]; D_ = [WR+18, WR+19]; R_ = [WR+20, WR+21]; Ta = [WR+22, WR+23]; Tb = [WR+24, WR+25]; Tc = [WR+26, WR+27]
    ln_stats([[XV+8*rr+k for k in range(8)] for rr in range(2)], M_, D_, R_, Ta, Tb)
    HO = WR + 28
    for rr in range(2):
        for q in range(4):
            x = XV + 8*rr + 2*q
            ln_norm2(x, x+1, M_[rr], D_[rr], R_[rr], Ta[rr], Tb[rr], Tc[rr])
            modulate2(x, x+1, C1R+4*rr+q, SBR+4*rr+q, Ta[rr], Tb[rr], Tc[rr], HO+4*rr+q)
    a(f's_mul_i32 s{T2}, s{WV}, {2*H2S}')
    a(f'v_lshlrev_b32 v{VA}, 3, v0')
    a(f'v_add_u32 v{VA}, s{T2}, v{VA}')
    for rr in range(2):
        for hf in range(2):
            r = HO + 4*rr + 2*hf
            a(f'ds_write_b64 v{VA}, v[{r}:{r+1}] offset:{L_H2 + rr*H2S + hf*512}')
    a(f'v_and_b32 v{VA}, 7, v0')
    a(f'v_mul_u32_u24 v{VA}, {H2S}, v{VA}')
    a(f'v_bfe_u32 v{VB}, v0, 3, 1')
    a(f'v_lshl_add_u32 v{VA}, v{VB}, 7, v{VA}')
    a(f'v_lshl_add_u32 v{VA}, v{VG}, 4, v{VA}')
    a(f's_lshl_b32 s{T2}, s{WV}, 8')
    a(f'v_add_u32 v{VA}, s{T2}, v{VA}')
    a('s_waitcnt lgkmcnt(0)')
    a('s_barrier')
    a(f'ds_read_b128 v[{CF}:{CF+3}], v{VA} offset:{L_H2}')
    a(f'ds_read_b128 v[{CF+4}:{CF+7}], v{VA} offset:{L_H2+64}')
    a(f's_lshl_b32 s{T2}, s{WV}, 10')
    a(f'v_add_u32 v{VB}, s{T2}, v1')
    a('s_waitcnt lgkmcnt(0)')
    mf(D1, CF, BF, True); mf(D2, CF, BF+8, True); mf(D3, CF, BF+16, True); mf(D4, CF, BF+24, True)
    mf(D1, CF+4, BF+4, False); mf(D2, CF+4, BF+12, False); mf(D3, CF+4, BF+20, False); mf(D4, CF+4, BF+28, False)
    sel_halves(cv, RD, D1, D2); sel_halves(cv, RD+4, D3, D4)
    a(f'ds_write_b128 v{VB}, v[{RD}:{RD+3}] offset:{L_RED}')
    a(f'ds_write_b128 v{VB}, v[{RD+4}:{RD+7}] offset:{L_RED+4096}')
    a('s_waitcnt lgkmcnt(0)')
    a('s_barrier')
    a(f's_cmp_lg_u32 s{WV}, 0')
    a('s_cbranch_scc1 L_fin')
    red_addr(cv, VA)
    red_sum(cv, U0, VA, L_RED, WR)
    red_sum(cv, U2, VA, L_RED+4096, WR+16)
    rnd2(U0, U1, VD); rnd2(U2, U3, VD)
    silu(U0, VB, WR, WR+1); silu(U1, VC, WR+2, WR+3)
    rnd2(U0, U1, VD)
    a(f'v_mul_f32 v{U0}, v{U0}, v{U2}')
    a(f'v_mul_f32 v{U1}, v{U1}, v{U3}')
    a(f'v_cvt_pk_bf16_f32 v{RD}, v{U0}, v{U1}')
    a(f'v_mov_b32 v{RD+1}, s{TAG}')
    a(f'v_lshrrev_b32 v{VA}, 3, v0')
    a(f'v_mul_u32_u24 v{VA}, 5504, v{VA}')
    a(f'v_and_b32 v{VB}, 7, v0')
    a(f'v_lshl_add_u32 v{VA}, v{VB}, 3, v{VA}')
    a(f's_lshl_b32 s{T2}, s{F1T}, 6')
    a(f's_add_u32 s{T2}, s{T2}, {WS_ACT}')
    a(f'buffer_store_dwordx2 v[{RD}:{RD+1}], v{VA}, s[{SWS}:{SWS+3}], s{T2} offen sc1')
    stamp(4)
    a('s_branch L_fin')
    a.label('L_notf1')
    a(f's_mov_b32 s{T0}, s{F2T}')
    a(f's_cmp_lt_u32 s{T0}, 32')
    a('s_cbranch_scc0 L_fin')
    a(f'v_and_b32 v{VA}, 7, v0')
    a(f'v_mul_u32_u24 v{VA}, 5504, v{VA}')
    a(f'v_lshl_add_u32 v{VA}, v{VG}, 5, v{VA}')
    a(f'v_bfe_u32 v{VB}, v0, 3, 1')
    a(f's_mul_i32 s{T3}, s{WV}, 12')
    a(f'v_add_u32 v{VB}, s{T3}, v{VB}')
    AD = 8; VM = 14
    for u in range(6):
        a(f'v_add_u32 v{VC}, {2*u}, v{VB}')
        a(f'v_cmp_gt_u32 vcc, 43, v{VC}')
        a(f'v_cndmask_b32 v{VM+u}, 0, -1, vcc')
        a(f'v_min_u32 v{VC}, 42, v{VC}')
        a(f'v_lshl_add_u32 v{AD+u}, v{VC}, 7, v{VA}')
    a(f's_mov_b32 s{T2}, {WS_ACT}')
    loads = []; tags = []
    for u in range(6):
        for k in range(2):
            r = WR + 8*u + 4*k
            loads.append(f'buffer_load_dwordx4 v[{r}:{r+3}], v{AD+u}, s[{SWS}:{SWS+3}], s{T2} offen offset:{16*k} sc1')
            tags += [r+1, r+3]
    a(f'v_lshrrev_b32 v{U2}, 3, v0')
    a(f'v_lshlrev_b32 v{U2}, 11, v{U2}')
    a(f'v_and_b32 v{U3}, 7, v0')
    a(f'v_lshl_add_u32 v{U2}, v{U3}, 3, v{U2}')
    a(f's_lshl_b32 s{T1}, s{T0}, 6')
    a(f's_add_u32 s{T1}, s{T1}, {WS_X1}')
    X1R = WR + 48
    loads.append(f'buffer_load_dwordx2 v[{X1R}:{X1R+1}], v{U2}, s[{SWS}:{SWS+3}], s{T1} offen sc1')
    tags.append(X1R+1)
    poll('L_poll_act', loads, tags)
    AF = WR + 64
    for u in range(6):
        for k in range(4):
            a(f'v_and_b32 v{AF+4*u+k}, v{VM+u}, v{WR+8*u+2*k}')
    for u in range(6):
        mf(D1, AF+4*u, BF+8*u, u == 0); mf(D2, AF+4*u, BF+8*u+4, u == 0)
    sel_halves(cv, RD, D1, D2)
    a(f's_lshl_b32 s{T2}, s{WV}, 10')
    a(f'v_add_u32 v{VB}, s{T2}, v1')
    a(f'ds_write_b128 v{VB}, v[{RD}:{RD+3}] offset:{L_RED}')
    a('s_waitcnt lgkmcnt(0)')
    a('s_barrier')
    a(f's_cmp_lg_u32 s{WV}, 0')
    a('s_cbranch_scc1 L_fin')
    red_addr(cv, VA)
    red_sum(cv, U0, VA, L_RED, WR)
    rnd2(U0, U1, VD)
    modulate2(U0, U1, GBP, X1R, U2, U3, VD, RD)
    a(f'v_lshrrev_b32 v{VA}, 3, v0')
    a(f'v_lshlrev_b32 v{VA}, 10, v{VA}')
    a(f'v_and_b32 v{VB}, 7, v0')
    a(f'v_lshl_add_u32 v{VA}, v{VB}, 2, v{VA}')
    a(f's_lshl_b32 s{T2}, s{T0}, 5')
    a(f'buffer_store_dword v{RD}, v{VA}, s[{SOUT}:{SOUT+3}], s{T2} offen')
    stamp(5)
    a(f's_cmp_lg_u32 s{T0}, 0')
    a('s_cbranch_scc1 L_fin')
    a(f's_sub_u32 s{T2}, s{TAG}, {TAGC - 1}')
    a(f'v_mov_b32 v{VB}, s{T2}')
    a(f'v_mov_b32 v{VA}, 0')
    a('s_mov_b64 exec, 1')
    a(f'buffer_store_dword v{VB}, v{VA}, s[{SWS}:{SWS+3}], 0 offen offset:{WS_GEN} sc1')
    a.label('L_fin', fence=stamps)
    if stamps: finish(SWS, 8)
    a.label('L_end', fence=False)
    a('s_endpgm')
    a.raw('.section .rodata,"a"')
    a.raw('.p2align 6')
    a.raw(f'.amdhsa_kernel {NAME}')
    a.raw('  .amdhsa_next_free_vgpr 256')
    a.raw('  .amdhsa_next_free_sgpr 96')
    a.raw('  .amdhsa_accum_offset 256')
    a.raw('  .amdhsa_group_segment_fixed_size 0')
    a.raw('  .amdhsa_kernarg_size 112')
    a.raw('  .amdhsa_user_sgpr_count 2')
    a.raw('  .amdhsa_user_sgpr_kernarg_segment_ptr 1')
    a.raw('  .amdhsa_system_sgpr_workgroup_id_x 1')
    a.raw('  .amdhsa_float_denorm_mode_32 3')
    a.raw('.end_amdhsa_kernel')
    return a.text()

if __name__ == '__main__':
    import json
    out = sys.argv[1] if len(sys.argv) > 1 else 'adaLN_cond__mha_block_cached__swiglu_ffn__decode.s'
    kw = json.loads(sys.argv[2]) if len(sys.argv) > 2 else {}
    open(out, 'w').write(gen(**kw))
    print('wrote', out)
```

```python
import sys, struct
from asmlib import Asm

NAME = 'adaLN_cond__mha_block_cached__swiglu_ffn__decode_kernel'

def f32(x):
    return '0x%08x' % struct.unpack('<I', struct.pack('<f', x))[0]

L2E = 1.4426950408889634
WS_GEN = 0
WS_MOD = 0x1000
WS_X1 = 0x20000
WS_ACT = 0x28000
WS_HEAD = 0x38000
WS_WOP = 0x100000
WS_P = 0x200000
WS_SLOT = 0x800000
WS_DBG = 0x2000000
WS_SIZE = 0x40000000
L_CNT = 0x0
L_MX = 0x40
L_QP = 0x100
L_OP = 0x900
L_RED = 0x1100
L_H2 = 0x3100; H2S = 1040
L_SC = 0x5200
L_OS = 0x9200
L_STG = 0x9A00; STGW = 12288
LDS_SIZE = L_STG + 4 * STGW
NF1 = 86
F2_BASE = 96
SPIN_MAX = 100000
NSH = 32
TAGC = 0x5bd1e995

def gen(dbg=False, W=6, VW=4, W0=6, nA=4, kpol='nt', wpol='nt', stamps=False, gate=False, notail=False,
        gsleep=4, b0wq=0, sprio=2, mprio=3, boost=2, sboost=3, n0=0, WQ=32, SW_=2,
        wqpol=None, wopol=None, mpol=None, fpol=None, nopre=False, pre=None, dst=False, perm=False):
    if dst: stamps = True
    wqpol = wpol if wqpol is None else wqpol; wopol = wpol if wopol is None else wopol
    mpol = wpol if mpol is None else mpol; fpol = wpol if fpol is None else fpol
    a = Asm()
    hdr = open('adaLN_cond__mha_block_cached__swiglu_ffn__decode.s.ref').read().split('\n')
    for l in hdr:
        if l.startswith('; @launch'): break
        a.raw(l)
    a.raw(f'; @launch grid=(256,1,1) block=(512,1,1) lds={LDS_SIZE}')
    a.raw('.amdgcn_target "amdgcn-amd-amdhsa--gfx950"')
    a.raw('.text')
    a.raw(f'.globl {NAME}')
    a.raw('.p2align 8')
    a.raw(f'.type {NAME},@function')
    a.raw(f'{NAME}:')

    def srd(d, p, size):
        a(f's_mov_b32 s{d}, s{p}')
        a(f's_mov_b32 s{d+1}, s{p+1}')
        a(f's_mov_b32 s{d+2}, {size}')
        a(f's_mov_b32 s{d+3}, 0x00020000')

    def rnd1(x, t):
        a(f'v_cvt_pk_bf16_f32 v{t}, v{x}, v{x}')
        a(f'v_lshlrev_b32 v{x}, 16, v{t}')
    def rnd2(x, y, t):
        a(f'v_cvt_pk_bf16_f32 v{t}, v{x}, v{y}')
        a(f'v_lshlrev_b32 v{x}, 16, v{t}')
        a(f'v_and_b32 v{y}, 0xffff0000, v{t}')
    def unpack(lo, hi, src):
        a(f'v_lshlrev_b32 v{lo}, 16, v{src}')
        a(f'v_and_b32 v{hi}, 0xffff0000, v{src}')
    def wave_reduce(op, regs, tmps):
        for ctl in ('quad_perm:[1,0,3,2]', 'quad_perm:[2,3,0,1]', 'row_half_mirror', 'row_mirror'):
            for r in regs:
                a(f'{op}_dpp v{r}, v{r}, v{r} {ctl} row_mask:0xf bank_mask:0xf')
        for sw in ('v_permlane16_swap_b32', 'v_permlane32_swap_b32'):
            for r, t in zip(regs, tmps): a(f'v_mov_b32 v{t}, v{r}')
            for r, t in zip(regs, tmps): a(f'{sw} v{r}, v{t}')
            for r, t in zip(regs, tmps): a(f'{op} v{r}, v{r}, v{t}')
    def greduce8(acc):
        for e in range(4): a(f'v_permlane32_swap_b32 v{acc+e}, v{acc+e+4}')
        for e in range(4): a(f'v_add_f32 v{acc+e}, v{acc+e}, v{acc+e+4}')
        for e in range(2): a(f'v_permlane16_swap_b32 v{acc+e}, v{acc+e+2}')
        for e in range(2): a(f'v_add_f32 v{acc+e}, v{acc+e}, v{acc+e+2}')
    def silu(x, t, t2, t3):
        a(f'v_mul_f32 v{t}, {f32(-L2E)}, v{x}')
        a(f'v_exp_f32 v{t}, v{t}')
        a(f'v_add_f32 v{t}, 1.0, v{t}')
        a(f'v_min_f32 v{t}, 0x7f7fffff, v{t}')
        a(f'v_rcp_f32 v{t2}, v{t}')
        a(f'v_mul_f32 v{t3}, v{x}, v{t2}')
        a(f'v_fma_f32 v{x}, -v{t3}, v{t}, v{x}')
        a(f'v_fma_f32 v{x}, v{x}, v{t2}, v{t3}')
    STP = 92
    def stamp(idx):
        if not stamps: return
        a(f's_memrealtime s[{STP}:{STP+1}]')
        a('s_waitcnt lgkmcnt(0)')
        a(f's_mov_b32 s{4+idx}, s{STP}')
    def finish(ws_srd, vt, role='v'):
        if dst:
            a('s_mov_b64 exec, -1')
            a(f'v_mov_b32 v{vt}, 0')
            if role == 's':
                a(f's_not_b32 s{STP}, s4'); a(f'v_writelane_b32 v{vt}, s{STP}, 0')
                a(f'v_writelane_b32 v{vt}, s4, 1')
                a(f'v_writelane_b32 v{vt}, s5, 2')
                a(f'v_writelane_b32 v{vt}, s11, 3')
                a(f'v_writelane_b32 v{vt}, s6, 4')
                a(f's_not_b32 s{STP}, s6'); a(f'v_writelane_b32 v{vt}, s{STP}, 5')
                a(f's_memtime s[{STP}:{STP+1}]'); a('s_waitcnt lgkmcnt(0)')
                a(f's_sub_u32 s{STP}, s{STP}, s14'); a(f'v_writelane_b32 v{vt}, s{STP}, 10')
                a(f's_sub_u32 s{STP}, s6, s4'); a(f'v_writelane_b32 v{vt}, s{STP}, 11')
            else:
                a(f'v_writelane_b32 v{vt}, s6, 6')
                a(f'v_writelane_b32 v{vt}, s7, 7')
                a(f'v_writelane_b32 v{vt}, s8, 8')
                a(f'v_writelane_b32 v{vt}, s9, 9')
            srd(STP-4, 40, 256)
            a(f'v_lshlrev_b32 v{vt+1}, 2, v0')
            a('s_mov_b64 exec, 0xffff')
            a(f'buffer_atomic_umax v{vt}, v{vt+1}, s[{STP-4}:{STP-1}], 0 offen')
        elif stamps:
            a('s_mov_b64 exec, -1')
            a(f'v_mov_b32 v{vt}, 0')
            for k in range(12):
                a(f'v_writelane_b32 v{vt}, s{4+k}, {k}')
            a(f's_lshl_b32 s{STP}, s2, 3')
            a(f's_add_u32 s{STP}, s{STP}, s3')
            a(f's_lshl_b32 s{STP}, s{STP}, 6')
            a(f's_add_u32 s{STP}, s{STP}, {WS_DBG + 0x100000}')
            a(f'v_lshlrev_b32 v{vt+1}, 2, v0')
            a('s_mov_b64 exec, 0xffff')
            a(f'buffer_store_dword v{vt}, v{vt+1}, s[{ws_srd}:{ws_srd+3}], s{STP} offen')
        a('s_endpgm')

    def mf(d, A, Bf, first):
        c = '0' if first else f'v[{d}:{d+3}]'
        a(f'v_mfma_f32_16x16x32_bf16 v[{d}:{d+3}], v[{A}:{A+3}], v[{Bf}:{Bf+3}], {c}')
    def tr_read(dst, v, ks):
        a(f'ds_read_b64_tr_b16 v[{dst}:{dst+1}], v{v} offset:{ks*1024}')
        a(f'ds_read_b64_tr_b16 v[{dst+2}:{dst+3}], v{v} offset:{ks*1024+128}')

    class Ctx:
        pass
    def tr_addr(c, v):
        a(f'v_lshrrev_b32 v{v}, 2, v{c.VI}')
        a(f'v_lshlrev_b32 v{v}, 5, v{v}')
        a(f'v_lshl_add_u32 v{v}, v{c.VG}, 8, v{v}')
        a(f'v_and_b32 v{c.VD}, 3, v{c.VI}')
        a(f'v_lshl_add_u32 v{v}, v{c.VD}, 3, v{v}')
        a(f'v_add_u32 v{v}, s{c.STGB}, v{v}')
    def sel_halves(c, dst, d1, d2):
        for r in range(4):
            a(f'v_cndmask_b32 v{dst+r}, v{d2+r}, v{d1+r}, s[{c.LO32}:{c.LO32+1}]')
    def red_addr(c, v):
        a(f'v_and_b32 v{v}, 7, v0')
        a(f'v_lshlrev_b32 v{v}, 5, v{v}')
        a(f'v_lshrrev_b32 v{c.VD}, 5, v0')
        a(f'v_lshl_add_u32 v{v}, v{c.VD}, 8, v{v}')
        a(f'v_bfe_u32 v{c.VD}, v0, 3, 2')
        a(f'v_lshl_add_u32 v{v}, v{c.VD}, 2, v{v}')
    def red_sum(c, dst, v, off, scratch):
        a(f'v_add_u32 v{c.VD}, {off}, v{v}')
        for w in range(4):
            for hf in range(2):
                r = scratch + 2*(2*w + hf)
                a(f'ds_read2_b32 v[{r}:{r+1}], v{c.VD} offset0:{hf*128} offset1:{hf*128+4}')
            if w < 3: a(f'v_add_u32 v{c.VD}, 1024, v{c.VD}')
        a('s_waitcnt lgkmcnt(0)')
        for st in (8, 4):
            for k in range(st): a(f'v_add_f32 v{scratch+k}, v{scratch+k}, v{scratch+k+st}')
        a(f'v_add_f32 v{dst}, v{scratch}, v{scratch+2}')
        a(f'v_add_f32 v{dst+1}, v{scratch+1}, v{scratch+3}')

    def mod_issue(c):
        a(f's_and_b32 s{c.T0}, s{c.WG}, 7')
        a(f's_lshl_b32 s{c.T0}, s{c.T0}, 2')
        a(f's_lshr_b32 s{c.T1}, s{c.WG}, 3')
        a(f's_and_b32 s{c.T1}, s{c.T1}, 3')
        a(f's_add_u32 s{c.T0}, s{c.T0}, s{c.T1}')
        a(f's_and_b32 s{c.T1}, s{c.WG}, 0xe0')
        a(f's_add_u32 s{c.T1}, s{c.T1}, s{c.T0}')
        a(f's_lshl_b32 s{c.T1}, s{c.T1}, 5')
        a(f's_mul_i32 s{c.T2}, s{c.WV}, {128*6144}')
        a(f's_add_u32 s{c.T1}, s{c.T1}, s{c.T2}')
        a(f'v_and_b32 v{c.VA}, 7, v0')
        a(f'v_lshlrev_b32 v{c.VA}, 10, v{c.VA}')
        a(f'v_bfe_u32 v{c.VB}, v0, 3, 1')
        a(f'v_lshl_add_u32 v{c.VA}, v{c.VB}, 7, v{c.VA}')
        a(f'v_lshl_add_u32 v{c.VA}, v{c.VG}, 4, v{c.VA}')
        a(f's_lshl_b32 s{c.T2}, s{c.WV}, 8')
        a(f'buffer_load_dwordx4 v[{c.CF}:{c.CF+3}], v{c.VA}, s[{c.SC}:{c.SC+3}], s{c.T2} offen')
        a(f'buffer_load_dwordx4 v[{c.CF+4}:{c.CF+7}], v{c.VA}, s[{c.SC}:{c.SC+3}], s{c.T2} offen offset:64')
        a(f'v_lshrrev_b32 v{c.VB}, 1, v0')
        a(f'v_mul_u32_u24 v{c.VB}, 6144, v{c.VB}')
        a(f'v_and_b32 v{c.VC}, 1, v0')
        a(f'v_lshl_add_u32 v{c.VB}, v{c.VC}, 4, v{c.VB}')
        for s in range(4):
            a(f's_add_u32 m0, s{c.STGB}, {s*1024}')
            if c.paced: a('s_waitcnt vmcnt(0)')
            a(f'buffer_load_dwordx4 v{c.VB}, s[{c.SM}:{c.SM+3}], s{c.T1} offen {mpol} lds')
            if s < 3: a(f's_add_u32 s{c.T1}, s{c.T1}, {32*6144}')
    def mod_compute(c, younger, cnt_off, done, st=None):
        a(f's_waitcnt vmcnt({younger + 4})')
        if st: stamp(st[0])
        if c.GENV is not None:
            a(f'v_readfirstlane_b32 s{c.TAG}, v{c.GENV}')
            a(f's_add_u32 s{c.TAG}, s{c.TAG}, {TAGC}')
        XF = c.XF
        for r in range(8):
            unpack(XF, XF+1, c.CF+r)
            silu(XF, XF+2, XF+4, XF+6); silu(XF+1, XF+3, XF+5, XF+7)
            a(f'v_cvt_pk_bf16_f32 v{c.CF+r}, v{XF}, v{XF+1}')
        tr_addr(c, c.VA)
        a(f's_waitcnt vmcnt({younger})')
        if st: stamp(st[1])
        BF = c.BF
        for s in range(4): tr_read(BF + 4*s, c.VA, s)
        a('s_waitcnt lgkmcnt(0)')
        mf(c.D1, c.CF, BF, True); mf(c.D2, c.CF, BF+8, True)
        mf(c.D1, c.CF+4, BF+4, False); mf(c.D2, c.CF+4, BF+12, False)
        sel_halves(c, c.RD, c.D1, c.D2)
        a(f's_lshl_b32 s{c.T2}, s{c.WV}, 10')
        a(f'v_add_u32 v{c.VB}, s{c.T2}, v1')
        a(f'ds_write_b128 v{c.VB}, v[{c.RD}:{c.RD+3}] offset:{L_RED}')
        a(f'v_mov_b32 v{c.VC}, 0')
        a(f'v_mov_b32 v{c.VB}, 1')
        a('s_mov_b64 exec, 1')
        a(f'ds_add_rtn_u32 v{c.VB}, v{c.VC}, v{c.VB} offset:{cnt_off}')
        a('s_mov_b64 exec, -1')
        a('s_waitcnt lgkmcnt(0)')
        a(f'v_readfirstlane_b32 s{c.T2}, v{c.VB}')
        a(f's_cmp_lg_u32 s{c.T2}, 3')
        a(f's_cbranch_scc1 {done}')
        red_addr(c, c.VA)
        red_sum(c, c.U0, c.VA, L_RED, BF)
        a(f'v_cvt_pk_bf16_f32 v{c.RD}, v{c.U0}, v{c.U0+1}')
        a(f'v_mov_b32 v{c.RD+1}, s{c.TAG}')
        a(f's_lshr_b32 s{c.T2}, s{c.WG}, 5')
        a(f's_lshl_b32 s{c.T2}, s{c.T2}, 2')
        a(f's_lshr_b32 s{c.T2}, 0x532410, s{c.T2}')
        a(f's_and_b32 s{c.T3}, s{c.T2}, 1')
        a(f's_lshl_b32 s{c.T3}, s{c.T3}, 3')
        a(f's_bfe_u32 s{c.T2}, s{c.T2}, 0x30001')
        a(f's_lshl_b32 s{c.T2}, s{c.T2}, 15')
        a(f's_add_u32 s{c.T2}, s{c.T2}, s{c.T3}')
        a(f's_lshl_b32 s{c.T3}, s{c.T0}, 7')
        a(f's_add_u32 s{c.T2}, s{c.T2}, s{c.T3}')
        a(f's_add_u32 s{c.T2}, s{c.T2}, {WS_MOD}')
        a(f'v_lshrrev_b32 v{c.VA}, 3, v0')
        a(f'v_lshlrev_b32 v{c.VA}, 12, v{c.VA}')
        a(f'v_and_b32 v{c.VB}, 7, v0')
        a(f'v_lshl_add_u32 v{c.VA}, v{c.VB}, 4, v{c.VA}')
        a(f'buffer_store_dwordx2 v[{c.RD}:{c.RD+1}], v{c.VA}, s[{c.SWS}:{c.SWS+3}], s{c.T2} offen sc1')

    a('s_cmp_ge_u32 s2, 256')
    a('s_cbranch_scc1 L_end')
    if perm:
        a('s_lshr_b32 s3, s2, 5'); a('s_xor_b32 s2, s2, s3')
    a('s_load_dwordx16 s[16:31], s[0:1], 0')
    a('s_load_dwordx8 s[32:39], s[0:1], 64')
    a('s_load_dwordx4 s[40:43], s[0:1], 96')
    if stamps:
        for k in range(12): a(f's_mov_b32 s{4+k}, 0')
    a('v_lshrrev_b32 v1, 6, v0')
    a('v_readfirstlane_b32 s3, v1')
    a('v_and_b32 v0, 63, v0')
    a('v_lshlrev_b32 v1, 4, v0')
    a('s_cmp_ge_u32 s3, 4')
    a('s_cbranch_scc1 L_service')

    Q = 4; Pq = 8; ACC = 24; TMP = 32; VMAX = 40; VT0 = 41; VT1 = 42; PP0 = 43; PP1 = 44; VSC = 2; VI = 45; VG = 46; VT2 = 47; VT3 = 48
    GENV = 3
    TK = 50; PN = 52; VPA = 54; VSA = 55; FL = 56; VZ = 60; VHA = 61
    RING = 64; EXA = 128; EXB = 192
    IS = 44; SWS = 52; SOFF = 56; CNT = 57; BASE = 58; M1 = 60; M2 = 62; SELLO = 64; SELHI = 65; SCALE = 66; TAG = 67
    SHD = 70; SLOTC = 71; SLOTN = 72; FIRST = 73; T0 = 74; T1 = 75; T2 = 76; T3 = 77; STGB = 78; SPIN = 79
    SC = 80; SM = 84; LO32 = 88
    HOME = 48; STEP = 49; QUIT = 50; ESPIN = 51
    P_ = Pq
    a('s_lshl_b32 s58, s2, 20')
    a('s_lshl_b32 s59, s3, 12')
    a('s_add_u32 s58, s58, s59')
    a('s_mov_b32 s56, s58')
    a(f'v_mov_b32 v{VZ}, 0')
    a(f'v_and_b32 v{VI}, 15, v0')
    a(f'v_lshrrev_b32 v{VG}, 4, v0')
    a(f's_mul_i32 s{STGB}, s3, {STGW}')
    a(f's_add_u32 s{STGB}, s{STGB}, {L_STG}')
    a('s_waitcnt lgkmcnt(0)')
    srd(SWS, 42, WS_SIZE)
    a(f'buffer_load_dword v{GENV}, v{VZ}, s[{SWS}:{SWS+3}], 0 offen offset:{WS_GEN} sc1')
    srd(IS, 18, 0x10000000)
    srd(SC, 34, 8192)
    srd(SM, 36, 512*3072*2)
    stamp(0)
    if dst:
        a(f's_memtime s[{STP}:{STP+1}]'); a('s_waitcnt lgkmcnt(0)'); a(f's_mov_b32 s14, s{STP}')
    cs = Ctx()
    cs.VI = VI; cs.VG = VG; cs.VA = RING; cs.VB = RING+1; cs.VC = RING+2; cs.VD = RING+3
    cs.CF = RING+4; cs.XF = RING+12; cs.BF = RING+20; cs.D1 = RING+36; cs.D2 = RING+40; cs.RD = RING+44; cs.U0 = RING+48
    cs.T0 = T0; cs.T1 = T1; cs.T2 = T2; cs.T3 = T3; cs.WV = 3; cs.STGB = STGB; cs.SC = SC; cs.SM = SM; cs.SWS = SWS
    cs.LO32 = LO32; cs.TAG = TAG; cs.GENV = GENV; cs.WG = 2; cs.paced = False
    a('s_cmp_ge_u32 s2, 64')
    a('s_cbranch_scc1 L_s_noissue')
    if mprio: a(f's_setprio {mprio}')
    mod_issue(cs)
    a.label('L_s_noissue', fence=False)

    def issue(base, j):
        r = base + 4 * j
        a(f'buffer_load_dwordx4 v[{r}:{r+3}], v1, s[{IS}:{IS+3}], s{SOFF} offen offset:{(j % 4) * 1024} {kpol}')
        if j % 4 == 3:
            a(f's_add_u32 s{SOFF}, s{SOFF}, 16384')

    seq = [(base, j) for base in (EXA, EXB, RING) for j in range(16)]
    for n in range(nA): issue(*seq[n])
    a(f's_mov_b32 s{M1}, 0xaaaaaaaa'); a(f's_mov_b32 s{M1+1}, 0xaaaaaaaa')
    a(f's_mov_b32 s{M2}, 0xcccccccc'); a(f's_mov_b32 s{M2+1}, 0xcccccccc')
    a(f's_mov_b32 s{SELLO}, 0x05040100'); a(f's_mov_b32 s{SELHI}, 0x07060302')
    a(f's_mov_b32 s{SCALE}, {f32(128 ** -0.5)}')
    a(f's_mov_b32 s{LO32}, -1'); a(f's_mov_b32 s{LO32+1}, 0')
    a(f's_lshl_b32 s59, s3, 12')
    a(f's_add_u32 s59, s59, {L_SC}')
    a(f'v_lshlrev_b32 v{VSC}, 2, v0')
    a(f'v_add_u32 v{VSC}, s59, v{VSC}')
    a(f'v_mov_b32 v{VMAX}, 0xff800000')
    a('s_barrier')
    a('s_cmp_ge_u32 s2, 64')
    a('s_cbranch_scc1 L_s_moddone')
    mod_compute(cs, nA, L_CNT, 'L_s_moddone', st=(3, 4))
    a.label('L_s_moddone')
    if mprio: a('s_setprio 0')
    stamp(5)
    for n in range(nA, 48):
        Wn = W0 if n < n0 else W
        if n >= Wn and n < 48 - boost:
            a(f's_waitcnt vmcnt({Wn-1})')
        issue(*seq[n])
    a(f'v_readfirstlane_b32 s{TAG}, v{GENV}')
    a(f's_add_u32 s{TAG}, s{TAG}, {TAGC}')
    stamp(6)
    a('s_barrier')
    a(f'v_lshlrev_b32 v{VT0}, 5, v{VI}')
    for w in range(4):
        a(f'ds_read_b128 v[{P_+8*(w%2)}:{P_+8*(w%2)+3}], v{VT0} offset:{L_QP + w*512}')
        a(f'ds_read_b128 v[{P_+8*(w%2)+4}:{P_+8*(w%2)+7}], v{VT0} offset:{L_QP + w*512 + 16}')
        if w == 1:
            a('s_waitcnt lgkmcnt(0)')
            for e in range(8): a(f'v_add_f32 v{ACC+e}, v{P_+e}, v{P_+8+e}')
    a('s_waitcnt lgkmcnt(0)')
    for e in range(8): a(f'v_add_f32 v{P_+e}, v{P_+e}, v{P_+8+e}')
    for e in range(8): a(f'v_add_f32 v{ACC+e}, v{ACC+e}, v{P_+e}')
    for c in range(4): a(f'v_cvt_pk_bf16_f32 v{Q+c}, v{ACC+2*c}, v{ACC+2*c+1}')
    if dbg:
        a(f's_lshl_b32 s{T0}, s2, 8')
        a(f's_add_u32 s{T0}, s{T0}, {WS_DBG}')
        a(f'v_lshlrev_b32 v{VT0}, 4, v{VI}')
        a(f'buffer_store_dwordx4 v[{Q}:{Q+3}], v{VT0}, s[{SWS}:{SWS+3}], s{T0} offen')
        a('s_waitcnt vmcnt(0)')
    stamp(1)

    def ksteps(base, PB, reissue, wait, vsc, sc_off, t0, t1):
        def l1(j):
            a(f'v_add_f32_dpp v{PB+j-1}, v{PB+j-1}, v{PB+j-1} row_ror:8 row_mask:0xf bank_mask:0x3')
            a(f'v_add_f32_dpp v{PB+j-1}, v{PB+j}, v{PB+j} row_ror:8 row_mask:0xf bank_mask:0xc')
        def l2(q):
            x = PB + 4*q; y = PB + 4*q + 2
            a(f'v_add_f32_dpp v{x}, v{x}, v{x} row_shl:4 row_mask:0xf bank_mask:0x5')
            a(f'v_add_f32_dpp v{x}, v{y}, v{y} row_shr:4 row_mask:0xf bank_mask:0xa')
        def step(j):
            r = base + 4*j
            if wait is not None:
                a(f's_waitcnt vmcnt({wait})')
            a(f'v_dot2_f32_bf16 v{PB+j}, v{r}, v{Q}, 0')
            for c in range(1, 4):
                a(f'v_dot2_f32_bf16 v{PB+j}, v{r+c}, v{Q+c}, v{PB+j}')
            if reissue: issue(base, j)
            if j >= 2 and j % 2 == 0: l1(j-1)
            if j >= 5 and j % 4 == 1: l2((j-5)//4)
        def epi():
            l1(15)
            l2(3)
            U = [PB, PB+4, PB+8, PB+12]
            for u in U: a(f'v_add_f32_dpp v{u}, v{u}, v{u} quad_perm:[2,3,0,1] row_mask:0xf bank_mask:0xf')
            a(f'v_cndmask_b32 v{U[0]}, v{U[0]}, v{U[1]}, s[{M2}:{M2+1}]')
            a(f'v_cndmask_b32 v{U[2]}, v{U[2]}, v{U[3]}, s[{M2}:{M2+1}]')
            for u in (U[0], U[2]): a(f'v_add_f32_dpp v{u}, v{u}, v{u} quad_perm:[1,0,3,2] row_mask:0xf bank_mask:0xf')
            a(f'v_cndmask_b32 v{t0}, v{U[0]}, v{U[2]}, s[{M1}:{M1+1}]')
            rnd1(t0, t1)
            a(f'v_mul_f32 v{t0}, s{SCALE}, v{t0}')
            rnd1(t0, t1)
            a(f'v_max_f32 v{VMAX}, v{VMAX}, v{t0}')
            a(f'ds_write_b32 v{vsc}, v{t0} offset:{sc_off}')
        return [lambda j=j: step(j) for j in range(16)] + [epi]
    P2 = ACC
    for it, ex in enumerate((EXA, EXB)):
        s1 = ksteps(RING, P_, True, W-1, VSC, (2+it)*256, VT0, VT1)
        s2 = ksteps(ex, P2, False, None, VSC, it*256, PP0, PP1)
        for j in range(16):
            s1[j](); s2[j]()
        s1[16](); s2[16]()
    a(f'v_add_u32 v{VT2}, {4*256}, v{VSC}')
    a(f's_mov_b32 s{CNT}, 12')
    a.label('L_kloop')
    a(f's_cmp_eq_u32 s{CNT}, 1')
    a(f's_cselect_b32 s{IS}, s20, s{IS}')
    a(f's_cselect_b32 s{IS+1}, s21, s{IS+1}')
    a(f's_cselect_b32 s{SOFF}, s{BASE}, s{SOFF}')
    for f in ksteps(RING, P_, True, W-1, VT2, 0, VT0, VT1): f()
    a(f'v_add_u32 v{VT2}, 256, v{VT2}')
    a(f's_sub_u32 s{CNT}, s{CNT}, 1')
    a(f's_cmp_lg_u32 s{CNT}, 0')
    a('s_cbranch_scc1 L_kloop')
    stamp(7)
    vq = [(EXA, j) for j in range(16)] + [(EXB, j) for j in range(16)]
    def pi(n=1, paced=True):
        for _ in range(n):
            if not vq: return
            if paced: a(f's_waitcnt vmcnt({W-1})')
            issue(*vq.pop(0))
    pi()
    a('s_waitcnt lgkmcnt(0)')
    for t in range(0, 16, 2):
        a(f'ds_read2st64_b32 v[{P_+t}:{P_+t+1}], v{VSC} offset0:{t} offset1:{t+1}')
    wave_reduce('v_max_f32', [VMAX], [VT0])
    pi()
    a('s_waitcnt lgkmcnt(0)')
    for t in range(16): a(f'v_sub_f32 v{P_+t}, v{P_+t}, v{VMAX}')
    for t in range(16): a(f'v_mul_f32 v{P_+t}, {f32(L2E)}, v{P_+t}')
    pi()
    for t in range(16): a(f'v_exp_f32 v{P_+t}, v{P_+t}')
    pi()
    for t in range(8): a(f'v_add_f32 v{TMP+t}, v{P_+t}, v{P_+8+t}')
    for t in range(4): a(f'v_add_f32 v{TMP+t}, v{TMP+t}, v{TMP+4+t}')
    for t in range(2): a(f'v_add_f32 v{TMP+t}, v{TMP+t}, v{TMP+2+t}')
    a(f'v_add_f32 v{VT0}, v{TMP}, v{TMP+1}')
    assert VT0 == VMAX + 1
    wave_reduce('v_add_f32', [VT0], [VT1])
    a(f's_lshl_b32 s59, s3, 3')
    a(f'v_mov_b32 v{VT1}, s59')
    a(f'ds_write_b64 v{VT1}, v[{VMAX}:{VMAX+1}] offset:{L_MX}')
    a(f'v_mov_b32 v{VT1}, 1')
    a('s_waitcnt lgkmcnt(0)')
    a('s_mov_b64 exec, 1')
    a(f'ds_add_u32 v{VZ}, v{VT1} offset:{L_CNT+12}')
    a('s_mov_b64 exec, -1')
    pi(12)
    pi(sboost, paced=False)
    a(f's_mov_b32 s{SPIN}, 0')
    a.label('L_b2')
    a(f'ds_read_b32 v{VT1}, v{VZ} offset:{L_CNT+12}')
    a('s_waitcnt lgkmcnt(0)')
    a(f'v_readfirstlane_b32 s{T0}, v{VT1}')
    a(f's_cmp_ge_u32 s{T0}, 4')
    a('s_cbranch_scc1 L_b2_ok')
    a(f's_add_u32 s{SPIN}, s{SPIN}, 1')
    a(f's_cmp_lt_u32 s{SPIN}, {SPIN_MAX*8}')
    a('s_cbranch_scc0 L_b2_ok')
    a('s_sleep 1')
    a('s_branch L_b2')
    a.label('L_b2_ok')
    a(f'ds_read_b128 v[{TMP}:{TMP+3}], v{VZ} offset:{L_MX}')
    a(f'ds_read_b128 v[{TMP+4}:{TMP+7}], v{VZ} offset:{L_MX+16}')
    a('s_waitcnt lgkmcnt(0)')
    a(f'v_max_f32 v{VT1}, v{TMP}, v{TMP+2}')
    a(f'v_max3_f32 v{VT1}, v{VT1}, v{TMP+4}, v{TMP+6}')
    for k in range(4): a(f'v_sub_f32 v{TMP+2*k}, v{TMP+2*k}, v{VT1}')
    a(f'v_sub_f32 v{VT3}, v{VMAX}, v{VT1}')
    for k in range(4): a(f'v_mul_f32 v{TMP+2*k}, {f32(L2E)}, v{TMP+2*k}')
    a(f'v_mul_f32 v{VT3}, {f32(L2E)}, v{VT3}')
    for k in range(4): a(f'v_exp_f32 v{TMP+2*k}, v{TMP+2*k}')
    a(f'v_exp_f32 v{VT3}, v{VT3}')
    a(f'v_mul_f32 v{VT0}, v{TMP}, v{TMP+1}')
    for k in range(1, 4): a(f'v_fmac_f32 v{VT0}, v{TMP+2*k}, v{TMP+2*k+1}')
    a(f'v_rcp_f32 v{VT0}, v{VT0}')
    a(f'v_mul_f32 v{VT3}, v{VT3}, v{VT0}')
    pi()
    for t in range(16): a(f'v_mul_f32 v{P_+t}, v{P_+t}, v{VT3}')
    for half in range(2):
        for t in range(8): a(f'v_mov_b32_dpp v{TMP+t}, v{P_+8*half+t} row_ror:8 row_mask:0xf bank_mask:0xf')
        for t in range(8): a(f'v_cvt_pk_bf16_f32 v{P_+8*half+t}, v{P_+8*half+t}, v{TMP+t}')
        pi()
    for t in range(4, 16, 2):
        a(f'ds_write2st64_b32 v{VSC}, v{P_+t}, v{P_+t+1} offset0:{t} offset1:{t+1}')
    for e in range(8): a(f'v_mov_b32 v{ACC+e}, 0')

    def bl(m): return 4*(m & 1) + 2*((m >> 1) & 1) + (m >> 2)
    def vstep(base, m, reissue, wait, pp, mid=None):
        A = base + 8*m; Bq = A + 4
        if wait is not None:
            a(f's_waitcnt vmcnt({wait})')
        for c in range(4):
            a(f'v_perm_b32 v{TMP+2*c}, v{Bq+c}, v{A+c}, s{SELLO}')
            a(f'v_perm_b32 v{TMP+2*c+1}, v{Bq+c}, v{A+c}, s{SELHI}')
        if reissue:
            issue(base, 2*m); issue(base, 2*m+1)
        if mid: mid()
        for e in range(8):
            a(f'v_dot2c_f32_bf16_dpp v{ACC+e}, v{pp}, v{TMP+e} row_newbcast:{bl(m)} row_mask:0xf bank_mask:0xf')
    def static_flush():
        a(f'v_lshlrev_b32 v{VT0}, 5, v{VI}')
        a(f'v_lshl_add_u32 v{VT0}, v{VG}, 3, v{VT0}')
        a(f's_lshl_b32 s59, s3, 9')
        a(f'v_add_u32 v{VT0}, s59, v{VT0}')
        a(f'ds_write_b64 v{VT0}, v[{ACC}:{ACC+1}] offset:{L_OP}')
        a(f'v_mov_b32 v{VT1}, 1')
        a('s_waitcnt lgkmcnt(0)')
        a('s_mov_b64 exec, 1')
        a(f'ds_add_u32 v{VZ}, v{VT1} offset:{L_CNT+8}')
        a('s_mov_b64 exec, -1')
        stamp(8)

    nleft = len(vq)
    assert 1 <= nleft <= 16, nleft
    for m in range(8):
        k = (nleft*(m+1))//8 - (nleft*m)//8
        if m == 0: a(f's_waitcnt vmcnt({16 - nleft})')
        vstep(EXA, m, False, None, P_+1, mid=(lambda k=k: pi(k)))
    assert not vq
    for m in range(8): vstep(RING, m, True, VW, P_+0)
    a(f'v_add_u32 v{VT2}, {5*256}, v{VSC}')
    for m in range(8):
        vstep(RING, m, True, VW, P_+3)
        vstep(EXB, m, False, None, P_+2)
    a(f'v_mov_b32 v{PP0}, v{P_+4}')
    a(f's_mov_b32 s{CNT}, 11')
    a.label('L_vloop')
    a(f'ds_read_b32 v{PP1}, v{VT2}')
    a(f'v_add_u32 v{VT2}, 256, v{VT2}')
    for m in range(8): vstep(RING, m, True, VW, PP0)
    a('s_waitcnt lgkmcnt(0)')
    a(f'v_mov_b32 v{PP0}, v{PP1}')
    a(f's_sub_u32 s{CNT}, s{CNT}, 1')
    a(f's_cmp_lg_u32 s{CNT}, 0')
    a('s_cbranch_scc1 L_vloop')
    for m in range(8): vstep(RING, m, False, 14 - 2*m, PP0)
    greduce8(ACC)
    static_flush()
    if gate:
        lab = a.uid('L_nogate')
        a('s_cmp_lg_u32 s3, 0')
        a(f's_cbranch_scc1 {lab}')
        srd(SC, 40, 256)
        a('s_mov_b64 exec, 1')
        a(f'buffer_atomic_add v{VT1}, v{VZ}, s[{SC}:{SC+3}], 0 offen')
        a('s_mov_b64 exec, -1')
        a.label(lab)
    a('s_waitcnt lgkmcnt(0)')
    stamp(2)
    finish(SWS, TMP, 's')

    a.label('L_service')
    SX = 44; SW = 48; SWS = 52; SC = 56; SST = 60; SOUT = 64; SDBG = 68
    WV = 72
    SB = 73; SH = 74; T0 = 75; T1 = 76; T2 = 77; T3 = 78; TAG = 80; SPIN = 81; SELLO = 82; SELHI = 83; LO32 = 84; STGB = 86; T4 = 87
    F1T = 88; F2T = 89; T5 = 90; T6 = 91
    VI = 2; VG = 3; VA = 4; VB = 5; VC = 6; VD = 7
    GENV = 8
    XR = 12; XP = 16; CF = 20; XF = 28
    MEAN = 36; DEN = 37; RDEN = 38; U0 = 39; U1 = 40; U2 = 41; U3 = 42; HP = 43
    ACC = 44
    D1 = 52; D2 = 56; D3 = 60; D4 = 64
    RD = 68
    BF = 76
    SPARE = 127
    WR = 128
    cv = Ctx()
    cv.VI = VI; cv.VG = VG; cv.VA = VA; cv.VB = VB; cv.VC = VC; cv.VD = VD
    cv.CF = CF; cv.XF = XF; cv.BF = BF; cv.D1 = D1; cv.D2 = D2; cv.RD = RD; cv.U0 = U0
    cv.T0 = T0; cv.T1 = T1; cv.T2 = T2; cv.T3 = T3; cv.WV = WV; cv.STGB = STGB; cv.SC = SC; cv.SM = SST; cv.SWS = SWS
    cv.LO32 = LO32; cv.TAG = TAG; cv.GENV = None; cv.WG = T4; cv.paced = SW_ < 8
    if sprio: a(f's_setprio {sprio}')
    a(f's_sub_u32 s{WV}, s3, 4')
    a(f's_lshr_b32 s{SB}, s2, 5')
    a(f's_and_b32 s{SH}, s2, 31')
    a(f's_and_b32 s{T0}, s2, 7')
    a(f's_lshr_b32 s{T1}, s2, 3')
    a(f's_mul_i32 s{F1T}, s{T0}, 11')
    a(f's_add_u32 s{F1T}, s{F1T}, s{T1}')
    a(f's_cmp_lt_u32 s2, 88')
    a(f's_cselect_b32 s{F1T}, s{F1T}, 255')
    a(f's_lshl_b32 s{F2T}, s{T0}, 2')
    a(f's_add_u32 s{F2T}, s{F2T}, s{T1}')
    a(f's_sub_u32 s{F2T}, s{F2T}, {F2_BASE//8}')
    a(f's_sub_u32 s{T1}, s2, {F2_BASE}')
    a(f's_cmp_lt_u32 s{T1}, 32')
    a(f's_cselect_b32 s{F2T}, s{F2T}, 255')
    a(f'v_and_b32 v{VI}, 15, v0')
    a(f'v_lshrrev_b32 v{VG}, 4, v0')
    a(f'v_mov_b32 v{VA}, 0')
    a(f'v_lshlrev_b32 v{VB}, 2, v{VI}')
    a(f'ds_write_b32 v{VB}, v{VA} offset:{L_CNT}')
    a(f's_mov_b32 s{SELLO}, 0x05040100'); a(f's_mov_b32 s{SELHI}, 0x07060302')
    a(f's_mov_b32 s{LO32}, -1'); a(f's_mov_b32 s{LO32+1}, 0')
    a(f's_mul_i32 s{STGB}, s{WV}, {STGW}')
    a(f's_add_u32 s{STGB}, s{STGB}, {L_STG}')
    a('s_waitcnt lgkmcnt(0)')
    srd(SWS, 42, WS_SIZE); srd(SX, 16, 8192); srd(SW, 22, 512*4096*2)
    a(f'buffer_load_dword v{GENV}, v{VA}, s[{SWS}:{SWS+3}], 0 offen offset:{WS_GEN} sc1')
    a(f's_lshl_b32 s{T2}, s{SB}, 10')
    a(f'buffer_load_dwordx4 v[{XR}:{XR+3}], v1, s[{SX}:{SX+3}], s{T2} offen')
    a(f'v_lshlrev_b32 v{VA}, 4, v{VI}')
    a(f'v_lshl_add_u32 v{VA}, v{VG}, 2, v{VA}')
    a(f's_lshl_b32 s{T3}, s{WV}, 8')
    a(f's_add_u32 s{T2}, s{T2}, s{T3}')
    a(f'buffer_load_dword v{XP}, v{VA}, s[{SX}:{SX+3}], s{T2} offen')
    a(f'v_lshlrev_b32 v{VA}, 4, v{VI}')
    a(f'v_lshl_add_u32 v{VA}, v{VG}, 14, v{VA}')
    a(f's_lshl_b32 s{T2}, s{WV}, 20')
    a(f's_lshl_b32 s{T3}, s{SH}, 8')
    a(f's_add_u32 s{T2}, s{T2}, s{T3}')
    for j in range(32):
        if j == b0wq: a('s_barrier')
        if j >= WQ: a(f's_waitcnt vmcnt({WQ-1})')
        r = WR + 4*j
        a(f'buffer_load_dwordx4 v[{r}:{r+3}], v{VA}, s[{SW}:{SW+3}], s{T2} offen {wqpol}')
        if j < 31: a(f's_add_u32 s{T2}, s{T2}, {8192 if j % 2 == 0 else 7*8192}')
    srd(SC, 34, 8192); srd(SST, 36, 512*3072*2); srd(SOUT, 38, 8192); srd(SDBG, 40, 256)
    stamp(6)
    a('s_waitcnt vmcnt(32)')
    stamp(7)
    a(f'v_readfirstlane_b32 s{TAG}, v{GENV}')
    a(f's_add_u32 s{TAG}, s{TAG}, {TAGC}')

    def ln_stats(vals, mean, den, rden, t0, t1):
        R = len(vals)
        for r in range(R):
            v = vals[r]
            a(f'v_add_f32 v{mean[r]}, v{v[0]}, v{v[1]}')
            for k in range(2, len(v)): a(f'v_add_f32 v{mean[r]}, v{mean[r]}, v{v[k]}')
        wave_reduce('v_add_f32', mean, t0)
        for r in range(R): a(f'v_mul_f32 v{mean[r]}, {f32(1/512)}, v{mean[r]}')
        for r in range(R):
            v = vals[r]
            for k in range(len(v)):
                a(f'v_sub_f32 v{t0[r]}, v{v[k]}, v{mean[r]}')
                if k == 0: a(f'v_mul_f32 v{den[r]}, v{t0[r]}, v{t0[r]}')
                else: a(f'v_fmac_f32 v{den[r]}, v{t0[r]}, v{t0[r]}')
        wave_reduce('v_add_f32', den, t0)
        for r in range(R):
            a(f'v_mul_f32 v{den[r]}, {f32(1/512)}, v{den[r]}')
            rnd2(mean[r], den[r], t0[r])
            a(f'v_add_f32 v{den[r]}, {f32(1e-5)}, v{den[r]}')
            rnd1(den[r], t0[r])
            a(f'v_sqrt_f32 v{den[r]}, v{den[r]}')
            rnd1(den[r], t0[r])
            a(f'v_rcp_f32 v{rden[r]}, v{den[r]}')
    def ln_norm2(x, y, mean, den, rden, t0, t1, t2):
        a(f'v_sub_f32 v{x}, v{x}, v{mean}')
        a(f'v_sub_f32 v{y}, v{y}, v{mean}')
        rnd2(x, y, t0)
        a(f'v_mul_f32 v{t0}, v{x}, v{rden}')
        a(f'v_mul_f32 v{t1}, v{y}, v{rden}')
        a(f'v_fma_f32 v{x}, -v{t0}, v{den}, v{x}')
        a(f'v_fma_f32 v{y}, -v{t1}, v{den}, v{y}')
        a(f'v_fma_f32 v{x}, v{x}, v{rden}, v{t0}')
        a(f'v_fma_f32 v{y}, v{y}, v{rden}, v{t1}')
        rnd2(x, y, t0)
    def modulate2(x, y, c1pair, spair, t0, t1, t2, out):
        unpack(t0, t1, c1pair)
        a(f'v_mul_f32 v{x}, v{x}, v{t0}')
        a(f'v_mul_f32 v{y}, v{y}, v{t1}')
        rnd2(x, y, t2)
        unpack(t0, t1, spair)
        a(f'v_add_f32 v{x}, v{x}, v{t0}')
        a(f'v_add_f32 v{y}, v{y}, v{t1}')
        a(f'v_cvt_pk_bf16_f32 v{out}, v{x}, v{y}')
    def one_plus(pair, t0, t1):
        unpack(t0, t1, pair)
        a(f'v_add_f32 v{t0}, 1.0, v{t0}')
        a(f'v_add_f32 v{t1}, 1.0, v{t1}')
        a(f'v_cvt_pk_bf16_f32 v{pair}, v{t0}, v{t1}')

    for r in range(4): unpack(XF+2*r, XF+2*r+1, XR+r)
    ln_stats([[XF+k for k in range(8)]], [MEAN], [DEN], [RDEN], [U0], [U1])
    unpack(U2, U3, XP)
    ln_norm2(U2, U3, MEAN, DEN, RDEN, U0, U1, HP)
    stamp(9)

    def permute_weights(wait_fn):
        wmap = []
        free = SPARE
        for m in range(16):
            A = WR + 8*m; Bq = A + 4
            w = wait_fn(m)
            if w is not None: a(f's_waitcnt vmcnt({w})')
            row = [None]*8
            for c in range(4):
                a(f'v_perm_b32 v{free}, v{Bq+c}, v{A+c}, s{SELLO}')
                a(f'v_perm_b32 v{Bq+c}, v{Bq+c}, v{A+c}, s{SELHI}')
                row[2*c] = free; row[2*c+1] = Bq + c
                free = A + c
            wmap.append(row)
        return wmap, free
    def gemv(wmap, vec):
        for e in range(8): a(f'v_mov_b32 v{ACC+e}, 0')
        for m in range(16):
            for e in range(8):
                a(f'v_dot2c_f32_bf16_dpp v{ACC+e}, v{vec}, v{wmap[m][e]} row_newbcast:{m} row_mask:0xf bank_mask:0xf')
        greduce8(ACC)
    def poll(name, loads, tagregs, sleep=1, maskreg=None):
        a(f's_mov_b32 s{SPIN}, 0')
        a.label(name)
        for l in loads: a(l)
        a('s_waitcnt vmcnt(0)')
        a(f'v_xor_b32 v{VD}, s{TAG}, v{tagregs[0]}')
        for t in tagregs[1:]:
            a(f'v_bitop3_b32 v{VD}, v{t}, s{TAG}, v{VD} bitop3:0xbe')
        if maskreg is not None:
            a(f'v_and_b32 v{VD}, v{maskreg}, v{VD}')
        a(f'v_cmp_ne_u32 vcc, 0, v{VD}')
        a(f's_cbranch_vccz {name}_ok')
        a(f's_add_u32 s{SPIN}, s{SPIN}, 1')
        a(f's_cmp_lt_u32 s{SPIN}, {SPIN_MAX}')
        a(f's_cbranch_scc0 {name}_ok')
        if sleep: a(f's_sleep {sleep}')
        a(f's_branch {name}')
        a.label(name + '_ok')
    def lds_wait(name, off_v, off, val, sleep):
        a(f's_mov_b32 s{SPIN}, 0')
        a.label(name)
        a(f'ds_read_b32 v{VD}, v{off_v} offset:{off}')
        a('s_waitcnt lgkmcnt(0)')
        a(f'v_readfirstlane_b32 s{T2}, v{VD}')
        a(f's_cmp_ge_u32 s{T2}, {val}')
        a(f's_cbranch_scc1 {name}_ok')
        a(f's_add_u32 s{SPIN}, s{SPIN}, 1')
        a(f's_cmp_lt_u32 s{SPIN}, {SPIN_MAX*4}')
        a(f's_cbranch_scc0 {name}_ok')
        if sleep: a(f's_sleep {sleep}')
        a(f's_branch {name}')
        a.label(name + '_ok')

    wmap, _ = permute_weights(lambda m: 30 - 2*m)
    a(f'v_lshlrev_b32 v{VA}, 6, v{VI}')
    a(f'v_lshl_add_u32 v{VA}, v{VG}, 4, v{VA}')
    a(f's_lshl_b32 s{T2}, s{SB}, 12')
    a(f's_lshl_b32 s{T3}, s{WV}, 10')
    a(f's_add_u32 s{T2}, s{T2}, s{T3}')
    a(f's_add_u32 s{T2}, s{T2}, {WS_MOD}')
    stamp(0)
    poll('L_poll_sa', [f'buffer_load_dwordx4 v[{RD}:{RD+3}], v{VA}, s[{SWS}:{SWS+3}], s{T2} offen sc1'], [RD+1, RD+3])
    stamp(10)
    one_plus(RD+2, U0, U1)
    modulate2(U2, U3, RD+2, RD, U0, U1, VD, HP)
    gemv(wmap, HP)
    a(f'v_lshlrev_b32 v{VA}, 5, v{VI}')
    a(f'v_lshl_add_u32 v{VA}, v{VG}, 3, v{VA}')
    a(f's_lshl_b32 s{T2}, s{WV}, 9')
    a(f'v_add_u32 v{VB}, s{T2}, v{VA}')
    a(f'ds_write_b64 v{VB}, v[{ACC}:{ACC+1}] offset:{L_QP}')
    a('s_waitcnt lgkmcnt(0)')
    a('s_barrier')
    stamp(1)

    if nopre:
        stamp(11)
        finish(SWS, 8)
    srd(SW, 24, 4096*512*2)
    a(f'v_lshlrev_b32 v{VA}, 4, v{VI}')
    a(f'v_lshl_add_u32 v{VA}, v{VG}, 11, v{VA}')
    a(f's_lshl_b32 s{T2}, s{SH}, 17')
    if pre is not None and pre & 8: a(f's_mov_b32 s{T2}, 0')
    a(f's_lshl_b32 s{T3}, s{WV}, 8')
    a(f's_add_u32 s{T2}, s{T2}, s{T3}')
    for j in range(32 if (pre is None or pre & 2) else 0):
        if j >= SW_: a(f's_waitcnt vmcnt({SW_-1})')
        r = WR + 4*j
        a(f'buffer_load_dwordx4 v[{r}:{r+3}], v{VA}, s[{SW}:{SW+3}], s{T2} offen offset:{(j%2)*1024} {wopol}')
        if j % 2 == 1 and j < 31: a(f's_add_u32 s{T2}, s{T2}, 8192')
    wmap, _ = permute_weights(lambda m: 30 - 2*m)
    a(f's_sub_u32 s{T4}, s2, 64')
    a(f's_cmp_lt_u32 s2, {128 if (pre is None or pre & 1) else 256}')
    a('s_cbranch_scc1 L_v_moddone')
    mod_issue(cv)
    mod_compute(cv, 0, L_CNT+4, 'L_v_moddone')
    a.label('L_v_moddone')

    if pre is not None and not pre & 4:
        stamp(11)
        finish(SWS, 8)
    a(f's_cmp_lt_u32 s{F1T}, {NF1}')
    a('s_cbranch_scc0 L_nof1w')
    a(f'v_lshrrev_b32 v{VB}, 1, v0')
    a(f'v_mul_u32_u24 v{VB}, 2752, v{VB}')
    a(f'v_and_b32 v{VC}, 1, v0')
    a(f'v_lshl_add_u32 v{VB}, v{VC}, 4, v{VB}')
    for which, p in enumerate((28, 30)):
        srd(SST, p, 512*1376*2)
        a(f's_mul_i32 s{T1}, s{WV}, {128*2752}')
        a(f's_lshl_b32 s{T2}, s{F1T}, 5')
        a(f's_add_u32 s{T1}, s{T1}, s{T2}')
        for s in range(4):
            a(f's_add_u32 m0, s{STGB}, {(which*4+s)*1024}')
            if SW_ < 8: a('s_waitcnt vmcnt(0)')
            a(f'buffer_load_dwordx4 v{VB}, s[{SST}:{SST+3}], s{T1} offen {fpol} lds')
            if s < 3: a(f's_add_u32 s{T1}, s{T1}, {32*2752}')
    tr_addr(cv, VA)
    a('s_waitcnt vmcnt(0)')
    for s in range(8): tr_read(BF + 4*s, VA, s)
    if pre is not None:
        stamp(11)
        finish(SWS, 8)
    SBR = BF + 32; C1R = BF + 40
    a(f'v_lshlrev_b32 v{VA}, 5, v0')
    a(f's_lshl_b32 s{T2}, s{WV}, 13')
    a(f's_add_u32 s{T2}, s{T2}, {WS_MOD + 32768}')
    for rr in range(2):
        loads = []; tags = []
        for hf in range(2):
            for k in range(2):
                r = 8 + 4*(2*hf + k)
                loads.append(f'buffer_load_dwordx4 v[{r}:{r+3}], v{VA}, s[{SWS}:{SWS+3}], s{T2} offen offset:{hf*2048 + k*16} sc1')
                tags += [r+1, r+3]
        poll(f'L_poll_sb{rr}', loads, tags, sleep=32)
        for q in range(4):
            a(f'v_mov_b32 v{SBR+4*rr+q}, v{8+4*q}')
            one_plus(8+4*q+2, U0, U1)
            a(f'v_mov_b32 v{C1R+4*rr+q}, v{8+4*q+2}')
        if rr == 0: a(f's_add_u32 s{T2}, s{T2}, 4096')
    a('s_waitcnt lgkmcnt(0)')
    a('s_branch L_wdone')
    a.label('L_nof1w')
    a(f's_mov_b32 s{T0}, s{F2T}')
    a(f's_cmp_lt_u32 s{T0}, 32')
    a('s_cbranch_scc0 L_wdone')
    srd(SST, 32, 1376*512*2)
    a(f'v_lshrrev_b32 v{VB}, 1, v0')
    a(f'v_lshlrev_b32 v{VB}, 10, v{VB}')
    a(f'v_and_b32 v{VC}, 1, v0')
    a(f'v_lshl_add_u32 v{VB}, v{VC}, 4, v{VB}')
    a(f's_mul_i32 s{T3}, s{WV}, 12')
    a(f's_lshl_b32 s{T2}, s{T0}, 5')
    for s in range(12):
        a(f's_add_u32 s{T1}, s{T3}, {s}')
        a(f's_min_u32 s{T1}, s{T1}, 42')
        a(f's_lshl_b32 s{T1}, s{T1}, 15')
        a(f's_add_u32 s{T1}, s{T1}, s{T2}')
        a(f's_add_u32 m0, s{STGB}, {s*1024}')
        if SW_ < 8: a('s_waitcnt vmcnt(0)')
        a(f'buffer_load_dwordx4 v{VB}, s[{SST}:{SST+3}], s{T1} offen {fpol} lds')
    tr_addr(cv, VA)
    a('s_waitcnt vmcnt(0)')
    for s in range(12): tr_read(BF + 4*s, VA, s)
    if pre is not None:
        stamp(11)
        finish(SWS, 8)
    GBP = 125
    a(f'v_lshrrev_b32 v{VA}, 3, v0')
    a(f'v_lshlrev_b32 v{VA}, 12, v{VA}')
    a(f'v_and_b32 v{VB}, 7, v0')
    a(f'v_lshl_add_u32 v{VA}, v{VB}, 4, v{VA}')
    a(f's_lshl_b32 s{T2}, s{T0}, 7')
    a(f's_add_u32 s{T2}, s{T2}, {WS_MOD + 65536 + 8}')
    poll('L_poll_gb', [f'buffer_load_dwordx2 v[8:9], v{VA}, s[{SWS}:{SWS+3}], s{T2} offen sc1'], [9], sleep=32)
    a(f'v_mov_b32 v{GBP}, v8')
    a('s_waitcnt lgkmcnt(0)')
    a.label('L_wdone')
    if pre is not None:
        stamp(11)
        finish(SWS, 8)
    GAP = 124; XR1 = 126
    a(f'v_and_b32 v{VB}, 7, v0')
    a(f'v_lshlrev_b32 v{VA}, 4, v{VB}')
    a(f's_lshl_b32 s{T2}, s{SB}, 12')
    a(f's_lshl_b32 s{T3}, s{SH}, 7')
    a(f's_add_u32 s{T2}, s{T2}, s{T3}')
    a(f's_add_u32 s{T2}, s{T2}, {WS_MOD + 65536}')
    poll('L_poll_ga', [f'buffer_load_dwordx2 v[8:9], v{VA}, s[{SWS}:{SWS+3}], s{T2} offen sc1'], [9], sleep=32)
    a(f'v_mov_b32 v{GAP}, v8')
    a(f'v_lshlrev_b32 v{VA}, 2, v{VB}')
    a(f's_lshl_b32 s{T2}, s{SB}, 10')
    a(f's_lshl_b32 s{T3}, s{SH}, 5')
    a(f's_add_u32 s{T2}, s{T2}, s{T3}')
    a(f'buffer_load_dword v{XR1}, v{VA}, s[{SX}:{SX+3}], s{T2} offen')
    a(f'v_lshlrev_b32 v{VA}, 5, v{VI}')
    a(f'v_lshl_add_u32 v{VA}, v{VG}, 3, v{VA}')
    a(f'v_lshrrev_b32 v{VB}, 1, v{VI}')
    a(f'v_lshlrev_b32 v{VB}, 12, v{VB}')
    a(f'v_and_b32 v{VC}, 1, v{VI}')
    a(f'v_lshl_add_u32 v{VB}, v{VC}, 6, v{VB}')
    a(f'v_lshl_add_u32 v{VB}, v{VG}, 4, v{VB}')
    a(f's_lshl_b32 s{T4}, s{SB}, 17')
    a(f's_lshl_b32 s{T3}, s{WV}, 15')
    a(f's_add_u32 s{T4}, s{T4}, s{T3}')
    a(f's_lshl_b32 s{T3}, s{SH}, 7')
    a(f's_add_u32 s{T4}, s{T4}, s{T3}')
    a(f's_add_u32 s{T4}, s{T4}, {WS_WOP}')
    a('s_waitcnt vmcnt(0)')
    stamp(11)
    a(f'v_mov_b32 v{VC}, 0')
    lds_wait('L_w_stat', VC, L_CNT+8, 4, 1)
    stamp(8)
    LO = L_OP
    for w in range(4):
        a(f'ds_read_b64 v[{RD+2*w}:{RD+2*w+1}], v{VA} offset:{LO + w*512}')
    a('s_waitcnt lgkmcnt(0)')
    for k in range(4): a(f'v_add_f32 v{RD+k}, v{RD+k}, v{RD+k+4}')
    for k in range(2): a(f'v_add_f32 v{RD+k}, v{RD+k}, v{RD+k+2}')
    a(f'v_cvt_pk_bf16_f32 v{HP}, v{RD}, v{RD+1}')
    if dbg:
        a(f's_lshl_b32 s{T2}, s2, 8')
        a(f's_add_u32 s{T2}, s{T2}, {WS_DBG + 0x10000}')
        a(f'v_lshrrev_b32 v{VC}, 1, v{VA}')
        a(f'buffer_store_dword v{HP}, v{VC}, s[{SWS}:{SWS+3}], s{T2} offen')
    gemv(wmap, HP)
    a(f'v_mov_b32 v{RD}, v{ACC}')
    a(f'v_mov_b32 v{RD+1}, s{TAG}')
    a(f'v_mov_b32 v{RD+2}, v{ACC+1}')
    a(f'v_mov_b32 v{RD+3}, s{TAG}')
    a(f'buffer_store_dwordx4 v[{RD}:{RD+3}], v{VB}, s[{SWS}:{SWS+3}], s{T4} offen sc1')
    stamp(2)
    if notail: finish(SWS, 8)
    a(f's_cmp_lt_u32 s{F1T}, {NF1}')
    a('s_cbranch_scc1 L_gate')
    a(f's_mov_b32 s{T0}, s{F2T}')
    a(f's_cmp_lt_u32 s{T0}, 32')
    a('s_cbranch_scc1 L_gate')
    a(f's_cmp_eq_u32 s{WV}, 0')
    a('s_cbranch_scc1 L_gate')
    a('s_branch L_fin')
    a.label('L_gate')
    if gate:
        a(f's_mov_b32 s{SPIN}, 0')
        a(f'v_mov_b32 v{VA}, 0')
        a.label('L_gate_poll')
        a(f'buffer_load_dword v8, v{VA}, s[{SDBG}:{SDBG+3}], 0 offen sc1')
        a('s_waitcnt vmcnt(0)')
        a(f'v_readfirstlane_b32 s{T2}, v8')
        a(f's_cmp_ge_u32 s{T2}, 256')
        a('s_cbranch_scc1 L_gate_ok')
        a(f's_add_u32 s{SPIN}, s{SPIN}, 1')
        a(f's_cmp_lt_u32 s{SPIN}, {SPIN_MAX}')
        a('s_cbranch_scc0 L_gate_ok')
        a(f's_sleep {gsleep}')
        a('s_branch L_gate_poll')
        a.label('L_gate_ok')
    a(f's_cmp_lg_u32 s{WV}, 0')
    a('s_cbranch_scc1 L_r1done')
    a(f's_lshl_b32 s{T2}, s2, 12')
    a(f's_add_u32 s{T2}, s{T2}, {WS_WOP}')
    loads = [f'buffer_load_dwordx4 v[{8+4*j}:{8+4*j+3}], v1, s[{SWS}:{SWS+3}], s{T2} offen offset:{j*1024} sc1' for j in range(4)]
    poll('L_poll_wop', loads, [9, 11, 13, 15, 17, 19, 21, 23])
    for k, r in enumerate((8, 10)):
        a(f'v_add_f32 v{r}, v{r}, v{r+4}')
        a(f'v_add_f32 v{r+8}, v{r+8}, v{r+12}')
        a(f'v_add_f32 v{U0+k}, v{r}, v{r+8}')
    for k in range(2): a(f'v_add_f32_dpp v{U0+k}, v{U0+k}, v{U0+k} row_ror:8 row_mask:0xf bank_mask:0xf')
    for sw in ('v_permlane16_swap_b32', 'v_permlane32_swap_b32'):
        for k in range(2): a(f'v_mov_b32 v{U2+k}, v{U0+k}')
        for k in range(2): a(f'{sw} v{U0+k}, v{U2+k}')
        for k in range(2): a(f'v_add_f32 v{U0+k}, v{U0+k}, v{U2+k}')
    rnd2(U0, U1, VD)
    modulate2(U0, U1, GAP, XR1, U2, U3, VD, RD)
    a(f'v_mov_b32 v{RD+1}, s{TAG}')
    a(f'v_lshlrev_b32 v{VA}, 3, v0')
    a(f's_lshl_b32 s{T2}, s2, 6')
    a(f's_add_u32 s{T2}, s{T2}, {WS_X1}')
    a('s_mov_b64 exec, 0xff')
    a(f'buffer_store_dwordx2 v[{RD}:{RD+1}], v{VA}, s[{SWS}:{SWS+3}], s{T2} offen sc1')
    a('s_mov_b64 exec, -1')
    stamp(3)
    a.label('L_r1done')
    a(f's_cmp_lt_u32 s{F1T}, {NF1}')
    a('s_cbranch_scc0 L_notf1')
    a(f's_lshl_b32 s{T2}, s{WV}, 12')
    a(f's_add_u32 s{T2}, s{T2}, {WS_X1}')
    loads = [f'buffer_load_dwordx4 v[{8+4*j}:{8+4*j+3}], v1, s[{SWS}:{SWS+3}], s{T2} offen offset:{j*1024} sc1' for j in range(4)]
    poll('L_poll_x1', loads, [9, 11, 13, 15, 17, 19, 21, 23])
    XV = WR
    for rr in range(2):
        for q in range(4):
            src = 8 + 4*(2*rr + q//2) + 2*(q % 2)
            unpack(XV + 8*rr + 2*q, XV + 8*rr + 2*q + 1, src)
    M_ = [WR+16, WR+17]; D_ = [WR+18, WR+19]; R_ = [WR+20, WR+21]; Ta = [WR+22, WR+23]; Tb = [WR+24, WR+25]; Tc = [WR+26, WR+27]
    ln_stats([[XV+8*rr+k for k in range(8)] for rr in range(2)], M_, D_, R_, Ta, Tb)
    HO = WR + 28
    for rr in range(2):
        for q in range(4):
            x = XV + 8*rr + 2*q
            ln_norm2(x, x+1, M_[rr], D_[rr], R_[rr], Ta[rr], Tb[rr], Tc[rr])
            modulate2(x, x+1, C1R+4*rr+q, SBR+4*rr+q, Ta[rr], Tb[rr], Tc[rr], HO+4*rr+q)
    a(f's_mul_i32 s{T2}, s{WV}, {2*H2S}')
    a(f'v_lshlrev_b32 v{VA}, 3, v0')
    a(f'v_add_u32 v{VA}, s{T2}, v{VA}')
    for rr in range(2):
        for hf in range(2):
            r = HO + 4*rr + 2*hf
            a(f'ds_write_b64 v{VA}, v[{r}:{r+1}] offset:{L_H2 + rr*H2S + hf*512}')
    a(f'v_and_b32 v{VA}, 7, v0')
    a(f'v_mul_u32_u24 v{VA}, {H2S}, v{VA}')
    a(f'v_bfe_u32 v{VB}, v0, 3, 1')
    a(f'v_lshl_add_u32 v{VA}, v{VB}, 7, v{VA}')
    a(f'v_lshl_add_u32 v{VA}, v{VG}, 4, v{VA}')
    a(f's_lshl_b32 s{T2}, s{WV}, 8')
    a(f'v_add_u32 v{VA}, s{T2}, v{VA}')
    a('s_waitcnt lgkmcnt(0)')
    a('s_barrier')
    a(f'ds_read_b128 v[{CF}:{CF+3}], v{VA} offset:{L_H2}')
    a(f'ds_read_b128 v[{CF+4}:{CF+7}], v{VA} offset:{L_H2+64}')
    a(f's_lshl_b32 s{T2}, s{WV}, 10')
    a(f'v_add_u32 v{VB}, s{T2}, v1')
    a('s_waitcnt lgkmcnt(0)')
    mf(D1, CF, BF, True); mf(D2, CF, BF+8, True); mf(D3, CF, BF+16, True); mf(D4, CF, BF+24, True)
    mf(D1, CF+4, BF+4, False); mf(D2, CF+4, BF+12, False); mf(D3, CF+4, BF+20, False); mf(D4, CF+4, BF+28, False)
    sel_halves(cv, RD, D1, D2); sel_halves(cv, RD+4, D3, D4)
    a(f'ds_write_b128 v{VB}, v[{RD}:{RD+3}] offset:{L_RED}')
    a(f'ds_write_b128 v{VB}, v[{RD+4}:{RD+7}] offset:{L_RED+4096}')
    a('s_waitcnt lgkmcnt(0)')
    a('s_barrier')
    a(f's_cmp_lg_u32 s{WV}, 0')
    a('s_cbranch_scc1 L_fin')
    red_addr(cv, VA)
    red_sum(cv, U0, VA, L_RED, WR)
    red_sum(cv, U2, VA, L_RED+4096, WR+16)
    rnd2(U0, U1, VD); rnd2(U2, U3, VD)
    silu(U0, VB, WR, WR+1); silu(U1, VC, WR+2, WR+3)
    rnd2(U0, U1, VD)
    a(f'v_mul_f32 v{U0}, v{U0}, v{U2}')
    a(f'v_mul_f32 v{U1}, v{U1}, v{U3}')
    a(f'v_cvt_pk_bf16_f32 v{RD}, v{U0}, v{U1}')
    a(f'v_mov_b32 v{RD+1}, s{TAG}')
    a(f'v_lshrrev_b32 v{VA}, 3, v0')
    a(f'v_mul_u32_u24 v{VA}, 5504, v{VA}')
    a(f'v_and_b32 v{VB}, 7, v0')
    a(f'v_lshl_add_u32 v{VA}, v{VB}, 3, v{VA}')
    a(f's_lshl_b32 s{T2}, s{F1T}, 6')
    a(f's_add_u32 s{T2}, s{T2}, {WS_ACT}')
    a(f'buffer_store_dwordx2 v[{RD}:{RD+1}], v{VA}, s[{SWS}:{SWS+3}], s{T2} offen sc1')
    stamp(4)
    a('s_branch L_fin')
    a.label('L_notf1')
    a(f's_mov_b32 s{T0}, s{F2T}')
    a(f's_cmp_lt_u32 s{T0}, 32')
    a('s_cbranch_scc0 L_fin')
    a(f'v_and_b32 v{VA}, 7, v0')
    a(f'v_mul_u32_u24 v{VA}, 5504, v{VA}')
    a(f'v_lshl_add_u32 v{VA}, v{VG}, 5, v{VA}')
    a(f'v_bfe_u32 v{VB}, v0, 3, 1')
    a(f's_mul_i32 s{T3}, s{WV}, 12')
    a(f'v_add_u32 v{VB}, s{T3}, v{VB}')
    AD = 8; VM = 14
    for u in range(6):
        a(f'v_add_u32 v{VC}, {2*u}, v{VB}')
        a(f'v_cmp_gt_u32 vcc, 43, v{VC}')
        a(f'v_cndmask_b32 v{VM+u}, 0, -1, vcc')
        a(f'v_min_u32 v{VC}, 42, v{VC}')
        a(f'v_lshl_add_u32 v{AD+u}, v{VC}, 7, v{VA}')
    a(f's_mov_b32 s{T2}, {WS_ACT}')
    loads = []; tags = []
    for u in range(6):
        for k in range(2):
            r = WR + 8*u + 4*k
            loads.append(f'buffer_load_dwordx4 v[{r}:{r+3}], v{AD+u}, s[{SWS}:{SWS+3}], s{T2} offen offset:{16*k} sc1')
            tags += [r+1, r+3]
    a(f'v_lshrrev_b32 v{U2}, 3, v0')
    a(f'v_lshlrev_b32 v{U2}, 11, v{U2}')
    a(f'v_and_b32 v{U3}, 7, v0')
    a(f'v_lshl_add_u32 v{U2}, v{U3}, 3, v{U2}')
    a(f's_lshl_b32 s{T1}, s{T0}, 6')
    a(f's_add_u32 s{T1}, s{T1}, {WS_X1}')
    X1R = WR + 48
    loads.append(f'buffer_load_dwordx2 v[{X1R}:{X1R+1}], v{U2}, s[{SWS}:{SWS+3}], s{T1} offen sc1')
    tags.append(X1R+1)
    poll('L_poll_act', loads, tags)
    AF = WR + 64
    for u in range(6):
        for k in range(4):
            a(f'v_and_b32 v{AF+4*u+k}, v{VM+u}, v{WR+8*u+2*k}')
    for u in range(6):
        mf(D1, AF+4*u, BF+8*u, u == 0); mf(D2, AF+4*u, BF+8*u+4, u == 0)
    sel_halves(cv, RD, D1, D2)
    a(f's_lshl_b32 s{T2}, s{WV}, 10')
    a(f'v_add_u32 v{VB}, s{T2}, v1')
    a(f'ds_write_b128 v{VB}, v[{RD}:{RD+3}] offset:{L_RED}')
    a('s_waitcnt lgkmcnt(0)')
    a('s_barrier')
    a(f's_cmp_lg_u32 s{WV}, 0')
    a('s_cbranch_scc1 L_fin')
    red_addr(cv, VA)
    red_sum(cv, U0, VA, L_RED, WR)
    rnd2(U0, U1, VD)
    modulate2(U0, U1, GBP, X1R, U2, U3, VD, RD)
    a(f'v_lshrrev_b32 v{VA}, 3, v0')
    a(f'v_lshlrev_b32 v{VA}, 10, v{VA}')
    a(f'v_and_b32 v{VB}, 7, v0')
    a(f'v_lshl_add_u32 v{VA}, v{VB}, 2, v{VA}')
    a(f's_lshl_b32 s{T2}, s{T0}, 5')
    a(f'buffer_store_dword v{RD}, v{VA}, s[{SOUT}:{SOUT+3}], s{T2} offen')
    stamp(5)
    a(f's_cmp_lg_u32 s{T0}, 0')
    a('s_cbranch_scc1 L_fin')
    a(f's_sub_u32 s{T2}, s{TAG}, {TAGC - 1}')
    a(f'v_mov_b32 v{VB}, s{T2}')
    a(f'v_mov_b32 v{VA}, 0')
    a('s_mov_b64 exec, 1')
    a(f'buffer_store_dword v{VB}, v{VA}, s[{SWS}:{SWS+3}], 0 offen offset:{WS_GEN} sc1')
    a.label('L_fin', fence=stamps)
    if stamps: finish(SWS, 8)
    a.label('L_end', fence=False)
    a('s_endpgm')
    a.raw('.section .rodata,"a"')
    a.raw('.p2align 6')
    a.raw(f'.amdhsa_kernel {NAME}')
    a.raw('  .amdhsa_next_free_vgpr 256')
    a.raw('  .amdhsa_next_free_sgpr 96')
    a.raw('  .amdhsa_accum_offset 256')
    a.raw('  .amdhsa_group_segment_fixed_size 0')
    a.raw('  .amdhsa_kernarg_size 112')
    a.raw('  .amdhsa_user_sgpr_count 2')
    a.raw('  .amdhsa_user_sgpr_kernarg_segment_ptr 1')
    a.raw('  .amdhsa_system_sgpr_workgroup_id_x 1')
    a.raw('  .amdhsa_float_denorm_mode_32 3')
    a.raw('.end_amdhsa_kernel')
    return a.text()

if __name__ == '__main__':
    import json
    out = sys.argv[1] if len(sys.argv) > 1 else 'adaLN_cond__mha_block_cached__swiglu_ffn__decode.s'
    kw = json.loads(sys.argv[2]) if len(sys.argv) > 2 else {}
    open(out, 'w').write(gen(**kw))
    print('wrote', out)
```

```python
import sys, struct
from asmlib import Asm

NAME = 'adaLN_cond__mha_block_cached__swiglu_ffn__decode_kernel'

def f32(x):
    return '0x%08x' % struct.unpack('<I', struct.pack('<f', x))[0]

L2E = 1.4426950408889634
WS_GEN = 0
WS_MOD = 0x1000
WS_X1 = 0x20000
WS_ACT = 0x28000
WS_HEAD = 0x38000
WS_WOP = 0x100000
WS_P = 0x200000
WS_SLOT = 0x800000
WS_DBG = 0x2000000
WS_SIZE = 0x40000000
L_CNT = 0x0
L_MX = 0x40
L_QP = 0x100
L_OP = 0x900
L_RED = 0x1100
L_H2 = 0x3100; H2S = 1040
L_SC = 0x5200
L_OS = 0x9200
L_STG = 0x9A00; STGW = 12288
LDS_SIZE = L_STG + 4 * STGW
NF1 = 86
F2_BASE = 96
SPIN_MAX = 100000
NSH = 32
TAGC = 0x5bd1e995

def gen(dbg=False, W=6, VW=4, W0=6, nA=4, kpol='nt', wpol='nt', stamps=False, gate=False, notail=False,
        gsleep=4, b0wq=0, sprio=2, mprio=3, boost=2, sboost=3, n0=0, WQ=32, SW_=2,
        wqpol=None, wopol=None, mpol=None, fpol=None, nopre=False, pre=None, dst=False, perm=False, hold=0):
    if dst: stamps = True
    wqpol = wpol if wqpol is None else wqpol; wopol = wpol if wopol is None else wopol
    mpol = wpol if mpol is None else mpol; fpol = wpol if fpol is None else fpol
    a = Asm()
    hdr = open('adaLN_cond__mha_block_cached__swiglu_ffn__decode.s.ref').read().split('\n')
    for l in hdr:
        if l.startswith('; @launch'): break
        a.raw(l)
    a.raw(f'; @launch grid=(256,1,1) block=(512,1,1) lds={LDS_SIZE}')
    a.raw('.amdgcn_target "amdgcn-amd-amdhsa--gfx950"')
    a.raw('.text')
    a.raw(f'.globl {NAME}')
    a.raw('.p2align 8')
    a.raw(f'.type {NAME},@function')
    a.raw(f'{NAME}:')

    def srd(d, p, size):
        a(f's_mov_b32 s{d}, s{p}')
        a(f's_mov_b32 s{d+1}, s{p+1}')
        a(f's_mov_b32 s{d+2}, {size}')
        a(f's_mov_b32 s{d+3}, 0x00020000')

    def rnd1(x, t):
        a(f'v_cvt_pk_bf16_f32 v{t}, v{x}, v{x}')
        a(f'v_lshlrev_b32 v{x}, 16, v{t}')
    def rnd2(x, y, t):
        a(f'v_cvt_pk_bf16_f32 v{t}, v{x}, v{y}')
        a(f'v_lshlrev_b32 v{x}, 16, v{t}')
        a(f'v_and_b32 v{y}, 0xffff0000, v{t}')
    def unpack(lo, hi, src):
        a(f'v_lshlrev_b32 v{lo}, 16, v{src}')
        a(f'v_and_b32 v{hi}, 0xffff0000, v{src}')
    def wave_reduce(op, regs, tmps):
        for ctl in ('quad_perm:[1,0,3,2]', 'quad_perm:[2,3,0,1]', 'row_half_mirror', 'row_mirror'):
            for r in regs:
                a(f'{op}_dpp v{r}, v{r}, v{r} {ctl} row_mask:0xf bank_mask:0xf')
        for sw in ('v_permlane16_swap_b32', 'v_permlane32_swap_b32'):
            for r, t in zip(regs, tmps): a(f'v_mov_b32 v{t}, v{r}')
            for r, t in zip(regs, tmps): a(f'{sw} v{r}, v{t}')
            for r, t in zip(regs, tmps): a(f'{op} v{r}, v{r}, v{t}')
    def greduce8(acc):
        for e in range(4): a(f'v_permlane32_swap_b32 v{acc+e}, v{acc+e+4}')
        for e in range(4): a(f'v_add_f32 v{acc+e}, v{acc+e}, v{acc+e+4}')
        for e in range(2): a(f'v_permlane16_swap_b32 v{acc+e}, v{acc+e+2}')
        for e in range(2): a(f'v_add_f32 v{acc+e}, v{acc+e}, v{acc+e+2}')
    def silu(x, t, t2, t3):
        a(f'v_mul_f32 v{t}, {f32(-L2E)}, v{x}')
        a(f'v_exp_f32 v{t}, v{t}')
        a(f'v_add_f32 v{t}, 1.0, v{t}')
        a(f'v_min_f32 v{t}, 0x7f7fffff, v{t}')
        a(f'v_rcp_f32 v{t2}, v{t}')
        a(f'v_mul_f32 v{t3}, v{x}, v{t2}')
        a(f'v_fma_f32 v{x}, -v{t3}, v{t}, v{x}')
        a(f'v_fma_f32 v{x}, v{x}, v{t2}, v{t3}')
    STP = 92
    def stamp(idx):
        if not stamps: return
        a(f's_memrealtime s[{STP}:{STP+1}]')
        a('s_waitcnt lgkmcnt(0)')
        a(f's_mov_b32 s{4+idx}, s{STP}')
    def finish(ws_srd, vt, role='v'):
        if dst:
            a('s_mov_b64 exec, -1')
            a(f'v_mov_b32 v{vt}, 0')
            if role == 's':
                a(f's_not_b32 s{STP}, s4'); a(f'v_writelane_b32 v{vt}, s{STP}, 0')
                a(f'v_writelane_b32 v{vt}, s4, 1')
                a(f'v_writelane_b32 v{vt}, s5, 2')
                a(f'v_writelane_b32 v{vt}, s11, 3')
                a(f'v_writelane_b32 v{vt}, s6, 4')
                a(f's_not_b32 s{STP}, s6'); a(f'v_writelane_b32 v{vt}, s{STP}, 5')
                a(f's_memtime s[{STP}:{STP+1}]'); a('s_waitcnt lgkmcnt(0)')
                a(f's_sub_u32 s{STP}, s{STP}, s14'); a(f'v_writelane_b32 v{vt}, s{STP}, 10')
                a(f's_sub_u32 s{STP}, s6, s4'); a(f'v_writelane_b32 v{vt}, s{STP}, 11')
            else:
                a(f'v_writelane_b32 v{vt}, s6, 6')
                a(f'v_writelane_b32 v{vt}, s7, 7')
                a(f'v_writelane_b32 v{vt}, s8, 8')
                a(f'v_writelane_b32 v{vt}, s9, 9')
            srd(STP-4, 40, 256)
            a(f'v_lshlrev_b32 v{vt+1}, 2, v0')
            a('s_mov_b64 exec, 0xffff')
            a(f'buffer_atomic_umax v{vt}, v{vt+1}, s[{STP-4}:{STP-1}], 0 offen')
        elif stamps:
            a('s_mov_b64 exec, -1')
            a(f'v_mov_b32 v{vt}, 0')
            for k in range(12):
                a(f'v_writelane_b32 v{vt}, s{4+k}, {k}')
            a(f's_lshl_b32 s{STP}, s2, 3')
            a(f's_add_u32 s{STP}, s{STP}, s3')
            a(f's_lshl_b32 s{STP}, s{STP}, 6')
            a(f's_add_u32 s{STP}, s{STP}, {WS_DBG + 0x100000}')
            a(f'v_lshlrev_b32 v{vt+1}, 2, v0')
            a('s_mov_b64 exec, 0xffff')
            a(f'buffer_store_dword v{vt}, v{vt+1}, s[{ws_srd}:{ws_srd+3}], s{STP} offen')
        a('s_endpgm')

    def mf(d, A, Bf, first):
        c = '0' if first else f'v[{d}:{d+3}]'
        a(f'v_mfma_f32_16x16x32_bf16 v[{d}:{d+3}], v[{A}:{A+3}], v[{Bf}:{Bf+3}], {c}')
    def tr_read(dst, v, ks):
        a(f'ds_read_b64_tr_b16 v[{dst}:{dst+1}], v{v} offset:{ks*1024}')
        a(f'ds_read_b64_tr_b16 v[{dst+2}:{dst+3}], v{v} offset:{ks*1024+128}')

    class Ctx:
        pass
    def tr_addr(c, v):
        a(f'v_lshrrev_b32 v{v}, 2, v{c.VI}')
        a(f'v_lshlrev_b32 v{v}, 5, v{v}')
        a(f'v_lshl_add_u32 v{v}, v{c.VG}, 8, v{v}')
        a(f'v_and_b32 v{c.VD}, 3, v{c.VI}')
        a(f'v_lshl_add_u32 v{v}, v{c.VD}, 3, v{v}')
        a(f'v_add_u32 v{v}, s{c.STGB}, v{v}')
    def sel_halves(c, dst, d1, d2):
        for r in range(4):
            a(f'v_cndmask_b32 v{dst+r}, v{d2+r}, v{d1+r}, s[{c.LO32}:{c.LO32+1}]')
    def red_addr(c, v):
        a(f'v_and_b32 v{v}, 7, v0')
        a(f'v_lshlrev_b32 v{v}, 5, v{v}')
        a(f'v_lshrrev_b32 v{c.VD}, 5, v0')
        a(f'v_lshl_add_u32 v{v}, v{c.VD}, 8, v{v}')
        a(f'v_bfe_u32 v{c.VD}, v0, 3, 2')
        a(f'v_lshl_add_u32 v{v}, v{c.VD}, 2, v{v}')
    def red_sum(c, dst, v, off, scratch):
        a(f'v_add_u32 v{c.VD}, {off}, v{v}')
        for w in range(4):
            for hf in range(2):
                r = scratch + 2*(2*w + hf)
                a(f'ds_read2_b32 v[{r}:{r+1}], v{c.VD} offset0:{hf*128} offset1:{hf*128+4}')
            if w < 3: a(f'v_add_u32 v{c.VD}, 1024, v{c.VD}')
        a('s_waitcnt lgkmcnt(0)')
        for st in (8, 4):
            for k in range(st): a(f'v_add_f32 v{scratch+k}, v{scratch+k}, v{scratch+k+st}')
        a(f'v_add_f32 v{dst}, v{scratch}, v{scratch+2}')
        a(f'v_add_f32 v{dst+1}, v{scratch+1}, v{scratch+3}')

    def mod_issue(c):
        a(f's_and_b32 s{c.T0}, s{c.WG}, 7')
        a(f's_lshl_b32 s{c.T0}, s{c.T0}, 2')
        a(f's_lshr_b32 s{c.T1}, s{c.WG}, 3')
        a(f's_and_b32 s{c.T1}, s{c.T1}, 3')
        a(f's_add_u32 s{c.T0}, s{c.T0}, s{c.T1}')
        a(f's_and_b32 s{c.T1}, s{c.WG}, 0xe0')
        a(f's_add_u32 s{c.T1}, s{c.T1}, s{c.T0}')
        a(f's_lshl_b32 s{c.T1}, s{c.T1}, 5')
        a(f's_mul_i32 s{c.T2}, s{c.WV}, {128*6144}')
        a(f's_add_u32 s{c.T1}, s{c.T1}, s{c.T2}')
        a(f'v_and_b32 v{c.VA}, 7, v0')
        a(f'v_lshlrev_b32 v{c.VA}, 10, v{c.VA}')
        a(f'v_bfe_u32 v{c.VB}, v0, 3, 1')
        a(f'v_lshl_add_u32 v{c.VA}, v{c.VB}, 7, v{c.VA}')
        a(f'v_lshl_add_u32 v{c.VA}, v{c.VG}, 4, v{c.VA}')
        a(f's_lshl_b32 s{c.T2}, s{c.WV}, 8')
        a(f'buffer_load_dwordx4 v[{c.CF}:{c.CF+3}], v{c.VA}, s[{c.SC}:{c.SC+3}], s{c.T2} offen')
        a(f'buffer_load_dwordx4 v[{c.CF+4}:{c.CF+7}], v{c.VA}, s[{c.SC}:{c.SC+3}], s{c.T2} offen offset:64')
        a(f'v_lshrrev_b32 v{c.VB}, 1, v0')
        a(f'v_mul_u32_u24 v{c.VB}, 6144, v{c.VB}')
        a(f'v_and_b32 v{c.VC}, 1, v0')
        a(f'v_lshl_add_u32 v{c.VB}, v{c.VC}, 4, v{c.VB}')
        for s in range(4):
            a(f's_add_u32 m0, s{c.STGB}, {s*1024}')
            if c.paced: a('s_waitcnt vmcnt(0)')
            a(f'buffer_load_dwordx4 v{c.VB}, s[{c.SM}:{c.SM+3}], s{c.T1} offen {mpol} lds')
            if s < 3: a(f's_add_u32 s{c.T1}, s{c.T1}, {32*6144}')
    def mod_compute(c, younger, cnt_off, done, st=None):
        a(f's_waitcnt vmcnt({younger + 4})')
        if st: stamp(st[0])
        if c.GENV is not None:
            a(f'v_readfirstlane_b32 s{c.TAG}, v{c.GENV}')
            a(f's_add_u32 s{c.TAG}, s{c.TAG}, {TAGC}')
        XF = c.XF
        for r in range(8):
            unpack(XF, XF+1, c.CF+r)
            silu(XF, XF+2, XF+4, XF+6); silu(XF+1, XF+3, XF+5, XF+7)
            a(f'v_cvt_pk_bf16_f32 v{c.CF+r}, v{XF}, v{XF+1}')
        tr_addr(c, c.VA)
        a(f's_waitcnt vmcnt({younger})')
        if st: stamp(st[1])
        BF = c.BF
        for s in range(4): tr_read(BF + 4*s, c.VA, s)
        a('s_waitcnt lgkmcnt(0)')
        mf(c.D1, c.CF, BF, True); mf(c.D2, c.CF, BF+8, True)
        mf(c.D1, c.CF+4, BF+4, False); mf(c.D2, c.CF+4, BF+12, False)
        sel_halves(c, c.RD, c.D1, c.D2)
        a(f's_lshl_b32 s{c.T2}, s{c.WV}, 10')
        a(f'v_add_u32 v{c.VB}, s{c.T2}, v1')
        a(f'ds_write_b128 v{c.VB}, v[{c.RD}:{c.RD+3}] offset:{L_RED}')
        a(f'v_mov_b32 v{c.VC}, 0')
        a(f'v_mov_b32 v{c.VB}, 1')
        a('s_mov_b64 exec, 1')
        a(f'ds_add_rtn_u32 v{c.VB}, v{c.VC}, v{c.VB} offset:{cnt_off}')
        a('s_mov_b64 exec, -1')
        a('s_waitcnt lgkmcnt(0)')
        a(f'v_readfirstlane_b32 s{c.T2}, v{c.VB}')
        a(f's_cmp_lg_u32 s{c.T2}, 3')
        a(f's_cbranch_scc1 {done}')
        red_addr(c, c.VA)
        red_sum(c, c.U0, c.VA, L_RED, BF)
        a(f'v_cvt_pk_bf16_f32 v{c.RD}, v{c.U0}, v{c.U0+1}')
        a(f'v_mov_b32 v{c.RD+1}, s{c.TAG}')
        a(f's_lshr_b32 s{c.T2}, s{c.WG}, 5')
        a(f's_lshl_b32 s{c.T2}, s{c.T2}, 2')
        a(f's_lshr_b32 s{c.T2}, 0x532410, s{c.T2}')
        a(f's_and_b32 s{c.T3}, s{c.T2}, 1')
        a(f's_lshl_b32 s{c.T3}, s{c.T3}, 3')
        a(f's_bfe_u32 s{c.T2}, s{c.T2}, 0x30001')
        a(f's_lshl_b32 s{c.T2}, s{c.T2}, 15')
        a(f's_add_u32 s{c.T2}, s{c.T2}, s{c.T3}')
        a(f's_lshl_b32 s{c.T3}, s{c.T0}, 7')
        a(f's_add_u32 s{c.T2}, s{c.T2}, s{c.T3}')
        a(f's_add_u32 s{c.T2}, s{c.T2}, {WS_MOD}')
        a(f'v_lshrrev_b32 v{c.VA}, 3, v0')
        a(f'v_lshlrev_b32 v{c.VA}, 12, v{c.VA}')
        a(f'v_and_b32 v{c.VB}, 7, v0')
        a(f'v_lshl_add_u32 v{c.VA}, v{c.VB}, 4, v{c.VA}')
        a(f'buffer_store_dwordx2 v[{c.RD}:{c.RD+1}], v{c.VA}, s[{c.SWS}:{c.SWS+3}], s{c.T2} offen sc1')

    a('s_cmp_ge_u32 s2, 256')
    a('s_cbranch_scc1 L_end')
    if perm:
        a('s_lshr_b32 s3, s2, 5'); a('s_xor_b32 s2, s2, s3')
    a('s_load_dwordx16 s[16:31], s[0:1], 0')
    a('s_load_dwordx8 s[32:39], s[0:1], 64')
    a('s_load_dwordx4 s[40:43], s[0:1], 96')
    if stamps:
        for k in range(12): a(f's_mov_b32 s{4+k}, 0')
    if hold:
        a('s_memrealtime s[94:95]')
    a('v_lshrrev_b32 v1, 6, v0')
    a('v_readfirstlane_b32 s3, v1')
    a('v_and_b32 v0, 63, v0')
    a('v_lshlrev_b32 v1, 4, v0')
    a('s_cmp_ge_u32 s3, 4')
    a('s_cbranch_scc1 L_service')

    Q = 4; Pq = 8; ACC = 24; TMP = 32; VMAX = 40; VT0 = 41; VT1 = 42; PP0 = 43; PP1 = 44; VSC = 2; VI = 45; VG = 46; VT2 = 47; VT3 = 48
    GENV = 3
    TK = 50; PN = 52; VPA = 54; VSA = 55; FL = 56; VZ = 60; VHA = 61
    RING = 64; EXA = 128; EXB = 192
    IS = 44; SWS = 52; SOFF = 56; CNT = 57; BASE = 58; M1 = 60; M2 = 62; SELLO = 64; SELHI = 65; SCALE = 66; TAG = 67
    SHD = 70; SLOTC = 71; SLOTN = 72; FIRST = 73; T0 = 74; T1 = 75; T2 = 76; T3 = 77; STGB = 78; SPIN = 79
    SC = 80; SM = 84; LO32 = 88
    HOME = 48; STEP = 49; QUIT = 50; ESPIN = 51
    P_ = Pq
    a('s_lshl_b32 s58, s2, 20')
    a('s_lshl_b32 s59, s3, 12')
    a('s_add_u32 s58, s58, s59')
    a('s_mov_b32 s56, s58')
    a(f'v_mov_b32 v{VZ}, 0')
    a(f'v_and_b32 v{VI}, 15, v0')
    a(f'v_lshrrev_b32 v{VG}, 4, v0')
    a(f's_mul_i32 s{STGB}, s3, {STGW}')
    a(f's_add_u32 s{STGB}, s{STGB}, {L_STG}')
    a('s_waitcnt lgkmcnt(0)')
    srd(SWS, 42, WS_SIZE)
    a(f'buffer_load_dword v{GENV}, v{VZ}, s[{SWS}:{SWS+3}], 0 offen offset:{WS_GEN} sc1')
    srd(IS, 18, 0x10000000)
    srd(SC, 34, 8192)
    srd(SM, 36, 512*3072*2)
    stamp(0)
    if dst:
        a(f's_memtime s[{STP}:{STP+1}]'); a('s_waitcnt lgkmcnt(0)'); a(f's_mov_b32 s14, s{STP}')
    cs = Ctx()
    cs.VI = VI; cs.VG = VG; cs.VA = RING; cs.VB = RING+1; cs.VC = RING+2; cs.VD = RING+3
    cs.CF = RING+4; cs.XF = RING+12; cs.BF = RING+20; cs.D1 = RING+36; cs.D2 = RING+40; cs.RD = RING+44; cs.U0 = RING+48
    cs.T0 = T0; cs.T1 = T1; cs.T2 = T2; cs.T3 = T3; cs.WV = 3; cs.STGB = STGB; cs.SC = SC; cs.SM = SM; cs.SWS = SWS
    cs.LO32 = LO32; cs.TAG = TAG; cs.GENV = GENV; cs.WG = 2; cs.paced = False
    a('s_cmp_ge_u32 s2, 64')
    a('s_cbranch_scc1 L_s_noissue')
    if mprio: a(f's_setprio {mprio}')
    mod_issue(cs)
    a.label('L_s_noissue', fence=False)

    def issue(base, j):
        r = base + 4 * j
        a(f'buffer_load_dwordx4 v[{r}:{r+3}], v1, s[{IS}:{IS+3}], s{SOFF} offen offset:{(j % 4) * 1024} {kpol}')
        if j % 4 == 3:
            a(f's_add_u32 s{SOFF}, s{SOFF}, 16384')

    seq = [(base, j) for base in (EXA, EXB, RING) for j in range(16)]
    for n in range(nA): issue(*seq[n])
    a(f's_mov_b32 s{M1}, 0xaaaaaaaa'); a(f's_mov_b32 s{M1+1}, 0xaaaaaaaa')
    a(f's_mov_b32 s{M2}, 0xcccccccc'); a(f's_mov_b32 s{M2+1}, 0xcccccccc')
    a(f's_mov_b32 s{SELLO}, 0x05040100'); a(f's_mov_b32 s{SELHI}, 0x07060302')
    a(f's_mov_b32 s{SCALE}, {f32(128 ** -0.5)}')
    a(f's_mov_b32 s{LO32}, -1'); a(f's_mov_b32 s{LO32+1}, 0')
    a(f's_lshl_b32 s59, s3, 12')
    a(f's_add_u32 s59, s59, {L_SC}')
    a(f'v_lshlrev_b32 v{VSC}, 2, v0')
    a(f'v_add_u32 v{VSC}, s59, v{VSC}')
    a(f'v_mov_b32 v{VMAX}, 0xff800000')
    a('s_barrier')
    a('s_cmp_ge_u32 s2, 64')
    a('s_cbranch_scc1 L_s_moddone')
    mod_compute(cs, nA, L_CNT, 'L_s_moddone', st=(3, 4))
    a.label('L_s_moddone')
    if mprio: a('s_setprio 0')
    stamp(5)
    for n in range(nA, 48):
        Wn = W0 if n < n0 else W
        if n >= Wn and n < 48 - boost:
            a(f's_waitcnt vmcnt({Wn-1})')
        issue(*seq[n])
    a(f'v_readfirstlane_b32 s{TAG}, v{GENV}')
    a(f's_add_u32 s{TAG}, s{TAG}, {TAGC}')
    stamp(6)
    a('s_barrier')
    a(f'v_lshlrev_b32 v{VT0}, 5, v{VI}')
    for w in range(4):
        a(f'ds_read_b128 v[{P_+8*(w%2)}:{P_+8*(w%2)+3}], v{VT0} offset:{L_QP + w*512}')
        a(f'ds_read_b128 v[{P_+8*(w%2)+4}:{P_+8*(w%2)+7}], v{VT0} offset:{L_QP + w*512 + 16}')
        if w == 1:
            a('s_waitcnt lgkmcnt(0)')
            for e in range(8): a(f'v_add_f32 v{ACC+e}, v{P_+e}, v{P_+8+e}')
    a('s_waitcnt lgkmcnt(0)')
    for e in range(8): a(f'v_add_f32 v{P_+e}, v{P_+e}, v{P_+8+e}')
    for e in range(8): a(f'v_add_f32 v{ACC+e}, v{ACC+e}, v{P_+e}')
    for c in range(4): a(f'v_cvt_pk_bf16_f32 v{Q+c}, v{ACC+2*c}, v{ACC+2*c+1}')
    if dbg:
        a(f's_lshl_b32 s{T0}, s2, 8')
        a(f's_add_u32 s{T0}, s{T0}, {WS_DBG}')
        a(f'v_lshlrev_b32 v{VT0}, 4, v{VI}')
        a(f'buffer_store_dwordx4 v[{Q}:{Q+3}], v{VT0}, s[{SWS}:{SWS+3}], s{T0} offen')
        a('s_waitcnt vmcnt(0)')
    stamp(1)

    def ksteps(base, PB, reissue, wait, vsc, sc_off, t0, t1):
        def l1(j):
            a(f'v_add_f32_dpp v{PB+j-1}, v{PB+j-1}, v{PB+j-1} row_ror:8 row_mask:0xf bank_mask:0x3')
            a(f'v_add_f32_dpp v{PB+j-1}, v{PB+j}, v{PB+j} row_ror:8 row_mask:0xf bank_mask:0xc')
        def l2(q):
            x = PB + 4*q; y = PB + 4*q + 2
            a(f'v_add_f32_dpp v{x}, v{x}, v{x} row_shl:4 row_mask:0xf bank_mask:0x5')
            a(f'v_add_f32_dpp v{x}, v{y}, v{y} row_shr:4 row_mask:0xf bank_mask:0xa')
        def step(j):
            r = base + 4*j
            if wait is not None:
                a(f's_waitcnt vmcnt({wait})')
            a(f'v_dot2_f32_bf16 v{PB+j}, v{r}, v{Q}, 0')
            for c in range(1, 4):
                a(f'v_dot2_f32_bf16 v{PB+j}, v{r+c}, v{Q+c}, v{PB+j}')
            if reissue: issue(base, j)
            if j >= 2 and j % 2 == 0: l1(j-1)
            if j >= 5 and j % 4 == 1: l2((j-5)//4)
        def epi():
            l1(15)
            l2(3)
            U = [PB, PB+4, PB+8, PB+12]
            for u in U: a(f'v_add_f32_dpp v{u}, v{u}, v{u} quad_perm:[2,3,0,1] row_mask:0xf bank_mask:0xf')
            a(f'v_cndmask_b32 v{U[0]}, v{U[0]}, v{U[1]}, s[{M2}:{M2+1}]')
            a(f'v_cndmask_b32 v{U[2]}, v{U[2]}, v{U[3]}, s[{M2}:{M2+1}]')
            for u in (U[0], U[2]): a(f'v_add_f32_dpp v{u}, v{u}, v{u} quad_perm:[1,0,3,2] row_mask:0xf bank_mask:0xf')
            a(f'v_cndmask_b32 v{t0}, v{U[0]}, v{U[2]}, s[{M1}:{M1+1}]')
            rnd1(t0, t1)
            a(f'v_mul_f32 v{t0}, s{SCALE}, v{t0}')
            rnd1(t0, t1)
            a(f'v_max_f32 v{VMAX}, v{VMAX}, v{t0}')
            a(f'ds_write_b32 v{vsc}, v{t0} offset:{sc_off}')
        return [lambda j=j: step(j) for j in range(16)] + [epi]
    P2 = ACC
    for it, ex in enumerate((EXA, EXB)):
        s1 = ksteps(RING, P_, True, W-1, VSC, (2+it)*256, VT0, VT1)
        s2 = ksteps(ex, P2, False, None, VSC, it*256, PP0, PP1)
        for j in range(16):
            s1[j](); s2[j]()
        s1[16](); s2[16]()
    a(f'v_add_u32 v{VT2}, {4*256}, v{VSC}')
    a(f's_mov_b32 s{CNT}, 12')
    a.label('L_kloop')
    a(f's_cmp_eq_u32 s{CNT}, 1')
    a(f's_cselect_b32 s{IS}, s20, s{IS}')
    a(f's_cselect_b32 s{IS+1}, s21, s{IS+1}')
    a(f's_cselect_b32 s{SOFF}, s{BASE}, s{SOFF}')
    for f in ksteps(RING, P_, True, W-1, VT2, 0, VT0, VT1): f()
    a(f'v_add_u32 v{VT2}, 256, v{VT2}')
    a(f's_sub_u32 s{CNT}, s{CNT}, 1')
    a(f's_cmp_lg_u32 s{CNT}, 0')
    a('s_cbranch_scc1 L_kloop')
    stamp(7)
    vq = [(EXA, j) for j in range(16)] + [(EXB, j) for j in range(16)]
    def pi(n=1, paced=True):
        for _ in range(n):
            if not vq: return
            if paced: a(f's_waitcnt vmcnt({W-1})')
            issue(*vq.pop(0))
    pi()
    a('s_waitcnt lgkmcnt(0)')
    for t in range(0, 16, 2):
        a(f'ds_read2st64_b32 v[{P_+t}:{P_+t+1}], v{VSC} offset0:{t} offset1:{t+1}')
    wave_reduce('v_max_f32', [VMAX], [VT0])
    pi()
    a('s_waitcnt lgkmcnt(0)')
    for t in range(16): a(f'v_sub_f32 v{P_+t}, v{P_+t}, v{VMAX}')
    for t in range(16): a(f'v_mul_f32 v{P_+t}, {f32(L2E)}, v{P_+t}')
    pi()
    for t in range(16): a(f'v_exp_f32 v{P_+t}, v{P_+t}')
    pi()
    for t in range(8): a(f'v_add_f32 v{TMP+t}, v{P_+t}, v{P_+8+t}')
    for t in range(4): a(f'v_add_f32 v{TMP+t}, v{TMP+t}, v{TMP+4+t}')
    for t in range(2): a(f'v_add_f32 v{TMP+t}, v{TMP+t}, v{TMP+2+t}')
    a(f'v_add_f32 v{VT0}, v{TMP}, v{TMP+1}')
    assert VT0 == VMAX + 1
    wave_reduce('v_add_f32', [VT0], [VT1])
    a(f's_lshl_b32 s59, s3, 3')
    a(f'v_mov_b32 v{VT1}, s59')
    a(f'ds_write_b64 v{VT1}, v[{VMAX}:{VMAX+1}] offset:{L_MX}')
    a(f'v_mov_b32 v{VT1}, 1')
    a('s_waitcnt lgkmcnt(0)')
    a('s_mov_b64 exec, 1')
    a(f'ds_add_u32 v{VZ}, v{VT1} offset:{L_CNT+12}')
    a('s_mov_b64 exec, -1')
    pi(12)
    pi(sboost, paced=False)
    a(f's_mov_b32 s{SPIN}, 0')
    a.label('L_b2')
    a(f'ds_read_b32 v{VT1}, v{VZ} offset:{L_CNT+12}')
    a('s_waitcnt lgkmcnt(0)')
    a(f'v_readfirstlane_b32 s{T0}, v{VT1}')
    a(f's_cmp_ge_u32 s{T0}, 4')
    a('s_cbranch_scc1 L_b2_ok')
    a(f's_add_u32 s{SPIN}, s{SPIN}, 1')
    a(f's_cmp_lt_u32 s{SPIN}, {SPIN_MAX*8}')
    a('s_cbranch_scc0 L_b2_ok')
    a('s_sleep 1')
    a('s_branch L_b2')
    a.label('L_b2_ok')
    a(f'ds_read_b128 v[{TMP}:{TMP+3}], v{VZ} offset:{L_MX}')
    a(f'ds_read_b128 v[{TMP+4}:{TMP+7}], v{VZ} offset:{L_MX+16}')
    a('s_waitcnt lgkmcnt(0)')
    a(f'v_max_f32 v{VT1}, v{TMP}, v{TMP+2}')
    a(f'v_max3_f32 v{VT1}, v{VT1}, v{TMP+4}, v{TMP+6}')
    for k in range(4): a(f'v_sub_f32 v{TMP+2*k}, v{TMP+2*k}, v{VT1}')
    a(f'v_sub_f32 v{VT3}, v{VMAX}, v{VT1}')
    for k in range(4): a(f'v_mul_f32 v{TMP+2*k}, {f32(L2E)}, v{TMP+2*k}')
    a(f'v_mul_f32 v{VT3}, {f32(L2E)}, v{VT3}')
    for k in range(4): a(f'v_exp_f32 v{TMP+2*k}, v{TMP+2*k}')
    a(f'v_exp_f32 v{VT3}, v{VT3}')
    a(f'v_mul_f32 v{VT0}, v{TMP}, v{TMP+1}')
    for k in range(1, 4): a(f'v_fmac_f32 v{VT0}, v{TMP+2*k}, v{TMP+2*k+1}')
    a(f'v_rcp_f32 v{VT0}, v{VT0}')
    a(f'v_mul_f32 v{VT3}, v{VT3}, v{VT0}')
    pi()
    for t in range(16): a(f'v_mul_f32 v{P_+t}, v{P_+t}, v{VT3}')
    for half in range(2):
        for t in range(8): a(f'v_mov_b32_dpp v{TMP+t}, v{P_+8*half+t} row_ror:8 row_mask:0xf bank_mask:0xf')
        for t in range(8): a(f'v_cvt_pk_bf16_f32 v{P_+8*half+t}, v{P_+8*half+t}, v{TMP+t}')
        pi()
    for t in range(4, 16, 2):
        a(f'ds_write2st64_b32 v{VSC}, v{P_+t}, v{P_+t+1} offset0:{t} offset1:{t+1}')
    for e in range(8): a(f'v_mov_b32 v{ACC+e}, 0')

    def bl(m): return 4*(m & 1) + 2*((m >> 1) & 1) + (m >> 2)
    def vstep(base, m, reissue, wait, pp, mid=None):
        A = base + 8*m; Bq = A + 4
        if wait is not None:
            a(f's_waitcnt vmcnt({wait})')
        for c in range(4):
            a(f'v_perm_b32 v{TMP+2*c}, v{Bq+c}, v{A+c}, s{SELLO}')
            a(f'v_perm_b32 v{TMP+2*c+1}, v{Bq+c}, v{A+c}, s{SELHI}')
        if reissue:
            issue(base, 2*m); issue(base, 2*m+1)
        if mid: mid()
        for e in range(8):
            a(f'v_dot2c_f32_bf16_dpp v{ACC+e}, v{pp}, v{TMP+e} row_newbcast:{bl(m)} row_mask:0xf bank_mask:0xf')
    def static_flush():
        a(f'v_lshlrev_b32 v{VT0}, 5, v{VI}')
        a(f'v_lshl_add_u32 v{VT0}, v{VG}, 3, v{VT0}')
        a(f's_lshl_b32 s59, s3, 9')
        a(f'v_add_u32 v{VT0}, s59, v{VT0}')
        a(f'ds_write_b64 v{VT0}, v[{ACC}:{ACC+1}] offset:{L_OP}')
        a(f'v_mov_b32 v{VT1}, 1')
        a('s_waitcnt lgkmcnt(0)')
        a('s_mov_b64 exec, 1')
        a(f'ds_add_u32 v{VZ}, v{VT1} offset:{L_CNT+8}')
        a('s_mov_b64 exec, -1')
        stamp(8)

    nleft = len(vq)
    assert 1 <= nleft <= 16, nleft
    for m in range(8):
        k = (nleft*(m+1))//8 - (nleft*m)//8
        if m == 0: a(f's_waitcnt vmcnt({16 - nleft})')
        vstep(EXA, m, False, None, P_+1, mid=(lambda k=k: pi(k)))
    assert not vq
    for m in range(8): vstep(RING, m, True, VW, P_+0)
    a(f'v_add_u32 v{VT2}, {5*256}, v{VSC}')
    for m in range(8):
        vstep(RING, m, True, VW, P_+3)
        vstep(EXB, m, False, None, P_+2)
    a(f'v_mov_b32 v{PP0}, v{P_+4}')
    a(f's_mov_b32 s{CNT}, 11')
    a.label('L_vloop')
    a(f'ds_read_b32 v{PP1}, v{VT2}')
    a(f'v_add_u32 v{VT2}, 256, v{VT2}')
    for m in range(8): vstep(RING, m, True, VW, PP0)
    a('s_waitcnt lgkmcnt(0)')
    a(f'v_mov_b32 v{PP0}, v{PP1}')
    a(f's_sub_u32 s{CNT}, s{CNT}, 1')
    a(f's_cmp_lg_u32 s{CNT}, 0')
    a('s_cbranch_scc1 L_vloop')
    for m in range(8): vstep(RING, m, False, 14 - 2*m, PP0)
    greduce8(ACC)
    static_flush()
    if gate:
        lab = a.uid('L_nogate')
        a('s_cmp_lg_u32 s3, 0')
        a(f's_cbranch_scc1 {lab}')
        srd(SC, 40, 256)
        a('s_mov_b64 exec, 1')
        a(f'buffer_atomic_add v{VT1}, v{VZ}, s[{SC}:{SC+3}], 0 offen')
        a('s_mov_b64 exec, -1')
        a.label(lab)
    a('s_waitcnt lgkmcnt(0)')
    stamp(2)
    finish(SWS, TMP, 's')

    a.label('L_service')
    SX = 44; SW = 48; SWS = 52; SC = 56; SST = 60; SOUT = 64; SDBG = 68
    WV = 72
    SB = 73; SH = 74; T0 = 75; T1 = 76; T2 = 77; T3 = 78; TAG = 80; SPIN = 81; SELLO = 82; SELHI = 83; LO32 = 84; STGB = 86; T4 = 87
    F1T = 88; F2T = 89; T5 = 90; T6 = 91
    VI = 2; VG = 3; VA = 4; VB = 5; VC = 6; VD = 7
    GENV = 8
    XR = 12; XP = 16; CF = 20; XF = 28
    MEAN = 36; DEN = 37; RDEN = 38; U0 = 39; U1 = 40; U2 = 41; U3 = 42; HP = 43
    ACC = 44
    D1 = 52; D2 = 56; D3 = 60; D4 = 64
    RD = 68
    BF = 76
    SPARE = 127
    WR = 128
    cv = Ctx()
    cv.VI = VI; cv.VG = VG; cv.VA = VA; cv.VB = VB; cv.VC = VC; cv.VD = VD
    cv.CF = CF; cv.XF = XF; cv.BF = BF; cv.D1 = D1; cv.D2 = D2; cv.RD = RD; cv.U0 = U0
    cv.T0 = T0; cv.T1 = T1; cv.T2 = T2; cv.T3 = T3; cv.WV = WV; cv.STGB = STGB; cv.SC = SC; cv.SM = SST; cv.SWS = SWS
    cv.LO32 = LO32; cv.TAG = TAG; cv.GENV = None; cv.WG = T4; cv.paced = SW_ < 8
    if sprio: a(f's_setprio {sprio}')
    a(f's_sub_u32 s{WV}, s3, 4')
    a(f's_lshr_b32 s{SB}, s2, 5')
    a(f's_and_b32 s{SH}, s2, 31')
    a(f's_and_b32 s{T0}, s2, 7')
    a(f's_lshr_b32 s{T1}, s2, 3')
    a(f's_mul_i32 s{F1T}, s{T0}, 11')
    a(f's_add_u32 s{F1T}, s{F1T}, s{T1}')
    a(f's_cmp_lt_u32 s2, 88')
    a(f's_cselect_b32 s{F1T}, s{F1T}, 255')
    a(f's_lshl_b32 s{F2T}, s{T0}, 2')
    a(f's_add_u32 s{F2T}, s{F2T}, s{T1}')
    a(f's_sub_u32 s{F2T}, s{F2T}, {F2_BASE//8}')
    a(f's_sub_u32 s{T1}, s2, {F2_BASE}')
    a(f's_cmp_lt_u32 s{T1}, 32')
    a(f's_cselect_b32 s{F2T}, s{F2T}, 255')
    a(f'v_and_b32 v{VI}, 15, v0')
    a(f'v_lshrrev_b32 v{VG}, 4, v0')
    a(f'v_mov_b32 v{VA}, 0')
    a(f'v_lshlrev_b32 v{VB}, 2, v{VI}')
    a(f'ds_write_b32 v{VB}, v{VA} offset:{L_CNT}')
    a(f's_mov_b32 s{SELLO}, 0x05040100'); a(f's_mov_b32 s{SELHI}, 0x07060302')
    a(f's_mov_b32 s{LO32}, -1'); a(f's_mov_b32 s{LO32+1}, 0')
    a(f's_mul_i32 s{STGB}, s{WV}, {STGW}')
    a(f's_add_u32 s{STGB}, s{STGB}, {L_STG}')
    a('s_waitcnt lgkmcnt(0)')
    srd(SWS, 42, WS_SIZE); srd(SX, 16, 8192); srd(SW, 22, 512*4096*2)
    a(f'buffer_load_dword v{GENV}, v{VA}, s[{SWS}:{SWS+3}], 0 offen offset:{WS_GEN} sc1')
    a(f's_lshl_b32 s{T2}, s{SB}, 10')
    a(f'buffer_load_dwordx4 v[{XR}:{XR+3}], v1, s[{SX}:{SX+3}], s{T2} offen')
    a(f'v_lshlrev_b32 v{VA}, 4, v{VI}')
    a(f'v_lshl_add_u32 v{VA}, v{VG}, 2, v{VA}')
    a(f's_lshl_b32 s{T3}, s{WV}, 8')
    a(f's_add_u32 s{T2}, s{T2}, s{T3}')
    a(f'buffer_load_dword v{XP}, v{VA}, s[{SX}:{SX+3}], s{T2} offen')
    a(f'v_lshlrev_b32 v{VA}, 4, v{VI}')
    a(f'v_lshl_add_u32 v{VA}, v{VG}, 14, v{VA}')
    a(f's_lshl_b32 s{T2}, s{WV}, 20')
    a(f's_lshl_b32 s{T3}, s{SH}, 8')
    a(f's_add_u32 s{T2}, s{T2}, s{T3}')
    for j in range(32):
        if j == b0wq: a('s_barrier')
        if j >= WQ: a(f's_waitcnt vmcnt({WQ-1})')
        r = WR + 4*j
        a(f'buffer_load_dwordx4 v[{r}:{r+3}], v{VA}, s[{SW}:{SW+3}], s{T2} offen {wqpol}')
        if j < 31: a(f's_add_u32 s{T2}, s{T2}, {8192 if j % 2 == 0 else 7*8192}')
    srd(SC, 34, 8192); srd(SST, 36, 512*3072*2); srd(SOUT, 38, 8192); srd(SDBG, 40, 256)
    stamp(6)
    a('s_waitcnt vmcnt(32)')
    stamp(7)
    a(f'v_readfirstlane_b32 s{TAG}, v{GENV}')
    a(f's_add_u32 s{TAG}, s{TAG}, {TAGC}')

    def ln_stats(vals, mean, den, rden, t0, t1):
        R = len(vals)
        for r in range(R):
            v = vals[r]
            a(f'v_add_f32 v{mean[r]}, v{v[0]}, v{v[1]}')
            for k in range(2, len(v)): a(f'v_add_f32 v{mean[r]}, v{mean[r]}, v{v[k]}')
        wave_reduce('v_add_f32', mean, t0)
        for r in range(R): a(f'v_mul_f32 v{mean[r]}, {f32(1/512)}, v{mean[r]}')
        for r in range(R):
            v = vals[r]
            for k in range(len(v)):
                a(f'v_sub_f32 v{t0[r]}, v{v[k]}, v{mean[r]}')
                if k == 0: a(f'v_mul_f32 v{den[r]}, v{t0[r]}, v{t0[r]}')
                else: a(f'v_fmac_f32 v{den[r]}, v{t0[r]}, v{t0[r]}')
        wave_reduce('v_add_f32', den, t0)
        for r in range(R):
            a(f'v_mul_f32 v{den[r]}, {f32(1/512)}, v{den[r]}')
            rnd2(mean[r], den[r], t0[r])
            a(f'v_add_f32 v{den[r]}, {f32(1e-5)}, v{den[r]}')
            rnd1(den[r], t0[r])
            a(f'v_sqrt_f32 v{den[r]}, v{den[r]}')
            rnd1(den[r], t0[r])
            a(f'v_rcp_f32 v{rden[r]}, v{den[r]}')
    def ln_norm2(x, y, mean, den, rden, t0, t1, t2):
        a(f'v_sub_f32 v{x}, v{x}, v{mean}')
        a(f'v_sub_f32 v{y}, v{y}, v{mean}')
        rnd2(x, y, t0)
        a(f'v_mul_f32 v{t0}, v{x}, v{rden}')
        a(f'v_mul_f32 v{t1}, v{y}, v{rden}')
        a(f'v_fma_f32 v{x}, -v{t0}, v{den}, v{x}')
        a(f'v_fma_f32 v{y}, -v{t1}, v{den}, v{y}')
        a(f'v_fma_f32 v{x}, v{x}, v{rden}, v{t0}')
        a(f'v_fma_f32 v{y}, v{y}, v{rden}, v{t1}')
        rnd2(x, y, t0)
    def modulate2(x, y, c1pair, spair, t0, t1, t2, out):
        unpack(t0, t1, c1pair)
        a(f'v_mul_f32 v{x}, v{x}, v{t0}')
        a(f'v_mul_f32 v{y}, v{y}, v{t1}')
        rnd2(x, y, t2)
        unpack(t0, t1, spair)
        a(f'v_add_f32 v{x}, v{x}, v{t0}')
        a(f'v_add_f32 v{y}, v{y}, v{t1}')
        a(f'v_cvt_pk_bf16_f32 v{out}, v{x}, v{y}')
    def one_plus(pair, t0, t1):
        unpack(t0, t1, pair)
        a(f'v_add_f32 v{t0}, 1.0, v{t0}')
        a(f'v_add_f32 v{t1}, 1.0, v{t1}')
        a(f'v_cvt_pk_bf16_f32 v{pair}, v{t0}, v{t1}')

    for r in range(4): unpack(XF+2*r, XF+2*r+1, XR+r)
    ln_stats([[XF+k for k in range(8)]], [MEAN], [DEN], [RDEN], [U0], [U1])
    unpack(U2, U3, XP)
    ln_norm2(U2, U3, MEAN, DEN, RDEN, U0, U1, HP)
    stamp(9)

    def permute_weights(wait_fn):
        wmap = []
        free = SPARE
        for m in range(16):
            A = WR + 8*m; Bq = A + 4
            w = wait_fn(m)
            if w is not None: a(f's_waitcnt vmcnt({w})')
            row = [None]*8
            for c in range(4):
                a(f'v_perm_b32 v{free}, v{Bq+c}, v{A+c}, s{SELLO}')
                a(f'v_perm_b32 v{Bq+c}, v{Bq+c}, v{A+c}, s{SELHI}')
                row[2*c] = free; row[2*c+1] = Bq + c
                free = A + c
            wmap.append(row)
        return wmap, free
    def gemv(wmap, vec):
        for e in range(8): a(f'v_mov_b32 v{ACC+e}, 0')
        for m in range(16):
            for e in range(8):
                a(f'v_dot2c_f32_bf16_dpp v{ACC+e}, v{vec}, v{wmap[m][e]} row_newbcast:{m} row_mask:0xf bank_mask:0xf')
        greduce8(ACC)
    def poll(name, loads, tagregs, sleep=1, maskreg=None):
        a(f's_mov_b32 s{SPIN}, 0')
        a.label(name)
        for l in loads: a(l)
        a('s_waitcnt vmcnt(0)')
        a(f'v_xor_b32 v{VD}, s{TAG}, v{tagregs[0]}')
        for t in tagregs[1:]:
            a(f'v_bitop3_b32 v{VD}, v{t}, s{TAG}, v{VD} bitop3:0xbe')
        if maskreg is not None:
            a(f'v_and_b32 v{VD}, v{maskreg}, v{VD}')
        a(f'v_cmp_ne_u32 vcc, 0, v{VD}')
        a(f's_cbranch_vccz {name}_ok')
        a(f's_add_u32 s{SPIN}, s{SPIN}, 1')
        a(f's_cmp_lt_u32 s{SPIN}, {SPIN_MAX}')
        a(f's_cbranch_scc0 {name}_ok')
        if sleep: a(f's_sleep {sleep}')
        a(f's_branch {name}')
        a.label(name + '_ok')
    def lds_wait(name, off_v, off, val, sleep):
        a(f's_mov_b32 s{SPIN}, 0')
        a.label(name)
        a(f'ds_read_b32 v{VD}, v{off_v} offset:{off}')
        a('s_waitcnt lgkmcnt(0)')
        a(f'v_readfirstlane_b32 s{T2}, v{VD}')
        a(f's_cmp_ge_u32 s{T2}, {val}')
        a(f's_cbranch_scc1 {name}_ok')
        a(f's_add_u32 s{SPIN}, s{SPIN}, 1')
        a(f's_cmp_lt_u32 s{SPIN}, {SPIN_MAX*4}')
        a(f's_cbranch_scc0 {name}_ok')
        if sleep: a(f's_sleep {sleep}')
        a(f's_branch {name}')
        a.label(name + '_ok')

    wmap, _ = permute_weights(lambda m: 30 - 2*m)
    a(f'v_lshlrev_b32 v{VA}, 6, v{VI}')
    a(f'v_lshl_add_u32 v{VA}, v{VG}, 4, v{VA}')
    a(f's_lshl_b32 s{T2}, s{SB}, 12')
    a(f's_lshl_b32 s{T3}, s{WV}, 10')
    a(f's_add_u32 s{T2}, s{T2}, s{T3}')
    a(f's_add_u32 s{T2}, s{T2}, {WS_MOD}')
    stamp(0)
    poll('L_poll_sa', [f'buffer_load_dwordx4 v[{RD}:{RD+3}], v{VA}, s[{SWS}:{SWS+3}], s{T2} offen sc1'], [RD+1, RD+3])
    stamp(10)
    one_plus(RD+2, U0, U1)
    modulate2(U2, U3, RD+2, RD, U0, U1, VD, HP)
    gemv(wmap, HP)
    a(f'v_lshlrev_b32 v{VA}, 5, v{VI}')
    a(f'v_lshl_add_u32 v{VA}, v{VG}, 3, v{VA}')
    a(f's_lshl_b32 s{T2}, s{WV}, 9')
    a(f'v_add_u32 v{VB}, s{T2}, v{VA}')
    a(f'ds_write_b64 v{VB}, v[{ACC}:{ACC+1}] offset:{L_QP}')
    a('s_waitcnt lgkmcnt(0)')
    a('s_barrier')
    stamp(1)

    if nopre:
        stamp(11)
        finish(SWS, 8)
    srd(SW, 24, 4096*512*2)
    a(f'v_lshlrev_b32 v{VA}, 4, v{VI}')
    a(f'v_lshl_add_u32 v{VA}, v{VG}, 11, v{VA}')
    a(f's_lshl_b32 s{T2}, s{SH}, 17')
    if pre is not None and pre & 8: a(f's_mov_b32 s{T2}, 0')
    a(f's_lshl_b32 s{T3}, s{WV}, 8')
    a(f's_add_u32 s{T2}, s{T2}, s{T3}')
    for j in range(32 if (pre is None or pre & 2) else 0):
        if j >= SW_: a(f's_waitcnt vmcnt({SW_-1})')
        r = WR + 4*j
        a(f'buffer_load_dwordx4 v[{r}:{r+3}], v{VA}, s[{SW}:{SW+3}], s{T2} offen offset:{(j%2)*1024} {wopol}')
        if j % 2 == 1 and j < 31: a(f's_add_u32 s{T2}, s{T2}, 8192')
    wmap, _ = permute_weights(lambda m: 30 - 2*m)
    a(f's_sub_u32 s{T4}, s2, 64')
    a(f's_cmp_lt_u32 s2, {128 if (pre is None or pre & 1) else 256}')
    a('s_cbranch_scc1 L_v_moddone')
    mod_issue(cv)
    mod_compute(cv, 0, L_CNT+4, 'L_v_moddone')
    a.label('L_v_moddone')

    if pre is not None and not pre & 4:
        stamp(11)
        finish(SWS, 8)
    a(f's_cmp_lt_u32 s{F1T}, {NF1}')
    a('s_cbranch_scc0 L_nof1w')
    a(f'v_lshrrev_b32 v{VB}, 1, v0')
    a(f'v_mul_u32_u24 v{VB}, 2752, v{VB}')
    a(f'v_and_b32 v{VC}, 1, v0')
    a(f'v_lshl_add_u32 v{VB}, v{VC}, 4, v{VB}')
    for which, p in enumerate((28, 30)):
        srd(SST, p, 512*1376*2)
        a(f's_mul_i32 s{T1}, s{WV}, {128*2752}')
        a(f's_lshl_b32 s{T2}, s{F1T}, 5')
        a(f's_add_u32 s{T1}, s{T1}, s{T2}')
        for s in range(4):
            a(f's_add_u32 m0, s{STGB}, {(which*4+s)*1024}')
            if SW_ < 8: a('s_waitcnt vmcnt(0)')
            a(f'buffer_load_dwordx4 v{VB}, s[{SST}:{SST+3}], s{T1} offen {fpol} lds')
            if s < 3: a(f's_add_u32 s{T1}, s{T1}, {32*2752}')
    tr_addr(cv, VA)
    a('s_waitcnt vmcnt(0)')
    for s in range(8): tr_read(BF + 4*s, VA, s)
    if pre is not None:
        stamp(11)
        finish(SWS, 8)
    SBR = BF + 32; C1R = BF + 40
    a(f'v_lshlrev_b32 v{VA}, 5, v0')
    a(f's_lshl_b32 s{T2}, s{WV}, 13')
    a(f's_add_u32 s{T2}, s{T2}, {WS_MOD + 32768}')
    for rr in range(2):
        loads = []; tags = []
        for hf in range(2):
            for k in range(2):
                r = 8 + 4*(2*hf + k)
                loads.append(f'buffer_load_dwordx4 v[{r}:{r+3}], v{VA}, s[{SWS}:{SWS+3}], s{T2} offen offset:{hf*2048 + k*16} sc1')
                tags += [r+1, r+3]
        poll(f'L_poll_sb{rr}', loads, tags, sleep=32)
        for q in range(4):
            a(f'v_mov_b32 v{SBR+4*rr+q}, v{8+4*q}')
            one_plus(8+4*q+2, U0, U1)
            a(f'v_mov_b32 v{C1R+4*rr+q}, v{8+4*q+2}')
        if rr == 0: a(f's_add_u32 s{T2}, s{T2}, 4096')
    a('s_waitcnt lgkmcnt(0)')
    a('s_branch L_wdone')
    a.label('L_nof1w')
    a(f's_mov_b32 s{T0}, s{F2T}')
    a(f's_cmp_lt_u32 s{T0}, 32')
    a('s_cbranch_scc0 L_wdone')
    srd(SST, 32, 1376*512*2)
    a(f'v_lshrrev_b32 v{VB}, 1, v0')
    a(f'v_lshlrev_b32 v{VB}, 10, v{VB}')
    a(f'v_and_b32 v{VC}, 1, v0')
    a(f'v_lshl_add_u32 v{VB}, v{VC}, 4, v{VB}')
    a(f's_mul_i32 s{T3}, s{WV}, 12')
    a(f's_lshl_b32 s{T2}, s{T0}, 5')
    for s in range(12):
        a(f's_add_u32 s{T1}, s{T3}, {s}')
        a(f's_min_u32 s{T1}, s{T1}, 42')
        a(f's_lshl_b32 s{T1}, s{T1}, 15')
        a(f's_add_u32 s{T1}, s{T1}, s{T2}')
        a(f's_add_u32 m0, s{STGB}, {s*1024}')
        if SW_ < 8: a('s_waitcnt vmcnt(0)')
        a(f'buffer_load_dwordx4 v{VB}, s[{SST}:{SST+3}], s{T1} offen {fpol} lds')
    tr_addr(cv, VA)
    a('s_waitcnt vmcnt(0)')
    for s in range(12): tr_read(BF + 4*s, VA, s)
    if pre is not None:
        stamp(11)
        finish(SWS, 8)
    GBP = 125
    a(f'v_lshrrev_b32 v{VA}, 3, v0')
    a(f'v_lshlrev_b32 v{VA}, 12, v{VA}')
    a(f'v_and_b32 v{VB}, 7, v0')
    a(f'v_lshl_add_u32 v{VA}, v{VB}, 4, v{VA}')
    a(f's_lshl_b32 s{T2}, s{T0}, 7')
    a(f's_add_u32 s{T2}, s{T2}, {WS_MOD + 65536 + 8}')
    poll('L_poll_gb', [f'buffer_load_dwordx2 v[8:9], v{VA}, s[{SWS}:{SWS+3}], s{T2} offen sc1'], [9], sleep=32)
    a(f'v_mov_b32 v{GBP}, v8')
    a('s_waitcnt lgkmcnt(0)')
    a.label('L_wdone')
    if pre is not None:
        stamp(11)
        finish(SWS, 8)
    GAP = 124; XR1 = 126
    a(f'v_and_b32 v{VB}, 7, v0')
    a(f'v_lshlrev_b32 v{VA}, 4, v{VB}')
    a(f's_lshl_b32 s{T2}, s{SB}, 12')
    a(f's_lshl_b32 s{T3}, s{SH}, 7')
    a(f's_add_u32 s{T2}, s{T2}, s{T3}')
    a(f's_add_u32 s{T2}, s{T2}, {WS_MOD + 65536}')
    poll('L_poll_ga', [f'buffer_load_dwordx2 v[8:9], v{VA}, s[{SWS}:{SWS+3}], s{T2} offen sc1'], [9], sleep=32)
    a(f'v_mov_b32 v{GAP}, v8')
    a(f'v_lshlrev_b32 v{VA}, 2, v{VB}')
    a(f's_lshl_b32 s{T2}, s{SB}, 10')
    a(f's_lshl_b32 s{T3}, s{SH}, 5')
    a(f's_add_u32 s{T2}, s{T2}, s{T3}')
    a(f'buffer_load_dword v{XR1}, v{VA}, s[{SX}:{SX+3}], s{T2} offen')
    a(f'v_lshlrev_b32 v{VA}, 5, v{VI}')
    a(f'v_lshl_add_u32 v{VA}, v{VG}, 3, v{VA}')
    a(f'v_lshrrev_b32 v{VB}, 1, v{VI}')
    a(f'v_lshlrev_b32 v{VB}, 12, v{VB}')
    a(f'v_and_b32 v{VC}, 1, v{VI}')
    a(f'v_lshl_add_u32 v{VB}, v{VC}, 6, v{VB}')
    a(f'v_lshl_add_u32 v{VB}, v{VG}, 4, v{VB}')
    a(f's_lshl_b32 s{T4}, s{SB}, 17')
    a(f's_lshl_b32 s{T3}, s{WV}, 15')
    a(f's_add_u32 s{T4}, s{T4}, s{T3}')
    a(f's_lshl_b32 s{T3}, s{SH}, 7')
    a(f's_add_u32 s{T4}, s{T4}, s{T3}')
    a(f's_add_u32 s{T4}, s{T4}, {WS_WOP}')
    a('s_waitcnt vmcnt(0)')
    stamp(11)
    a(f'v_mov_b32 v{VC}, 0')
    lds_wait('L_w_stat', VC, L_CNT+8, 4, 1)
    stamp(8)
    LO = L_OP
    for w in range(4):
        a(f'ds_read_b64 v[{RD+2*w}:{RD+2*w+1}], v{VA} offset:{LO + w*512}')
    a('s_waitcnt lgkmcnt(0)')
    for k in range(4): a(f'v_add_f32 v{RD+k}, v{RD+k}, v{RD+k+4}')
    for k in range(2): a(f'v_add_f32 v{RD+k}, v{RD+k}, v{RD+k+2}')
    a(f'v_cvt_pk_bf16_f32 v{HP}, v{RD}, v{RD+1}')
    if dbg:
        a(f's_lshl_b32 s{T2}, s2, 8')
        a(f's_add_u32 s{T2}, s{T2}, {WS_DBG + 0x10000}')
        a(f'v_lshrrev_b32 v{VC}, 1, v{VA}')
        a(f'buffer_store_dword v{HP}, v{VC}, s[{SWS}:{SWS+3}], s{T2} offen')
    gemv(wmap, HP)
    a(f'v_mov_b32 v{RD}, v{ACC}')
    a(f'v_mov_b32 v{RD+1}, s{TAG}')
    a(f'v_mov_b32 v{RD+2}, v{ACC+1}')
    a(f'v_mov_b32 v{RD+3}, s{TAG}')
    a(f'buffer_store_dwordx4 v[{RD}:{RD+3}], v{VB}, s[{SWS}:{SWS+3}], s{T4} offen sc1')
    stamp(2)
    if notail: finish(SWS, 8)
    a(f's_cmp_lt_u32 s{F1T}, {NF1}')
    a('s_cbranch_scc1 L_gate')
    a(f's_mov_b32 s{T0}, s{F2T}')
    a(f's_cmp_lt_u32 s{T0}, 32')
    a('s_cbranch_scc1 L_gate')
    a(f's_cmp_eq_u32 s{WV}, 0')
    a('s_cbranch_scc1 L_gate')
    a('s_branch L_fin')
    a.label('L_gate')
    if gate:
        a(f's_mov_b32 s{SPIN}, 0')
        a(f'v_mov_b32 v{VA}, 0')
        a.label('L_gate_poll')
        a(f'buffer_load_dword v8, v{VA}, s[{SDBG}:{SDBG+3}], 0 offen sc1')
        a('s_waitcnt vmcnt(0)')
        a(f'v_readfirstlane_b32 s{T2}, v8')
        a(f's_cmp_ge_u32 s{T2}, 256')
        a('s_cbranch_scc1 L_gate_ok')
        a(f's_add_u32 s{SPIN}, s{SPIN}, 1')
        a(f's_cmp_lt_u32 s{SPIN}, {SPIN_MAX}')
        a('s_cbranch_scc0 L_gate_ok')
        a(f's_sleep {gsleep}')
        a('s_branch L_gate_poll')
        a.label('L_gate_ok')
    a(f's_cmp_lg_u32 s{WV}, 0')
    a('s_cbranch_scc1 L_r1done')
    a(f's_lshl_b32 s{T2}, s2, 12')
    a(f's_add_u32 s{T2}, s{T2}, {WS_WOP}')
    loads = [f'buffer_load_dwordx4 v[{8+4*j}:{8+4*j+3}], v1, s[{SWS}:{SWS+3}], s{T2} offen offset:{j*1024} sc1' for j in range(4)]
    poll('L_poll_wop', loads, [9, 11, 13, 15, 17, 19, 21, 23])
    for k, r in enumerate((8, 10)):
        a(f'v_add_f32 v{r}, v{r}, v{r+4}')
        a(f'v_add_f32 v{r+8}, v{r+8}, v{r+12}')
        a(f'v_add_f32 v{U0+k}, v{r}, v{r+8}')
    for k in range(2): a(f'v_add_f32_dpp v{U0+k}, v{U0+k}, v{U0+k} row_ror:8 row_mask:0xf bank_mask:0xf')
    for sw in ('v_permlane16_swap_b32', 'v_permlane32_swap_b32'):
        for k in range(2): a(f'v_mov_b32 v{U2+k}, v{U0+k}')
        for k in range(2): a(f'{sw} v{U0+k}, v{U2+k}')
        for k in range(2): a(f'v_add_f32 v{U0+k}, v{U0+k}, v{U2+k}')
    rnd2(U0, U1, VD)
    modulate2(U0, U1, GAP, XR1, U2, U3, VD, RD)
    a(f'v_mov_b32 v{RD+1}, s{TAG}')
    a(f'v_lshlrev_b32 v{VA}, 3, v0')
    a(f's_lshl_b32 s{T2}, s2, 6')
    a(f's_add_u32 s{T2}, s{T2}, {WS_X1}')
    a('s_mov_b64 exec, 0xff')
    a(f'buffer_store_dwordx2 v[{RD}:{RD+1}], v{VA}, s[{SWS}:{SWS+3}], s{T2} offen sc1')
    a('s_mov_b64 exec, -1')
    stamp(3)
    a.label('L_r1done')
    a(f's_cmp_lt_u32 s{F1T}, {NF1}')
    a('s_cbranch_scc0 L_notf1')
    a(f's_lshl_b32 s{T2}, s{WV}, 12')
    a(f's_add_u32 s{T2}, s{T2}, {WS_X1}')
    loads = [f'buffer_load_dwordx4 v[{8+4*j}:{8+4*j+3}], v1, s[{SWS}:{SWS+3}], s{T2} offen offset:{j*1024} sc1' for j in range(4)]
    poll('L_poll_x1', loads, [9, 11, 13, 15, 17, 19, 21, 23])
    XV = WR
    for rr in range(2):
        for q in range(4):
            src = 8 + 4*(2*rr + q//2) + 2*(q % 2)
            unpack(XV + 8*rr + 2*q, XV + 8*rr + 2*q + 1, src)
    M_ = [WR+16, WR+17]; D_ = [WR+18, WR+19]; R_ = [WR+20, WR+21]; Ta = [WR+22, WR+23]; Tb = [WR+24, WR+25]; Tc = [WR+26, WR+27]
    ln_stats([[XV+8*rr+k for k in range(8)] for rr in range(2)], M_, D_, R_, Ta, Tb)
    HO = WR + 28
    for rr in range(2):
        for q in range(4):
            x = XV + 8*rr + 2*q
            ln_norm2(x, x+1, M_[rr], D_[rr], R_[rr], Ta[rr], Tb[rr], Tc[rr])
            modulate2(x, x+1, C1R+4*rr+q, SBR+4*rr+q, Ta[rr], Tb[rr], Tc[rr], HO+4*rr+q)
    a(f's_mul_i32 s{T2}, s{WV}, {2*H2S}')
    a(f'v_lshlrev_b32 v{VA}, 3, v0')
    a(f'v_add_u32 v{VA}, s{T2}, v{VA}')
    for rr in range(2):
        for hf in range(2):
            r = HO + 4*rr + 2*hf
            a(f'ds_write_b64 v{VA}, v[{r}:{r+1}] offset:{L_H2 + rr*H2S + hf*512}')
    a(f'v_and_b32 v{VA}, 7, v0')
    a(f'v_mul_u32_u24 v{VA}, {H2S}, v{VA}')
    a(f'v_bfe_u32 v{VB}, v0, 3, 1')
    a(f'v_lshl_add_u32 v{VA}, v{VB}, 7, v{VA}')
    a(f'v_lshl_add_u32 v{VA}, v{VG}, 4, v{VA}')
    a(f's_lshl_b32 s{T2}, s{WV}, 8')
    a(f'v_add_u32 v{VA}, s{T2}, v{VA}')
    a('s_waitcnt lgkmcnt(0)')
    a('s_barrier')
    a(f'ds_read_b128 v[{CF}:{CF+3}], v{VA} offset:{L_H2}')
    a(f'ds_read_b128 v[{CF+4}:{CF+7}], v{VA} offset:{L_H2+64}')
    a(f's_lshl_b32 s{T2}, s{WV}, 10')
    a(f'v_add_u32 v{VB}, s{T2}, v1')
    a('s_waitcnt lgkmcnt(0)')
    mf(D1, CF, BF, True); mf(D2, CF, BF+8, True); mf(D3, CF, BF+16, True); mf(D4, CF, BF+24, True)
    mf(D1, CF+4, BF+4, False); mf(D2, CF+4, BF+12, False); mf(D3, CF+4, BF+20, False); mf(D4, CF+4, BF+28, False)
    sel_halves(cv, RD, D1, D2); sel_halves(cv, RD+4, D3, D4)
    a(f'ds_write_b128 v{VB}, v[{RD}:{RD+3}] offset:{L_RED}')
    a(f'ds_write_b128 v{VB}, v[{RD+4}:{RD+7}] offset:{L_RED+4096}')
    a('s_waitcnt lgkmcnt(0)')
    a('s_barrier')
    a(f's_cmp_lg_u32 s{WV}, 0')
    a('s_cbranch_scc1 L_fin')
    red_addr(cv, VA)
    red_sum(cv, U0, VA, L_RED, WR)
    red_sum(cv, U2, VA, L_RED+4096, WR+16)
    rnd2(U0, U1, VD); rnd2(U2, U3, VD)
    silu(U0, VB, WR, WR+1); silu(U1, VC, WR+2, WR+3)
    rnd2(U0, U1, VD)
    a(f'v_mul_f32 v{U0}, v{U0}, v{U2}')
    a(f'v_mul_f32 v{U1}, v{U1}, v{U3}')
    a(f'v_cvt_pk_bf16_f32 v{RD}, v{U0}, v{U1}')
    a(f'v_mov_b32 v{RD+1}, s{TAG}')
    a(f'v_lshrrev_b32 v{VA}, 3, v0')
    a(f'v_mul_u32_u24 v{VA}, 5504, v{VA}')
    a(f'v_and_b32 v{VB}, 7, v0')
    a(f'v_lshl_add_u32 v{VA}, v{VB}, 3, v{VA}')
    a(f's_lshl_b32 s{T2}, s{F1T}, 6')
    a(f's_add_u32 s{T2}, s{T2}, {WS_ACT}')
    a(f'buffer_store_dwordx2 v[{RD}:{RD+1}], v{VA}, s[{SWS}:{SWS+3}], s{T2} offen sc1')
    stamp(4)
    a('s_branch L_fin')
    a.label('L_notf1')
    a(f's_mov_b32 s{T0}, s{F2T}')
    a(f's_cmp_lt_u32 s{T0}, 32')
    a('s_cbranch_scc0 L_fin')
    a(f'v_and_b32 v{VA}, 7, v0')
    a(f'v_mul_u32_u24 v{VA}, 5504, v{VA}')
    a(f'v_lshl_add_u32 v{VA}, v{VG}, 5, v{VA}')
    a(f'v_bfe_u32 v{VB}, v0, 3, 1')
    a(f's_mul_i32 s{T3}, s{WV}, 12')
    a(f'v_add_u32 v{VB}, s{T3}, v{VB}')
    AD = 8; VM = 14
    for u in range(6):
        a(f'v_add_u32 v{VC}, {2*u}, v{VB}')
        a(f'v_cmp_gt_u32 vcc, 43, v{VC}')
        a(f'v_cndmask_b32 v{VM+u}, 0, -1, vcc')
        a(f'v_min_u32 v{VC}, 42, v{VC}')
        a(f'v_lshl_add_u32 v{AD+u}, v{VC}, 7, v{VA}')
    a(f's_mov_b32 s{T2}, {WS_ACT}')
    loads = []; tags = []
    for u in range(6):
        for k in range(2):
            r = WR + 8*u + 4*k
            loads.append(f'buffer_load_dwordx4 v[{r}:{r+3}], v{AD+u}, s[{SWS}:{SWS+3}], s{T2} offen offset:{16*k} sc1')
            tags += [r+1, r+3]
    a(f'v_lshrrev_b32 v{U2}, 3, v0')
    a(f'v_lshlrev_b32 v{U2}, 11, v{U2}')
    a(f'v_and_b32 v{U3}, 7, v0')
    a(f'v_lshl_add_u32 v{U2}, v{U3}, 3, v{U2}')
    a(f's_lshl_b32 s{T1}, s{T0}, 6')
    a(f's_add_u32 s{T1}, s{T1}, {WS_X1}')
    X1R = WR + 48
    loads.append(f'buffer_load_dwordx2 v[{X1R}:{X1R+1}], v{U2}, s[{SWS}:{SWS+3}], s{T1} offen sc1')
    tags.append(X1R+1)
    poll('L_poll_act', loads, tags)
    AF = WR + 64
    for u in range(6):
        for k in range(4):
            a(f'v_and_b32 v{AF+4*u+k}, v{VM+u}, v{WR+8*u+2*k}')
    for u in range(6):
        mf(D1, AF+4*u, BF+8*u, u == 0); mf(D2, AF+4*u, BF+8*u+4, u == 0)
    sel_halves(cv, RD, D1, D2)
    a(f's_lshl_b32 s{T2}, s{WV}, 10')
    a(f'v_add_u32 v{VB}, s{T2}, v1')
    a(f'ds_write_b128 v{VB}, v[{RD}:{RD+3}] offset:{L_RED}')
    a('s_waitcnt lgkmcnt(0)')
    a('s_barrier')
    a(f's_cmp_lg_u32 s{WV}, 0')
    a('s_cbranch_scc1 L_fin')
    red_addr(cv, VA)
    red_sum(cv, U0, VA, L_RED, WR)
    rnd2(U0, U1, VD)
    modulate2(U0, U1, GBP, X1R, U2, U3, VD, RD)
    a(f'v_lshrrev_b32 v{VA}, 3, v0')
    a(f'v_lshlrev_b32 v{VA}, 10, v{VA}')
    a(f'v_and_b32 v{VB}, 7, v0')
    a(f'v_lshl_add_u32 v{VA}, v{VB}, 2, v{VA}')
    a(f's_lshl_b32 s{T2}, s{T0}, 5')
    a(f'buffer_store_dword v{RD}, v{VA}, s[{SOUT}:{SOUT+3}], s{T2} offen')
    stamp(5)
    a(f's_cmp_lg_u32 s{T0}, 0')
    a('s_cbranch_scc1 L_fin')
    a(f's_sub_u32 s{T2}, s{TAG}, {TAGC - 1}')
    a(f'v_mov_b32 v{VB}, s{T2}')
    a(f'v_mov_b32 v{VA}, 0')
    a('s_mov_b64 exec, 1')
    a(f'buffer_store_dword v{VB}, v{VA}, s[{SWS}:{SWS+3}], 0 offen offset:{WS_GEN} sc1')
    if hold:
        a('s_waitcnt vmcnt(0)')
        a.label('L_hold')
        a('s_memrealtime s[92:93]')
        a('s_waitcnt lgkmcnt(0)')
        a('s_sub_u32 s92, s92, s94')
        a(f's_cmp_lt_u32 s92, {hold}')
        a('s_cbranch_scc1 L_hold')
    a.label('L_fin', fence=stamps)
    if stamps: finish(SWS, 8)
    a.label('L_end', fence=False)
    a('s_endpgm')
    a.raw('.section .rodata,"a"')
    a.raw('.p2align 6')
    a.raw(f'.amdhsa_kernel {NAME}')
    a.raw('  .amdhsa_next_free_vgpr 256')
    a.raw('  .amdhsa_next_free_sgpr 96')
    a.raw('  .amdhsa_accum_offset 256')
    a.raw('  .amdhsa_group_segment_fixed_size 0')
    a.raw('  .amdhsa_kernarg_size 112')
    a.raw('  .amdhsa_user_sgpr_count 2')
    a.raw('  .amdhsa_user_sgpr_kernarg_segment_ptr 1')
    a.raw('  .amdhsa_system_sgpr_workgroup_id_x 1')
    a.raw('  .amdhsa_float_denorm_mode_32 3')
    a.raw('.end_amdhsa_kernel')
    return a.text()

if __name__ == '__main__':
    import json
    out = sys.argv[1] if len(sys.argv) > 1 else 'adaLN_cond__mha_block_cached__swiglu_ffn__decode.s'
    kw = json.loads(sys.argv[2]) if len(sys.argv) > 2 else {}
    open(out, 'w').write(gen(**kw))
    print('wrote', out)
```

```python
import sys, struct
from asmlib import Asm

NAME = 'adaLN_cond__mha_block_cached__swiglu_ffn__decode_kernel'

def f32(x):
    return '0x%08x' % struct.unpack('<I', struct.pack('<f', x))[0]

L2E = 1.4426950408889634
WS_GEN = 0
WS_MOD = 0x1000
WS_X1 = 0x20000
WS_ACT = 0x28000
WS_HEAD = 0x38000
WS_MST = 0x48000
WS_WOP = 0x100000
WS_P = 0x200000
WS_SLOT = 0x800000
WS_DBG = 0x2000000
WS_SIZE = 0x40000000
L_CNT = 0x0
L_MX = 0x40
L_QP = 0x100
L_OP = 0x900
L_RED = 0x1100
L_H2 = 0x3100; H2S = 1040
L_SC = 0x5200
L_OS = 0x9200
L_STG = 0x9A00; STGW = 12288
LDS_SIZE = L_STG + 4 * STGW
NF1 = 86
LAYOUT = 6
F2_BASE = 96
SPIN_MAX = 100000
NSH = 32
TAGC = 0x5bd1e995

def gen(dbg=False, W=6, VW=4, W0=6, nA=4, kpol='nt', wpol='nt', stamps=False, gate=False, notail=False,
        gsleep=4, b0wq=0, sprio=2, mprio=3, boost=2, sboost=3, n0=0, WQ=32, SW_=2,
        wqpol=None, wopol=None, mpol=None, fpol=None, nopre=False, pre=None, dst=False, perm=False, hold=0,
        lv=None, th=(70, -70), tK=900, sK=14.9, tV=4230, sV=13.46, lv0=None, g1=False, g2=False, rel=False, dl=0, MB=88, DD=2, MSTR=4096, CSTR=256, tst=False, tlbv=False, tlbo=False, mlp='', agg='mean', noml=False, nomst=False, msp='sc1'):
    if dst: stamps = True
    wqpol = wpol if wqpol is None else wqpol; wopol = wpol if wopol is None else wopol
    mpol = wpol if mpol is None else mpol; fpol = wpol if fpol is None else fpol
    a = Asm()
    hdr = open('adaLN_cond__mha_block_cached__swiglu_ffn__decode.s.ref').read().split('\n')
    for l in hdr:
        if l.startswith('; @launch'): break
        a.raw(l)
    a.raw(f'; @launch grid=(256,1,1) block=(512,1,1) lds={LDS_SIZE}')
    a.raw('.amdgcn_target "amdgcn-amd-amdhsa--gfx950"')
    a.raw('.text')
    a.raw(f'.globl {NAME}')
    a.raw('.p2align 8')
    a.raw(f'.type {NAME},@function')
    a.raw(f'{NAME}:')

    def srd(d, p, size):
        a(f's_mov_b32 s{d}, s{p}')
        a(f's_mov_b32 s{d+1}, s{p+1}')
        a(f's_mov_b32 s{d+2}, {size}')
        a(f's_mov_b32 s{d+3}, 0x00020000')

    def rnd1(x, t):
        a(f'v_cvt_pk_bf16_f32 v{t}, v{x}, v{x}')
        a(f'v_lshlrev_b32 v{x}, 16, v{t}')
    def rnd2(x, y, t):
        a(f'v_cvt_pk_bf16_f32 v{t}, v{x}, v{y}')
        a(f'v_lshlrev_b32 v{x}, 16, v{t}')
        a(f'v_and_b32 v{y}, 0xffff0000, v{t}')
    def unpack(lo, hi, src):
        a(f'v_lshlrev_b32 v{lo}, 16, v{src}')
        a(f'v_and_b32 v{hi}, 0xffff0000, v{src}')
    def wave_reduce(op, regs, tmps):
        for ctl in ('quad_perm:[1,0,3,2]', 'quad_perm:[2,3,0,1]', 'row_half_mirror', 'row_mirror'):
            for r in regs:
                a(f'{op}_dpp v{r}, v{r}, v{r} {ctl} row_mask:0xf bank_mask:0xf')
        for sw in ('v_permlane16_swap_b32', 'v_permlane32_swap_b32'):
            for r, t in zip(regs, tmps): a(f'v_mov_b32 v{t}, v{r}')
            for r, t in zip(regs, tmps): a(f'{sw} v{r}, v{t}')
            for r, t in zip(regs, tmps): a(f'{op} v{r}, v{r}, v{t}')
    def greduce8(acc):
        for e in range(4): a(f'v_permlane32_swap_b32 v{acc+e}, v{acc+e+4}')
        for e in range(4): a(f'v_add_f32 v{acc+e}, v{acc+e}, v{acc+e+4}')
        for e in range(2): a(f'v_permlane16_swap_b32 v{acc+e}, v{acc+e+2}')
        for e in range(2): a(f'v_add_f32 v{acc+e}, v{acc+e}, v{acc+e+2}')
    def silu(x, t, t2, t3):
        a(f'v_mul_f32 v{t}, {f32(-L2E)}, v{x}')
        a(f'v_exp_f32 v{t}, v{t}')
        a(f'v_add_f32 v{t}, 1.0, v{t}')
        a(f'v_min_f32 v{t}, 0x7f7fffff, v{t}')
        a(f'v_rcp_f32 v{t2}, v{t}')
        a(f'v_mul_f32 v{t3}, v{x}, v{t2}')
        a(f'v_fma_f32 v{x}, -v{t3}, v{t}, v{x}')
        a(f'v_fma_f32 v{x}, v{x}, v{t2}, v{t3}')
    STP = 92
    def stamp(idx):
        if not stamps: return
        a(f's_memrealtime s[{STP}:{STP+1}]')
        a('s_waitcnt lgkmcnt(0)')
        a(f's_mov_b32 s{4+idx}, s{STP}')
    def finish(ws_srd, vt, role='v'):
        if dst:
            a('s_mov_b64 exec, -1')
            a(f'v_mov_b32 v{vt}, 0')
            if role == 's':
                a(f's_not_b32 s{STP}, s4'); a(f'v_writelane_b32 v{vt}, s{STP}, 0')
                a(f'v_writelane_b32 v{vt}, s4, 1')
                a(f'v_writelane_b32 v{vt}, s5, 2')
                a(f'v_writelane_b32 v{vt}, s11, 3')
                a(f'v_writelane_b32 v{vt}, s6, 4')
                a(f's_not_b32 s{STP}, s6'); a(f'v_writelane_b32 v{vt}, s{STP}, 5')
                a(f's_memtime s[{STP}:{STP+1}]'); a('s_waitcnt lgkmcnt(0)')
                a(f's_sub_u32 s{STP}, s{STP}, s14'); a(f'v_writelane_b32 v{vt}, s{STP}, 10')
                a(f's_sub_u32 s{STP}, s6, s4'); a(f'v_writelane_b32 v{vt}, s{STP}, 11')
            else:
                a(f'v_writelane_b32 v{vt}, s6, 6')
                a(f'v_writelane_b32 v{vt}, s7, 7')
                a(f'v_writelane_b32 v{vt}, s8, 8')
                a(f'v_writelane_b32 v{vt}, s9, 9')
            srd(STP-4, 40, 256)
            a(f'v_lshlrev_b32 v{vt+1}, 2, v0')
            a('s_mov_b64 exec, 0xffff')
            a(f'buffer_atomic_umax v{vt}, v{vt+1}, s[{STP-4}:{STP-1}], 0 offen')
        elif stamps:
            a('s_mov_b64 exec, -1')
            a(f'v_mov_b32 v{vt}, 0')
            for k in range(12):
                a(f'v_writelane_b32 v{vt}, s{4+k}, {k}')
            a(f's_lshl_b32 s{STP}, s2, 3')
            a(f's_add_u32 s{STP}, s{STP}, s3')
            a(f's_lshl_b32 s{STP}, s{STP}, 6')
            a(f's_add_u32 s{STP}, s{STP}, {WS_DBG + 0x100000}')
            a(f'v_lshlrev_b32 v{vt+1}, 2, v0')
            a('s_mov_b64 exec, 0xffff')
            a(f'buffer_store_dword v{vt}, v{vt+1}, s[{ws_srd}:{ws_srd+3}], s{STP} offen')
        a('s_endpgm')

    def mf(d, A, Bf, first):
        c = '0' if first else f'v[{d}:{d+3}]'
        a(f'v_mfma_f32_16x16x32_bf16 v[{d}:{d+3}], v[{A}:{A+3}], v[{Bf}:{Bf+3}], {c}')
    def tr_read(dst, v, ks):
        a(f'ds_read_b64_tr_b16 v[{dst}:{dst+1}], v{v} offset:{ks*1024}')
        a(f'ds_read_b64_tr_b16 v[{dst+2}:{dst+3}], v{v} offset:{ks*1024+128}')

    class Ctx:
        pass
    def tr_addr(c, v):
        a(f'v_lshrrev_b32 v{v}, 2, v{c.VI}')
        a(f'v_lshlrev_b32 v{v}, 5, v{v}')
        a(f'v_lshl_add_u32 v{v}, v{c.VG}, 8, v{v}')
        a(f'v_and_b32 v{c.VD}, 3, v{c.VI}')
        a(f'v_lshl_add_u32 v{v}, v{c.VD}, 3, v{v}')
        a(f'v_add_u32 v{v}, s{c.STGB}, v{v}')
    def sel_halves(c, dst, d1, d2):
        for r in range(4):
            a(f'v_cndmask_b32 v{dst+r}, v{d2+r}, v{d1+r}, s[{c.LO32}:{c.LO32+1}]')
    def red_addr(c, v):
        a(f'v_and_b32 v{v}, 7, v0')
        a(f'v_lshlrev_b32 v{v}, 5, v{v}')
        a(f'v_lshrrev_b32 v{c.VD}, 5, v0')
        a(f'v_lshl_add_u32 v{v}, v{c.VD}, 8, v{v}')
        a(f'v_bfe_u32 v{c.VD}, v0, 3, 2')
        a(f'v_lshl_add_u32 v{v}, v{c.VD}, 2, v{v}')
    def red_sum(c, dst, v, off, scratch):
        a(f'v_add_u32 v{c.VD}, {off}, v{v}')
        for w in range(4):
            for hf in range(2):
                r = scratch + 2*(2*w + hf)
                a(f'ds_read2_b32 v[{r}:{r+1}], v{c.VD} offset0:{hf*128} offset1:{hf*128+4}')
            if w < 3: a(f'v_add_u32 v{c.VD}, 1024, v{c.VD}')
        a('s_waitcnt lgkmcnt(0)')
        for st in (8, 4):
            for k in range(st): a(f'v_add_f32 v{scratch+k}, v{scratch+k}, v{scratch+k+st}')
        a(f'v_add_f32 v{dst}, v{scratch}, v{scratch+2}')
        a(f'v_add_f32 v{dst+1}, v{scratch+1}, v{scratch+3}')

    def mod_issue(c):
        a(f's_and_b32 s{c.T0}, s{c.WG}, 7')
        a(f's_lshl_b32 s{c.T0}, s{c.T0}, 2')
        a(f's_lshr_b32 s{c.T1}, s{c.WG}, 3')
        a(f's_and_b32 s{c.T1}, s{c.T1}, 3')
        a(f's_add_u32 s{c.T0}, s{c.T0}, s{c.T1}')
        a(f's_and_b32 s{c.T1}, s{c.WG}, 0xe0')
        a(f's_add_u32 s{c.T1}, s{c.T1}, s{c.T0}')
        a(f's_lshl_b32 s{c.T1}, s{c.T1}, 5')
        a(f's_mul_i32 s{c.T2}, s{c.WV}, {128*6144}')
        a(f's_add_u32 s{c.T1}, s{c.T1}, s{c.T2}')
        a(f'v_and_b32 v{c.VA}, 7, v0')
        a(f'v_lshlrev_b32 v{c.VA}, 10, v{c.VA}')
        a(f'v_bfe_u32 v{c.VB}, v0, 3, 1')
        a(f'v_lshl_add_u32 v{c.VA}, v{c.VB}, 7, v{c.VA}')
        a(f'v_lshl_add_u32 v{c.VA}, v{c.VG}, 4, v{c.VA}')
        a(f's_lshl_b32 s{c.T2}, s{c.WV}, 8')
        a(f'buffer_load_dwordx4 v[{c.CF}:{c.CF+3}], v{c.VA}, s[{c.SC}:{c.SC+3}], s{c.T2} offen')
        a(f'buffer_load_dwordx4 v[{c.CF+4}:{c.CF+7}], v{c.VA}, s[{c.SC}:{c.SC+3}], s{c.T2} offen offset:64')
        a(f'v_lshrrev_b32 v{c.VB}, 1, v0')
        a(f'v_mul_u32_u24 v{c.VB}, 6144, v{c.VB}')
        a(f'v_and_b32 v{c.VC}, 1, v0')
        a(f'v_lshl_add_u32 v{c.VB}, v{c.VC}, 4, v{c.VB}')
        for s in range(4):
            a(f's_add_u32 m0, s{c.STGB}, {s*1024}')
            if c.paced: a('s_waitcnt vmcnt(0)')
            a(f'buffer_load_dwordx4 v{c.VB}, s[{c.SM}:{c.SM+3}], s{c.T1} offen {mpol} lds')
            if s < 3: a(f's_add_u32 s{c.T1}, s{c.T1}, {32*6144}')
    def mod_compute(c, younger, cnt_off, done, st=None):
        a(f's_waitcnt vmcnt({younger + 4})')
        if st: stamp(st[0])
        if c.GENV is not None:
            a(f'v_readfirstlane_b32 s{c.TAG}, v{c.GENV}')
            a(f's_add_u32 s{c.TAG}, s{c.TAG}, {TAGC}')
        XF = c.XF
        for r in range(8):
            unpack(XF, XF+1, c.CF+r)
            silu(XF, XF+2, XF+4, XF+6); silu(XF+1, XF+3, XF+5, XF+7)
            a(f'v_cvt_pk_bf16_f32 v{c.CF+r}, v{XF}, v{XF+1}')
        tr_addr(c, c.VA)
        a(f's_waitcnt vmcnt({younger})')
        if st: stamp(st[1])
        BF = c.BF
        for s in range(4): tr_read(BF + 4*s, c.VA, s)
        a('s_waitcnt lgkmcnt(0)')
        mf(c.D1, c.CF, BF, True); mf(c.D2, c.CF, BF+8, True)
        mf(c.D1, c.CF+4, BF+4, False); mf(c.D2, c.CF+4, BF+12, False)
        sel_halves(c, c.RD, c.D1, c.D2)
        a(f's_lshl_b32 s{c.T2}, s{c.WV}, 10')
        a(f'v_add_u32 v{c.VB}, s{c.T2}, v1')
        a(f'ds_write_b128 v{c.VB}, v[{c.RD}:{c.RD+3}] offset:{L_RED}')
        a(f'v_mov_b32 v{c.VC}, 0')
        a(f'v_mov_b32 v{c.VB}, 1')
        a('s_mov_b64 exec, 1')
        a(f'ds_add_rtn_u32 v{c.VB}, v{c.VC}, v{c.VB} offset:{cnt_off}')
        a('s_mov_b64 exec, -1')
        a('s_waitcnt lgkmcnt(0)')
        a(f'v_readfirstlane_b32 s{c.T2}, v{c.VB}')
        a(f's_cmp_lg_u32 s{c.T2}, 3')
        a(f's_cbranch_scc1 {done}')
        red_addr(c, c.VA)
        red_sum(c, c.U0, c.VA, L_RED, BF)
        a(f'v_cvt_pk_bf16_f32 v{c.RD}, v{c.U0}, v{c.U0+1}')
        a(f'v_mov_b32 v{c.RD+1}, s{c.TAG}')
        a(f's_lshr_b32 s{c.T2}, s{c.WG}, 5')
        a(f's_lshl_b32 s{c.T2}, s{c.T2}, 2')
        a(f's_lshr_b32 s{c.T2}, 0x532410, s{c.T2}')
        a(f's_and_b32 s{c.T3}, s{c.T2}, 1')
        a(f's_lshl_b32 s{c.T3}, s{c.T3}, 3')
        a(f's_bfe_u32 s{c.T2}, s{c.T2}, 0x30001')
        a(f's_lshl_b32 s{c.T2}, s{c.T2}, 15')
        a(f's_add_u32 s{c.T2}, s{c.T2}, s{c.T3}')
        a(f's_lshl_b32 s{c.T3}, s{c.T0}, 7')
        a(f's_add_u32 s{c.T2}, s{c.T2}, s{c.T3}')
        a(f's_add_u32 s{c.T2}, s{c.T2}, {WS_MOD}')
        a(f'v_lshrrev_b32 v{c.VA}, 3, v0')
        a(f'v_lshlrev_b32 v{c.VA}, 12, v{c.VA}')
        a(f'v_and_b32 v{c.VB}, 7, v0')
        a(f'v_lshl_add_u32 v{c.VA}, v{c.VB}, 4, v{c.VA}')
        a(f'buffer_store_dwordx2 v[{c.RD}:{c.RD+1}], v{c.VA}, s[{c.SWS}:{c.SWS+3}], s{c.T2} offen sc1')

    a('s_cmp_ge_u32 s2, 256')
    a('s_cbranch_scc1 L_end')
    if perm:
        a('s_lshr_b32 s3, s2, 5'); a('s_xor_b32 s2, s2, s3')
    a('s_load_dwordx16 s[16:31], s[0:1], 0')
    a('s_load_dwordx8 s[32:39], s[0:1], 64')
    a('s_load_dwordx4 s[40:43], s[0:1], 96')
    if stamps:
        for k in range(12): a(f's_mov_b32 s{4+k}, 0')
    if hold:
        a('s_memrealtime s[94:95]')
    a('v_lshrrev_b32 v1, 6, v0')
    a('v_readfirstlane_b32 s3, v1')
    a('v_and_b32 v0, 63, v0')
    a('v_lshlrev_b32 v1, 4, v0')
    a('s_cmp_ge_u32 s3, 4')
    a('s_cbranch_scc1 L_service')

    Q = 4; Pq = 8; ACC = 24; TMP = 32; VMAX = 40; VT0 = 41; VT1 = 42; PP0 = 43; PP1 = 44; VSC = 2; VI = 45; VG = 46; VT2 = 47; VT3 = 48
    GENV = 3
    TK = 50; PN = 52; VPA = 54; VSA = 55; FL = 56; VZ = 60; VHA = 61
    RING = 64; EXA = 128; EXB = 192
    IS = 44; SWS = 52; SOFF = 56; CNT = 57; BASE = 58; M1 = 60; M2 = 62; SELLO = 64; SELHI = 65; SCALE = 66; TAG = 67
    SHD = 70; SLOTC = 71; SLOTN = 72; FIRST = 73; T0 = 74; T1 = 75; T2 = 76; T3 = 77; STGB = 78; SPIN = 79
    SC = 80; SM = 84; LO32 = 88
    HOME = 48; STEP = 49; QUIT = 50; ESPIN = 51
    P_ = Pq
    if lv is not None: a('s_memrealtime s[70:71]')
    a('s_lshl_b32 s58, s2, 20')
    a('s_lshl_b32 s59, s3, 12')
    a('s_add_u32 s58, s58, s59')
    a('s_mov_b32 s56, s58')
    a(f'v_mov_b32 v{VZ}, 0')
    a(f'v_and_b32 v{VI}, 15, v0')
    a(f'v_lshrrev_b32 v{VG}, 4, v0')
    a(f's_mul_i32 s{STGB}, s3, {STGW}')
    a(f's_add_u32 s{STGB}, s{STGB}, {L_STG}')
    a('s_waitcnt lgkmcnt(0)')
    srd(SWS, 42, WS_SIZE)
    a(f'buffer_load_dword v{GENV}, v{VZ}, s[{SWS}:{SWS+3}], 0 offen offset:{WS_GEN} sc1')
    srd(IS, 18, 0x10000000)
    srd(SC, 34, 8192)
    srd(SM, 36, 512*3072*2)
    stamp(0)
    if dst:
        a(f's_memtime s[{STP}:{STP+1}]'); a('s_waitcnt lgkmcnt(0)'); a(f's_mov_b32 s14, s{STP}')
    cs = Ctx()
    cs.VI = VI; cs.VG = VG; cs.VA = RING; cs.VB = RING+1; cs.VC = RING+2; cs.VD = RING+3
    cs.CF = RING+4; cs.XF = RING+12; cs.BF = RING+20; cs.D1 = RING+36; cs.D2 = RING+40; cs.RD = RING+44; cs.U0 = RING+48
    cs.T0 = T0; cs.T1 = T1; cs.T2 = T2; cs.T3 = T3; cs.WV = 3; cs.STGB = STGB; cs.SC = SC; cs.SM = SM; cs.SWS = SWS
    cs.LO32 = LO32; cs.TAG = TAG; cs.GENV = GENV; cs.WG = 2; cs.paced = False
    a('s_cmp_ge_u32 s2, 64')
    a('s_cbranch_scc1 L_s_noissue')
    if mprio: a(f's_setprio {mprio}')
    mod_issue(cs)
    a.label('L_s_noissue', fence=False)

    LV = 68; TGT = 69; T00 = 70; TM = 72; LAG = 71
    def pw(d=0):
        if lv is None:
            a(f's_waitcnt vmcnt({(W-1) if d == 0 else VW})')
            return
        lab = a.uid('L_pw')
        for k, Wk in enumerate(lv):
            a(f's_waitcnt vmcnt({Wk-1-d})')
            if k < len(lv) - 1:
                a(f's_cmp_eq_u32 s{LV}, {k}')
                a(f's_cbranch_scc1 {lab}')
        a.label(lab, fence=False)
    def tsched(n):
        return int(round(tK + (n - 48) * sK)) if n <= 272 else int(round(tV + (n - 272) * sV))
    MS = 50; VBS = 52; VMA = 53; MD = 54; MT = 56; ISM = 48; CK = 49; CKS = 50
    def mload():
        if lv is None or not rel or noml: return
        lab = a.uid('L_ml')
        a('s_cmp_lg_u32 s3, 0')
        a(f's_cbranch_scc1 {lab}')
        a(f'buffer_load_dwordx2 v[{MS}:{MS+1}], v{VMA}, s[{SWS}:{SWS+3}], s{CK} offen {mlp}')
        a.label(lab, fence=False)
    def clk():
        if lv is None: return
        a(f's_memrealtime s[{TM}:{TM+1}]')
        if rel: a(f'ds_read_b32 v{VBS}, v{VZ} offset:{L_CNT+16}')
    def ctl(n=None, step=None, upd=True, th_=None):
        if lv is None: return
        th_ = th if th_ is None else th_
        a('s_waitcnt lgkmcnt(0)')
        if rel:
            a(f'v_readfirstlane_b32 s{TM+1}, v{VBS}')
            if n is not None: a(f's_sub_u32 s{TM}, s{TM}, {tsched(n)}')
            else: a(f's_sub_u32 s{TM}, s{TM}, s{TGT}')
            a(f's_sub_u32 s{LAG}, s{TM}, s{TM+1}')
        else:
            if n is not None: a(f's_add_u32 s{TGT}, s{T00}, {tsched(n)}')
            a(f's_sub_u32 s{LAG}, s{TM}, s{TGT}')
        if step is not None: a(f's_add_u32 s{TGT}, s{TGT}, {step}')
        a(f's_mov_b32 s{LV}, {len(lv)-1}')
        for k in range(len(lv) - 2, -1, -1):
            a(f's_cmp_gt_i32 s{LAG}, {th_[k]}')
            a(f's_cselect_b32 s{LV}, {k}, s{LV}')
        if rel:
            lab = a.uid('L_ct')
            a('s_cmp_lg_u32 s3, 0')
            a(f's_cbranch_scc1 {lab}')
            lab2 = a.uid('L_cm')
            a(f's_cmp_eq_u32 s{ISM}, 0')
            a(f's_cbranch_scc1 {lab2}')
            a(f'v_mov_b32 v{MD}, s{TM}')
            a(f'v_mov_b32 v{MD+1}, s{TAG}')
            a(f's_add_u32 s{CKS}, s{ISM}, s{CK}')
            a('s_mov_b64 exec, 1')
            if not nomst: a(f'buffer_store_dwordx2 v[{MD}:{MD+1}], v{VZ}, s[{SWS}:{SWS+3}], s{CKS} offen {msp}')
            a('s_mov_b64 exec, -1')
            a.label(lab2, fence=False)
            a(f's_add_u32 s{CK}, s{CK}, {CSTR}')
            if upd:
                a(f'v_cmp_ne_u32 vcc, s{TAG}, v{MS+1}')
                a(f'v_subrev_u32 v{MT}, s{T00}, v{MS}')
                for c_ in ('quad_perm:[1,0,3,2]', 'quad_perm:[2,3,0,1]', 'row_half_mirror'):
                    a(f'{"v_add_u32" if agg == "mean" else "v_max_i32"}_dpp v{MT}, v{MT}, v{MT} {c_} row_mask:0xf bank_mask:0xf')
                if agg == 'mean': a(f'v_ashrrev_i32 v{MT}, 3, v{MT}')
                a(f's_add_u32 s{TM+1}, s{T00}, {dl}')
                a(f'v_add_u32 v{MT}, s{TM+1}, v{MT}')
                a(f's_cbranch_vccnz {lab}')
                a(f'ds_write_b32 v{VZ}, v{MT} offset:{L_CNT+16}')
            a.label(lab, fence=False)
    def issue(base, j):
        r = base + 4 * j
        a(f'buffer_load_dwordx4 v[{r}:{r+3}], v1, s[{IS}:{IS+3}], s{SOFF} offen offset:{(j % 4) * 1024} {kpol}')
        if j % 4 == 3:
            a(f's_add_u32 s{SOFF}, s{SOFF}, 16384')

    seq = [(base, j) for base in (EXA, EXB, RING) for j in range(16)]
    for n in range(nA): issue(*seq[n])
    a(f's_mov_b32 s{M1}, 0xaaaaaaaa'); a(f's_mov_b32 s{M1+1}, 0xaaaaaaaa')
    a(f's_mov_b32 s{M2}, 0xcccccccc'); a(f's_mov_b32 s{M2+1}, 0xcccccccc')
    a(f's_mov_b32 s{SELLO}, 0x05040100'); a(f's_mov_b32 s{SELHI}, 0x07060302')
    a(f's_mov_b32 s{SCALE}, {f32(128 ** -0.5)}')
    a(f's_mov_b32 s{LO32}, -1'); a(f's_mov_b32 s{LO32+1}, 0')
    a(f's_lshl_b32 s59, s3, 12')
    a(f's_add_u32 s59, s59, {L_SC}')
    a(f'v_lshlrev_b32 v{VSC}, 2, v0')
    a(f'v_add_u32 v{VSC}, s59, v{VSC}')
    a(f'v_mov_b32 v{VMAX}, 0xff800000')
    a('s_barrier')
    a('s_cmp_ge_u32 s2, 64')
    a('s_cbranch_scc1 L_s_moddone')
    mod_compute(cs, nA, L_CNT, 'L_s_moddone', st=(3, 4))
    a.label('L_s_moddone')
    if mprio: a('s_setprio 0')
    stamp(5)
    for n in range(nA, 48):
        Wn = W0 if n < n0 else W
        if n >= Wn and n < 48 - boost:
            a(f's_waitcnt vmcnt({Wn-1})')
        issue(*seq[n])
    a(f'v_readfirstlane_b32 s{TAG}, v{GENV}')
    a(f's_add_u32 s{TAG}, s{TAG}, {TAGC}')
    if lv is not None and rel:
        a(f'v_and_b32 v{VMA}, 7, v0')
        a(f'v_mul_u32_u24 v{VMA}, {MSTR}, v{VMA}')
        a(f'v_add_u32 v{VMA}, {WS_MST - DD*CSTR}, v{VMA}')
        a(f's_mov_b32 s{CK}, 0')
        a(f'v_mov_b32 v{MS}, 0'); a(f'v_not_b32 v{MS+1}, s{TAG}')
        if MB >= 0:
            a(f's_sub_u32 s{T0}, s2, {MB}')
        else:
            a(f's_lshr_b32 s{T0}, s2, 5')
        a(f's_mul_i32 s{ISM}, s{T0}, {MSTR}')
        a(f's_add_u32 s{ISM}, s{ISM}, {WS_MST}')
        if MB >= 0:
            a(f's_cmp_lt_u32 s{T0}, 8')
        else:
            a(f's_and_b32 s{T1}, s2, 31')
            a(f's_add_u32 s{T0}, s{T0}, {-MB-1}')
            a(f's_cmp_eq_u32 s{T0}, s{T1}')
        a(f's_cselect_b32 s{ISM}, s{ISM}, 0')
        a(f'v_mov_b32 v{MT}, s{T00}')
        a('s_cmp_lg_u32 s3, 0')
        a('s_cbranch_scc1 L_nobase')
        a(f'ds_write_b32 v{VZ}, v{MT} offset:{L_CNT+16}')
        a('s_waitcnt lgkmcnt(0)')
        a.label('L_nobase', fence=False)
    stamp(6)
    a('s_barrier')
    a(f'v_lshlrev_b32 v{VT0}, 5, v{VI}')
    for w in range(4):
        a(f'ds_read_b128 v[{P_+8*(w%2)}:{P_+8*(w%2)+3}], v{VT0} offset:{L_QP + w*512}')
        a(f'ds_read_b128 v[{P_+8*(w%2)+4}:{P_+8*(w%2)+7}], v{VT0} offset:{L_QP + w*512 + 16}')
        if w == 1:
            a('s_waitcnt lgkmcnt(0)')
            for e in range(8): a(f'v_add_f32 v{ACC+e}, v{P_+e}, v{P_+8+e}')
    a('s_waitcnt lgkmcnt(0)')
    for e in range(8): a(f'v_add_f32 v{P_+e}, v{P_+e}, v{P_+8+e}')
    for e in range(8): a(f'v_add_f32 v{ACC+e}, v{ACC+e}, v{P_+e}')
    for c in range(4): a(f'v_cvt_pk_bf16_f32 v{Q+c}, v{ACC+2*c}, v{ACC+2*c+1}')
    clk(); ctl(n=48, upd=False)
    if dbg:
        a(f's_lshl_b32 s{T0}, s2, 8')
        a(f's_add_u32 s{T0}, s{T0}, {WS_DBG}')
        a(f'v_lshlrev_b32 v{VT0}, 4, v{VI}')
        a(f'buffer_store_dwordx4 v[{Q}:{Q+3}], v{VT0}, s[{SWS}:{SWS+3}], s{T0} offen')
        a('s_waitcnt vmcnt(0)')
    stamp(1)

    def ksteps(base, PB, reissue, wait, vsc, sc_off, t0, t1, hook=None):
        def l1(j):
            a(f'v_add_f32_dpp v{PB+j-1}, v{PB+j-1}, v{PB+j-1} row_ror:8 row_mask:0xf bank_mask:0x3')
            a(f'v_add_f32_dpp v{PB+j-1}, v{PB+j}, v{PB+j} row_ror:8 row_mask:0xf bank_mask:0xc')
        def l2(q):
            x = PB + 4*q; y = PB + 4*q + 2
            a(f'v_add_f32_dpp v{x}, v{x}, v{x} row_shl:4 row_mask:0xf bank_mask:0x5')
            a(f'v_add_f32_dpp v{x}, v{y}, v{y} row_shr:4 row_mask:0xf bank_mask:0xa')
        def step(j):
            r = base + 4*j
            if hook is not None and j == 0: mload()
            if hook is not None and j == 12: clk()
            if hook is not None and j == 15: hook()
            if wait is not None:
                pw(0)
            a(f'v_dot2_f32_bf16 v{PB+j}, v{r}, v{Q}, 0')
            for c in range(1, 4):
                a(f'v_dot2_f32_bf16 v{PB+j}, v{r+c}, v{Q+c}, v{PB+j}')
            if reissue: issue(base, j)
            if j >= 2 and j % 2 == 0: l1(j-1)
            if j >= 5 and j % 4 == 1: l2((j-5)//4)
        def epi():
            l1(15)
            l2(3)
            U = [PB, PB+4, PB+8, PB+12]
            for u in U: a(f'v_add_f32_dpp v{u}, v{u}, v{u} quad_perm:[2,3,0,1] row_mask:0xf bank_mask:0xf')
            a(f'v_cndmask_b32 v{U[0]}, v{U[0]}, v{U[1]}, s[{M2}:{M2+1}]')
            a(f'v_cndmask_b32 v{U[2]}, v{U[2]}, v{U[3]}, s[{M2}:{M2+1}]')
            for u in (U[0], U[2]): a(f'v_add_f32_dpp v{u}, v{u}, v{u} quad_perm:[1,0,3,2] row_mask:0xf bank_mask:0xf')
            a(f'v_cndmask_b32 v{t0}, v{U[0]}, v{U[2]}, s[{M1}:{M1+1}]')
            rnd1(t0, t1)
            a(f'v_mul_f32 v{t0}, s{SCALE}, v{t0}')
            rnd1(t0, t1)
            a(f'v_max_f32 v{VMAX}, v{VMAX}, v{t0}')
            a(f'ds_write_b32 v{vsc}, v{t0} offset:{sc_off}')
        return [lambda j=j: step(j) for j in range(16)] + [epi]
    P2 = ACC
    for it, ex in enumerate((EXA, EXB)):
        s1 = ksteps(RING, P_, True, W-1, VSC, (2+it)*256, VT0, VT1, hook=lambda it=it: ctl(n=48+16*it+12))
        s2 = ksteps(ex, P2, False, None, VSC, it*256, PP0, PP1)
        for j in range(16):
            s1[j](); s2[j]()
        s1[16](); s2[16]()
    a(f'v_add_u32 v{VT2}, {4*256}, v{VSC}')
    a(f's_mov_b32 s{CNT}, 12')
    if lv is not None: a(f's_mov_b32 s{TGT}, {tsched(80+12)}' if rel else f's_add_u32 s{TGT}, s{T00}, {tsched(80+12)}')
    stamp(9)
    a.label('L_kloop')
    a(f's_cmp_eq_u32 s{CNT}, 1')
    a(f's_cselect_b32 s{IS}, s20, s{IS}')
    a(f's_cselect_b32 s{IS+1}, s21, s{IS+1}')
    a(f's_cselect_b32 s{SOFF}, s{BASE}, s{SOFF}')
    for f in ksteps(RING, P_, True, W-1, VT2, 0, VT0, VT1, hook=lambda: ctl(step=int(round(16*sK)))): f()
    a(f'v_add_u32 v{VT2}, 256, v{VT2}')
    a(f's_sub_u32 s{CNT}, s{CNT}, 1')
    a(f's_cmp_lg_u32 s{CNT}, 0')
    a('s_cbranch_scc1 L_kloop')
    stamp(7)
    vq = [(EXA, j) for j in range(16)] + [(EXB, j) for j in range(16)]
    def pi(n=1, paced=True):
        for _ in range(n):
            if not vq: return
            if paced: pw(0)
            issue(*vq.pop(0))
    pi()
    a('s_waitcnt lgkmcnt(0)')
    for t in range(0, 16, 2):
        a(f'ds_read2st64_b32 v[{P_+t}:{P_+t+1}], v{VSC} offset0:{t} offset1:{t+1}')
    wave_reduce('v_max_f32', [VMAX], [VT0])
    pi()
    a('s_waitcnt lgkmcnt(0)')
    for t in range(16): a(f'v_sub_f32 v{P_+t}, v{P_+t}, v{VMAX}')
    for t in range(16): a(f'v_mul_f32 v{P_+t}, {f32(L2E)}, v{P_+t}')
    pi()
    for t in range(16): a(f'v_exp_f32 v{P_+t}, v{P_+t}')
    pi()
    for t in range(8): a(f'v_add_f32 v{TMP+t}, v{P_+t}, v{P_+8+t}')
    for t in range(4): a(f'v_add_f32 v{TMP+t}, v{TMP+t}, v{TMP+4+t}')
    for t in range(2): a(f'v_add_f32 v{TMP+t}, v{TMP+t}, v{TMP+2+t}')
    a(f'v_add_f32 v{VT0}, v{TMP}, v{TMP+1}')
    assert VT0 == VMAX + 1
    wave_reduce('v_add_f32', [VT0], [VT1])
    a(f's_lshl_b32 s59, s3, 3')
    a(f'v_mov_b32 v{VT1}, s59')
    a(f'ds_write_b64 v{VT1}, v[{VMAX}:{VMAX+1}] offset:{L_MX}')
    a(f'v_mov_b32 v{VT1}, 1')
    a('s_waitcnt lgkmcnt(0)')
    a('s_mov_b64 exec, 1')
    a(f'ds_add_u32 v{VZ}, v{VT1} offset:{L_CNT+12}')
    a('s_mov_b64 exec, -1')
    pi(12)
    pi(sboost, paced=False)
    a(f's_mov_b32 s{SPIN}, 0')
    a.label('L_b2')
    a(f'ds_read_b32 v{VT1}, v{VZ} offset:{L_CNT+12}')
    a('s_waitcnt lgkmcnt(0)')
    a(f'v_readfirstlane_b32 s{T0}, v{VT1}')
    a(f's_cmp_ge_u32 s{T0}, 4')
    a('s_cbranch_scc1 L_b2_ok')
    a(f's_add_u32 s{SPIN}, s{SPIN}, 1')
    a(f's_cmp_lt_u32 s{SPIN}, {SPIN_MAX*8}')
    a('s_cbranch_scc0 L_b2_ok')
    a('s_sleep 1')
    a('s_branch L_b2')
    a.label('L_b2_ok')
    a(f'ds_read_b128 v[{TMP}:{TMP+3}], v{VZ} offset:{L_MX}')
    a(f'ds_read_b128 v[{TMP+4}:{TMP+7}], v{VZ} offset:{L_MX+16}')
    a('s_waitcnt lgkmcnt(0)')
    a(f'v_max_f32 v{VT1}, v{TMP}, v{TMP+2}')
    a(f'v_max3_f32 v{VT1}, v{VT1}, v{TMP+4}, v{TMP+6}')
    for k in range(4): a(f'v_sub_f32 v{TMP+2*k}, v{TMP+2*k}, v{VT1}')
    a(f'v_sub_f32 v{VT3}, v{VMAX}, v{VT1}')
    for k in range(4): a(f'v_mul_f32 v{TMP+2*k}, {f32(L2E)}, v{TMP+2*k}')
    a(f'v_mul_f32 v{VT3}, {f32(L2E)}, v{VT3}')
    for k in range(4): a(f'v_exp_f32 v{TMP+2*k}, v{TMP+2*k}')
    a(f'v_exp_f32 v{VT3}, v{VT3}')
    a(f'v_mul_f32 v{VT0}, v{TMP}, v{TMP+1}')
    for k in range(1, 4): a(f'v_fmac_f32 v{VT0}, v{TMP+2*k}, v{TMP+2*k+1}')
    a(f'v_rcp_f32 v{VT0}, v{VT0}')
    a(f'v_mul_f32 v{VT3}, v{VT3}, v{VT0}')
    pi()
    for t in range(16): a(f'v_mul_f32 v{P_+t}, v{P_+t}, v{VT3}')
    for half in range(2):
        for t in range(8): a(f'v_mov_b32_dpp v{TMP+t}, v{P_+8*half+t} row_ror:8 row_mask:0xf bank_mask:0xf')
        for t in range(8): a(f'v_cvt_pk_bf16_f32 v{P_+8*half+t}, v{P_+8*half+t}, v{TMP+t}')
        pi()
    for t in range(4, 16, 2):
        a(f'ds_write2st64_b32 v{VSC}, v{P_+t}, v{P_+t+1} offset0:{t} offset1:{t+1}')
    for e in range(8): a(f'v_mov_b32 v{ACC+e}, 0')

    def bl(m): return 4*(m & 1) + 2*((m >> 1) & 1) + (m >> 2)
    def vstep(base, m, reissue, wait, pp, mid=None, hook=None):
        A = base + 8*m; Bq = A + 4
        if hook is not None and m == 0: mload()
        if hook is not None and m == 5: clk()
        if hook is not None and m == 7: hook()
        if wait == 'p': pw(1)
        elif wait is not None:
            a(f's_waitcnt vmcnt({wait})')
        for c in range(4):
            a(f'v_perm_b32 v{TMP+2*c}, v{Bq+c}, v{A+c}, s{SELLO}')
            a(f'v_perm_b32 v{TMP+2*c+1}, v{Bq+c}, v{A+c}, s{SELHI}')
        if reissue:
            issue(base, 2*m); issue(base, 2*m+1)
        if mid: mid()
        for e in range(8):
            a(f'v_dot2c_f32_bf16_dpp v{ACC+e}, v{pp}, v{TMP+e} row_newbcast:{bl(m)} row_mask:0xf bank_mask:0xf')
    def static_flush():
        a(f'v_lshlrev_b32 v{VT0}, 5, v{VI}')
        a(f'v_lshl_add_u32 v{VT0}, v{VG}, 3, v{VT0}')
        a(f's_lshl_b32 s59, s3, 9')
        a(f'v_add_u32 v{VT0}, s59, v{VT0}')
        a(f'ds_write_b64 v{VT0}, v[{ACC}:{ACC+1}] offset:{L_OP}')
        a(f'v_mov_b32 v{VT1}, 1')
        a('s_waitcnt lgkmcnt(0)')
        a('s_mov_b64 exec, 1')
        a(f'ds_add_u32 v{VZ}, v{VT1} offset:{L_CNT+8}')
        a('s_mov_b64 exec, -1')
        stamp(8)

    nleft = len(vq)
    assert 1 <= nleft <= 16, nleft
    for m in range(8):
        k = (nleft*(m+1))//8 - (nleft*m)//8
        if m == 0: a(f's_waitcnt vmcnt({16 - nleft})')
        vstep(EXA, m, False, None, P_+1, mid=(lambda k=k: pi(k)))
    assert not vq
    clk(); ctl(n=304, upd=False)
    for m in range(8): vstep(RING, m, True, 'p', P_+0, hook=lambda: ctl(n=304+10))
    a(f'v_add_u32 v{VT2}, {5*256}, v{VSC}')
    for m in range(8):
        vstep(RING, m, True, 'p', P_+3, hook=lambda: ctl(n=320+10))
        vstep(EXB, m, False, None, P_+2)
    a(f'v_mov_b32 v{PP0}, v{P_+4}')
    a(f's_mov_b32 s{CNT}, 11')
    if lv is not None: a(f's_mov_b32 s{TGT}, {tsched(336+10)}' if rel else f's_add_u32 s{TGT}, s{T00}, {tsched(336+10)}')
    stamp(10)
    a.label('L_vloop')
    a(f'ds_read_b32 v{PP1}, v{VT2}')
    a(f'v_add_u32 v{VT2}, 256, v{VT2}')
    for m in range(8): vstep(RING, m, True, 'p', PP0, hook=lambda: ctl(step=int(round(16*sV))))
    a('s_waitcnt lgkmcnt(0)')
    a(f'v_mov_b32 v{PP0}, v{PP1}')
    a(f's_sub_u32 s{CNT}, s{CNT}, 1')
    a(f's_cmp_lg_u32 s{CNT}, 0')
    a('s_cbranch_scc1 L_vloop')
    stamp(11)
    for m in range(8): vstep(RING, m, False, 14 - 2*m, PP0)
    greduce8(ACC)
    static_flush()
    if gate:
        lab = a.uid('L_nogate')
        a('s_cmp_lg_u32 s3, 0')
        a(f's_cbranch_scc1 {lab}')
        srd(SC, 40, 256)
        a('s_mov_b64 exec, 1')
        a(f'buffer_atomic_add v{VT1}, v{VZ}, s[{SC}:{SC+3}], 0 offen')
        a('s_mov_b64 exec, -1')
        a.label(lab)
    a('s_waitcnt lgkmcnt(0)')
    stamp(2)
    finish(SWS, TMP, 's')

    a.label('L_service')
    SX = 44; SW = 48; SWS = 52; SC = 56; SST = 60; SOUT = 64; SDBG = 68
    WV = 72
    SB = 73; SH = 74; T0 = 75; T1 = 76; T2 = 77; T3 = 78; TAG = 80; SPIN = 81; SELLO = 82; SELHI = 83; LO32 = 84; STGB = 86; T4 = 87
    F1T = 88; F2T = 89; T5 = 90; T6 = 91
    VI = 2; VG = 3; VA = 4; VB = 5; VC = 6; VD = 7
    GENV = 8
    XR = 12; XP = 16; CF = 20; XF = 28
    MEAN = 36; DEN = 37; RDEN = 38; U0 = 39; U1 = 40; U2 = 41; U3 = 42; HP = 43
    ACC = 44
    D1 = 52; D2 = 56; D3 = 60; D4 = 64
    RD = 68
    BF = 76
    SPARE = 127
    WR = 128
    cv = Ctx()
    cv.VI = VI; cv.VG = VG; cv.VA = VA; cv.VB = VB; cv.VC = VC; cv.VD = VD
    cv.CF = CF; cv.XF = XF; cv.BF = BF; cv.D1 = D1; cv.D2 = D2; cv.RD = RD; cv.U0 = U0
    cv.T0 = T0; cv.T1 = T1; cv.T2 = T2; cv.T3 = T3; cv.WV = WV; cv.STGB = STGB; cv.SC = SC; cv.SM = SST; cv.SWS = SWS
    cv.LO32 = LO32; cv.TAG = TAG; cv.GENV = None; cv.WG = T4; cv.paced = SW_ < 8
    if sprio: a(f's_setprio {sprio}')
    a(f's_sub_u32 s{WV}, s3, 4')
    a(f's_lshr_b32 s{SB}, s2, 5')
    a(f's_and_b32 s{SH}, s2, 31')
    a(f's_and_b32 s{T0}, s2, 7')
    a(f's_lshr_b32 s{T1}, s2, 3')
    a(f's_mul_i32 s{F1T}, s{T0}, 11')
    a(f's_add_u32 s{F1T}, s{F1T}, s{T1}')
    a(f's_cmp_lt_u32 s2, 88')
    a(f's_cselect_b32 s{F1T}, s{F1T}, 255')
    a(f's_lshl_b32 s{F2T}, s{T0}, 2')
    a(f's_add_u32 s{F2T}, s{F2T}, s{T1}')
    a(f's_sub_u32 s{F2T}, s{F2T}, {F2_BASE//8}')
    a(f's_sub_u32 s{T1}, s2, {F2_BASE}')
    a(f's_cmp_lt_u32 s{T1}, 32')
    a(f's_cselect_b32 s{F2T}, s{F2T}, 255')
    a(f'v_and_b32 v{VI}, 15, v0')
    a(f'v_lshrrev_b32 v{VG}, 4, v0')
    a(f'v_mov_b32 v{VA}, 0')
    a(f'v_lshlrev_b32 v{VB}, 2, v{VI}')
    a(f'ds_write_b32 v{VB}, v{VA} offset:{L_CNT}')
    a(f's_mov_b32 s{SELLO}, 0x05040100'); a(f's_mov_b32 s{SELHI}, 0x07060302')
    a(f's_mov_b32 s{LO32}, -1'); a(f's_mov_b32 s{LO32+1}, 0')
    a(f's_mul_i32 s{STGB}, s{WV}, {STGW}')
    a(f's_add_u32 s{STGB}, s{STGB}, {L_STG}')
    a('s_waitcnt lgkmcnt(0)')
    srd(SWS, 42, WS_SIZE); srd(SX, 16, 8192); srd(SW, 22, 512*4096*2)
    a(f'buffer_load_dword v{GENV}, v{VA}, s[{SWS}:{SWS+3}], 0 offen offset:{WS_GEN} sc1')
    a(f's_lshl_b32 s{T2}, s{SB}, 10')
    a(f'buffer_load_dwordx4 v[{XR}:{XR+3}], v1, s[{SX}:{SX+3}], s{T2} offen')
    a(f'v_lshlrev_b32 v{VA}, 4, v{VI}')
    a(f'v_lshl_add_u32 v{VA}, v{VG}, 2, v{VA}')
    a(f's_lshl_b32 s{T3}, s{WV}, 8')
    a(f's_add_u32 s{T2}, s{T2}, s{T3}')
    a(f'buffer_load_dword v{XP}, v{VA}, s[{SX}:{SX+3}], s{T2} offen')
    a(f'v_lshlrev_b32 v{VA}, 4, v{VI}')
    a(f'v_lshl_add_u32 v{VA}, v{VG}, 14, v{VA}')
    a(f's_lshl_b32 s{T2}, s{WV}, 20')
    a(f's_lshl_b32 s{T3}, s{SH}, 8')
    a(f's_add_u32 s{T2}, s{T2}, s{T3}')
    for j in range(32):
        if j == b0wq: a('s_barrier')
        if j >= WQ: a(f's_waitcnt vmcnt({WQ-1})')
        r = WR + 4*j
        a(f'buffer_load_dwordx4 v[{r}:{r+3}], v{VA}, s[{SW}:{SW+3}], s{T2} offen {wqpol}')
        if j < 31: a(f's_add_u32 s{T2}, s{T2}, {8192 if j % 2 == 0 else 7*8192}')
    srd(SC, 34, 8192); srd(SST, 36, 512*3072*2); srd(SOUT, 38, 8192); srd(SDBG, 40, 256)
    stamp(6)
    a('s_waitcnt vmcnt(32)')
    stamp(7)
    a(f'v_readfirstlane_b32 s{TAG}, v{GENV}')
    a(f's_add_u32 s{TAG}, s{TAG}, {TAGC}')

    def ln_stats(vals, mean, den, rden, t0, t1):
        R = len(vals)
        for r in range(R):
            v = vals[r]
            a(f'v_add_f32 v{mean[r]}, v{v[0]}, v{v[1]}')
            for k in range(2, len(v)): a(f'v_add_f32 v{mean[r]}, v{mean[r]}, v{v[k]}')
        wave_reduce('v_add_f32', mean, t0)
        for r in range(R): a(f'v_mul_f32 v{mean[r]}, {f32(1/512)}, v{mean[r]}')
        for r in range(R):
            v = vals[r]
            for k in range(len(v)):
                a(f'v_sub_f32 v{t0[r]}, v{v[k]}, v{mean[r]}')
                if k == 0: a(f'v_mul_f32 v{den[r]}, v{t0[r]}, v{t0[r]}')
                else: a(f'v_fmac_f32 v{den[r]}, v{t0[r]}, v{t0[r]}')
        wave_reduce('v_add_f32', den, t0)
        for r in range(R):
            a(f'v_mul_f32 v{den[r]}, {f32(1/512)}, v{den[r]}')
            rnd2(mean[r], den[r], t0[r])
            a(f'v_add_f32 v{den[r]}, {f32(1e-5)}, v{den[r]}')
            rnd1(den[r], t0[r])
            a(f'v_sqrt_f32 v{den[r]}, v{den[r]}')
            rnd1(den[r], t0[r])
            a(f'v_rcp_f32 v{rden[r]}, v{den[r]}')
    def ln_norm2(x, y, mean, den, rden, t0, t1, t2):
        a(f'v_sub_f32 v{x}, v{x}, v{mean}')
        a(f'v_sub_f32 v{y}, v{y}, v{mean}')
        rnd2(x, y, t0)
        a(f'v_mul_f32 v{t0}, v{x}, v{rden}')
        a(f'v_mul_f32 v{t1}, v{y}, v{rden}')
        a(f'v_fma_f32 v{x}, -v{t0}, v{den}, v{x}')
        a(f'v_fma_f32 v{y}, -v{t1}, v{den}, v{y}')
        a(f'v_fma_f32 v{x}, v{x}, v{rden}, v{t0}')
        a(f'v_fma_f32 v{y}, v{y}, v{rden}, v{t1}')
        rnd2(x, y, t0)
    def modulate2(x, y, c1pair, spair, t0, t1, t2, out):
        unpack(t0, t1, c1pair)
        a(f'v_mul_f32 v{x}, v{x}, v{t0}')
        a(f'v_mul_f32 v{y}, v{y}, v{t1}')
        rnd2(x, y, t2)
        unpack(t0, t1, spair)
        a(f'v_add_f32 v{x}, v{x}, v{t0}')
        a(f'v_add_f32 v{y}, v{y}, v{t1}')
        a(f'v_cvt_pk_bf16_f32 v{out}, v{x}, v{y}')
    def one_plus(pair, t0, t1):
        unpack(t0, t1, pair)
        a(f'v_add_f32 v{t0}, 1.0, v{t0}')
        a(f'v_add_f32 v{t1}, 1.0, v{t1}')
        a(f'v_cvt_pk_bf16_f32 v{pair}, v{t0}, v{t1}')

    for r in range(4): unpack(XF+2*r, XF+2*r+1, XR+r)
    ln_stats([[XF+k for k in range(8)]], [MEAN], [DEN], [RDEN], [U0], [U1])
    unpack(U2, U3, XP)
    ln_norm2(U2, U3, MEAN, DEN, RDEN, U0, U1, HP)
    stamp(9)

    def permute_weights(wait_fn):
        wmap = []
        free = SPARE
        for m in range(16):
            A = WR + 8*m; Bq = A + 4
            w = wait_fn(m)
            if w is not None: a(f's_waitcnt vmcnt({w})')
            row = [None]*8
            for c in range(4):
                a(f'v_perm_b32 v{free}, v{Bq+c}, v{A+c}, s{SELLO}')
                a(f'v_perm_b32 v{Bq+c}, v{Bq+c}, v{A+c}, s{SELHI}')
                row[2*c] = free; row[2*c+1] = Bq + c
                free = A + c
            wmap.append(row)
        return wmap, free
    def gemv(wmap, vec):
        for e in range(8): a(f'v_mov_b32 v{ACC+e}, 0')
        for m in range(16):
            for e in range(8):
                a(f'v_dot2c_f32_bf16_dpp v{ACC+e}, v{vec}, v{wmap[m][e]} row_newbcast:{m} row_mask:0xf bank_mask:0xf')
        greduce8(ACC)
    def poll(name, loads, tagregs, sleep=1, maskreg=None, chk=None):
        a(f's_mov_b32 s{SPIN}, 0')
        a.label(name)
        for l in loads: a(l)
        a('s_waitcnt vmcnt(0)')
        if chk is not None:
            chk(); tagregs = [None]
        else:
            a(f'v_xor_b32 v{VD}, s{TAG}, v{tagregs[0]}')
        for t in tagregs[1:]:
            a(f'v_bitop3_b32 v{VD}, v{t}, s{TAG}, v{VD} bitop3:0xbe')
        if maskreg is not None:
            a(f'v_and_b32 v{VD}, v{maskreg}, v{VD}')
        a(f'v_cmp_ne_u32 vcc, 0, v{VD}')
        a(f's_cbranch_vccz {name}_ok')
        a(f's_add_u32 s{SPIN}, s{SPIN}, 1')
        a(f's_cmp_lt_u32 s{SPIN}, {SPIN_MAX}')
        a(f's_cbranch_scc0 {name}_ok')
        if sleep: a(f's_sleep {sleep}')
        a(f's_branch {name}')
        a.label(name + '_ok')
    def lds_wait(name, off_v, off, val, sleep):
        a(f's_mov_b32 s{SPIN}, 0')
        a.label(name)
        a(f'ds_read_b32 v{VD}, v{off_v} offset:{off}')
        a('s_waitcnt lgkmcnt(0)')
        a(f'v_readfirstlane_b32 s{T2}, v{VD}')
        a(f's_cmp_ge_u32 s{T2}, {val}')
        a(f's_cbranch_scc1 {name}_ok')
        a(f's_add_u32 s{SPIN}, s{SPIN}, 1')
        a(f's_cmp_lt_u32 s{SPIN}, {SPIN_MAX*4}')
        a(f's_cbranch_scc0 {name}_ok')
        if sleep: a(f's_sleep {sleep}')
        a(f's_branch {name}')
        a.label(name + '_ok')

    wmap, _ = permute_weights(lambda m: 30 - 2*m)
    a(f'v_lshlrev_b32 v{VA}, 6, v{VI}')
    a(f'v_lshl_add_u32 v{VA}, v{VG}, 4, v{VA}')
    a(f's_lshl_b32 s{T2}, s{SB}, 12')
    a(f's_lshl_b32 s{T3}, s{WV}, 10')
    a(f's_add_u32 s{T2}, s{T2}, s{T3}')
    a(f's_add_u32 s{T2}, s{T2}, {WS_MOD}')
    stamp(0)
    poll('L_poll_sa', [f'buffer_load_dwordx4 v[{RD}:{RD+3}], v{VA}, s[{SWS}:{SWS+3}], s{T2} offen sc1'], [RD+1, RD+3])
    stamp(10)
    one_plus(RD+2, U0, U1)
    modulate2(U2, U3, RD+2, RD, U0, U1, VD, HP)
    gemv(wmap, HP)
    a(f'v_lshlrev_b32 v{VA}, 5, v{VI}')
    a(f'v_lshl_add_u32 v{VA}, v{VG}, 3, v{VA}')
    a(f's_lshl_b32 s{T2}, s{WV}, 9')
    a(f'v_add_u32 v{VB}, s{T2}, v{VA}')
    a(f'ds_write_b64 v{VB}, v[{ACC}:{ACC+1}] offset:{L_QP}')
    a('s_waitcnt lgkmcnt(0)')
    a('s_barrier')
    stamp(1)

    if nopre:
        stamp(11)
        finish(SWS, 8)
    if tlbv:
        srd(SW, 20, 0x10000000)
        a(f's_lshl_b32 s{T2}, s2, 20')
        a(f'v_mov_b32 v{VA}, 0')
        a('s_mov_b64 exec, 1')
        a(f'buffer_load_dword v8, v{VA}, s[{SW}:{SW+3}], s{T2} offen')
        a('s_mov_b64 exec, -1')
    if tlbo:
        a(f'v_mov_b32 v{VA}, 0')
        a('s_mov_b64 exec, 1')
        a(f'buffer_load_dword v9, v{VA}, s[{SOUT}:{SOUT+3}], 0 offen sc1')
        a('s_mov_b64 exec, -1')
    srd(SW, 24, 4096*512*2)
    a(f'v_lshlrev_b32 v{VA}, 4, v{VI}')
    a(f'v_lshl_add_u32 v{VA}, v{VG}, 11, v{VA}')
    a(f's_lshl_b32 s{T2}, s{SH}, 17')
    if pre is not None and pre & 8: a(f's_mov_b32 s{T2}, 0')
    a(f's_lshl_b32 s{T3}, s{WV}, 8')
    a(f's_add_u32 s{T2}, s{T2}, s{T3}')
    for j in range(32 if (pre is None or pre & 2) else 0):
        if j >= SW_: a(f's_waitcnt vmcnt({SW_-1})')
        r = WR + 4*j
        a(f'buffer_load_dwordx4 v[{r}:{r+3}], v{VA}, s[{SW}:{SW+3}], s{T2} offen offset:{(j%2)*1024} {wopol}')
        if j % 2 == 1 and j < 31: a(f's_add_u32 s{T2}, s{T2}, 8192')
    wmap, _ = permute_weights(lambda m: 30 - 2*m)
    a(f's_sub_u32 s{T4}, s2, 64')
    a(f's_cmp_lt_u32 s2, {128 if (pre is None or pre & 1) else 256}')
    a('s_cbranch_scc1 L_v_moddone')
    mod_issue(cv)
    mod_compute(cv, 0, L_CNT+4, 'L_v_moddone')
    a.label('L_v_moddone')

    if pre is not None and not pre & 4:
        stamp(11)
        finish(SWS, 8)
    for r in (24, 25, 26, 27, 28, 29, 60, 61, 62, 63): a(f'v_mov_b32 v{r}, 0')
    a(f's_mov_b32 s{T5}, {WS_ACT}')
    a(f's_cmp_lt_u32 s{F1T}, {NF1}')
    a('s_cbranch_scc0 L_nof1w')
    a(f'v_lshrrev_b32 v{VB}, 1, v0')
    a(f'v_mul_u32_u24 v{VB}, 2752, v{VB}')
    a(f'v_and_b32 v{VC}, 1, v0')
    a(f'v_lshl_add_u32 v{VB}, v{VC}, 4, v{VB}')
    for which, p in enumerate((28, 30)):
        srd(SST, p, 512*1376*2)
        a(f's_mul_i32 s{T1}, s{WV}, {128*2752}')
        a(f's_lshl_b32 s{T2}, s{F1T}, 5')
        a(f's_add_u32 s{T1}, s{T1}, s{T2}')
        for s in range(4):
            a(f's_add_u32 m0, s{STGB}, {(which*4+s)*1024}')
            if SW_ < 8: a('s_waitcnt vmcnt(0)')
            a(f'buffer_load_dwordx4 v{VB}, s[{SST}:{SST+3}], s{T1} offen {fpol} lds')
            if s < 3: a(f's_add_u32 s{T1}, s{T1}, {32*2752}')
    a(f'v_bfe_u32 v{VA}, v{VI}, 1, 1')
    a(f'v_mul_u32_u24 v{VA}, {2*STGW}, v{VA}')
    a(f'v_and_b32 v{VD}, 1, v{VI}')
    a(f'v_lshl_add_u32 v{VA}, v{VD}, 12, v{VA}')
    a(f'v_lshl_add_u32 v{VA}, v{VG}, 8, v{VA}')
    a(f'v_lshrrev_b32 v{VD}, 2, v{VI}')
    a(f'v_lshl_add_u32 v{VA}, v{VD}, 5, v{VA}')
    a(f's_lshl_b32 s{T2}, s{WV}, 3')
    a(f's_add_u32 s{T2}, s{T2}, {L_STG}')
    a(f'v_add_u32 v{VA}, s{T2}, v{VA}')
    a(f'v_mov_b32 v{VC}, 0')
    a(f'v_mov_b32 v{VB}, 1')
    a('s_waitcnt vmcnt(0)')
    a('s_mov_b64 exec, 1')
    a(f'ds_add_u32 v{VC}, v{VB} offset:{L_CNT+20}')
    a('s_mov_b64 exec, -1')
    lds_wait('L_w_stg', VC, L_CNT+20, 4, 8)
    for s in range(8):
        o = (s >> 2)*STGW + (s & 3)*1024
        a(f'ds_read_b64_tr_b16 v[{BF+4*s}:{BF+4*s+1}], v{VA} offset:{o}')
        a(f'ds_read_b64_tr_b16 v[{BF+4*s+2}:{BF+4*s+3}], v{VA} offset:{o+128}')
    SBF = BF + 32; C1F = D1
    a(f'v_lshlrev_b32 v{VA}, 5, v0')
    a(f's_lshl_b32 s{T2}, s{WV}, 13')
    a(f's_add_u32 s{T2}, s{T2}, {WS_MOD + 32768}')
    for rr in range(2):
        loads = []; tags = []
        for hf in range(2):
            for k in range(2):
                r = 8 + 4*(2*hf + k)
                loads.append(f'buffer_load_dwordx4 v[{r}:{r+3}], v{VA}, s[{SWS}:{SWS+3}], s{T2} offen offset:{hf*2048 + k*16} sc1')
                tags += [r+1, r+3]
        poll(f'L_poll_sb{rr}', loads, tags, sleep=32)
        for q in range(4):
            unpack(SBF+8*rr+2*q, SBF+8*rr+2*q+1, 8+4*q)
            c1 = C1F+8*rr+2*q
            unpack(c1, c1+1, 8+4*q+2)
            a(f'v_add_f32 v{c1}, 1.0, v{c1}')
            a(f'v_add_f32 v{c1+1}, 1.0, v{c1+1}')
            rnd2(c1, c1+1, U0)
        if rr == 0: a(f's_add_u32 s{T2}, s{T2}, 4096')
    AH = 24; AA = 25; AS = 26
    a(f's_mul_i32 s{T2}, s{WV}, {2*H2S}')
    a(f'v_lshlrev_b32 v{AH}, 3, v0')
    a(f'v_add_u32 v{AH}, s{T2}, v{AH}')
    a(f'v_and_b32 v{AA}, 7, v0')
    a(f'v_mul_u32_u24 v{AA}, {H2S}, v{AA}')
    a(f'v_bfe_u32 v{VB}, v0, 3, 1')
    a(f'v_lshl_add_u32 v{AA}, v{VB}, 9, v{AA}')
    a(f'v_lshl_add_u32 v{AA}, v{VG}, 4, v{AA}')
    a(f'v_bfe_u32 v{AS}, v0, 4, 1')
    a(f'v_lshlrev_b32 v{AS}, 6, v{AS}')
    a(f'v_lshrrev_b32 v{VB}, 5, v0')
    a(f'v_lshl_add_u32 v{AS}, v{VB}, 5, v{AS}')
    a(f'v_bfe_u32 v{VB}, v0, 1, 1')
    a(f'v_lshl_add_u32 v{AS}, v{VB}, 4, v{AS}')
    a(f's_lshr_b32 s{T5}, s{F1T}, 2')
    a(f's_lshl_b32 s{T5}, s{T5}, 11')
    a(f's_bfe_u32 s{T2}, s{F1T}, 0x10001')
    a(f's_lshl_b32 s{T2}, s{T2}, 7')
    a(f's_add_u32 s{T5}, s{T5}, s{T2}')
    a(f's_and_b32 s{T2}, s{F1T}, 1')
    a(f's_lshl_b32 s{T2}, s{T2}, 9')
    a(f's_add_u32 s{T5}, s{T5}, s{T2}')
    a(f's_and_b32 s{T2}, s{WV}, 1')
    a(f's_lshl_b32 s{T2}, s{T2}, 10')
    a(f's_add_u32 s{T5}, s{T5}, s{T2}')
    a(f's_lshr_b32 s{T2}, s{WV}, 1')
    a(f's_lshl_b32 s{T2}, s{T2}, 8')
    a(f's_add_u32 s{T5}, s{T5}, s{T2}')
    a(f's_add_u32 s{T5}, s{T5}, {WS_ACT}')
    a('s_waitcnt lgkmcnt(0)')
    a('s_branch L_wdone')
    a.label('L_nof1w')
    a(f's_mov_b32 s{T0}, s{F2T}')
    a(f's_cmp_lt_u32 s{T0}, 32')
    a('s_cbranch_scc0 L_wdone')
    srd(SST, 32, 1376*512*2)
    a(f'v_lshrrev_b32 v{VB}, 1, v0')
    a(f'v_lshlrev_b32 v{VB}, 10, v{VB}')
    a(f'v_and_b32 v{VC}, 1, v0')
    a(f'v_lshl_add_u32 v{VB}, v{VC}, 4, v{VB}')
    a(f's_mul_i32 s{T3}, s{WV}, 12')
    a(f's_lshl_b32 s{T2}, s{T0}, 5')
    for s in range(12):
        a(f's_add_u32 s{T1}, s{T3}, {s}')
        a(f's_min_u32 s{T1}, s{T1}, 42')
        a(f's_lshl_b32 s{T1}, s{T1}, 15')
        a(f's_add_u32 s{T1}, s{T1}, s{T2}')
        a(f's_add_u32 m0, s{STGB}, {s*1024}')
        if SW_ < 8: a('s_waitcnt vmcnt(0)')
        a(f'buffer_load_dwordx4 v{VB}, s[{SST}:{SST+3}], s{T1} offen {fpol} lds')
    tr_addr(cv, VA)
    a('s_waitcnt vmcnt(0)')
    for s in range(12): tr_read(BF + 4*s, VA, s)
    GBP = 125
    a(f'v_lshrrev_b32 v{VA}, 3, v0')
    a(f'v_lshlrev_b32 v{VA}, 12, v{VA}')
    a(f'v_and_b32 v{VB}, 7, v0')
    a(f'v_lshl_add_u32 v{VA}, v{VB}, 4, v{VA}')
    a(f's_lshl_b32 s{T2}, s{T0}, 7')
    a(f's_add_u32 s{T2}, s{T2}, {WS_MOD + 65536 + 8}')
    poll('L_poll_gb', [f'buffer_load_dwordx2 v[8:9], v{VA}, s[{SWS}:{SWS+3}], s{T2} offen sc1'], [9], sleep=32)
    a(f'v_mov_b32 v{GBP}, v8')
    AD = 24; VM = 30; AX = 60; AR = 61; AO = 62; AW = 63
    a(f'v_bfe_u32 v{VB}, v0, 3, 1')
    a(f's_mul_i32 s{T3}, s{WV}, 12')
    a(f'v_add_u32 v{VB}, s{T3}, v{VB}')
    a(f'v_and_b32 v{VA}, {0x3f0 & ~0x80}, v1')
    a(f'v_add_u32 v{VA}, {21*2048}, v{VA}')
    a(f's_mul_i32 s{T3}, s{WV}, {6*2048}')
    for u in range(6):
        a(f'v_add_u32 v{VC}, {2*u}, v{VB}')
        a(f'v_cmp_gt_u32 vcc, 43, v{VC}')
        a(f'v_cndmask_b32 v{VM+u}, 0, -1, vcc')
        a(f'v_add_u32 v{VC}, s{T3}, v1')
        a(f'v_cndmask_b32 v{AD+u}, v{VA}, v{VC}, vcc')
        if u < 5: a(f's_add_u32 s{T3}, s{T3}, 2048')
    a(f'v_lshrrev_b32 v{AX}, 3, v0')
    a(f'v_lshlrev_b32 v{AO}, 10, v{AX}')
    a(f'v_lshlrev_b32 v{AX}, 12, v{AX}')
    a(f'v_and_b32 v{VB}, 7, v0')
    a(f'v_lshl_add_u32 v{AX}, v{VB}, 3, v{AX}')
    a(f'v_lshl_add_u32 v{AO}, v{VB}, 2, v{AO}')
    red_addr(cv, AR)
    a(f's_lshl_b32 s{T2}, s{WV}, 10')
    a(f'v_add_u32 v{AW}, s{T2}, v1')
    a('s_waitcnt lgkmcnt(0)')
    a.label('L_wdone')
    GAP = 124; XR1 = 126; AQ = 36; A64 = 37
    a(f'v_and_b32 v{VB}, 3, v0')
    a(f'v_lshrrev_b32 v{VC}, 5, v0')
    a(f'v_lshl_add_u32 v{VB}, v{VB}, 1, v{VC}')
    a(f'v_lshlrev_b32 v{AQ}, 3, v{VB}')
    a(f'v_lshlrev_b32 v{VA}, 4, v{VB}')
    a(f's_lshl_b32 s{T2}, s{SB}, 12')
    a(f's_lshl_b32 s{T3}, s{SH}, 7')
    a(f's_add_u32 s{T2}, s{T2}, s{T3}')
    a(f's_add_u32 s{T2}, s{T2}, {WS_MOD + 65536}')
    poll('L_poll_ga', [f'buffer_load_dwordx2 v[8:9], v{VA}, s[{SWS}:{SWS+3}], s{T2} offen sc1'], [9], sleep=32)
    a(f'v_mov_b32 v{GAP}, v8')
    a(f'v_lshlrev_b32 v{VA}, 2, v{VB}')
    a(f's_lshl_b32 s{T2}, s{SB}, 10')
    a(f's_lshl_b32 s{T3}, s{SH}, 5')
    a(f's_add_u32 s{T2}, s{T2}, s{T3}')
    a(f'buffer_load_dword v{XR1}, v{VA}, s[{SX}:{SX+3}], s{T2} offen')
    a(f'v_lshlrev_b32 v{VA}, 5, v{VI}')
    a(f'v_lshl_add_u32 v{VA}, v{VG}, 3, v{VA}')
    a(f'v_lshrrev_b32 v{VB}, 2, v{VI}')
    a(f'v_lshlrev_b32 v{VB}, 12, v{VB}')
    a(f'v_and_b32 v{VC}, 3, v{VI}')
    a(f'v_lshl_add_u32 v{VB}, v{VC}, 5, v{VB}')
    a(f'v_lshl_add_u32 v{VB}, v{VG}, 3, v{VB}')
    a(f'v_lshrrev_b32 v{A64}, 2, v0')
    a(f'v_lshlrev_b32 v{A64}, 7, v{A64}')
    a(f'v_and_b32 v{VC}, 3, v0')
    a(f'v_lshl_add_u32 v{A64}, v{VC}, 4, v{A64}')
    a(f's_lshl_b32 s{T4}, s{SB}, 16')
    a(f's_lshl_b32 s{T3}, s{WV}, 14')
    a(f's_add_u32 s{T4}, s{T4}, s{T3}')
    a(f's_lshl_b32 s{T3}, s{SH}, 7')
    a(f's_add_u32 s{T4}, s{T4}, s{T3}')
    a(f's_add_u32 s{T4}, s{T4}, {WS_WOP}')
    NP = 8; NC = 16
    a(f'v_lshrrev_b32 v{VC}, 5, v0')
    a(f'v_lshlrev_b32 v{VC}, 4, v{VC}')
    a(f'v_lshrrev_b32 v{NP}, v{VC}, s{TAG}')
    a(f'v_and_b32 v{VC}, 1, v0')
    a(f'v_lshlrev_b32 v{VC}, 4, v{VC}')
    a(f'v_lshrrev_b32 v{NC}, v{VC}, s{TAG}')
    for k in range(1, 4):
        a(f'v_lshrrev_b32 v{NP+k}, {4*k}, v{NP}')
        a(f'v_lshrrev_b32 v{NC+k}, {4*k}, v{NC}')
    a('s_waitcnt vmcnt(0)')
    stamp(11)
    a(f'v_mov_b32 v{VC}, 0')
    lds_wait('L_w_stat', VC, L_CNT+8, 4, 1)
    stamp(8)
    LO = L_OP
    for w in range(4):
        a(f'ds_read_b64 v[{RD+2*w}:{RD+2*w+1}], v{VA} offset:{LO + w*512}')
    a('s_waitcnt lgkmcnt(0)')
    for k in range(4): a(f'v_add_f32 v{RD+k}, v{RD+k}, v{RD+k+4}')
    for k in range(2): a(f'v_add_f32 v{RD+k}, v{RD+k}, v{RD+k+2}')
    a(f'v_cvt_pk_bf16_f32 v{HP}, v{RD}, v{RD+1}')
    if dbg:
        a(f's_lshl_b32 s{T2}, s2, 8')
        a(f's_add_u32 s{T2}, s{T2}, {WS_DBG + 0x10000}')
        a(f'v_lshrrev_b32 v{VC}, 1, v{VA}')
        a(f'buffer_store_dword v{HP}, v{VC}, s[{SWS}:{SWS+3}], s{T2} offen')
    gemv(wmap, HP)
    a(f'v_add_u32 v{ACC}, 8, v{ACC}')
    a(f'v_add_u32 v{ACC+1}, 8, v{ACC+1}')
    a(f'v_mov_b32 v{ACC+2}, v{ACC}')
    a(f'v_mov_b32 v{ACC+3}, v{ACC+1}')
    a(f'v_permlane16_swap_b32 v{ACC}, v{ACC+2}')
    a(f'v_permlane16_swap_b32 v{ACC+1}, v{ACC+3}')
    for k in range(4): a(f'v_bfi_b32 v{RD+k}, 15, v{NP+k}, v{ACC+k}')
    a('s_mov_b64 exec, 0x0000ffff0000ffff' if False else 's_mov_b32 exec_lo, 0xffff')
    a('s_mov_b32 exec_hi, 0xffff')
    a(f'buffer_store_dwordx4 v[{RD}:{RD+3}], v{VB}, s[{SWS}:{SWS+3}], s{T4} offen sc1')
    a('s_mov_b64 exec, -1')
    stamp(2)
    if notail: finish(SWS, 8)
    a(f's_cmp_lt_u32 s{F1T}, {NF1}')
    a('s_cbranch_scc1 L_gate')
    a(f's_mov_b32 s{T0}, s{F2T}')
    a(f's_cmp_lt_u32 s{T0}, 32')
    a('s_cbranch_scc1 L_gate')
    a(f's_cmp_eq_u32 s{WV}, 0')
    a('s_cbranch_scc1 L_gate')
    a('s_branch L_fin')
    a.label('L_gate')
    a(f's_cmp_lg_u32 s{WV}, 0')
    a('s_cbranch_scc1 L_r1done')
    a(f's_lshr_b32 s{T2}, s2, 1')
    a(f's_lshl_b32 s{T2}, s{T2}, 12')
    a(f's_and_b32 s{T3}, s2, 1')
    a(f's_lshl_b32 s{T3}, s{T3}, 6')
    a(f's_add_u32 s{T2}, s{T2}, s{T3}')
    a(f's_add_u32 s{T2}, s{T2}, {WS_WOP}')
    loads = [f'buffer_load_dwordx4 v[{8+4*j}:{8+4*j+3}], v{A64}, s[{SWS}:{SWS+3}], s{T2} offen offset:{j*2048} sc1' for j in range(2)]
    def chk8():
        a(f'v_xor_b32 v{VD}, v8, v{NC}')
        for r in range(9, 16): a(f'v_bitop3_b32 v{VD}, v{r}, v{NC + (r & 3)}, v{VD} bitop3:0xbe')
        a(f'v_and_b32 v{VD}, 15, v{VD}')
    poll('L_poll_wop', loads, None, chk=chk8)
    if tst: stamp(6); a(f's_mov_b32 s5, s{SPIN}')
    for r in range(8, 16): a(f'v_and_b32 v{r}, -16, v{r}')
    a('v_pk_add_f32 v[8:9], v[8:9], v[12:13]')
    a('v_pk_add_f32 v[10:11], v[10:11], v[14:15]')
    a('v_permlane32_swap_b32 v8, v10')
    a('v_permlane32_swap_b32 v9, v11')
    a('v_pk_add_f32 v[8:9], v[8:9], v[10:11]')
    a('v_mov_b32 v10, v8'); a('v_mov_b32 v11, v9')
    a('v_permlane16_swap_b32 v8, v10')
    a('v_permlane16_swap_b32 v9, v11')
    a('v_pk_add_f32 v[8:9], v[8:9], v[10:11]')
    for ctl_ in ('row_ror:4', 'row_ror:8'):
        for k in range(2): a(f'v_add_f32_dpp v{8+k}, v{8+k}, v{8+k} {ctl_} row_mask:0xf bank_mask:0xf')
    rnd2(8, 9, VD)
    modulate2(8, 9, GAP, XR1, U2, U3, VD, RD)
    a(f'v_mov_b32 v{RD+1}, s{TAG}')
    a(f's_lshl_b32 s{T2}, s2, 7')
    a(f's_add_u32 s{T2}, s{T2}, {WS_X1}')
    a('s_mov_b32 exec_lo, 0xf'); a('s_mov_b32 exec_hi, 0xf')
    a(f'buffer_store_dwordx2 v[{RD}:{RD+1}], v{AQ}, s[{SWS}:{SWS+3}], s{T2} offen sc1')
    a('s_mov_b64 exec, -1')
    stamp(3)
    a.label('L_r1done')
    if g1: a('s_barrier')
    a(f's_cmp_lt_u32 s{F1T}, {NF1}')
    a('s_cbranch_scc0 L_notf1')
    a(f's_lshl_b32 s{T2}, s{WV}, 13')
    a(f's_add_u32 s{T2}, s{T2}, {WS_X1}')
    a(f's_add_u32 s{T3}, s{T2}, 4096')
    a('s_mov_b32 s32, 0x11111111'); a('s_mov_b32 s33, 0x11111111')
    loads = [f'buffer_load_dwordx4 v[{8+4*j}:{8+4*j+3}], v{A64}, s[{SWS}:{SWS+3}], s{T3 if j >> 1 else T2} offen offset:{(j&1)*2048} sc1' for j in range(4)]
    poll('L_poll_x1', loads, [9, 11, 13, 15, 17, 19, 21, 23])
    if tst: stamp(7); a(f's_mov_b32 s15, s{SPIN}')
    XV = WR; DV = WR + 16; PS = WR + 32; X0V = WR + 44; TT = WR + 45; HO = WR + 48; AF = WR + 64
    def pr(r): return f'v[{r}:{r+1}]'
    BC = 'op_sel_hi:[1,0]'; NG = 'neg_lo:[0,1] neg_hi:[0,1]'
    for rr in range(2):
        for q in range(4):
            src = 8 + 4*(2*rr + q//2) + 2*(q % 2)
            unpack(XV + 8*rr + 2*q, XV + 8*rr + 2*q + 1, src)
            if q == 0: a(f'v_readfirstlane_b32 s{22+2*rr}, v{XV+8*rr}')
    for rr in range(2):
        for q in range(4):
            a(f'v_pk_add_f32 {pr(DV+8*rr+2*q)}, {pr(XV+8*rr+2*q)}, s[{22+2*rr}:{23+2*rr}] {BC} {NG}')
    a(f'v_mov_b32 v{X0V}, s24'); a(f'v_mov_b32 v{TT}, s22')
    a(f'v_cndmask_b32 v{X0V}, v{X0V}, v{TT}, s[{LO32}:{LO32+1}]')
    S_ = [PS, PS+2]; Q_ = [PS+4, PS+6]; Z_ = [PS+8, PS+10]
    for rr in range(2): a(f'v_pk_add_f32 {pr(S_[rr])}, {pr(DV+8*rr)}, {pr(DV+8*rr+2)}')
    for rr in range(2): a(f'v_pk_add_f32 {pr(Z_[rr])}, {pr(DV+8*rr+4)}, {pr(DV+8*rr+6)}')
    for rr in range(2): a(f'v_pk_mul_f32 {pr(Q_[rr])}, {pr(DV+8*rr)}, {pr(DV+8*rr)}')
    for rr in range(2): a(f'v_pk_add_f32 {pr(S_[rr])}, {pr(S_[rr])}, {pr(Z_[rr])}')
    for q in range(1, 4):
        for rr in range(2): a(f'v_pk_fma_f32 {pr(Q_[rr])}, {pr(DV+8*rr+2*q)}, {pr(DV+8*rr+2*q)}, {pr(Q_[rr])}')
    for r in S_ + Q_: a(f'v_add_f32 v{r}, v{r}, v{r+1}')
    a(f'v_permlane32_swap_b32 v{S_[0]}, v{S_[1]}')
    a(f'v_permlane32_swap_b32 v{Q_[0]}, v{Q_[1]}')
    a(f'v_add_f32 v{S_[0]}, v{S_[0]}, v{S_[1]}')
    a(f'v_add_f32 v{Q_[0]}, v{Q_[0]}, v{Q_[1]}')
    a(f'v_permlane16_swap_b32 v{S_[0]}, v{Q_[0]}')
    T_ = S_[0]; C_ = Q_[0]
    a(f'v_add_f32 v{T_}, v{S_[0]}, v{Q_[0]}')
    for ctl_ in ('quad_perm:[1,0,3,2]', 'quad_perm:[2,3,0,1]', 'row_half_mirror', 'row_mirror'):
        a(f'v_add_f32_dpp v{T_}, v{T_}, v{T_} {ctl_} row_mask:0xf bank_mask:0xf')
    a(f'v_mul_f32 v{T_}, {f32(1/512)}, v{T_}')
    a(f'v_mov_b32 v{C_}, v{T_}')
    a(f'v_permlane16_swap_b32 v{T_}, v{C_}')
    a(f'v_add_f32 v{X0V}, v{X0V}, v{T_}')
    a(f'v_fma_f32 v{C_}, -v{T_}, v{T_}, v{C_}')
    a(f'v_max_f32 v{C_}, 0, v{C_}')
    rnd2(X0V, C_, TT)
    a(f'v_add_f32 v{C_}, {f32(1e-5)}, v{C_}')
    a(f'v_readlane_b32 s22, v{X0V}, 0'); a(f'v_readlane_b32 s24, v{X0V}, 32')
    rnd1(C_, TT)
    a(f'v_sqrt_f32 v{C_}, v{C_}')
    P8 = [(rr, q) for rr in range(2) for q in range(4)]
    def X(rr, q): return XV + 8*rr + 2*q
    def rnd_all():
        for n_, (rr, q) in enumerate(P8): a(f'v_cvt_pk_bf16_f32 v{DV+n_}, v{X(rr,q)}, v{X(rr,q)+1}')
        for n_, (rr, q) in enumerate(P8):
            a(f'v_lshlrev_b32 v{X(rr,q)}, 16, v{DV+n_}')
            a(f'v_and_b32 v{X(rr,q)+1}, 0xffff0000, v{DV+n_}')
    for rr, q in P8[:2]: a(f'v_pk_add_f32 {pr(X(rr,q))}, {pr(X(rr,q))}, s[{22+2*rr}:{23+2*rr}] {BC} {NG}')
    rnd1(C_, TT)
    a(f'v_rcp_f32 v{C_}, v{C_}')
    for rr, q in P8[2:]: a(f'v_pk_add_f32 {pr(X(rr,q))}, {pr(X(rr,q))}, s[{22+2*rr}:{23+2*rr}] {BC} {NG}')
    a(f'v_readlane_b32 s26, v{C_}, 0'); a(f'v_readlane_b32 s28, v{C_}, 32')
    rnd_all()
    for rr, q in P8: a(f'v_pk_mul_f32 {pr(X(rr,q))}, {pr(X(rr,q))}, s[{26+2*rr}:{27+2*rr}] {BC}')
    rnd_all()
    for rr, q in P8: a(f'v_pk_mul_f32 {pr(X(rr,q))}, {pr(X(rr,q))}, {pr(C1F+8*rr+2*q)}')
    rnd_all()
    for rr, q in P8: a(f'v_pk_add_f32 {pr(X(rr,q))}, {pr(X(rr,q))}, {pr(SBF+8*rr+2*q)}')
    for rr in range(2):
        for hf in range(2):
            r = HO + 4*rr + 2*hf
            for k in range(2): a(f'v_cvt_pk_bf16_f32 v{r+k}, v{X(rr,2*hf+k)}, v{X(rr,2*hf+k)+1}')
            a(f'ds_write_b64 v{AH}, v[{r}:{r+1}] offset:{L_H2 + rr*H2S + hf*512}')
    a('s_waitcnt lgkmcnt(0)')
    if tst: stamp(9)
    a('s_barrier')
    if tst: stamp(0)
    for s in range(8): a(f'ds_read_b128 v[{AF+4*s}:{AF+4*s+3}], v{AA} offset:{L_H2 + s*64}')
    a(f'v_mov_b32 v{RD+5}, s{TAG}'); a(f'v_mov_b32 v{RD+7}, s{TAG}')
    a('s_mov_b64 vcc, s[32:33]')
    for s in range(8):
        a(f's_waitcnt lgkmcnt({7-s})')
        mf(RD, AF+4*s, BF+4*s, s == 0)
    a(f'v_permlane32_swap_b32 v{RD}, v{RD+2}')
    a(f'v_permlane32_swap_b32 v{RD+1}, v{RD+3}')
    for k in range(2): a(f'v_add_f32_dpp v{RD+k}, v{RD+2+k}, v{RD+k} row_ror:8 row_mask:0xf bank_mask:0xf')
    rnd2(RD, RD+1, VD)
    for k in range(2): a(f'v_mov_b32_dpp v{U0+k}, v{RD+k} row_shl:4 row_mask:0xf bank_mask:0xf')
    silu(RD, VB, WR, WR+1); silu(RD+1, VC, WR+2, WR+3)
    rnd2(RD, RD+1, VD)
    for k in range(2): a(f'v_mul_f32 v{RD+k}, v{RD+k}, v{U0+k}')
    for k in range(2): a(f'v_mov_b32_dpp v{U0+k}, v{RD+k} quad_perm:[1,0,3,2] row_mask:0xf bank_mask:0xf')
    for k in range(2): a(f'v_cvt_pk_bf16_f32 v{RD+k}, v{RD+k}, v{U0+k}')
    a(f'v_cndmask_b32_dpp v{RD+4}, v{RD+1}, v{RD}, vcc quad_perm:[0,0,0,0] row_mask:0xf bank_mask:0xf')
    a('s_not_b64 vcc, vcc')
    a(f'v_cndmask_b32_dpp v{RD+6}, v{RD}, v{RD+1}, vcc quad_perm:[2,2,2,2] row_mask:0xf bank_mask:0xf')
    a('s_mov_b32 exec_lo, 0x00050005'); a('s_mov_b32 exec_hi, 0x00050005')
    a(f'buffer_store_dwordx4 v[{RD+4}:{RD+7}], v{AS}, s[{SWS}:{SWS+3}], s{T5} offen sc1')
    stamp(4)
    a('s_branch L_fin')
    a.label('L_notf1')
    a(f's_mov_b32 s{T0}, s{F2T}')
    a(f's_cmp_lt_u32 s{T0}, 32')
    a('s_cbranch_scc0 L_fin')
    a(f's_mov_b32 s{T2}, {WS_ACT}')
    loads = []; tags = []
    for u in range(6):
        for k in range(2):
            r = WR + 8*u + 4*k
            loads.append(f'buffer_load_dwordx4 v[{r}:{r+3}], v{AD+u}, s[{SWS}:{SWS+3}], s{T2} offen offset:{1024*k} sc1')
            tags += [r+1, r+3]
    a(f's_lshl_b32 s{T1}, s{T0}, 7')
    a(f's_add_u32 s{T1}, s{T1}, {WS_X1}')
    X1R = WR + 48
    poll('L_poll_x1b', [f'buffer_load_dwordx2 v[{X1R}:{X1R+1}], v{AX}, s[{SWS}:{SWS+3}], s{T1} offen sc1'], [X1R+1])
    if g2: poll('L_poll_act0', loads[:1], tags[:2])
    poll('L_poll_act', loads, tags)
    if tst: stamp(7); a(f's_mov_b32 s15, s{SPIN}')
    AF = WR + 64
    for u in range(6):
        for k in range(4):
            a(f'v_and_b32 v{AF+4*u+k}, v{VM+u}, v{WR+8*u+2*k}')
        mf(D1, AF+4*u, BF+8*u, u == 0); mf(D2, AF+4*u, BF+8*u+4, u == 0)
    sel_halves(cv, RD, D1, D2)
    a(f'ds_write_b128 v{AW}, v[{RD}:{RD+3}] offset:{L_RED}')
    a('s_waitcnt lgkmcnt(0)')
    a('s_barrier')
    if tst: stamp(10)
    a(f's_cmp_lg_u32 s{WV}, 0')
    a('s_cbranch_scc1 L_fin')
    red_sum(cv, U0, AR, L_RED, WR)
    rnd2(U0, U1, VD)
    modulate2(U0, U1, GBP, X1R, U2, U3, VD, RD)
    a(f's_lshl_b32 s{T2}, s{T0}, 5')
    a(f'buffer_store_dword v{RD}, v{AO}, s[{SOUT}:{SOUT+3}], s{T2} offen')
    stamp(5)
    if tst:
        a('s_waitcnt vmcnt(0)'); stamp(9)
    a(f's_cmp_lg_u32 s{T0}, 0')
    a('s_cbranch_scc1 L_fin')
    a(f's_sub_u32 s{T2}, s{TAG}, {TAGC - 0x11111111}')
    a(f'v_mov_b32 v{VB}, s{T2}')
    a(f'v_mov_b32 v{VA}, 0')
    a('s_mov_b64 exec, 1')
    a(f'buffer_store_dword v{VB}, v{VA}, s[{SWS}:{SWS+3}], 0 offen offset:{WS_GEN} sc1')
    if hold:
        a('s_waitcnt vmcnt(0)')
        a.label('L_hold')
        a('s_memrealtime s[92:93]')
        a('s_waitcnt lgkmcnt(0)')
        a('s_sub_u32 s92, s92, s94')
        a(f's_cmp_lt_u32 s92, {hold}')
        a('s_cbranch_scc1 L_hold')
    a.label('L_fin', fence=stamps)
    if stamps: finish(SWS, 8)
    a.label('L_end', fence=False)
    a('s_endpgm')
    a.raw('.section .rodata,"a"')
    a.raw('.p2align 6')
    a.raw(f'.amdhsa_kernel {NAME}')
    a.raw('  .amdhsa_next_free_vgpr 256')
    a.raw('  .amdhsa_next_free_sgpr 96')
    a.raw('  .amdhsa_accum_offset 256')
    a.raw('  .amdhsa_group_segment_fixed_size 0')
    a.raw('  .amdhsa_kernarg_size 112')
    a.raw('  .amdhsa_user_sgpr_count 2')
    a.raw('  .amdhsa_user_sgpr_kernarg_segment_ptr 1')
    a.raw('  .amdhsa_system_sgpr_workgroup_id_x 1')
    a.raw('  .amdhsa_float_denorm_mode_32 3')
    a.raw('.end_amdhsa_kernel')
    return a.text()

if __name__ == '__main__':
    import json
    out = sys.argv[1] if len(sys.argv) > 1 else 'adaLN_cond__mha_block_cached__swiglu_ffn__decode.s'
    kw = json.loads(sys.argv[2]) if len(sys.argv) > 2 else {}
    open(out, 'w').write(gen(**kw))
    print('wrote', out)
```

```python
import sys, struct
from asmlib import Asm

NAME = 'adaLN_cond__mha_block_cached__swiglu_ffn__decode_kernel'

def f32(x):
    return '0x%08x' % struct.unpack('<I', struct.pack('<f', x))[0]

L2E = 1.4426950408889634
WS_GEN = 0
WS_MOD = 0x1000
WS_X1 = 0x20000
WS_ACT = 0x28000
WS_HEAD = 0x38000
WS_MST = 0x48000
WS_WOP = 0x100000
WS_P = 0x200000
WS_SLOT = 0x800000
WS_DBG = 0x2000000
WS_SIZE = 0x40000000
L_CNT = 0x0
L_MX = 0x40
L_QP = 0x100
L_OP = 0x900
L_RED = 0x1100
L_H2 = 0x3100; H2S = 1040
L_SC = 0x5200
L_OS = 0x9200
L_STG = 0x9A00; STGW = 12288
LDS_SIZE = L_STG + 4 * STGW
NF1 = 86
LAYOUT = 7
F2_BASE = 96
SPIN_MAX = 100000
NSH = 32
TAGC = 0x5bd1e995

def gen(dbg=False, W=6, VW=4, W0=6, nA=4, kpol='nt', wpol='nt', stamps=False, gate=False, notail=False,
        gsleep=4, b0wq=0, sprio=2, mprio=3, boost=2, sboost=3, n0=0, WQ=32, SW_=2,
        wqpol=None, wopol=None, mpol=None, fpol=None, nopre=False, pre=None, dst=False, perm=False, hold=0,
        lv=None, th=(70, -70), tK=900, sK=14.9, tV=4230, sV=13.46, lv0=None, g1=False, g2=False, rel=False, dl=0, MB=88, DD=2, MSTR=4096, CSTR=256, tst=False, tlbv=False, tlbo=False, mlp='', agg='mean', noml=False, nomst=False, msp='sc1', thv=None, pd=0, lme=False, lpl=False, gene=False, dfw=False, dpol=None, bo1=None, bo2=0, bo3=0):
    assert g1 or not dfw
    thv = th if thv is None else thv
    if dst: stamps = True
    wqpol = wpol if wqpol is None else wqpol; wopol = wpol if wopol is None else wopol
    mpol = wpol if mpol is None else mpol; fpol = wpol if fpol is None else fpol
    a = Asm()
    hdr = open('adaLN_cond__mha_block_cached__swiglu_ffn__decode.s.ref').read().split('\n')
    for l in hdr:
        if l.startswith('; @launch'): break
        a.raw(l)
    a.raw(f'; @launch grid=(256,1,1) block=(512,1,1) lds={LDS_SIZE}')
    a.raw('.amdgcn_target "amdgcn-amd-amdhsa--gfx950"')
    a.raw('.text')
    a.raw(f'.globl {NAME}')
    a.raw('.p2align 8')
    a.raw(f'.type {NAME},@function')
    a.raw(f'{NAME}:')

    def srd(d, p, size):
        a(f's_mov_b32 s{d}, s{p}')
        a(f's_mov_b32 s{d+1}, s{p+1}')
        a(f's_mov_b32 s{d+2}, {size}')
        a(f's_mov_b32 s{d+3}, 0x00020000')

    def rnd1(x, t):
        a(f'v_cvt_pk_bf16_f32 v{t}, v{x}, v{x}')
        a(f'v_lshlrev_b32 v{x}, 16, v{t}')
    def rnd2(x, y, t):
        a(f'v_cvt_pk_bf16_f32 v{t}, v{x}, v{y}')
        a(f'v_lshlrev_b32 v{x}, 16, v{t}')
        a(f'v_and_b32 v{y}, 0xffff0000, v{t}')
    def unpack(lo, hi, src):
        a(f'v_lshlrev_b32 v{lo}, 16, v{src}')
        a(f'v_and_b32 v{hi}, 0xffff0000, v{src}')
    def wave_reduce(op, regs, tmps):
        for ctl in ('quad_perm:[1,0,3,2]', 'quad_perm:[2,3,0,1]', 'row_half_mirror', 'row_mirror'):
            for r in regs:
                a(f'{op}_dpp v{r}, v{r}, v{r} {ctl} row_mask:0xf bank_mask:0xf')
        for sw in ('v_permlane16_swap_b32', 'v_permlane32_swap_b32'):
            for r, t in zip(regs, tmps): a(f'v_mov_b32 v{t}, v{r}')
            for r, t in zip(regs, tmps): a(f'{sw} v{r}, v{t}')
            for r, t in zip(regs, tmps): a(f'{op} v{r}, v{r}, v{t}')
    def greduce8(acc):
        for e in range(4): a(f'v_permlane32_swap_b32 v{acc+e}, v{acc+e+4}')
        for e in range(4): a(f'v_add_f32 v{acc+e}, v{acc+e}, v{acc+e+4}')
        for e in range(2): a(f'v_permlane16_swap_b32 v{acc+e}, v{acc+e+2}')
        for e in range(2): a(f'v_add_f32 v{acc+e}, v{acc+e}, v{acc+e+2}')
    def silu(x, t, t2, t3):
        a(f'v_mul_f32 v{t}, {f32(-L2E)}, v{x}')
        a(f'v_exp_f32 v{t}, v{t}')
        a(f'v_add_f32 v{t}, 1.0, v{t}')
        a(f'v_min_f32 v{t}, 0x7f7fffff, v{t}')
        a(f'v_rcp_f32 v{t2}, v{t}')
        a(f'v_mul_f32 v{t3}, v{x}, v{t2}')
        a(f'v_fma_f32 v{x}, -v{t3}, v{t}, v{x}')
        a(f'v_fma_f32 v{x}, v{x}, v{t2}, v{t3}')
    STP = 92
    def stamp(idx):
        if not stamps: return
        a(f's_memrealtime s[{STP}:{STP+1}]')
        a('s_waitcnt lgkmcnt(0)')
        a(f's_mov_b32 s{4+idx}, s{STP}')
    def finish(ws_srd, vt, role='v'):
        if dst:
            a('s_mov_b64 exec, -1')
            a(f'v_mov_b32 v{vt}, 0')
            if role == 's':
                a(f's_not_b32 s{STP}, s4'); a(f'v_writelane_b32 v{vt}, s{STP}, 0')
                a(f'v_writelane_b32 v{vt}, s4, 1')
                a(f'v_writelane_b32 v{vt}, s5, 2')
                a(f'v_writelane_b32 v{vt}, s11, 3')
                a(f'v_writelane_b32 v{vt}, s6, 4')
                a(f's_not_b32 s{STP}, s6'); a(f'v_writelane_b32 v{vt}, s{STP}, 5')
                a(f's_memtime s[{STP}:{STP+1}]'); a('s_waitcnt lgkmcnt(0)')
                a(f's_sub_u32 s{STP}, s{STP}, s14'); a(f'v_writelane_b32 v{vt}, s{STP}, 10')
                a(f's_sub_u32 s{STP}, s6, s4'); a(f'v_writelane_b32 v{vt}, s{STP}, 11')
            else:
                a(f'v_writelane_b32 v{vt}, s6, 6')
                a(f'v_writelane_b32 v{vt}, s7, 7')
                a(f'v_writelane_b32 v{vt}, s8, 8')
                a(f'v_writelane_b32 v{vt}, s9, 9')
            srd(STP-4, 40, 256)
            a(f'v_lshlrev_b32 v{vt+1}, 2, v0')
            a('s_mov_b64 exec, 0xffff')
            a(f'buffer_atomic_umax v{vt}, v{vt+1}, s[{STP-4}:{STP-1}], 0 offen')
        elif stamps:
            a('s_mov_b64 exec, -1')
            a(f'v_mov_b32 v{vt}, 0')
            for k in range(12):
                a(f'v_writelane_b32 v{vt}, s{4+k}, {k}')
            a(f's_lshl_b32 s{STP}, s2, 3')
            a(f's_add_u32 s{STP}, s{STP}, s3')
            a(f's_lshl_b32 s{STP}, s{STP}, 6')
            a(f's_add_u32 s{STP}, s{STP}, {WS_DBG + 0x100000}')
            a(f'v_lshlrev_b32 v{vt+1}, 2, v0')
            a('s_mov_b64 exec, 0xffff')
            a(f'buffer_store_dword v{vt}, v{vt+1}, s[{ws_srd}:{ws_srd+3}], s{STP} offen')
        a('s_endpgm')

    def mf(d, A, Bf, first):
        c = '0' if first else f'v[{d}:{d+3}]'
        a(f'v_mfma_f32_16x16x32_bf16 v[{d}:{d+3}], v[{A}:{A+3}], v[{Bf}:{Bf+3}], {c}')
    def tr_read(dst, v, ks):
        a(f'ds_read_b64_tr_b16 v[{dst}:{dst+1}], v{v} offset:{ks*1024}')
        a(f'ds_read_b64_tr_b16 v[{dst+2}:{dst+3}], v{v} offset:{ks*1024+128}')

    class Ctx:
        pass
    def tr_addr(c, v):
        a(f'v_lshrrev_b32 v{v}, 2, v{c.VI}')
        a(f'v_lshlrev_b32 v{v}, 5, v{v}')
        a(f'v_lshl_add_u32 v{v}, v{c.VG}, 8, v{v}')
        a(f'v_and_b32 v{c.VD}, 3, v{c.VI}')
        a(f'v_lshl_add_u32 v{v}, v{c.VD}, 3, v{v}')
        a(f'v_add_u32 v{v}, s{c.STGB}, v{v}')
    def sel_halves(c, dst, d1, d2):
        for r in range(4):
            a(f'v_cndmask_b32 v{dst+r}, v{d2+r}, v{d1+r}, s[{c.LO32}:{c.LO32+1}]')
    def red_addr(c, v):
        a(f'v_and_b32 v{v}, 7, v0')
        a(f'v_lshlrev_b32 v{v}, 5, v{v}')
        a(f'v_lshrrev_b32 v{c.VD}, 5, v0')
        a(f'v_lshl_add_u32 v{v}, v{c.VD}, 8, v{v}')
        a(f'v_bfe_u32 v{c.VD}, v0, 3, 2')
        a(f'v_lshl_add_u32 v{v}, v{c.VD}, 2, v{v}')
    def red_sum(c, dst, v, off, scratch):
        a(f'v_add_u32 v{c.VD}, {off}, v{v}')
        for w in range(4):
            for hf in range(2):
                r = scratch + 2*(2*w + hf)
                a(f'ds_read2_b32 v[{r}:{r+1}], v{c.VD} offset0:{hf*128} offset1:{hf*128+4}')
            if w < 3: a(f'v_add_u32 v{c.VD}, 1024, v{c.VD}')
        a('s_waitcnt lgkmcnt(0)')
        for st in (8, 4):
            for k in range(st): a(f'v_add_f32 v{scratch+k}, v{scratch+k}, v{scratch+k+st}')
        a(f'v_add_f32 v{dst}, v{scratch}, v{scratch+2}')
        a(f'v_add_f32 v{dst+1}, v{scratch+1}, v{scratch+3}')

    def mod_issue(c):
        a(f's_and_b32 s{c.T0}, s{c.WG}, 7')
        a(f's_lshl_b32 s{c.T0}, s{c.T0}, 2')
        a(f's_lshr_b32 s{c.T1}, s{c.WG}, 3')
        a(f's_and_b32 s{c.T1}, s{c.T1}, 3')
        a(f's_add_u32 s{c.T0}, s{c.T0}, s{c.T1}')
        a(f's_and_b32 s{c.T1}, s{c.WG}, 0xe0')
        a(f's_add_u32 s{c.T1}, s{c.T1}, s{c.T0}')
        a(f's_lshl_b32 s{c.T1}, s{c.T1}, 5')
        a(f's_mul_i32 s{c.T2}, s{c.WV}, {128*6144}')
        a(f's_add_u32 s{c.T1}, s{c.T1}, s{c.T2}')
        a(f'v_and_b32 v{c.VA}, 7, v0')
        a(f'v_lshlrev_b32 v{c.VA}, 10, v{c.VA}')
        a(f'v_bfe_u32 v{c.VB}, v0, 3, 1')
        a(f'v_lshl_add_u32 v{c.VA}, v{c.VB}, 7, v{c.VA}')
        a(f'v_lshl_add_u32 v{c.VA}, v{c.VG}, 4, v{c.VA}')
        a(f's_lshl_b32 s{c.T2}, s{c.WV}, 8')
        a(f'buffer_load_dwordx4 v[{c.CF}:{c.CF+3}], v{c.VA}, s[{c.SC}:{c.SC+3}], s{c.T2} offen')
        a(f'buffer_load_dwordx4 v[{c.CF+4}:{c.CF+7}], v{c.VA}, s[{c.SC}:{c.SC+3}], s{c.T2} offen offset:64')
        a(f'v_lshrrev_b32 v{c.VB}, 1, v0')
        a(f'v_mul_u32_u24 v{c.VB}, 6144, v{c.VB}')
        a(f'v_and_b32 v{c.VC}, 1, v0')
        a(f'v_lshl_add_u32 v{c.VB}, v{c.VC}, 4, v{c.VB}')
        for s in range(4):
            a(f's_add_u32 m0, s{c.STGB}, {s*1024}')
            if c.paced: a('s_waitcnt vmcnt(0)')
            a(f'buffer_load_dwordx4 v{c.VB}, s[{c.SM}:{c.SM+3}], s{c.T1} offen {mpol} lds')
            if s < 3: a(f's_add_u32 s{c.T1}, s{c.T1}, {32*6144}')
    def mod_compute(c, younger, cnt_off, done, st=None):
        a(f's_waitcnt vmcnt({younger + 4})')
        if st: stamp(st[0])
        if c.GENV is not None:
            a(f'v_readfirstlane_b32 s{c.TAG}, v{c.GENV}')
            a(f's_add_u32 s{c.TAG}, s{c.TAG}, {TAGC}')
        XF = c.XF
        for r in range(8):
            unpack(XF, XF+1, c.CF+r)
            silu(XF, XF+2, XF+4, XF+6); silu(XF+1, XF+3, XF+5, XF+7)
            a(f'v_cvt_pk_bf16_f32 v{c.CF+r}, v{XF}, v{XF+1}')
        tr_addr(c, c.VA)
        a(f's_waitcnt vmcnt({younger})')
        if st: stamp(st[1])
        BF = c.BF
        for s in range(4): tr_read(BF + 4*s, c.VA, s)
        a('s_waitcnt lgkmcnt(0)')
        mf(c.D1, c.CF, BF, True); mf(c.D2, c.CF, BF+8, True)
        mf(c.D1, c.CF+4, BF+4, False); mf(c.D2, c.CF+4, BF+12, False)
        sel_halves(c, c.RD, c.D1, c.D2)
        a(f's_lshl_b32 s{c.T2}, s{c.WV}, 10')
        a(f'v_add_u32 v{c.VB}, s{c.T2}, v1')
        a(f'ds_write_b128 v{c.VB}, v[{c.RD}:{c.RD+3}] offset:{L_RED}')
        a(f'v_mov_b32 v{c.VC}, 0')
        a(f'v_mov_b32 v{c.VB}, 1')
        a('s_mov_b64 exec, 1')
        a(f'ds_add_rtn_u32 v{c.VB}, v{c.VC}, v{c.VB} offset:{cnt_off}')
        a('s_mov_b64 exec, -1')
        a('s_waitcnt lgkmcnt(0)')
        a(f'v_readfirstlane_b32 s{c.T2}, v{c.VB}')
        a(f's_cmp_lg_u32 s{c.T2}, 3')
        a(f's_cbranch_scc1 {done}')
        red_addr(c, c.VA)
        red_sum(c, c.U0, c.VA, L_RED, BF)
        a(f'v_cvt_pk_bf16_f32 v{c.RD}, v{c.U0}, v{c.U0+1}')
        a(f'v_mov_b32 v{c.RD+1}, s{c.TAG}')
        a(f's_and_b32 s{c.T2}, s{c.WG}, 0xe0')
        a(f's_add_u32 s{c.T2}, s{c.T2}, s{c.T0}')
        a(f's_lshl_b32 s{c.T2}, s{c.T2}, 9')
        a(f's_add_u32 s{c.T2}, s{c.T2}, {WS_MOD}')
        a(f'v_lshlrev_b32 v{c.VA}, 3, v0')
        a(f'buffer_store_dwordx2 v[{c.RD}:{c.RD+1}], v{c.VA}, s[{c.SWS}:{c.SWS+3}], s{c.T2} offen sc1')

    def roles(F1T, F2T, T0, T1):
        a(f's_and_b32 s{T0}, s2, 7')
        a(f's_lshr_b32 s{T1}, s2, 3')
        a(f's_mul_i32 s{F1T}, s{T0}, 11')
        a(f's_add_u32 s{F1T}, s{F1T}, s{T1}')
        a(f's_cmp_lt_u32 s2, 88')
        a(f's_cselect_b32 s{F1T}, s{F1T}, 255')
        a(f's_lshl_b32 s{F2T}, s{T0}, 2')
        a(f's_add_u32 s{F2T}, s{F2T}, s{T1}')
        a(f's_sub_u32 s{F2T}, s{F2T}, {F2_BASE//8}')
        a(f's_sub_u32 s{T1}, s2, {F2_BASE}')
        a(f's_cmp_lt_u32 s{T1}, 32')
        a(f's_cselect_b32 s{F2T}, s{F2T}, 255')
    def f1_dma(VB, VC, SST, WV, F1T, T1, T2, STGB, paced, pol):
        a(f'v_lshrrev_b32 v{VB}, 1, v0')
        a(f'v_mul_u32_u24 v{VB}, 2752, v{VB}')
        a(f'v_and_b32 v{VC}, 1, v0')
        a(f'v_lshl_add_u32 v{VB}, v{VC}, 4, v{VB}')
        for which, p in enumerate((28, 30)):
            srd(SST, p, 512*1376*2)
            a(f's_mul_i32 s{T1}, s{WV}, {128*2752}')
            a(f's_lshl_b32 s{T2}, s{F1T}, 5')
            a(f's_add_u32 s{T1}, s{T1}, s{T2}')
            for s in range(4):
                a(f's_add_u32 m0, s{STGB}, {(which*4+s)*1024}')
                if paced: a('s_waitcnt vmcnt(0)')
                a(f'buffer_load_dwordx4 v{VB}, s[{SST}:{SST+3}], s{T1} offen {pol} lds')
                if s < 3: a(f's_add_u32 s{T1}, s{T1}, {32*2752}')
    def f2_dma(VB, VC, SST, WV, F2T, T1, T2, T3, STGB, paced, pol):
        srd(SST, 32, 1376*512*2)
        a(f'v_lshrrev_b32 v{VB}, 1, v0')
        a(f'v_lshlrev_b32 v{VB}, 10, v{VB}')
        a(f'v_and_b32 v{VC}, 1, v0')
        a(f'v_lshl_add_u32 v{VB}, v{VC}, 4, v{VB}')
        a(f's_mul_i32 s{T3}, s{WV}, 12')
        a(f's_lshl_b32 s{T2}, s{F2T}, 5')
        for s in range(12):
            a(f's_add_u32 s{T1}, s{T3}, {s}')
            a(f's_min_u32 s{T1}, s{T1}, 42')
            a(f's_lshl_b32 s{T1}, s{T1}, 15')
            a(f's_add_u32 s{T1}, s{T1}, s{T2}')
            a(f's_add_u32 m0, s{STGB}, {s*1024}')
            if paced: a('s_waitcnt vmcnt(0)')
            a(f'buffer_load_dwordx4 v{VB}, s[{SST}:{SST+3}], s{T1} offen {pol} lds')

    a('s_cmp_ge_u32 s2, 256')
    a('s_cbranch_scc1 L_end')
    if perm:
        a('s_lshr_b32 s3, s2, 5'); a('s_xor_b32 s2, s2, s3')
    a('s_load_dwordx16 s[16:31], s[0:1], 0')
    a('s_load_dwordx8 s[32:39], s[0:1], 64')
    a('s_load_dwordx4 s[40:43], s[0:1], 96')
    if stamps:
        for k in range(12): a(f's_mov_b32 s{4+k}, 0')
    if hold or pd:
        a('s_memrealtime s[94:95]')
    a('v_lshrrev_b32 v1, 6, v0')
    a('v_readfirstlane_b32 s3, v1')
    a('v_and_b32 v0, 63, v0')
    a('v_lshlrev_b32 v1, 4, v0')
    a('s_cmp_ge_u32 s3, 4')
    a('s_cbranch_scc1 L_service')

    Q = 4; Pq = 8; ACC = 24; TMP = 32; VMAX = 40; VT0 = 41; VT1 = 42; PP0 = 43; PP1 = 44; VSC = 2; VI = 45; VG = 46; VT2 = 47; VT3 = 48
    GENV = 3
    TK = 50; PN = 52; VPA = 54; VSA = 55; FL = 56; VZ = 60; VHA = 61
    RING = 64; EXA = 128; EXB = 192
    IS = 44; SWS = 52; SOFF = 56; CNT = 57; BASE = 58; M1 = 60; M2 = 62; SELLO = 64; SELHI = 65; SCALE = 66; TAG = 67
    SHD = 70; SLOTC = 71; SLOTN = 72; FIRST = 73; T0 = 74; T1 = 75; T2 = 76; T3 = 77; STGB = 78; SPIN = 79
    SC = 80; SM = 84; LO32 = 88
    HOME = 48; STEP = 49; QUIT = 50; ESPIN = 51
    P_ = Pq
    if lv is not None: a('s_memrealtime s[70:71]')
    a('s_lshl_b32 s58, s2, 20')
    a('s_lshl_b32 s59, s3, 12')
    a('s_add_u32 s58, s58, s59')
    a('s_mov_b32 s56, s58')
    a(f'v_mov_b32 v{VZ}, 0')
    a(f'v_and_b32 v{VI}, 15, v0')
    a(f'v_lshrrev_b32 v{VG}, 4, v0')
    a(f's_mul_i32 s{STGB}, s3, {STGW}')
    a(f's_add_u32 s{STGB}, s{STGB}, {L_STG}')
    a('s_waitcnt lgkmcnt(0)')
    srd(SWS, 42, WS_SIZE)
    a(f'buffer_load_dword v{GENV}, v{VZ}, s[{SWS}:{SWS+3}], 0 offen offset:{WS_GEN} sc1')
    srd(IS, 18, 0x10000000)
    srd(SC, 34, 8192)
    srd(SM, 36, 512*3072*2)
    stamp(0)
    if dst:
        a(f's_memtime s[{STP}:{STP+1}]'); a('s_waitcnt lgkmcnt(0)'); a(f's_mov_b32 s14, s{STP}')
    cs = Ctx()
    cs.VI = VI; cs.VG = VG; cs.VA = RING; cs.VB = RING+1; cs.VC = RING+2; cs.VD = RING+3
    cs.CF = RING+4; cs.XF = RING+12; cs.BF = RING+20; cs.D1 = RING+36; cs.D2 = RING+40; cs.RD = RING+44; cs.U0 = RING+48
    cs.T0 = T0; cs.T1 = T1; cs.T2 = T2; cs.T3 = T3; cs.WV = 3; cs.STGB = STGB; cs.SC = SC; cs.SM = SM; cs.SWS = SWS
    cs.LO32 = LO32; cs.TAG = TAG; cs.GENV = GENV; cs.WG = 2; cs.paced = False
    a('s_cmp_ge_u32 s2, 64')
    a('s_cbranch_scc1 L_s_noissue')
    if mprio: a(f's_setprio {mprio}')
    mod_issue(cs)
    a.label('L_s_noissue', fence=False)

    LV = 68; TGT = 69; T00 = 70; TM = 72; LAG = 71
    def pw(d=0):
        if lv is None:
            a(f's_waitcnt vmcnt({(W-1) if d == 0 else VW})')
            return
        lab = a.uid('L_pw')
        for k, Wk in enumerate(lv):
            a(f's_waitcnt vmcnt({Wk-1-d})')
            if k < len(lv) - 1:
                a(f's_cmp_eq_u32 s{LV}, {k}')
                a(f's_cbranch_scc1 {lab}')
        a.label(lab, fence=False)
    def tsched(n):
        return int(round(tK + (n - 48) * sK)) if n <= 272 else int(round(tV + (n - 272) * sV))
    MS = 50; VBS = 52; VMA = 53; MD = 54; MT = 56; ISM = 48; CK = 49; CKS = 50
    def mload():
        if lv is None or not rel or noml: return
        lab = a.uid('L_ml')
        a('s_cmp_lg_u32 s3, 0')
        a(f's_cbranch_scc1 {lab}')
        a(f'buffer_load_dwordx2 v[{MS}:{MS+1}], v{VMA}, s[{SWS}:{SWS+3}], s{CK} offen {mlp}')
        a.label(lab, fence=False)
    def clk():
        if lv is None: return
        a(f's_memrealtime s[{TM}:{TM+1}]')
        if rel: a(f'ds_read_b32 v{VBS}, v{VZ} offset:{L_CNT+16}')
    def ctl(n=None, step=None, upd=True, th_=None):
        if lv is None: return
        th_ = th if th_ is None else th_
        a('s_waitcnt lgkmcnt(0)')
        if rel:
            a(f'v_readfirstlane_b32 s{TM+1}, v{VBS}')
            if n is not None: a(f's_sub_u32 s{TM}, s{TM}, {tsched(n)}')
            else: a(f's_sub_u32 s{TM}, s{TM}, s{TGT}')
            a(f's_sub_u32 s{LAG}, s{TM}, s{TM+1}')
        else:
            if n is not None: a(f's_add_u32 s{TGT}, s{T00}, {tsched(n)}')
            a(f's_sub_u32 s{LAG}, s{TM}, s{TGT}')
        if step is not None: a(f's_add_u32 s{TGT}, s{TGT}, {step}')
        a(f's_mov_b32 s{LV}, {len(lv)-1}')
        for k in range(len(lv) - 2, -1, -1):
            a(f's_cmp_gt_i32 s{LAG}, {th_[k]}')
            a(f's_cselect_b32 s{LV}, {k}, s{LV}')
        if rel:
            lab = a.uid('L_ct')
            a('s_cmp_lg_u32 s3, 0')
            a(f's_cbranch_scc1 {lab}')
            lab2 = a.uid('L_cm')
            a(f's_cmp_eq_u32 s{ISM}, 0')
            a(f's_cbranch_scc1 {lab2}')
            a(f'v_mov_b32 v{MD}, s{TM}')
            a(f'v_mov_b32 v{MD+1}, s{TAG}')
            a(f's_add_u32 s{CKS}, s{ISM}, s{CK}')
            a('s_mov_b64 exec, 1')
            if not nomst: a(f'buffer_store_dwordx2 v[{MD}:{MD+1}], v{VZ}, s[{SWS}:{SWS+3}], s{CKS} offen {msp}')
            a('s_mov_b64 exec, -1')
            a.label(lab2, fence=False)
            a(f's_add_u32 s{CK}, s{CK}, {CSTR}')
            if upd:
                a(f'v_cmp_ne_u32 vcc, s{TAG}, v{MS+1}')
                a(f'v_subrev_u32 v{MT}, s{T00}, v{MS}')
                for c_ in ('quad_perm:[1,0,3,2]', 'quad_perm:[2,3,0,1]', 'row_half_mirror'):
                    a(f'{"v_add_u32" if agg == "mean" else "v_max_i32"}_dpp v{MT}, v{MT}, v{MT} {c_} row_mask:0xf bank_mask:0xf')
                if agg == 'mean': a(f'v_ashrrev_i32 v{MT}, 3, v{MT}')
                a(f's_add_u32 s{TM+1}, s{T00}, {dl}')
                a(f'v_add_u32 v{MT}, s{TM+1}, v{MT}')
                a(f's_cbranch_vccnz {lab}')
                a(f'ds_write_b32 v{VZ}, v{MT} offset:{L_CNT+16}')
            a.label(lab, fence=False)
    def issue(base, j):
        r = base + 4 * j
        a(f'buffer_load_dwordx4 v[{r}:{r+3}], v1, s[{IS}:{IS+3}], s{SOFF} offen offset:{(j % 4) * 1024} {kpol}')
        if j % 4 == 3:
            a(f's_add_u32 s{SOFF}, s{SOFF}, 16384')

    seq = [(base, j) for base in (EXA, EXB, RING) for j in range(16)]
    for n in range(nA): issue(*seq[n])
    a(f's_mov_b32 s{M1}, 0xaaaaaaaa'); a(f's_mov_b32 s{M1+1}, 0xaaaaaaaa')
    a(f's_mov_b32 s{M2}, 0xcccccccc'); a(f's_mov_b32 s{M2+1}, 0xcccccccc')
    a(f's_mov_b32 s{SELLO}, 0x05040100'); a(f's_mov_b32 s{SELHI}, 0x07060302')
    a(f's_mov_b32 s{SCALE}, {f32(128 ** -0.5)}')
    a(f's_mov_b32 s{LO32}, -1'); a(f's_mov_b32 s{LO32+1}, 0')
    a(f's_lshl_b32 s59, s3, 12')
    a(f's_add_u32 s59, s59, {L_SC}')
    a(f'v_lshlrev_b32 v{VSC}, 2, v0')
    a(f'v_add_u32 v{VSC}, s59, v{VSC}')
    a(f'v_mov_b32 v{VMAX}, 0xff800000')
    a('s_barrier')
    a('s_cmp_ge_u32 s2, 64')
    a('s_cbranch_scc1 L_s_moddone')
    mod_compute(cs, nA, L_CNT, 'L_s_moddone', st=(3, 4))
    a.label('L_s_moddone')
    if mprio: a('s_setprio 0')
    stamp(5)
    for n in range(nA, 48):
        Wn = W0 if n < n0 else W
        if n >= Wn and n < 48 - boost:
            a(f's_waitcnt vmcnt({Wn-1})')
        issue(*seq[n])
    a(f'v_readfirstlane_b32 s{TAG}, v{GENV}')
    a(f's_add_u32 s{TAG}, s{TAG}, {TAGC}')
    if lv is not None and rel:
        a(f'v_and_b32 v{VMA}, 7, v0')
        a(f'v_mul_u32_u24 v{VMA}, {MSTR}, v{VMA}')
        a(f'v_add_u32 v{VMA}, {WS_MST - DD*CSTR}, v{VMA}')
        a(f's_mov_b32 s{CK}, 0')
        a(f'v_mov_b32 v{MS}, 0'); a(f'v_not_b32 v{MS+1}, s{TAG}')
        if MB >= 0:
            a(f's_sub_u32 s{T0}, s2, {MB}')
        else:
            a(f's_lshr_b32 s{T0}, s2, 5')
        a(f's_mul_i32 s{ISM}, s{T0}, {MSTR}')
        a(f's_add_u32 s{ISM}, s{ISM}, {WS_MST}')
        if MB >= 0:
            a(f's_cmp_lt_u32 s{T0}, 8')
        else:
            a(f's_and_b32 s{T1}, s2, 31')
            a(f's_add_u32 s{T0}, s{T0}, {-MB-1}')
            a(f's_cmp_eq_u32 s{T0}, s{T1}')
        a(f's_cselect_b32 s{ISM}, s{ISM}, 0')
        a(f'v_mov_b32 v{MT}, s{T00}')
        a('s_cmp_lg_u32 s3, 0')
        a('s_cbranch_scc1 L_nobase')
        a(f'ds_write_b32 v{VZ}, v{MT} offset:{L_CNT+16}')
        a('s_waitcnt lgkmcnt(0)')
        a.label('L_nobase', fence=False)
    stamp(6)
    a('s_barrier')
    a(f'v_lshlrev_b32 v{VT0}, 5, v{VI}')
    for w in range(4):
        a(f'ds_read_b128 v[{P_+8*(w%2)}:{P_+8*(w%2)+3}], v{VT0} offset:{L_QP + w*512}')
        a(f'ds_read_b128 v[{P_+8*(w%2)+4}:{P_+8*(w%2)+7}], v{VT0} offset:{L_QP + w*512 + 16}')
        if w == 1:
            a('s_waitcnt lgkmcnt(0)')
            for e in range(8): a(f'v_add_f32 v{ACC+e}, v{P_+e}, v{P_+8+e}')
    a('s_waitcnt lgkmcnt(0)')
    for e in range(8): a(f'v_add_f32 v{P_+e}, v{P_+e}, v{P_+8+e}')
    for e in range(8): a(f'v_add_f32 v{ACC+e}, v{ACC+e}, v{P_+e}')
    for c in range(4): a(f'v_cvt_pk_bf16_f32 v{Q+c}, v{ACC+2*c}, v{ACC+2*c+1}')
    clk(); ctl(n=48, upd=False)
    if dbg:
        a(f's_lshl_b32 s{T0}, s2, 8')
        a(f's_add_u32 s{T0}, s{T0}, {WS_DBG}')
        a(f'v_lshlrev_b32 v{VT0}, 4, v{VI}')
        a(f'buffer_store_dwordx4 v[{Q}:{Q+3}], v{VT0}, s[{SWS}:{SWS+3}], s{T0} offen')
        a('s_waitcnt vmcnt(0)')
    stamp(1)

    def ksteps(base, PB, reissue, wait, vsc, sc_off, t0, t1, hook=None):
        def l1(j):
            a(f'v_add_f32_dpp v{PB+j-1}, v{PB+j-1}, v{PB+j-1} row_ror:8 row_mask:0xf bank_mask:0x3')
            a(f'v_add_f32_dpp v{PB+j-1}, v{PB+j}, v{PB+j} row_ror:8 row_mask:0xf bank_mask:0xc')
        def l2(q):
            x = PB + 4*q; y = PB + 4*q + 2
            a(f'v_add_f32_dpp v{x}, v{x}, v{x} row_shl:4 row_mask:0xf bank_mask:0x5')
            a(f'v_add_f32_dpp v{x}, v{y}, v{y} row_shr:4 row_mask:0xf bank_mask:0xa')
        def step(j):
            r = base + 4*j
            if hook is not None and j == 0: mload()
            if hook is not None and j == 12: clk()
            if hook is not None and j == 15: hook()
            if wait is not None:
                pw(0)
            a(f'v_dot2_f32_bf16 v{PB+j}, v{r}, v{Q}, 0')
            for c in range(1, 4):
                a(f'v_dot2_f32_bf16 v{PB+j}, v{r+c}, v{Q+c}, v{PB+j}')
            if reissue: issue(base, j)
            if j >= 2 and j % 2 == 0: l1(j-1)
            if j >= 5 and j % 4 == 1: l2((j-5)//4)
        def epi():
            l1(15)
            l2(3)
            U = [PB, PB+4, PB+8, PB+12]
            for u in U: a(f'v_add_f32_dpp v{u}, v{u}, v{u} quad_perm:[2,3,0,1] row_mask:0xf bank_mask:0xf')
            a(f'v_cndmask_b32 v{U[0]}, v{U[0]}, v{U[1]}, s[{M2}:{M2+1}]')
            a(f'v_cndmask_b32 v{U[2]}, v{U[2]}, v{U[3]}, s[{M2}:{M2+1}]')
            for u in (U[0], U[2]): a(f'v_add_f32_dpp v{u}, v{u}, v{u} quad_perm:[1,0,3,2] row_mask:0xf bank_mask:0xf')
            a(f'v_cndmask_b32 v{t0}, v{U[0]}, v{U[2]}, s[{M1}:{M1+1}]')
            rnd1(t0, t1)
            a(f'v_mul_f32 v{t0}, s{SCALE}, v{t0}')
            rnd1(t0, t1)
            a(f'v_max_f32 v{VMAX}, v{VMAX}, v{t0}')
            a(f'ds_write_b32 v{vsc}, v{t0} offset:{sc_off}')
        return [lambda j=j: step(j) for j in range(16)] + [epi]
    P2 = ACC
    for it, ex in enumerate((EXA, EXB)):
        s1 = ksteps(RING, P_, True, W-1, VSC, (2+it)*256, VT0, VT1, hook=lambda it=it: ctl(n=48+16*it+12))
        s2 = ksteps(ex, P2, False, None, VSC, it*256, PP0, PP1)
        for j in range(16):
            s1[j](); s2[j]()
        s1[16](); s2[16]()
    a(f'v_add_u32 v{VT2}, {4*256}, v{VSC}')
    a(f's_mov_b32 s{CNT}, 12')
    if lv is not None: a(f's_mov_b32 s{TGT}, {tsched(80+12)}' if rel else f's_add_u32 s{TGT}, s{T00}, {tsched(80+12)}')
    stamp(9)
    a.label('L_kloop')
    a(f's_cmp_eq_u32 s{CNT}, 1')
    a(f's_cselect_b32 s{IS}, s20, s{IS}')
    a(f's_cselect_b32 s{IS+1}, s21, s{IS+1}')
    a(f's_cselect_b32 s{SOFF}, s{BASE}, s{SOFF}')
    for f in ksteps(RING, P_, True, W-1, VT2, 0, VT0, VT1, hook=lambda: ctl(step=int(round(16*sK)))): f()
    a(f'v_add_u32 v{VT2}, 256, v{VT2}')
    a(f's_sub_u32 s{CNT}, s{CNT}, 1')
    a(f's_cmp_lg_u32 s{CNT}, 0')
    a('s_cbranch_scc1 L_kloop')
    stamp(7)
    vq = [(EXA, j) for j in range(16)] + [(EXB, j) for j in range(16)]
    def pi(n=1, paced=True):
        for _ in range(n):
            if not vq: return
            if paced: pw(0)
            issue(*vq.pop(0))
    pi()
    a('s_waitcnt lgkmcnt(0)')
    for t in range(0, 16, 2):
        a(f'ds_read2st64_b32 v[{P_+t}:{P_+t+1}], v{VSC} offset0:{t} offset1:{t+1}')
    wave_reduce('v_max_f32', [VMAX], [VT0])
    pi()
    a('s_waitcnt lgkmcnt(0)')
    for t in range(16): a(f'v_sub_f32 v{P_+t}, v{P_+t}, v{VMAX}')
    for t in range(16): a(f'v_mul_f32 v{P_+t}, {f32(L2E)}, v{P_+t}')
    pi()
    for t in range(16): a(f'v_exp_f32 v{P_+t}, v{P_+t}')
    pi()
    for t in range(8): a(f'v_add_f32 v{TMP+t}, v{P_+t}, v{P_+8+t}')
    for t in range(4): a(f'v_add_f32 v{TMP+t}, v{TMP+t}, v{TMP+4+t}')
    for t in range(2): a(f'v_add_f32 v{TMP+t}, v{TMP+t}, v{TMP+2+t}')
    a(f'v_add_f32 v{VT0}, v{TMP}, v{TMP+1}')
    assert VT0 == VMAX + 1
    wave_reduce('v_add_f32', [VT0], [VT1])
    a(f's_lshl_b32 s59, s3, 3')
    a(f'v_mov_b32 v{VT1}, s59')
    a(f'ds_write_b64 v{VT1}, v[{VMAX}:{VMAX+1}] offset:{L_MX}')
    a(f'v_mov_b32 v{VT1}, 1')
    a('s_waitcnt lgkmcnt(0)')
    a('s_mov_b64 exec, 1')
    a(f'ds_add_u32 v{VZ}, v{VT1} offset:{L_CNT+12}')
    a('s_mov_b64 exec, -1')
    pi(12)
    pi(sboost, paced=False)
    a(f's_mov_b32 s{SPIN}, 0')
    a.label('L_b2')
    a(f'ds_read_b32 v{VT1}, v{VZ} offset:{L_CNT+12}')
    a('s_waitcnt lgkmcnt(0)')
    a(f'v_readfirstlane_b32 s{T0}, v{VT1}')
    a(f's_cmp_ge_u32 s{T0}, 4')
    a('s_cbranch_scc1 L_b2_ok')
    a(f's_add_u32 s{SPIN}, s{SPIN}, 1')
    a(f's_cmp_lt_u32 s{SPIN}, {SPIN_MAX*8}')
    a('s_cbranch_scc0 L_b2_ok')
    a('s_sleep 1')
    a('s_branch L_b2')
    a.label('L_b2_ok')
    a(f'ds_read_b128 v[{TMP}:{TMP+3}], v{VZ} offset:{L_MX}')
    a(f'ds_read_b128 v[{TMP+4}:{TMP+7}], v{VZ} offset:{L_MX+16}')
    a('s_waitcnt lgkmcnt(0)')
    a(f'v_max_f32 v{VT1}, v{TMP}, v{TMP+2}')
    a(f'v_max3_f32 v{VT1}, v{VT1}, v{TMP+4}, v{TMP+6}')
    for k in range(4): a(f'v_sub_f32 v{TMP+2*k}, v{TMP+2*k}, v{VT1}')
    a(f'v_sub_f32 v{VT3}, v{VMAX}, v{VT1}')
    for k in range(4): a(f'v_mul_f32 v{TMP+2*k}, {f32(L2E)}, v{TMP+2*k}')
    a(f'v_mul_f32 v{VT3}, {f32(L2E)}, v{VT3}')
    for k in range(4): a(f'v_exp_f32 v{TMP+2*k}, v{TMP+2*k}')
    a(f'v_exp_f32 v{VT3}, v{VT3}')
    a(f'v_mul_f32 v{VT0}, v{TMP}, v{TMP+1}')
    for k in range(1, 4): a(f'v_fmac_f32 v{VT0}, v{TMP+2*k}, v{TMP+2*k+1}')
    a(f'v_rcp_f32 v{VT0}, v{VT0}')
    a(f'v_mul_f32 v{VT3}, v{VT3}, v{VT0}')
    pi()
    for t in range(16): a(f'v_mul_f32 v{P_+t}, v{P_+t}, v{VT3}')
    for half in range(2):
        for t in range(8): a(f'v_mov_b32_dpp v{TMP+t}, v{P_+8*half+t} row_ror:8 row_mask:0xf bank_mask:0xf')
        for t in range(8): a(f'v_cvt_pk_bf16_f32 v{P_+8*half+t}, v{P_+8*half+t}, v{TMP+t}')
        pi()
    for t in range(4, 16, 2):
        a(f'ds_write2st64_b32 v{VSC}, v{P_+t}, v{P_+t+1} offset0:{t} offset1:{t+1}')
    for e in range(8): a(f'v_mov_b32 v{ACC+e}, 0')

    def bl(m): return 4*(m & 1) + 2*((m >> 1) & 1) + (m >> 2)
    def vstep(base, m, reissue, wait, pp, mid=None, hook=None):
        A = base + 8*m; Bq = A + 4
        if hook is not None and m == 0: mload()
        if hook is not None and m == 5: clk()
        if hook is not None and m == 7: hook()
        if wait == 'p': pw(1)
        elif wait is not None:
            a(f's_waitcnt vmcnt({wait})')
        for c in range(4):
            a(f'v_perm_b32 v{TMP+2*c}, v{Bq+c}, v{A+c}, s{SELLO}')
            a(f'v_perm_b32 v{TMP+2*c+1}, v{Bq+c}, v{A+c}, s{SELHI}')
        if reissue:
            issue(base, 2*m); issue(base, 2*m+1)
        if mid: mid()
        for e in range(8):
            a(f'v_dot2c_f32_bf16_dpp v{ACC+e}, v{pp}, v{TMP+e} row_newbcast:{bl(m)} row_mask:0xf bank_mask:0xf')
    def static_flush():
        a(f'v_lshlrev_b32 v{VT0}, 5, v{VI}')
        a(f'v_lshl_add_u32 v{VT0}, v{VG}, 3, v{VT0}')
        a(f's_lshl_b32 s59, s3, 9')
        a(f'v_add_u32 v{VT0}, s59, v{VT0}')
        a(f'ds_write_b64 v{VT0}, v[{ACC}:{ACC+1}] offset:{L_OP}')
        a(f'v_mov_b32 v{VT1}, 1')
        a('s_waitcnt lgkmcnt(0)')
        a('s_mov_b64 exec, 1')
        a(f'ds_add_u32 v{VZ}, v{VT1} offset:{L_CNT+8}')
        a('s_mov_b64 exec, -1')
        stamp(8)

    nleft = len(vq)
    assert 1 <= nleft <= 16, nleft
    for m in range(8):
        k = (nleft*(m+1))//8 - (nleft*m)//8
        if m == 0: a(f's_waitcnt vmcnt({16 - nleft})')
        vstep(EXA, m, False, None, P_+1, mid=(lambda k=k: pi(k)))
    assert not vq
    clk(); ctl(n=304, upd=False)
    for m in range(8): vstep(RING, m, True, 'p', P_+0, hook=lambda: ctl(n=304+10))
    a(f'v_add_u32 v{VT2}, {5*256}, v{VSC}')
    for m in range(8):
        vstep(RING, m, True, 'p', P_+3, hook=lambda: ctl(n=320+10))
        vstep(EXB, m, False, None, P_+2)
    a(f'v_mov_b32 v{PP0}, v{P_+4}')
    a(f's_mov_b32 s{CNT}, 11')
    if lv is not None: a(f's_mov_b32 s{TGT}, {tsched(336+10)}' if rel else f's_add_u32 s{TGT}, s{T00}, {tsched(336+10)}')
    stamp(10)
    a.label('L_vloop')
    a(f'ds_read_b32 v{PP1}, v{VT2}')
    a(f'v_add_u32 v{VT2}, 256, v{VT2}')
    for m in range(8): vstep(RING, m, True, 'p', PP0, hook=lambda: ctl(step=int(round(16*sV)), th_=thv))
    a('s_waitcnt lgkmcnt(0)')
    a(f'v_mov_b32 v{PP0}, v{PP1}')
    a(f's_sub_u32 s{CNT}, s{CNT}, 1')
    a(f's_cmp_lg_u32 s{CNT}, 0')
    a('s_cbranch_scc1 L_vloop')
    stamp(11)
    for m in range(8): vstep(RING, m, False, 14 - 2*m, PP0)
    greduce8(ACC)
    static_flush()
    if gate:
        lab = a.uid('L_nogate')
        a('s_cmp_lg_u32 s3, 0')
        a(f's_cbranch_scc1 {lab}')
        srd(SC, 40, 256)
        a('s_mov_b64 exec, 1')
        a(f'buffer_atomic_add v{VT1}, v{VZ}, s[{SC}:{SC+3}], 0 offen')
        a('s_mov_b64 exec, -1')
        a.label(lab)
    a('s_waitcnt lgkmcnt(0)')
    stamp(2)
    if dfw:
        dp = fpol if dpol is None else dpol
        roles(M1, M1+1, T0, T1)
        a(f's_cmp_lt_u32 s{M1}, {NF1}')
        a('s_cbranch_scc0 L_s_nof1')
        f1_dma(VT0, VT1, SM, 3, M1, T1, T2, STGB, False, dp)
        a('s_branch L_s_dma')
        a.label('L_s_nof1')
        a(f's_cmp_lt_u32 s{M1+1}, 32')
        a('s_cbranch_scc0 L_s_dma')
        f2_dma(VT0, VT1, SM, 3, M1+1, T1, T2, T3, STGB, False, dp)
        a.label('L_s_dma')
        a('s_waitcnt vmcnt(0)')
        stamp(8)
    finish(SWS, TMP, 's')

    a.label('L_service')
    SX = 44; SW = 48; SWS = 52; SC = 56; SST = 60; SOUT = 64; SDBG = 68
    WV = 72
    SB = 73; SH = 74; T0 = 75; T1 = 76; T2 = 77; T3 = 78; TAG = 80; SPIN = 81; SELLO = 82; SELHI = 83; LO32 = 84; STGB = 86; T4 = 87
    F1T = 88; F2T = 89; T5 = 90; T6 = 91
    VI = 2; VG = 3; VA = 4; VB = 5; VC = 6; VD = 7
    GENV = 8
    XR = 12; XP = 16; CF = 20; XF = 28
    MEAN = 36; DEN = 37; RDEN = 38; U0 = 39; U1 = 40; U2 = 41; U3 = 42; HP = 43
    ACC = 44
    D1 = 52; D2 = 56; D3 = 60; D4 = 64
    RD = 68
    BF = 76
    SPARE = 127
    WR = 128
    cv = Ctx()
    cv.VI = VI; cv.VG = VG; cv.VA = VA; cv.VB = VB; cv.VC = VC; cv.VD = VD
    cv.CF = CF; cv.XF = XF; cv.BF = BF; cv.D1 = D1; cv.D2 = D2; cv.RD = RD; cv.U0 = U0
    cv.T0 = T0; cv.T1 = T1; cv.T2 = T2; cv.T3 = T3; cv.WV = WV; cv.STGB = STGB; cv.SC = SC; cv.SM = SST; cv.SWS = SWS
    cv.LO32 = LO32; cv.TAG = TAG; cv.GENV = None; cv.WG = T4; cv.paced = SW_ < 8
    if sprio: a(f's_setprio {sprio}')
    a(f's_sub_u32 s{WV}, s3, 4')
    a(f's_lshr_b32 s{SB}, s2, 5')
    a(f's_and_b32 s{SH}, s2, 31')
    roles(F1T, F2T, T0, T1)
    a(f'v_and_b32 v{VI}, 15, v0')
    a(f'v_lshrrev_b32 v{VG}, 4, v0')
    a(f'v_mov_b32 v{VA}, 0')
    a(f'v_lshlrev_b32 v{VB}, 2, v{VI}')
    a(f'ds_write_b32 v{VB}, v{VA} offset:{L_CNT}')
    a(f's_mov_b32 s{SELLO}, 0x05040100'); a(f's_mov_b32 s{SELHI}, 0x07060302')
    a(f's_mov_b32 s{LO32}, -1'); a(f's_mov_b32 s{LO32+1}, 0')
    a(f's_mul_i32 s{STGB}, s{WV}, {STGW}')
    a(f's_add_u32 s{STGB}, s{STGB}, {L_STG}')
    a('s_waitcnt lgkmcnt(0)')
    srd(SWS, 42, WS_SIZE); srd(SX, 16, 8192); srd(SW, 22, 512*4096*2)
    a(f'buffer_load_dword v{GENV}, v{VA}, s[{SWS}:{SWS+3}], 0 offen offset:{WS_GEN} sc1')
    a(f's_lshl_b32 s{T2}, s{SB}, 10')
    a(f'buffer_load_dwordx4 v[{XR}:{XR+3}], v1, s[{SX}:{SX+3}], s{T2} offen')
    a(f'v_lshlrev_b32 v{VA}, 4, v{VI}')
    a(f'v_lshl_add_u32 v{VA}, v{VG}, 2, v{VA}')
    a(f's_lshl_b32 s{T3}, s{WV}, 8')
    a(f's_add_u32 s{T2}, s{T2}, s{T3}')
    a(f'buffer_load_dword v{XP}, v{VA}, s[{SX}:{SX+3}], s{T2} offen')
    a(f'v_lshlrev_b32 v{VA}, 4, v{VI}')
    a(f'v_lshl_add_u32 v{VA}, v{VG}, 14, v{VA}')
    a(f's_lshl_b32 s{T2}, s{WV}, 20')
    a(f's_lshl_b32 s{T3}, s{SH}, 8')
    a(f's_add_u32 s{T2}, s{T2}, s{T3}')
    for j in range(32):
        if j == b0wq: a('s_barrier')
        if j >= WQ: a(f's_waitcnt vmcnt({WQ-1})')
        r = WR + 4*j
        a(f'buffer_load_dwordx4 v[{r}:{r+3}], v{VA}, s[{SW}:{SW+3}], s{T2} offen {wqpol}')
        if j < 31: a(f's_add_u32 s{T2}, s{T2}, {8192 if j % 2 == 0 else 7*8192}')
    srd(SC, 34, 8192); srd(SST, 36, 512*3072*2); srd(SOUT, 38, 8192); srd(SDBG, 40, 256)
    stamp(6)
    a('s_waitcnt vmcnt(32)')
    stamp(7)
    a(f'v_readfirstlane_b32 s{TAG}, v{GENV}')
    a(f's_add_u32 s{TAG}, s{TAG}, {TAGC}')

    def ln_stats(vals, mean, den, rden, t0, t1):
        R = len(vals)
        for r in range(R):
            v = vals[r]
            a(f'v_add_f32 v{mean[r]}, v{v[0]}, v{v[1]}')
            for k in range(2, len(v)): a(f'v_add_f32 v{mean[r]}, v{mean[r]}, v{v[k]}')
        wave_reduce('v_add_f32', mean, t0)
        for r in range(R): a(f'v_mul_f32 v{mean[r]}, {f32(1/512)}, v{mean[r]}')
        for r in range(R):
            v = vals[r]
            for k in range(len(v)):
                a(f'v_sub_f32 v{t0[r]}, v{v[k]}, v{mean[r]}')
                if k == 0: a(f'v_mul_f32 v{den[r]}, v{t0[r]}, v{t0[r]}')
                else: a(f'v_fmac_f32 v{den[r]}, v{t0[r]}, v{t0[r]}')
        wave_reduce('v_add_f32', den, t0)
        for r in range(R):
            a(f'v_mul_f32 v{den[r]}, {f32(1/512)}, v{den[r]}')
            rnd2(mean[r], den[r], t0[r])
            a(f'v_add_f32 v{den[r]}, {f32(1e-5)}, v{den[r]}')
            rnd1(den[r], t0[r])
            a(f'v_sqrt_f32 v{den[r]}, v{den[r]}')
            rnd1(den[r], t0[r])
            a(f'v_rcp_f32 v{rden[r]}, v{den[r]}')
    def ln_norm2(x, y, mean, den, rden, t0, t1, t2):
        a(f'v_sub_f32 v{x}, v{x}, v{mean}')
        a(f'v_sub_f32 v{y}, v{y}, v{mean}')
        rnd2(x, y, t0)
        a(f'v_mul_f32 v{t0}, v{x}, v{rden}')
        a(f'v_mul_f32 v{t1}, v{y}, v{rden}')
        a(f'v_fma_f32 v{x}, -v{t0}, v{den}, v{x}')
        a(f'v_fma_f32 v{y}, -v{t1}, v{den}, v{y}')
        a(f'v_fma_f32 v{x}, v{x}, v{rden}, v{t0}')
        a(f'v_fma_f32 v{y}, v{y}, v{rden}, v{t1}')
        rnd2(x, y, t0)
    def modulate2(x, y, c1pair, spair, t0, t1, t2, out):
        unpack(t0, t1, c1pair)
        a(f'v_mul_f32 v{x}, v{x}, v{t0}')
        a(f'v_mul_f32 v{y}, v{y}, v{t1}')
        rnd2(x, y, t2)
        unpack(t0, t1, spair)
        a(f'v_add_f32 v{x}, v{x}, v{t0}')
        a(f'v_add_f32 v{y}, v{y}, v{t1}')
        a(f'v_cvt_pk_bf16_f32 v{out}, v{x}, v{y}')
    def one_plus(pair, t0, t1):
        unpack(t0, t1, pair)
        a(f'v_add_f32 v{t0}, 1.0, v{t0}')
        a(f'v_add_f32 v{t1}, 1.0, v{t1}')
        a(f'v_cvt_pk_bf16_f32 v{pair}, v{t0}, v{t1}')

    for r in range(4): unpack(XF+2*r, XF+2*r+1, XR+r)
    ln_stats([[XF+k for k in range(8)]], [MEAN], [DEN], [RDEN], [U0], [U1])
    unpack(U2, U3, XP)
    ln_norm2(U2, U3, MEAN, DEN, RDEN, U0, U1, HP)
    stamp(9)

    def permute_weights(wait_fn):
        wmap = []
        free = SPARE
        for m in range(16):
            A = WR + 8*m; Bq = A + 4
            w = wait_fn(m)
            if w is not None: a(f's_waitcnt vmcnt({w})')
            row = [None]*8
            for c in range(4):
                a(f'v_perm_b32 v{free}, v{Bq+c}, v{A+c}, s{SELLO}')
                a(f'v_perm_b32 v{Bq+c}, v{Bq+c}, v{A+c}, s{SELHI}')
                row[2*c] = free; row[2*c+1] = Bq + c
                free = A + c
            wmap.append(row)
        return wmap, free
    def gemv(wmap, vec):
        for e in range(8): a(f'v_mov_b32 v{ACC+e}, 0')
        for m in range(16):
            for e in range(8):
                a(f'v_dot2c_f32_bf16_dpp v{ACC+e}, v{vec}, v{wmap[m][e]} row_newbcast:{m} row_mask:0xf bank_mask:0xf')
        greduce8(ACC)
    def poll(name, loads, tagregs, sleep=1, maskreg=None, chk=None):
        a(f's_mov_b32 s{SPIN}, 0')
        a.label(name)
        for l in loads: a(l)
        a('s_waitcnt vmcnt(0)')
        if chk is not None:
            chk(); tagregs = [None]
        else:
            a(f'v_xor_b32 v{VD}, s{TAG}, v{tagregs[0]}')
        for t in tagregs[1:]:
            a(f'v_bitop3_b32 v{VD}, v{t}, s{TAG}, v{VD} bitop3:0xbe')
        if maskreg is not None:
            a(f'v_and_b32 v{VD}, v{maskreg}, v{VD}')
        a(f'v_cmp_ne_u32 vcc, 0, v{VD}')
        a(f's_cbranch_vccz {name}_ok')
        a(f's_add_u32 s{SPIN}, s{SPIN}, 1')
        a(f's_cmp_lt_u32 s{SPIN}, {SPIN_MAX}')
        a(f's_cbranch_scc0 {name}_ok')
        if sleep: a(f's_sleep {sleep}')
        a(f's_branch {name}')
        a.label(name + '_ok')
    def lds_wait(name, off_v, off, val, sleep):
        a(f's_mov_b32 s{SPIN}, 0')
        a.label(name)
        a(f'ds_read_b32 v{VD}, v{off_v} offset:{off}')
        a('s_waitcnt lgkmcnt(0)')
        a(f'v_readfirstlane_b32 s{T2}, v{VD}')
        a(f's_cmp_ge_u32 s{T2}, {val}')
        a(f's_cbranch_scc1 {name}_ok')
        a(f's_add_u32 s{SPIN}, s{SPIN}, 1')
        a(f's_cmp_lt_u32 s{SPIN}, {SPIN_MAX*4}')
        a(f's_cbranch_scc0 {name}_ok')
        if sleep: a(f's_sleep {sleep}')
        a(f's_branch {name}')
        a.label(name + '_ok')

    wmap, _ = permute_weights(lambda m: 30 - 2*m)
    a(f'v_lshrrev_b32 v{VA}, 1, v{VI}')
    a(f'v_lshlrev_b32 v{VA}, 9, v{VA}')
    a(f'v_and_b32 v{VB}, 1, v{VI}')
    a(f'v_lshl_add_u32 v{VA}, v{VB}, 5, v{VA}')
    a(f'v_lshl_add_u32 v{VA}, v{VG}, 3, v{VA}')
    a(f's_lshl_b32 s{T2}, s{SB}, 6')
    a(f's_lshl_b32 s{T3}, s{WV}, 12')
    a(f's_add_u32 s{T2}, s{T2}, s{T3}')
    a(f's_add_u32 s{T2}, s{T2}, {WS_MOD}')
    a(f's_add_u32 s{T3}, s{T2}, 16384')
    stamp(0)
    if pd:
        a.label('L_pd')
        a('s_memrealtime s[92:93]')
        a('s_waitcnt lgkmcnt(0)')
        a('s_sub_u32 s92, s92, s94')
        a(f's_cmp_ge_u32 s92, {pd}')
        a('s_cbranch_scc1 L_pd_ok')
        a('s_sleep 2')
        a('s_branch L_pd')
        a.label('L_pd_ok')
    poll('L_poll_sa', [f'buffer_load_dwordx2 v[{RD}:{RD+1}], v{VA}, s[{SWS}:{SWS+3}], s{T2} offen sc1',
                       f'buffer_load_dwordx2 v[{RD+2}:{RD+3}], v{VA}, s[{SWS}:{SWS+3}], s{T3} offen sc1'], [RD+1, RD+3])
    stamp(10)
    one_plus(RD+2, U0, U1)
    modulate2(U2, U3, RD+2, RD, U0, U1, VD, HP)
    gemv(wmap, HP)
    a(f'v_lshlrev_b32 v{VA}, 5, v{VI}')
    a(f'v_lshl_add_u32 v{VA}, v{VG}, 3, v{VA}')
    a(f's_lshl_b32 s{T2}, s{WV}, 9')
    a(f'v_add_u32 v{VB}, s{T2}, v{VA}')
    a(f'ds_write_b64 v{VB}, v[{ACC}:{ACC+1}] offset:{L_QP}')
    a('s_waitcnt lgkmcnt(0)')
    a('s_barrier')
    stamp(1)

    if nopre:
        stamp(11)
        finish(SWS, 8)
    def late_mod():
        a(f's_sub_u32 s{T4}, s2, 64')
        a(f's_cmp_lt_u32 s2, 128')
        a('s_cbranch_scc1 L_v_moddone')
        mod_issue(cv)
        mod_compute(cv, 0, L_CNT+4, 'L_v_moddone')
        a.label('L_v_moddone')
    def wait_kend(name):
        if not lpl: return
        a(f'v_mov_b32 v{VC}, 0')
        lds_wait(name, VC, L_CNT+12, 1, 16)
    if lme: late_mod()
    if tlbv:
        srd(SW, 20, 0x10000000)
        a(f's_lshl_b32 s{T2}, s2, 20')
        a(f'v_mov_b32 v{VA}, 0')
        a('s_mov_b64 exec, 1')
        a(f'buffer_load_dword v8, v{VA}, s[{SW}:{SW+3}], s{T2} offen')
        a('s_mov_b64 exec, -1')
    if tlbo:
        a(f'v_mov_b32 v{VA}, 0')
        a('s_mov_b64 exec, 1')
        a(f'buffer_load_dword v9, v{VA}, s[{SOUT}:{SOUT+3}], 0 offen sc1')
        a('s_mov_b64 exec, -1')
    srd(SW, 24, 4096*512*2)
    a(f'v_lshlrev_b32 v{VA}, 4, v{VI}')
    a(f'v_lshl_add_u32 v{VA}, v{VG}, 11, v{VA}')
    a(f's_lshl_b32 s{T2}, s{SH}, 17')
    if pre is not None and pre & 8: a(f's_mov_b32 s{T2}, 0')
    a(f's_lshl_b32 s{T3}, s{WV}, 8')
    a(f's_add_u32 s{T2}, s{T2}, s{T3}')
    for j in range(32 if (pre is None or pre & 2) else 0):
        if j >= SW_: a(f's_waitcnt vmcnt({SW_-1})')
        r = WR + 4*j
        a(f'buffer_load_dwordx4 v[{r}:{r+3}], v{VA}, s[{SW}:{SW+3}], s{T2} offen offset:{(j%2)*1024} {wopol}')
        if j % 2 == 1 and j < 31: a(f's_add_u32 s{T2}, s{T2}, 8192')
    wmap, _ = permute_weights(lambda m: 30 - 2*m)
    if not lme: late_mod()

    if pre is not None and not pre & 4:
        stamp(11)
        finish(SWS, 8)
    for r in (24, 25, 26, 27, 28, 29, 60, 61, 62, 63): a(f'v_mov_b32 v{r}, 0')
    a(f's_mov_b32 s{T5}, {WS_ACT}')
    a(f's_cmp_lt_u32 s{F1T}, {NF1}')
    a('s_cbranch_scc0 L_nof1w')
    if not dfw: f1_dma(VB, VC, SST, WV, F1T, T1, T2, STGB, SW_ < 8, fpol)
    AT = 27
    a(f'v_bfe_u32 v{VA}, v{VI}, 1, 1')
    a(f'v_mul_u32_u24 v{VA}, {2*STGW}, v{VA}')
    a(f'v_and_b32 v{VD}, 1, v{VI}')
    a(f'v_lshl_add_u32 v{VA}, v{VD}, 12, v{VA}')
    a(f'v_lshl_add_u32 v{VA}, v{VG}, 8, v{VA}')
    a(f'v_lshrrev_b32 v{VD}, 2, v{VI}')
    a(f'v_lshl_add_u32 v{VA}, v{VD}, 5, v{VA}')
    a(f's_lshl_b32 s{T2}, s{WV}, 3')
    a(f's_add_u32 s{T2}, s{T2}, {L_STG}')
    a(f'v_add_u32 v{AT}, s{T2}, v{VA}')
    def f1_tr():
        for s in range(8):
            o = (s >> 2)*STGW + (s & 3)*1024
            a(f'ds_read_b64_tr_b16 v[{BF+4*s}:{BF+4*s+1}], v{AT} offset:{o}')
            a(f'ds_read_b64_tr_b16 v[{BF+4*s+2}:{BF+4*s+3}], v{AT} offset:{o+128}')
    if not dfw:
        a(f'v_mov_b32 v{VC}, 0')
        a(f'v_mov_b32 v{VB}, 1')
        a('s_waitcnt vmcnt(0)')
        a('s_mov_b64 exec, 1')
        a(f'ds_add_u32 v{VC}, v{VB} offset:{L_CNT+20}')
        a('s_mov_b64 exec, -1')
        lds_wait('L_w_stg', VC, L_CNT+20, 4, 8)
        f1_tr()
    SBF = BF + 32; C1F = D1
    wait_kend('L_wk1')
    a(f'v_lshrrev_b32 v{VA}, 2, v0')
    a(f'v_lshlrev_b32 v{VA}, 9, v{VA}')
    a(f'v_and_b32 v{VB}, 3, v0')
    a(f'v_lshl_add_u32 v{VA}, v{VB}, 4, v{VA}')
    a(f's_lshl_b32 s{T0}, s{WV}, 7')
    SO = [T0, T1, T3, T6]
    a(f's_add_u32 s{T0}, s{T0}, {WS_MOD + 3*16384}')
    for k in range(1, 4): a(f's_add_u32 s{SO[k]}, s{T0}, {k*8192}')
    for rr in range(2):
        loads = []; tags = []
        for k in range(4):
            r = 8 + 4*k
            loads.append(f'buffer_load_dwordx4 v[{r}:{r+3}], v{VA}, s[{SWS}:{SWS+3}], s{SO[k]} offen offset:{rr*64} sc1')
            tags += [r+1, r+3]
        poll(f'L_poll_sb{rr}', loads, tags, sleep=32)
        for q in range(4):
            unpack(SBF+8*rr+2*q, SBF+8*rr+2*q+1, 8+4*(q>>1)+2*(q&1))
            c1 = C1F+8*rr+2*q
            unpack(c1, c1+1, 16+4*(q>>1)+2*(q&1))
            a(f'v_add_f32 v{c1}, 1.0, v{c1}')
            a(f'v_add_f32 v{c1+1}, 1.0, v{c1+1}')
            rnd2(c1, c1+1, U0)
    AH = 24; AA = 25; AS = 26
    a(f's_mul_i32 s{T2}, s{WV}, {2*H2S}')
    a(f'v_lshlrev_b32 v{AH}, 3, v0')
    a(f'v_add_u32 v{AH}, s{T2}, v{AH}')
    a(f'v_and_b32 v{AA}, 7, v0')
    a(f'v_mul_u32_u24 v{AA}, {H2S}, v{AA}')
    a(f'v_bfe_u32 v{VB}, v0, 3, 1')
    a(f'v_lshl_add_u32 v{AA}, v{VB}, 9, v{AA}')
    a(f'v_lshl_add_u32 v{AA}, v{VG}, 4, v{AA}')
    a(f'v_bfe_u32 v{AS}, v0, 4, 1')
    a(f'v_lshlrev_b32 v{AS}, 6, v{AS}')
    a(f'v_lshrrev_b32 v{VB}, 5, v0')
    a(f'v_lshl_add_u32 v{AS}, v{VB}, 5, v{AS}')
    a(f'v_bfe_u32 v{VB}, v0, 1, 1')
    a(f'v_lshl_add_u32 v{AS}, v{VB}, 4, v{AS}')
    a(f's_lshr_b32 s{T5}, s{F1T}, 2')
    a(f's_lshl_b32 s{T5}, s{T5}, 11')
    a(f's_bfe_u32 s{T2}, s{F1T}, 0x10001')
    a(f's_lshl_b32 s{T2}, s{T2}, 7')
    a(f's_add_u32 s{T5}, s{T5}, s{T2}')
    a(f's_and_b32 s{T2}, s{F1T}, 1')
    a(f's_lshl_b32 s{T2}, s{T2}, 9')
    a(f's_add_u32 s{T5}, s{T5}, s{T2}')
    a(f's_and_b32 s{T2}, s{WV}, 1')
    a(f's_lshl_b32 s{T2}, s{T2}, 10')
    a(f's_add_u32 s{T5}, s{T5}, s{T2}')
    a(f's_lshr_b32 s{T2}, s{WV}, 1')
    a(f's_lshl_b32 s{T2}, s{T2}, 8')
    a(f's_add_u32 s{T5}, s{T5}, s{T2}')
    a(f's_add_u32 s{T5}, s{T5}, {WS_ACT}')
    a('s_waitcnt lgkmcnt(0)')
    a('s_branch L_wdone')
    a.label('L_nof1w')
    a(f's_mov_b32 s{T0}, s{F2T}')
    a(f's_cmp_lt_u32 s{T0}, 32')
    a('s_cbranch_scc0 L_wdone')
    AT2 = 38
    tr_addr(cv, AT2)
    if not dfw:
        f2_dma(VB, VC, SST, WV, T0, T1, T2, T3, STGB, SW_ < 8, fpol)
        a('s_waitcnt vmcnt(0)')
        for s in range(12): tr_read(BF + 4*s, AT2, s)
    GBP = 125
    wait_kend('L_wk2')
    a(f'v_lshlrev_b32 v{VA}, 3, v0')
    a(f's_lshl_b32 s{T2}, s{T0}, 9')
    a(f's_add_u32 s{T2}, s{T2}, {WS_MOD + 5*16384}')
    poll('L_poll_gb', [f'buffer_load_dwordx2 v[8:9], v{VA}, s[{SWS}:{SWS+3}], s{T2} offen sc1'], [9], sleep=32)
    a(f'v_mov_b32 v{GBP}, v8')
    AD = 24; VM = 30; AX = 60; AR = 61; AO = 62; AW = 63
    a(f'v_bfe_u32 v{VB}, v0, 3, 1')
    a(f's_mul_i32 s{T3}, s{WV}, 12')
    a(f'v_add_u32 v{VB}, s{T3}, v{VB}')
    a(f'v_and_b32 v{VA}, {0x3f0 & ~0x80}, v1')
    a(f'v_add_u32 v{VA}, {21*2048}, v{VA}')
    a(f's_mul_i32 s{T3}, s{WV}, {6*2048}')
    for u in range(6):
        a(f'v_add_u32 v{VC}, {2*u}, v{VB}')
        a(f'v_cmp_gt_u32 vcc, 43, v{VC}')
        a(f'v_cndmask_b32 v{VM+u}, 0, -1, vcc')
        a(f'v_add_u32 v{VC}, s{T3}, v1')
        a(f'v_cndmask_b32 v{AD+u}, v{VA}, v{VC}, vcc')
        if u < 5: a(f's_add_u32 s{T3}, s{T3}, 2048')
    a(f'v_lshrrev_b32 v{AX}, 3, v0')
    a(f'v_lshlrev_b32 v{AO}, 10, v{AX}')
    a(f'v_lshlrev_b32 v{AX}, 12, v{AX}')
    a(f'v_and_b32 v{VB}, 7, v0')
    a(f'v_lshl_add_u32 v{AX}, v{VB}, 3, v{AX}')
    a(f'v_lshl_add_u32 v{AO}, v{VB}, 2, v{AO}')
    red_addr(cv, AR)
    a(f's_lshl_b32 s{T2}, s{WV}, 10')
    a(f'v_add_u32 v{AW}, s{T2}, v1')
    a('s_waitcnt lgkmcnt(0)')
    a.label('L_wdone')
    GAP = 124; XR1 = 126; AQ = 36; A64 = 37
    wait_kend('L_wk3')
    a(f'v_and_b32 v{VB}, 3, v0')
    a(f'v_lshrrev_b32 v{VC}, 5, v0')
    a(f'v_lshl_add_u32 v{VB}, v{VB}, 1, v{VC}')
    a(f'v_lshlrev_b32 v{AQ}, 3, v{VB}')
    a(f's_lshl_b32 s{T2}, s{SB}, 6')
    a(f's_lshl_b32 s{T3}, s{SH}, 9')
    a(f's_add_u32 s{T2}, s{T2}, s{T3}')
    a(f's_add_u32 s{T2}, s{T2}, {WS_MOD + 2*16384}')
    poll('L_poll_ga', [f'buffer_load_dwordx2 v[8:9], v{AQ}, s[{SWS}:{SWS+3}], s{T2} offen sc1'], [9], sleep=32)
    a(f'v_mov_b32 v{GAP}, v8')
    a(f'v_lshlrev_b32 v{VA}, 2, v{VB}')
    a(f's_lshl_b32 s{T2}, s{SB}, 10')
    a(f's_lshl_b32 s{T3}, s{SH}, 5')
    a(f's_add_u32 s{T2}, s{T2}, s{T3}')
    a(f'buffer_load_dword v{XR1}, v{VA}, s[{SX}:{SX+3}], s{T2} offen')
    a(f'v_lshlrev_b32 v{VA}, 5, v{VI}')
    a(f'v_lshl_add_u32 v{VA}, v{VG}, 3, v{VA}')
    a(f'v_lshrrev_b32 v{VB}, 2, v{VI}')
    a(f'v_lshlrev_b32 v{VB}, 12, v{VB}')
    a(f'v_and_b32 v{VC}, 3, v{VI}')
    a(f'v_lshl_add_u32 v{VB}, v{VC}, 5, v{VB}')
    a(f'v_lshl_add_u32 v{VB}, v{VG}, 3, v{VB}')
    a(f'v_lshrrev_b32 v{A64}, 2, v0')
    a(f'v_lshlrev_b32 v{A64}, 7, v{A64}')
    a(f'v_and_b32 v{VC}, 3, v0')
    a(f'v_lshl_add_u32 v{A64}, v{VC}, 4, v{A64}')
    a(f's_lshl_b32 s{T4}, s{SB}, 16')
    a(f's_lshl_b32 s{T3}, s{WV}, 14')
    a(f's_add_u32 s{T4}, s{T4}, s{T3}')
    a(f's_lshl_b32 s{T3}, s{SH}, 7')
    a(f's_add_u32 s{T4}, s{T4}, s{T3}')
    a(f's_add_u32 s{T4}, s{T4}, {WS_WOP}')
    NP = 8; NC = 16
    a(f'v_lshrrev_b32 v{VC}, 5, v0')
    a(f'v_lshlrev_b32 v{VC}, 4, v{VC}')
    a(f'v_lshrrev_b32 v{NP}, v{VC}, s{TAG}')
    a(f'v_and_b32 v{VC}, 1, v0')
    a(f'v_lshlrev_b32 v{VC}, 4, v{VC}')
    a(f'v_lshrrev_b32 v{NC}, v{VC}, s{TAG}')
    for k in range(1, 4):
        a(f'v_lshrrev_b32 v{NP+k}, {4*k}, v{NP}')
        a(f'v_lshrrev_b32 v{NC+k}, {4*k}, v{NC}')
    a('s_waitcnt vmcnt(0)')
    stamp(11)
    a(f'v_mov_b32 v{VC}, 0')
    lds_wait('L_w_stat', VC, L_CNT+8, 4, 1)
    stamp(8)
    LO = L_OP
    for w in range(4):
        a(f'ds_read_b64 v[{RD+2*w}:{RD+2*w+1}], v{VA} offset:{LO + w*512}')
    a('s_waitcnt lgkmcnt(0)')
    for k in range(4): a(f'v_add_f32 v{RD+k}, v{RD+k}, v{RD+k+4}')
    for k in range(2): a(f'v_add_f32 v{RD+k}, v{RD+k}, v{RD+k+2}')
    a(f'v_cvt_pk_bf16_f32 v{HP}, v{RD}, v{RD+1}')
    if dbg:
        a(f's_lshl_b32 s{T2}, s2, 8')
        a(f's_add_u32 s{T2}, s{T2}, {WS_DBG + 0x10000}')
        a(f'v_lshrrev_b32 v{VC}, 1, v{VA}')
        a(f'buffer_store_dword v{HP}, v{VC}, s[{SWS}:{SWS+3}], s{T2} offen')
    gemv(wmap, HP)
    a(f'v_add_u32 v{ACC}, 8, v{ACC}')
    a(f'v_add_u32 v{ACC+1}, 8, v{ACC+1}')
    a(f'v_mov_b32 v{ACC+2}, v{ACC}')
    a(f'v_mov_b32 v{ACC+3}, v{ACC+1}')
    a(f'v_permlane16_swap_b32 v{ACC}, v{ACC+2}')
    a(f'v_permlane16_swap_b32 v{ACC+1}, v{ACC+3}')
    for k in range(4): a(f'v_bfi_b32 v{RD+k}, 15, v{NP+k}, v{ACC+k}')
    a('s_mov_b64 exec, 0x0000ffff0000ffff' if False else 's_mov_b32 exec_lo, 0xffff')
    a('s_mov_b32 exec_hi, 0xffff')
    a(f'buffer_store_dwordx4 v[{RD}:{RD+3}], v{VB}, s[{SWS}:{SWS+3}], s{T4} offen sc1')
    a('s_mov_b64 exec, -1')
    stamp(2)
    if notail: finish(SWS, 8)
    a(f's_cmp_lt_u32 s{F1T}, {NF1}')
    a('s_cbranch_scc1 L_gate')
    a(f's_mov_b32 s{T0}, s{F2T}')
    a(f's_cmp_lt_u32 s{T0}, 32')
    a('s_cbranch_scc1 L_gate')
    a(f's_cmp_eq_u32 s{WV}, 0')
    a('s_cbranch_scc1 L_gate')
    a('s_branch L_fin')
    a.label('L_gate')
    a(f's_cmp_lg_u32 s{WV}, 0')
    a('s_cbranch_scc1 L_r1done')
    a(f's_lshr_b32 s{T2}, s2, 1')
    a(f's_lshl_b32 s{T2}, s{T2}, 12')
    a(f's_and_b32 s{T3}, s2, 1')
    a(f's_lshl_b32 s{T3}, s{T3}, 6')
    a(f's_add_u32 s{T2}, s{T2}, s{T3}')
    a(f's_add_u32 s{T2}, s{T2}, {WS_WOP}')
    loads = [f'buffer_load_dwordx4 v[{8+4*j}:{8+4*j+3}], v{A64}, s[{SWS}:{SWS+3}], s{T2} offen offset:{j*2048} sc1' for j in range(2)]
    def chk8():
        a(f'v_xor_b32 v{VD}, v8, v{NC}')
        for r in range(9, 16): a(f'v_bitop3_b32 v{VD}, v{r}, v{NC + (r & 3)}, v{VD} bitop3:0xbe')
        a(f'v_and_b32 v{VD}, 15, v{VD}')
    if bo1 is not None:
        a(f'v_mov_b32 v{VC}, 0')
        a(f'ds_read_b32 v{VD}, v{VC} offset:{L_CNT+16}')
        a('s_waitcnt lgkmcnt(0)')
        a(f'v_readfirstlane_b32 s{T3}, v{VD}')
        a(f's_add_u32 s{T3}, s{T3}, {tsched(512) + bo1}')
        a(f's_mov_b32 s{SPIN}, 0')
        a.label('L_bo1')
        a('s_memrealtime s[92:93]')
        a('s_waitcnt lgkmcnt(0)')
        a(f's_sub_u32 s92, s92, s{T3}')
        a('s_cmp_ge_i32 s92, 0')
        a('s_cbranch_scc1 L_bo1_ok')
        a(f's_add_u32 s{SPIN}, s{SPIN}, 1')
        a(f's_cmp_lt_u32 s{SPIN}, 64')
        a('s_cbranch_scc1 L_bo1')
        a.label('L_bo1_ok')
    poll('L_poll_wop', loads, None, chk=chk8)
    if tst: stamp(6); a(f's_mov_b32 s5, s{SPIN}')
    for r in range(8, 16): a(f'v_and_b32 v{r}, -16, v{r}')
    a('v_pk_add_f32 v[8:9], v[8:9], v[12:13]')
    a('v_pk_add_f32 v[10:11], v[10:11], v[14:15]')
    a('v_permlane32_swap_b32 v8, v10')
    a('v_permlane32_swap_b32 v9, v11')
    a('v_pk_add_f32 v[8:9], v[8:9], v[10:11]')
    a('v_mov_b32 v10, v8'); a('v_mov_b32 v11, v9')
    a('v_permlane16_swap_b32 v8, v10')
    a('v_permlane16_swap_b32 v9, v11')
    a('v_pk_add_f32 v[8:9], v[8:9], v[10:11]')
    for ctl_ in ('row_ror:4', 'row_ror:8'):
        for k in range(2): a(f'v_add_f32_dpp v{8+k}, v{8+k}, v{8+k} {ctl_} row_mask:0xf bank_mask:0xf')
    rnd2(8, 9, VD)
    modulate2(8, 9, GAP, XR1, U2, U3, VD, RD)
    a(f'v_mov_b32 v{RD+1}, s{TAG}')
    a(f's_lshl_b32 s{T2}, s2, 7')
    a(f's_add_u32 s{T2}, s{T2}, {WS_X1}')
    a('s_mov_b32 exec_lo, 0xf'); a('s_mov_b32 exec_hi, 0xf')
    a(f'buffer_store_dwordx2 v[{RD}:{RD+1}], v{AQ}, s[{SWS}:{SWS+3}], s{T2} offen sc1')
    a('s_mov_b64 exec, -1')
    stamp(3)
    a.label('L_r1done')
    if g1: a('s_barrier')
    a(f's_cmp_lt_u32 s{F1T}, {NF1}')
    a('s_cbranch_scc0 L_notf1')
    if dfw: f1_tr()
    a(f's_lshl_b32 s{T2}, s{WV}, 13')
    a(f's_add_u32 s{T2}, s{T2}, {WS_X1}')
    a(f's_add_u32 s{T3}, s{T2}, 4096')
    a('s_mov_b32 s32, 0x11111111'); a('s_mov_b32 s33, 0x11111111')
    loads = [f'buffer_load_dwordx4 v[{8+4*j}:{8+4*j+3}], v{A64}, s[{SWS}:{SWS+3}], s{T3 if j >> 1 else T2} offen offset:{(j&1)*2048} sc1' for j in range(4)]
    if bo2: a(f's_sleep {bo2}')
    poll('L_poll_x1', loads, [9, 11, 13, 15, 17, 19, 21, 23])
    if tst: stamp(7); a(f's_mov_b32 s15, s{SPIN}')
    XV = WR; DV = WR + 16; PS = WR + 32; X0V = WR + 44; TT = WR + 45; HO = WR + 48; AF = WR + 64
    def pr(r): return f'v[{r}:{r+1}]'
    BC = 'op_sel_hi:[1,0]'; NG = 'neg_lo:[0,1] neg_hi:[0,1]'
    for rr in range(2):
        for q in range(4):
            src = 8 + 4*(2*rr + q//2) + 2*(q % 2)
            unpack(XV + 8*rr + 2*q, XV + 8*rr + 2*q + 1, src)
            if q == 0: a(f'v_readfirstlane_b32 s{22+2*rr}, v{XV+8*rr}')
    for rr in range(2):
        for q in range(4):
            a(f'v_pk_add_f32 {pr(DV+8*rr+2*q)}, {pr(XV+8*rr+2*q)}, s[{22+2*rr}:{23+2*rr}] {BC} {NG}')
    a(f'v_mov_b32 v{X0V}, s24'); a(f'v_mov_b32 v{TT}, s22')
    a(f'v_cndmask_b32 v{X0V}, v{X0V}, v{TT}, s[{LO32}:{LO32+1}]')
    S_ = [PS, PS+2]; Q_ = [PS+4, PS+6]; Z_ = [PS+8, PS+10]
    for rr in range(2): a(f'v_pk_add_f32 {pr(S_[rr])}, {pr(DV+8*rr)}, {pr(DV+8*rr+2)}')
    for rr in range(2): a(f'v_pk_add_f32 {pr(Z_[rr])}, {pr(DV+8*rr+4)}, {pr(DV+8*rr+6)}')
    for rr in range(2): a(f'v_pk_mul_f32 {pr(Q_[rr])}, {pr(DV+8*rr)}, {pr(DV+8*rr)}')
    for rr in range(2): a(f'v_pk_add_f32 {pr(S_[rr])}, {pr(S_[rr])}, {pr(Z_[rr])}')
    for q in range(1, 4):
        for rr in range(2): a(f'v_pk_fma_f32 {pr(Q_[rr])}, {pr(DV+8*rr+2*q)}, {pr(DV+8*rr+2*q)}, {pr(Q_[rr])}')
    for r in S_ + Q_: a(f'v_add_f32 v{r}, v{r}, v{r+1}')
    a(f'v_permlane32_swap_b32 v{S_[0]}, v{S_[1]}')
    a(f'v_permlane32_swap_b32 v{Q_[0]}, v{Q_[1]}')
    a(f'v_add_f32 v{S_[0]}, v{S_[0]}, v{S_[1]}')
    a(f'v_add_f32 v{Q_[0]}, v{Q_[0]}, v{Q_[1]}')
    a(f'v_permlane16_swap_b32 v{S_[0]}, v{Q_[0]}')
    T_ = S_[0]; C_ = Q_[0]
    a(f'v_add_f32 v{T_}, v{S_[0]}, v{Q_[0]}')
    for ctl_ in ('quad_perm:[1,0,3,2]', 'quad_perm:[2,3,0,1]', 'row_half_mirror', 'row_mirror'):
        a(f'v_add_f32_dpp v{T_}, v{T_}, v{T_} {ctl_} row_mask:0xf bank_mask:0xf')
    a(f'v_mul_f32 v{T_}, {f32(1/512)}, v{T_}')
    a(f'v_mov_b32 v{C_}, v{T_}')
    a(f'v_permlane16_swap_b32 v{T_}, v{C_}')
    a(f'v_add_f32 v{X0V}, v{X0V}, v{T_}')
    a(f'v_fma_f32 v{C_}, -v{T_}, v{T_}, v{C_}')
    a(f'v_max_f32 v{C_}, 0, v{C_}')
    rnd2(X0V, C_, TT)
    a(f'v_add_f32 v{C_}, {f32(1e-5)}, v{C_}')
    a(f'v_readlane_b32 s22, v{X0V}, 0'); a(f'v_readlane_b32 s24, v{X0V}, 32')
    rnd1(C_, TT)
    a(f'v_sqrt_f32 v{C_}, v{C_}')
    P8 = [(rr, q) for rr in range(2) for q in range(4)]
    def X(rr, q): return XV + 8*rr + 2*q
    def rnd_all():
        for n_, (rr, q) in enumerate(P8): a(f'v_cvt_pk_bf16_f32 v{DV+n_}, v{X(rr,q)}, v{X(rr,q)+1}')
        for n_, (rr, q) in enumerate(P8):
            a(f'v_lshlrev_b32 v{X(rr,q)}, 16, v{DV+n_}')
            a(f'v_and_b32 v{X(rr,q)+1}, 0xffff0000, v{DV+n_}')
    for rr, q in P8[:2]: a(f'v_pk_add_f32 {pr(X(rr,q))}, {pr(X(rr,q))}, s[{22+2*rr}:{23+2*rr}] {BC} {NG}')
    rnd1(C_, TT)
    a(f'v_rcp_f32 v{C_}, v{C_}')
    for rr, q in P8[2:]: a(f'v_pk_add_f32 {pr(X(rr,q))}, {pr(X(rr,q))}, s[{22+2*rr}:{23+2*rr}] {BC} {NG}')
    a(f'v_readlane_b32 s26, v{C_}, 0'); a(f'v_readlane_b32 s28, v{C_}, 32')
    rnd_all()
    for rr, q in P8: a(f'v_pk_mul_f32 {pr(X(rr,q))}, {pr(X(rr,q))}, s[{26+2*rr}:{27+2*rr}] {BC}')
    rnd_all()
    for rr, q in P8: a(f'v_pk_mul_f32 {pr(X(rr,q))}, {pr(X(rr,q))}, {pr(C1F+8*rr+2*q)}')
    rnd_all()
    for rr, q in P8: a(f'v_pk_add_f32 {pr(X(rr,q))}, {pr(X(rr,q))}, {pr(SBF+8*rr+2*q)}')
    for rr in range(2):
        for hf in range(2):
            r = HO + 4*rr + 2*hf
            for k in range(2): a(f'v_cvt_pk_bf16_f32 v{r+k}, v{X(rr,2*hf+k)}, v{X(rr,2*hf+k)+1}')
            a(f'ds_write_b64 v{AH}, v[{r}:{r+1}] offset:{L_H2 + rr*H2S + hf*512}')
    a('s_waitcnt lgkmcnt(0)')
    if tst: stamp(9)
    a('s_barrier')
    if tst: stamp(0)
    for s in range(8): a(f'ds_read_b128 v[{AF+4*s}:{AF+4*s+3}], v{AA} offset:{L_H2 + s*64}')
    a(f'v_mov_b32 v{RD+5}, s{TAG}'); a(f'v_mov_b32 v{RD+7}, s{TAG}')
    a('s_mov_b64 vcc, s[32:33]')
    for s in range(8):
        a(f's_waitcnt lgkmcnt({7-s})')
        mf(RD, AF+4*s, BF+4*s, s == 0)
    a(f'v_permlane32_swap_b32 v{RD}, v{RD+2}')
    a(f'v_permlane32_swap_b32 v{RD+1}, v{RD+3}')
    for k in range(2): a(f'v_add_f32_dpp v{RD+k}, v{RD+2+k}, v{RD+k} row_ror:8 row_mask:0xf bank_mask:0xf')
    rnd2(RD, RD+1, VD)
    for k in range(2): a(f'v_mov_b32_dpp v{U0+k}, v{RD+k} row_shl:4 row_mask:0xf bank_mask:0xf')
    silu(RD, VB, WR, WR+1); silu(RD+1, VC, WR+2, WR+3)
    rnd2(RD, RD+1, VD)
    for k in range(2): a(f'v_mul_f32 v{RD+k}, v{RD+k}, v{U0+k}')
    for k in range(2): a(f'v_mov_b32_dpp v{U0+k}, v{RD+k} quad_perm:[1,0,3,2] row_mask:0xf bank_mask:0xf')
    for k in range(2): a(f'v_cvt_pk_bf16_f32 v{RD+k}, v{RD+k}, v{U0+k}')
    a(f'v_cndmask_b32_dpp v{RD+4}, v{RD+1}, v{RD}, vcc quad_perm:[0,0,0,0] row_mask:0xf bank_mask:0xf')
    a('s_not_b64 vcc, vcc')
    a(f'v_cndmask_b32_dpp v{RD+6}, v{RD}, v{RD+1}, vcc quad_perm:[2,2,2,2] row_mask:0xf bank_mask:0xf')
    a('s_mov_b32 exec_lo, 0x00050005'); a('s_mov_b32 exec_hi, 0x00050005')
    a(f'buffer_store_dwordx4 v[{RD+4}:{RD+7}], v{AS}, s[{SWS}:{SWS+3}], s{T5} offen sc1')
    stamp(4)
    a('s_branch L_fin')
    a.label('L_notf1')
    a(f's_mov_b32 s{T0}, s{F2T}')
    a(f's_cmp_lt_u32 s{T0}, 32')
    a('s_cbranch_scc0 L_fin')
    if dfw:
        for s in range(12): tr_read(BF + 4*s, AT2, s)
    a(f's_mov_b32 s{T2}, {WS_ACT}')
    loads = []; tags = []
    for u in range(6):
        for k in range(2):
            r = WR + 8*u + 4*k
            loads.append(f'buffer_load_dwordx4 v[{r}:{r+3}], v{AD+u}, s[{SWS}:{SWS+3}], s{T2} offen offset:{1024*k} sc1')
            tags += [r+1, r+3]
    a(f's_lshl_b32 s{T1}, s{T0}, 7')
    a(f's_add_u32 s{T1}, s{T1}, {WS_X1}')
    X1R = WR + 48
    if bo2: a(f's_sleep {bo2}')
    poll('L_poll_x1b', [f'buffer_load_dwordx2 v[{X1R}:{X1R+1}], v{AX}, s[{SWS}:{SWS+3}], s{T1} offen sc1'], [X1R+1])
    def gen_update(lab):
        a(f's_or_b32 s{T3}, s{T0}, s{WV}')
        a(f's_cmp_lg_u32 s{T3}, 0')
        a(f's_cbranch_scc1 {lab}')
        a(f's_sub_u32 s{T3}, s{TAG}, {TAGC - 0x11111111}')
        a(f'v_mov_b32 v{VB}, s{T3}')
        a(f'v_mov_b32 v{VA}, 0')
        a('s_mov_b64 exec, 1')
        a(f'buffer_store_dword v{VB}, v{VA}, s[{SWS}:{SWS+3}], 0 offen offset:{WS_GEN} sc1')
        a('s_mov_b64 exec, -1')
    if gene:
        gen_update('L_gen_done'); a.label('L_gen_done')
    if g2: poll('L_poll_act0', loads[:1], tags[:2])
    if bo3: a(f's_sleep {bo3}')
    poll('L_poll_act', loads, tags)
    if tst: stamp(7); a(f's_mov_b32 s15, s{SPIN}')
    AF = WR + 64
    a('s_waitcnt lgkmcnt(0)')
    for u in range(6):
        for k in range(4):
            a(f'v_and_b32 v{AF+4*u+k}, v{VM+u}, v{WR+8*u+2*k}')
        mf(D1, AF+4*u, BF+8*u, u == 0); mf(D2, AF+4*u, BF+8*u+4, u == 0)
    sel_halves(cv, RD, D1, D2)
    a(f'ds_write_b128 v{AW}, v[{RD}:{RD+3}] offset:{L_RED}')
    a('s_waitcnt lgkmcnt(0)')
    a('s_barrier')
    if tst: stamp(10)
    a(f's_cmp_lg_u32 s{WV}, 0')
    a('s_cbranch_scc1 L_fin')
    red_sum(cv, U0, AR, L_RED, WR)
    rnd2(U0, U1, VD)
    modulate2(U0, U1, GBP, X1R, U2, U3, VD, RD)
    a(f's_lshl_b32 s{T2}, s{T0}, 5')
    a(f'buffer_store_dword v{RD}, v{AO}, s[{SOUT}:{SOUT+3}], s{T2} offen')
    stamp(5)
    if tst:
        a('s_waitcnt vmcnt(0)'); stamp(9)
    if not gene: gen_update('L_fin')
    if hold:
        a('s_waitcnt vmcnt(0)')
        a.label('L_hold')
        a('s_memrealtime s[92:93]')
        a('s_waitcnt lgkmcnt(0)')
        a('s_sub_u32 s92, s92, s94')
        a(f's_cmp_lt_u32 s92, {hold}')
        a('s_cbranch_scc1 L_hold')
    a.label('L_fin', fence=stamps)
    if stamps: finish(SWS, 8)
    a.label('L_end', fence=False)
    a('s_endpgm')
    a.raw('.section .rodata,"a"')
    a.raw('.p2align 6')
    a.raw(f'.amdhsa_kernel {NAME}')
    a.raw('  .amdhsa_next_free_vgpr 256')
    a.raw('  .amdhsa_next_free_sgpr 96')
    a.raw('  .amdhsa_accum_offset 256')
    a.raw('  .amdhsa_group_segment_fixed_size 0')
    a.raw('  .amdhsa_kernarg_size 112')
    a.raw('  .amdhsa_user_sgpr_count 2')
    a.raw('  .amdhsa_user_sgpr_kernarg_segment_ptr 1')
    a.raw('  .amdhsa_system_sgpr_workgroup_id_x 1')
    a.raw('  .amdhsa_float_denorm_mode_32 3')
    a.raw('.end_amdhsa_kernel')
    return a.text()

if __name__ == '__main__':
    import json
    out = sys.argv[1] if len(sys.argv) > 1 else 'adaLN_cond__mha_block_cached__swiglu_ffn__decode.s'
    kw = json.loads(sys.argv[2]) if len(sys.argv) > 2 else {}
    open(out, 'w').write(gen(**kw))
    print('wrote', out)
```

```python
import sys, struct
from asmlib import Asm

NAME = 'adaLN_cond__mha_block_cached__swiglu_ffn__decode_kernel'

def f32(x):
    return '0x%08x' % struct.unpack('<I', struct.pack('<f', x))[0]

L2E = 1.4426950408889634
WS_GEN = 0
WS_MOD = 0x1000
WS_X1 = 0x20000
WS_ACT = 0x28000
WS_HEAD = 0x38000
WS_MST = 0x48000
WS_WOP = 0x100000
WS_P = 0x200000
WS_SLOT = 0x800000
WS_DBG = 0x2000000
WS_SIZE = 0x40000000
L_CNT = 0x0
L_MX = 0x40
L_QP = 0x100
L_OP = 0x900
L_RED = 0x1100
L_H2 = 0x3100; H2S = 1040
L_SC = 0x5200
L_OS = 0x9200
L_STG = 0x9A00; STGW = 12288
L_DUM = L_STG + 4 * STGW
LDS_SIZE = L_DUM + 4096
NF1 = 86
LAYOUT = 7
F2_BASE = 96
SPIN_MAX = 100000
NSH = 32
TAGC = 0x5bd1e995

def gen(dbg=False, W=6, VW=4, W0=6, nA=4, kpol='nt', wpol='nt', stamps=False, gate=False, notail=False,
        gsleep=4, b0wq=0, sprio=2, mprio=3, boost=2, sboost=3, n0=0, WQ=32, SW_=2,
        wqpol=None, wopol=None, mpol=None, fpol=None, nopre=False, pre=None, dst=False, perm=False, hold=0,
        lv=None, th=(70, -70), tK=900, sK=14.9, tV=4230, sV=13.46, lv0=None, g1=False, g2=False, rel=False, dl=0, MB=88, DD=2, MSTR=8192, CSTR=256, tst=False, tlbv=False, tlbo=False, mlp='', agg='mean', noml=False, nomst=False, msp='sc1', thv=None, pd=0, lme=False, lpl=False, gene=False, dfw=False, dpol=None, bo1=None, bo2=0, bo3=0, dry=False, dry2=False, nf=False, sst=False, pf=0, pfW=6, pfpol='', hmap=0, wqn=32, sst2=False):
    assert g1 or not dfw
    thv = th if thv is None else thv
    if dst: stamps = True
    wqpol = wpol if wqpol is None else wqpol; wopol = wpol if wopol is None else wopol
    mpol = wpol if mpol is None else mpol; fpol = wpol if fpol is None else fpol
    a = Asm()
    hdr = open('adaLN_cond__mha_block_cached__swiglu_ffn__decode.s.ref').read().split('\n')
    for l in hdr:
        if l.startswith('; @launch'): break
        a.raw(l)
    a.raw(f'; @launch grid=(256,1,1) block=(512,1,1) lds={LDS_SIZE}')
    a.raw('.amdgcn_target "amdgcn-amd-amdhsa--gfx950"')
    a.raw('.text')
    a.raw(f'.globl {NAME}')
    a.raw('.p2align 8')
    a.raw(f'.type {NAME},@function')
    a.raw(f'{NAME}:')

    def srd(d, p, size):
        a(f's_mov_b32 s{d}, s{p}')
        a(f's_mov_b32 s{d+1}, s{p+1}')
        a(f's_mov_b32 s{d+2}, {size}')
        a(f's_mov_b32 s{d+3}, 0x00020000')

    def rnd1(x, t):
        a(f'v_cvt_pk_bf16_f32 v{t}, v{x}, v{x}')
        a(f'v_lshlrev_b32 v{x}, 16, v{t}')
    def rnd2(x, y, t):
        a(f'v_cvt_pk_bf16_f32 v{t}, v{x}, v{y}')
        a(f'v_lshlrev_b32 v{x}, 16, v{t}')
        a(f'v_and_b32 v{y}, 0xffff0000, v{t}')
    def unpack(lo, hi, src):
        a(f'v_lshlrev_b32 v{lo}, 16, v{src}')
        a(f'v_and_b32 v{hi}, 0xffff0000, v{src}')
    def wave_reduce(op, regs, tmps):
        for ctl in ('quad_perm:[1,0,3,2]', 'quad_perm:[2,3,0,1]', 'row_half_mirror', 'row_mirror'):
            for r in regs:
                a(f'{op}_dpp v{r}, v{r}, v{r} {ctl} row_mask:0xf bank_mask:0xf')
        for sw in ('v_permlane16_swap_b32', 'v_permlane32_swap_b32'):
            for r, t in zip(regs, tmps): a(f'v_mov_b32 v{t}, v{r}')
            for r, t in zip(regs, tmps): a(f'{sw} v{r}, v{t}')
            for r, t in zip(regs, tmps): a(f'{op} v{r}, v{r}, v{t}')
    def greduce8(acc):
        for e in range(4): a(f'v_permlane32_swap_b32 v{acc+e}, v{acc+e+4}')
        for e in range(4): a(f'v_add_f32 v{acc+e}, v{acc+e}, v{acc+e+4}')
        for e in range(2): a(f'v_permlane16_swap_b32 v{acc+e}, v{acc+e+2}')
        for e in range(2): a(f'v_add_f32 v{acc+e}, v{acc+e}, v{acc+e+2}')
    def silu(x, t, t2, t3):
        a(f'v_mul_f32 v{t}, {f32(-L2E)}, v{x}')
        a(f'v_exp_f32 v{t}, v{t}')
        a(f'v_add_f32 v{t}, 1.0, v{t}')
        a(f'v_min_f32 v{t}, 0x7f7fffff, v{t}')
        a(f'v_rcp_f32 v{t2}, v{t}')
        a(f'v_mul_f32 v{t3}, v{x}, v{t2}')
        a(f'v_fma_f32 v{x}, -v{t3}, v{t}, v{x}')
        a(f'v_fma_f32 v{x}, v{x}, v{t2}, v{t3}')
    STP = 92
    def stamp(idx):
        if not stamps: return
        a(f's_memrealtime s[{STP}:{STP+1}]')
        a('s_waitcnt lgkmcnt(0)')
        a(f's_mov_b32 s{4+idx}, s{STP}')
    def finish(ws_srd, vt, role='v'):
        if dst:
            a('s_mov_b64 exec, -1')
            a(f'v_mov_b32 v{vt}, 0')
            if role == 's':
                a(f's_not_b32 s{STP}, s4'); a(f'v_writelane_b32 v{vt}, s{STP}, 0')
                a(f'v_writelane_b32 v{vt}, s4, 1')
                a(f'v_writelane_b32 v{vt}, s5, 2')
                a(f'v_writelane_b32 v{vt}, s11, 3')
                a(f'v_writelane_b32 v{vt}, s6, 4')
                a(f's_not_b32 s{STP}, s6'); a(f'v_writelane_b32 v{vt}, s{STP}, 5')
                a(f's_memtime s[{STP}:{STP+1}]'); a('s_waitcnt lgkmcnt(0)')
                a(f's_sub_u32 s{STP}, s{STP}, s14'); a(f'v_writelane_b32 v{vt}, s{STP}, 10')
                a(f's_sub_u32 s{STP}, s6, s4'); a(f'v_writelane_b32 v{vt}, s{STP}, 11')
            else:
                a(f'v_writelane_b32 v{vt}, s6, 6')
                a(f'v_writelane_b32 v{vt}, s7, 7')
                a(f'v_writelane_b32 v{vt}, s8, 8')
                a(f'v_writelane_b32 v{vt}, s9, 9')
            srd(STP-4, 40, 256)
            a(f'v_lshlrev_b32 v{vt+1}, 2, v0')
            a('s_mov_b64 exec, 0xffff')
            a(f'buffer_atomic_umax v{vt}, v{vt+1}, s[{STP-4}:{STP-1}], 0 offen')
        elif stamps:
            a('s_mov_b64 exec, -1')
            a(f'v_mov_b32 v{vt}, 0')
            for k in range(12):
                a(f'v_writelane_b32 v{vt}, s{4+k}, {k}')
            a(f's_lshl_b32 s{STP}, s2, 3')
            a(f's_add_u32 s{STP}, s{STP}, s3')
            a(f's_lshl_b32 s{STP}, s{STP}, 6')
            a(f's_add_u32 s{STP}, s{STP}, {WS_DBG + 0x100000}')
            a(f'v_lshlrev_b32 v{vt+1}, 2, v0')
            a('s_mov_b64 exec, 0xffff')
            a(f'buffer_store_dword v{vt}, v{vt+1}, s[{ws_srd}:{ws_srd+3}], s{STP} offen')
        a('s_endpgm')

    DRY = 34
    def ex_full(d):
        a(f's_mov_b64 exec, s[{DRY}:{DRY+1}]' if d else 's_mov_b64 exec, -1')
    def ex_mask(d, lo, hi):
        if d:
            a(f's_and_b32 exec_lo, {lo}, s{DRY}'); a(f's_and_b32 exec_hi, {hi}, s{DRY}')
        else:
            a(f's_mov_b32 exec_lo, {lo}'); a(f's_mov_b32 exec_hi, {hi}')
    def tbar(d):
        if d:
            lab = a.uid('L_tb')
            a(f's_cbranch_execz {lab}')
            a('s_barrier')
            a.label(lab, fence=False)
        else:
            a('s_barrier')
    def mf(d, A, Bf, first):
        c = '0' if first else f'v[{d}:{d+3}]'
        a(f'v_mfma_f32_16x16x32_bf16 v[{d}:{d+3}], v[{A}:{A+3}], v[{Bf}:{Bf+3}], {c}')
    def tr_read(dst, v, ks):
        a(f'ds_read_b64_tr_b16 v[{dst}:{dst+1}], v{v} offset:{ks*1024}')
        a(f'ds_read_b64_tr_b16 v[{dst+2}:{dst+3}], v{v} offset:{ks*1024+128}')

    class Ctx:
        pass
    def tr_addr(c, v):
        a(f'v_lshrrev_b32 v{v}, 2, v{c.VI}')
        a(f'v_lshlrev_b32 v{v}, 5, v{v}')
        a(f'v_lshl_add_u32 v{v}, v{c.VG}, 8, v{v}')
        a(f'v_and_b32 v{c.VD}, 3, v{c.VI}')
        a(f'v_lshl_add_u32 v{v}, v{c.VD}, 3, v{v}')
        a(f'v_add_u32 v{v}, s{c.STGB}, v{v}')
    def sel_halves(c, dst, d1, d2):
        for r in range(4):
            a(f'v_cndmask_b32 v{dst+r}, v{d2+r}, v{d1+r}, s[{c.LO32}:{c.LO32+1}]')
    def red_addr(c, v):
        a(f'v_and_b32 v{v}, 7, v0')
        a(f'v_lshlrev_b32 v{v}, 5, v{v}')
        a(f'v_lshrrev_b32 v{c.VD}, 5, v0')
        a(f'v_lshl_add_u32 v{v}, v{c.VD}, 8, v{v}')
        a(f'v_bfe_u32 v{c.VD}, v0, 3, 2')
        a(f'v_lshl_add_u32 v{v}, v{c.VD}, 2, v{v}')
    def red_sum(c, dst, v, off, scratch):
        a(f'v_add_u32 v{c.VD}, {off}, v{v}')
        for w in range(4):
            for hf in range(2):
                r = scratch + 2*(2*w + hf)
                a(f'ds_read2_b32 v[{r}:{r+1}], v{c.VD} offset0:{hf*128} offset1:{hf*128+4}')
            if w < 3: a(f'v_add_u32 v{c.VD}, 1024, v{c.VD}')
        a('s_waitcnt lgkmcnt(0)')
        for st in (8, 4):
            for k in range(st): a(f'v_add_f32 v{scratch+k}, v{scratch+k}, v{scratch+k+st}')
        a(f'v_add_f32 v{dst}, v{scratch}, v{scratch+2}')
        a(f'v_add_f32 v{dst+1}, v{scratch+1}, v{scratch+3}')

    def mod_issue(c):
        a(f's_and_b32 s{c.T0}, s{c.WG}, 7')
        a(f's_lshl_b32 s{c.T0}, s{c.T0}, 2')
        a(f's_lshr_b32 s{c.T1}, s{c.WG}, 3')
        a(f's_and_b32 s{c.T1}, s{c.T1}, 3')
        a(f's_add_u32 s{c.T0}, s{c.T0}, s{c.T1}')
        a(f's_and_b32 s{c.T1}, s{c.WG}, 0xe0')
        a(f's_add_u32 s{c.T1}, s{c.T1}, s{c.T0}')
        a(f's_lshl_b32 s{c.T1}, s{c.T1}, 5')
        a(f's_mul_i32 s{c.T2}, s{c.WV}, {128*6144}')
        a(f's_add_u32 s{c.T1}, s{c.T1}, s{c.T2}')
        a(f'v_and_b32 v{c.VA}, 7, v0')
        a(f'v_lshlrev_b32 v{c.VA}, 10, v{c.VA}')
        a(f'v_bfe_u32 v{c.VB}, v0, 3, 1')
        a(f'v_lshl_add_u32 v{c.VA}, v{c.VB}, 7, v{c.VA}')
        a(f'v_lshl_add_u32 v{c.VA}, v{c.VG}, 4, v{c.VA}')
        a(f's_lshl_b32 s{c.T2}, s{c.WV}, 8')
        a(f'buffer_load_dwordx4 v[{c.CF}:{c.CF+3}], v{c.VA}, s[{c.SC}:{c.SC+3}], s{c.T2} offen')
        a(f'buffer_load_dwordx4 v[{c.CF+4}:{c.CF+7}], v{c.VA}, s[{c.SC}:{c.SC+3}], s{c.T2} offen offset:64')
        a(f'v_lshrrev_b32 v{c.VB}, 1, v0')
        a(f'v_mul_u32_u24 v{c.VB}, 6144, v{c.VB}')
        a(f'v_and_b32 v{c.VC}, 1, v0')
        a(f'v_lshl_add_u32 v{c.VB}, v{c.VC}, 4, v{c.VB}')
        for s in range(4):
            a(f's_add_u32 m0, s{c.STGB}, {s*1024}')
            if c.paced: a('s_waitcnt vmcnt(0)')
            a(f'buffer_load_dwordx4 v{c.VB}, s[{c.SM}:{c.SM+3}], s{c.T1} offen {mpol} lds')
            if s < 3: a(f's_add_u32 s{c.T1}, s{c.T1}, {32*6144}')
    def mod_compute(c, younger, cnt_off, done, st=None):
        a(f's_waitcnt vmcnt({younger + 4})')
        if st: stamp(st[0])
        if c.GENV is not None:
            a(f'v_readfirstlane_b32 s{c.TAG}, v{c.GENV}')
            a(f's_add_u32 s{c.TAG}, s{c.TAG}, {TAGC}')
        XF = c.XF
        for r in range(8):
            unpack(XF, XF+1, c.CF+r)
            silu(XF, XF+2, XF+4, XF+6); silu(XF+1, XF+3, XF+5, XF+7)
            a(f'v_cvt_pk_bf16_f32 v{c.CF+r}, v{XF}, v{XF+1}')
        tr_addr(c, c.VA)
        a(f's_waitcnt vmcnt({younger})')
        if st: stamp(st[1])
        BF = c.BF
        for s in range(4): tr_read(BF + 4*s, c.VA, s)
        a('s_waitcnt lgkmcnt(0)')
        mf(c.D1, c.CF, BF, True); mf(c.D2, c.CF, BF+8, True)
        mf(c.D1, c.CF+4, BF+4, False); mf(c.D2, c.CF+4, BF+12, False)
        sel_halves(c, c.RD, c.D1, c.D2)
        a(f's_lshl_b32 s{c.T2}, s{c.WV}, 10')
        a(f'v_add_u32 v{c.VB}, s{c.T2}, v1')
        a(f'ds_write_b128 v{c.VB}, v[{c.RD}:{c.RD+3}] offset:{L_RED}')
        a(f'v_mov_b32 v{c.VC}, 0')
        a(f'v_mov_b32 v{c.VB}, 1')
        a('s_mov_b64 exec, 1')
        a(f'ds_add_rtn_u32 v{c.VB}, v{c.VC}, v{c.VB} offset:{cnt_off}')
        a('s_mov_b64 exec, -1')
        a('s_waitcnt lgkmcnt(0)')
        a(f'v_readfirstlane_b32 s{c.T2}, v{c.VB}')
        a(f's_cmp_lg_u32 s{c.T2}, 3')
        a(f's_cbranch_scc1 {done}')
        red_addr(c, c.VA)
        red_sum(c, c.U0, c.VA, L_RED, BF)
        a(f'v_cvt_pk_bf16_f32 v{c.RD}, v{c.U0}, v{c.U0+1}')
        a(f'v_mov_b32 v{c.RD+1}, s{c.TAG}')
        a(f's_and_b32 s{c.T2}, s{c.WG}, 0xe0')
        a(f's_add_u32 s{c.T2}, s{c.T2}, s{c.T0}')
        a(f's_lshl_b32 s{c.T2}, s{c.T2}, 9')
        a(f's_add_u32 s{c.T2}, s{c.T2}, {WS_MOD}')
        a(f'v_lshlrev_b32 v{c.VA}, 3, v0')
        a(f'buffer_store_dwordx2 v[{c.RD}:{c.RD+1}], v{c.VA}, s[{c.SWS}:{c.SWS+3}], s{c.T2} offen sc1')

    def head_of(d, t):
        if hmap == 0:
            a(f's_and_b32 s{d}, s2, 31')
        elif hmap == 1:
            a(f's_and_b32 s{d}, s2, 7'); a(f's_lshl_b32 s{d}, s{d}, 2')
            a(f's_bfe_u32 s{t}, s2, 0x20003'); a(f's_or_b32 s{d}, s{d}, s{t}')
        elif hmap == 2:
            a(f's_and_b32 s{d}, s2, 7'); a(f's_lshl_b32 s{d}, s{d}, 1')
            a(f's_bfe_u32 s{t}, s2, 0x10003'); a(f's_or_b32 s{d}, s{d}, s{t}')
            a(f's_and_b32 s{t}, s2, 16'); a(f's_or_b32 s{d}, s{d}, s{t}')
    def roles(F1T, F2T, T0, T1):
        a(f's_and_b32 s{T0}, s2, 7')
        a(f's_lshr_b32 s{T1}, s2, 3')
        a(f's_mul_i32 s{F1T}, s{T0}, 11')
        a(f's_add_u32 s{F1T}, s{F1T}, s{T1}')
        a(f's_cmp_lt_u32 s2, 88')
        a(f's_cselect_b32 s{F1T}, s{F1T}, 255')
        a(f's_lshl_b32 s{F2T}, s{T0}, 2')
        a(f's_add_u32 s{F2T}, s{F2T}, s{T1}')
        a(f's_sub_u32 s{F2T}, s{F2T}, {F2_BASE//8}')
        a(f's_sub_u32 s{T1}, s2, {F2_BASE}')
        a(f's_cmp_lt_u32 s{T1}, 32')
        a(f's_cselect_b32 s{F2T}, s{F2T}, 255')
    def f1_dma(VB, VC, SST, WV, F1T, T1, T2, STGB, paced, pol):
        a(f'v_lshrrev_b32 v{VB}, 1, v0')
        a(f'v_mul_u32_u24 v{VB}, 2752, v{VB}')
        a(f'v_and_b32 v{VC}, 1, v0')
        a(f'v_lshl_add_u32 v{VB}, v{VC}, 4, v{VB}')
        for which, p in enumerate((28, 30)):
            srd(SST, p, 512*1376*2)
            a(f's_mul_i32 s{T1}, s{WV}, {128*2752}')
            a(f's_lshl_b32 s{T2}, s{F1T}, 5')
            a(f's_add_u32 s{T1}, s{T1}, s{T2}')
            for s in range(4):
                a(f's_add_u32 m0, s{STGB}, {(which*4+s)*1024}')
                if paced: a('s_waitcnt vmcnt(0)')
                a(f'buffer_load_dwordx4 v{VB}, s[{SST}:{SST+3}], s{T1} offen {pol} lds')
                if s < 3: a(f's_add_u32 s{T1}, s{T1}, {32*2752}')
    def f2_dma(VB, VC, SST, WV, F2T, T1, T2, T3, STGB, paced, pol):
        srd(SST, 32, 1376*512*2)
        a(f'v_lshrrev_b32 v{VB}, 1, v0')
        a(f'v_lshlrev_b32 v{VB}, 10, v{VB}')
        a(f'v_and_b32 v{VC}, 1, v0')
        a(f'v_lshl_add_u32 v{VB}, v{VC}, 4, v{VB}')
        a(f's_mul_i32 s{T3}, s{WV}, 12')
        a(f's_lshl_b32 s{T2}, s{F2T}, 5')
        for s in range(12):
            a(f's_add_u32 s{T1}, s{T3}, {s}')
            a(f's_min_u32 s{T1}, s{T1}, 42')
            a(f's_lshl_b32 s{T1}, s{T1}, 15')
            a(f's_add_u32 s{T1}, s{T1}, s{T2}')
            a(f's_add_u32 m0, s{STGB}, {s*1024}')
            if paced: a('s_waitcnt vmcnt(0)')
            a(f'buffer_load_dwordx4 v{VB}, s[{SST}:{SST+3}], s{T1} offen {pol} lds')

    a('s_cmp_ge_u32 s2, 256')
    a('s_cbranch_scc1 L_end')
    if perm:
        a('s_lshr_b32 s3, s2, 5'); a('s_xor_b32 s2, s2, s3')
    a('s_load_dwordx16 s[16:31], s[0:1], 0')
    a('s_load_dwordx8 s[32:39], s[0:1], 64')
    a('s_load_dwordx4 s[40:43], s[0:1], 96')
    if stamps:
        for k in range(12): a(f's_mov_b32 s{4+k}, 0')
    if hold or pd:
        a('s_memrealtime s[94:95]')
    a('v_lshrrev_b32 v1, 6, v0')
    a('v_readfirstlane_b32 s3, v1')
    a('v_and_b32 v0, 63, v0')
    a('v_lshlrev_b32 v1, 4, v0')
    a('s_cmp_ge_u32 s3, 4')
    a('s_cbranch_scc1 L_service')

    Q = 4; Pq = 8; ACC = 24; TMP = 32; VMAX = 40; VT0 = 41; VT1 = 42; PP0 = 43; PP1 = 44; VSC = 2; VI = 45; VG = 46; VT2 = 47; VT3 = 48
    GENV = 3
    TK = 50; PN = 52; VPA = 54; VSA = 55; FL = 56; VZ = 60; VHA = 61
    RING = 64; EXA = 128; EXB = 192
    IS = 44; SWS = 52; SOFF = 56; CNT = 57; BASE = 58; M1 = 60; M2 = 62; SELLO = 64; SELHI = 65; SCALE = 66; TAG = 67
    SHD = 70; SLOTC = 71; SLOTN = 72; FIRST = 73; T0 = 74; T1 = 75; T2 = 76; T3 = 77; STGB = 78; SPIN = 79
    SC = 80; SM = 84; LO32 = 88
    HOME = 48; STEP = 49; QUIT = 50; ESPIN = 51
    P_ = Pq
    if lv is not None: a('s_memrealtime s[70:71]')
    head_of(58, 59)
    a('s_and_b32 s59, s2, 0xe0')
    a('s_or_b32 s58, s58, s59')
    a('s_lshl_b32 s58, s58, 20')
    a('s_lshl_b32 s59, s3, 12')
    a('s_add_u32 s58, s58, s59')
    a('s_mov_b32 s56, s58')
    a(f'v_mov_b32 v{VZ}, 0')
    a(f'v_and_b32 v{VI}, 15, v0')
    a(f'v_lshrrev_b32 v{VG}, 4, v0')
    a(f's_mul_i32 s{STGB}, s3, {STGW}')
    a(f's_add_u32 s{STGB}, s{STGB}, {L_STG}')
    a('s_waitcnt lgkmcnt(0)')
    srd(SWS, 42, WS_SIZE)
    a(f'buffer_load_dword v{GENV}, v{VZ}, s[{SWS}:{SWS+3}], 0 offen offset:{WS_GEN} sc1')
    srd(IS, 18, 0x10000000)
    srd(SC, 34, 8192)
    srd(SM, 36, 512*3072*2)
    if dry2: a(f's_mov_b64 s[{DRY}:{DRY+1}], -1')
    stamp(0)
    if dst:
        a(f's_memtime s[{STP}:{STP+1}]'); a('s_waitcnt lgkmcnt(0)'); a(f's_mov_b32 s14, s{STP}')
    cs = Ctx()
    cs.VI = VI; cs.VG = VG; cs.VA = RING; cs.VB = RING+1; cs.VC = RING+2; cs.VD = RING+3
    cs.CF = RING+4; cs.XF = RING+12; cs.BF = RING+20; cs.D1 = RING+36; cs.D2 = RING+40; cs.RD = RING+44; cs.U0 = RING+48
    cs.T0 = T0; cs.T1 = T1; cs.T2 = T2; cs.T3 = T3; cs.WV = 3; cs.STGB = STGB; cs.SC = SC; cs.SM = SM; cs.SWS = SWS
    cs.LO32 = LO32; cs.TAG = TAG; cs.GENV = GENV; cs.WG = 2; cs.paced = False
    a('s_cmp_ge_u32 s2, 64')
    a('s_cbranch_scc1 L_s_noissue')
    if mprio: a(f's_setprio {mprio}')
    mod_issue(cs)
    a.label('L_s_noissue', fence=False)

    LV = 68; TGT = 69; T00 = 70; TM = 72; LAG = 71
    def pw(d=0):
        if lv is None:
            a(f's_waitcnt vmcnt({(W-1) if d == 0 else VW})')
            return
        lab = a.uid('L_pw')
        for k, Wk in enumerate(lv):
            a(f's_waitcnt vmcnt({Wk-1-d})')
            if k < len(lv) - 1:
                a(f's_cmp_eq_u32 s{LV}, {k}')
                a(f's_cbranch_scc1 {lab}')
        a.label(lab, fence=False)
    def tsched(n):
        return int(round(tK + (n - 48) * sK)) if n <= 272 else int(round(tV + (n - 272) * sV))
    MS = 50; VBS = 52; VMA = 53; MD = 54; MT = 56; ISM = 48; CK = 49; CKS = 50
    def mload():
        if lv is None or not rel or noml: return
        lab = a.uid('L_ml')
        a('s_cmp_lg_u32 s3, 0')
        a(f's_cbranch_scc1 {lab}')
        a(f'buffer_load_dwordx2 v[{MS}:{MS+1}], v{VMA}, s[{SWS}:{SWS+3}], s{CK} offen {mlp}')
        a.label(lab, fence=False)
    def clk():
        if lv is None: return
        a(f's_memrealtime s[{TM}:{TM+1}]')
        if rel: a(f'ds_read_b32 v{VBS}, v{VZ} offset:{L_CNT+16}')
    def ctl(n=None, step=None, upd=True, th_=None):
        if lv is None: return
        th_ = th if th_ is None else th_
        a('s_waitcnt lgkmcnt(0)')
        if rel:
            a(f'v_readfirstlane_b32 s{TM+1}, v{VBS}')
            if n is not None: a(f's_sub_u32 s{TM}, s{TM}, {tsched(n)}')
            else: a(f's_sub_u32 s{TM}, s{TM}, s{TGT}')
            a(f's_sub_u32 s{LAG}, s{TM}, s{TM+1}')
        else:
            if n is not None: a(f's_add_u32 s{TGT}, s{T00}, {tsched(n)}')
            a(f's_sub_u32 s{LAG}, s{TM}, s{TGT}')
        if step is not None: a(f's_add_u32 s{TGT}, s{TGT}, {step}')
        a(f's_mov_b32 s{LV}, {len(lv)-1}')
        for k in range(len(lv) - 2, -1, -1):
            a(f's_cmp_gt_i32 s{LAG}, {th_[k]}')
            a(f's_cselect_b32 s{LV}, {k}, s{LV}')
        if rel:
            lab = a.uid('L_ct')
            a('s_cmp_lg_u32 s3, 0')
            a(f's_cbranch_scc1 {lab}')
            lab2 = a.uid('L_cm')
            a(f's_cmp_eq_u32 s{ISM}, 0')
            a(f's_cbranch_scc1 {lab2}')
            a(f'v_mov_b32 v{MD}, s{TM}')
            a(f'v_mov_b32 v{MD+1}, s{TAG}')
            a(f's_add_u32 s{CKS}, s{ISM}, s{CK}')
            a('s_mov_b64 exec, 1')
            if not nomst: a(f'buffer_store_dwordx2 v[{MD}:{MD+1}], v{VZ}, s[{SWS}:{SWS+3}], s{CKS} offen {msp}')
            a('s_mov_b64 exec, -1')
            a.label(lab2, fence=False)
            a(f's_add_u32 s{CK}, s{CK}, {CSTR}')
            if upd:
                a(f'v_cmp_ne_u32 vcc, s{TAG}, v{MS+1}')
                a(f'v_subrev_u32 v{MT}, s{T00}, v{MS}')
                for c_ in ('quad_perm:[1,0,3,2]', 'quad_perm:[2,3,0,1]', 'row_half_mirror'):
                    a(f'{"v_add_u32" if agg == "mean" else "v_max_i32"}_dpp v{MT}, v{MT}, v{MT} {c_} row_mask:0xf bank_mask:0xf')
                if agg == 'mean': a(f'v_ashrrev_i32 v{MT}, 3, v{MT}')
                a(f's_add_u32 s{TM+1}, s{T00}, {dl}')
                a(f'v_add_u32 v{MT}, s{TM+1}, v{MT}')
                a(f's_cbranch_vccnz {lab}')
                a(f'ds_write_b32 v{VZ}, v{MT} offset:{L_CNT+16}')
            a.label(lab, fence=False)
    def issue(base, j):
        r = base + 4 * j
        a(f'buffer_load_dwordx4 v[{r}:{r+3}], v1, s[{IS}:{IS+3}], s{SOFF} offen offset:{(j % 4) * 1024} {kpol}')
        if j % 4 == 3:
            a(f's_add_u32 s{SOFF}, s{SOFF}, 16384')

    seq = [(base, j) for base in (EXA, EXB, RING) for j in range(16)]
    for n in range(nA): issue(*seq[n])
    a(f's_mov_b32 s{M1}, 0xaaaaaaaa'); a(f's_mov_b32 s{M1+1}, 0xaaaaaaaa')
    a(f's_mov_b32 s{M2}, 0xcccccccc'); a(f's_mov_b32 s{M2+1}, 0xcccccccc')
    a(f's_mov_b32 s{SELLO}, 0x05040100'); a(f's_mov_b32 s{SELHI}, 0x07060302')
    a(f's_mov_b32 s{SCALE}, {f32(128 ** -0.5)}')
    a(f's_mov_b32 s{LO32}, -1'); a(f's_mov_b32 s{LO32+1}, 0')
    a(f's_lshl_b32 s59, s3, 12')
    a(f's_add_u32 s59, s59, {L_SC}')
    a(f'v_lshlrev_b32 v{VSC}, 2, v0')
    a(f'v_add_u32 v{VSC}, s59, v{VSC}')
    a(f'v_mov_b32 v{VMAX}, 0xff800000')
    if sst:
        stamp(9)
        a('s_cmp_lt_u32 s2, 64')
        a('s_cbranch_scc1 L_sst')
        a(f's_waitcnt vmcnt({nA})'); stamp(3)
        a(f's_waitcnt vmcnt({nA-1})'); stamp(4)
        a(f's_waitcnt vmcnt({nA-8})'); stamp(10)
        a(f's_waitcnt vmcnt(0)'); stamp(11)
        a.label('L_sst')
    a('s_barrier')
    a('s_cmp_ge_u32 s2, 64')
    a('s_cbranch_scc1 L_s_moddone')
    mod_compute(cs, nA, L_CNT, 'L_s_moddone', st=(3, 4))
    a.label('L_s_moddone')
    if mprio: a('s_setprio 0')
    stamp(5)
    for n in range(nA, 48):
        Wn = W0 if n < n0 else W
        if n >= Wn and n < 48 - boost:
            a(f's_waitcnt vmcnt({Wn-1})')
        if sst2 and n in (16, 24, 32, 40, 45): stamp({16: 9, 24: 3, 32: 4, 40: 10, 45: 11}[n])
        issue(*seq[n])
    if pf:
        a(f's_mov_b32 m0, {L_DUM}')
        a(f's_lshl_b32 s{T3}, s2, 2')
        a(f's_add_u32 s{T3}, s{T3}, s3')
        def pfl(srd_, so, off=0):
            a(f's_waitcnt vmcnt({pfW-1})')
            a(f'buffer_load_dwordx4 v1, s[{srd_}:{srd_+3}], s{so} offen offset:{off} {pfpol} lds')
        if pf & 1:
            srd(SC, 24, 4096*512*2)
            head_of(T0, T1)
            a(f's_lshl_b32 s{T0}, s{T0}, 17')
            a(f's_lshr_b32 s{T1}, s2, 5')
            a(f's_lshl_b32 s{T1}, s{T1}, 14')
            a(f's_add_u32 s{T0}, s{T0}, s{T1}')
            a(f's_lshl_b32 s{T1}, s3, 12')
            a(f's_add_u32 s{T0}, s{T0}, s{T1}')
            for j in range(4): pfl(SC, T0, j*1024)
        if pf & 4:
            a(f's_lshr_b32 s{T0}, s{T3}, 1')
            a(f's_mul_i32 s{T0}, s{T0}, 6144')
            a(f's_and_b32 s{T1}, s{T3}, 1')
            a(f's_lshl_b32 s{T1}, s{T1}, 11')
            a(f's_add_u32 s{T0}, s{T0}, s{T1}')
            for j in range(2): pfl(SM, T0, 2048 + j*1024)
        if pf & 2:
            a(f's_lshl_b32 s{T0}, s{T3}, 10')
            a(f's_add_u32 s{T1}, s{T0}, {1 << 20}')
            for p in (28, 30, 32):
                srd(SC, p, 512*1376*2)
                pfl(SC, T0)
                lab = a.uid('L_pf')
                a(f's_cmp_ge_u32 s{T3}, {1376-1024}')
                a(f's_cbranch_scc1 {lab}')
                pfl(SC, T1)
                a.label(lab, fence=False)
    a(f'v_readfirstlane_b32 s{TAG}, v{GENV}')
    a(f's_add_u32 s{TAG}, s{TAG}, {TAGC}')
    if lv is not None and rel:
        a(f'v_and_b32 v{VMA}, 7, v0')
        a(f'v_mul_u32_u24 v{VMA}, {MSTR}, v{VMA}')
        a(f'v_add_u32 v{VMA}, {WS_MST - DD*CSTR}, v{VMA}')
        a(f's_mov_b32 s{CK}, 0')
        a(f'v_mov_b32 v{MS}, 0'); a(f'v_not_b32 v{MS+1}, s{TAG}')
        if MB >= 0:
            a(f's_sub_u32 s{T0}, s2, {MB}')
        else:
            a(f's_lshr_b32 s{T0}, s2, 5')
        a(f's_mul_i32 s{ISM}, s{T0}, {MSTR}')
        a(f's_add_u32 s{ISM}, s{ISM}, {WS_MST}')
        if MB >= 0:
            a(f's_cmp_lt_u32 s{T0}, 8')
        else:
            a(f's_and_b32 s{T1}, s2, 31')
            a(f's_add_u32 s{T0}, s{T0}, {-MB-1}')
            a(f's_cmp_eq_u32 s{T0}, s{T1}')
        a(f's_cselect_b32 s{ISM}, s{ISM}, 0')
        a(f'v_mov_b32 v{MT}, s{T00}')
        a('s_cmp_lg_u32 s3, 0')
        a('s_cbranch_scc1 L_nobase')
        a(f'ds_write_b32 v{VZ}, v{MT} offset:{L_CNT+16}')
        a('s_waitcnt lgkmcnt(0)')
        a.label('L_nobase', fence=False)
    stamp(6)
    a('s_barrier')
    a(f'v_lshlrev_b32 v{VT0}, 5, v{VI}')
    for w in range(4):
        a(f'ds_read_b128 v[{P_+8*(w%2)}:{P_+8*(w%2)+3}], v{VT0} offset:{L_QP + w*512}')
        a(f'ds_read_b128 v[{P_+8*(w%2)+4}:{P_+8*(w%2)+7}], v{VT0} offset:{L_QP + w*512 + 16}')
        if w == 1:
            a('s_waitcnt lgkmcnt(0)')
            for e in range(8): a(f'v_add_f32 v{ACC+e}, v{P_+e}, v{P_+8+e}')
    a('s_waitcnt lgkmcnt(0)')
    for e in range(8): a(f'v_add_f32 v{P_+e}, v{P_+e}, v{P_+8+e}')
    for e in range(8): a(f'v_add_f32 v{ACC+e}, v{ACC+e}, v{P_+e}')
    for c in range(4): a(f'v_cvt_pk_bf16_f32 v{Q+c}, v{ACC+2*c}, v{ACC+2*c+1}')
    clk(); ctl(n=48, upd=False)
    if dbg:
        a(f's_lshr_b32 s{T0}, s{BASE}, 20')
        a(f's_lshl_b32 s{T0}, s{T0}, 8')
        a(f's_add_u32 s{T0}, s{T0}, {WS_DBG}')
        a(f'v_lshlrev_b32 v{VT0}, 4, v{VI}')
        a(f'buffer_store_dwordx4 v[{Q}:{Q+3}], v{VT0}, s[{SWS}:{SWS+3}], s{T0} offen')
        a('s_waitcnt vmcnt(0)')
    stamp(1)

    def ksteps(base, PB, reissue, wait, vsc, sc_off, t0, t1, hook=None):
        def l1(j):
            a(f'v_add_f32_dpp v{PB+j-1}, v{PB+j-1}, v{PB+j-1} row_ror:8 row_mask:0xf bank_mask:0x3')
            a(f'v_add_f32_dpp v{PB+j-1}, v{PB+j}, v{PB+j} row_ror:8 row_mask:0xf bank_mask:0xc')
        def l2(q):
            x = PB + 4*q; y = PB + 4*q + 2
            a(f'v_add_f32_dpp v{x}, v{x}, v{x} row_shl:4 row_mask:0xf bank_mask:0x5')
            a(f'v_add_f32_dpp v{x}, v{y}, v{y} row_shr:4 row_mask:0xf bank_mask:0xa')
        def step(j):
            r = base + 4*j
            if hook is not None and j == 0: mload()
            if hook is not None and j == 12: clk()
            if hook is not None and j == 15: hook()
            if wait is not None:
                pw(0)
            a(f'v_dot2_f32_bf16 v{PB+j}, v{r}, v{Q}, 0')
            for c in range(1, 4):
                a(f'v_dot2_f32_bf16 v{PB+j}, v{r+c}, v{Q+c}, v{PB+j}')
            if reissue: issue(base, j)
            if j >= 2 and j % 2 == 0: l1(j-1)
            if j >= 5 and j % 4 == 1: l2((j-5)//4)
        def epi():
            l1(15)
            l2(3)
            U = [PB, PB+4, PB+8, PB+12]
            for u in U: a(f'v_add_f32_dpp v{u}, v{u}, v{u} quad_perm:[2,3,0,1] row_mask:0xf bank_mask:0xf')
            a(f'v_cndmask_b32 v{U[0]}, v{U[0]}, v{U[1]}, s[{M2}:{M2+1}]')
            a(f'v_cndmask_b32 v{U[2]}, v{U[2]}, v{U[3]}, s[{M2}:{M2+1}]')
            for u in (U[0], U[2]): a(f'v_add_f32_dpp v{u}, v{u}, v{u} quad_perm:[1,0,3,2] row_mask:0xf bank_mask:0xf')
            a(f'v_cndmask_b32 v{t0}, v{U[0]}, v{U[2]}, s[{M1}:{M1+1}]')
            rnd1(t0, t1)
            a(f'v_mul_f32 v{t0}, s{SCALE}, v{t0}')
            rnd1(t0, t1)
            a(f'v_max_f32 v{VMAX}, v{VMAX}, v{t0}')
            a(f'ds_write_b32 v{vsc}, v{t0} offset:{sc_off}')
        return [lambda j=j: step(j) for j in range(16)] + [epi]
    P2 = ACC
    for it, ex in enumerate((EXA, EXB)):
        s1 = ksteps(RING, P_, True, W-1, VSC, (2+it)*256, VT0, VT1, hook=lambda it=it: ctl(n=48+16*it+12))
        s2 = ksteps(ex, P2, False, None, VSC, it*256, PP0, PP1)
        for j in range(16):
            s1[j](); s2[j]()
        s1[16](); s2[16]()
    a(f'v_add_u32 v{VT2}, {4*256}, v{VSC}')
    a(f's_mov_b32 s{CNT}, 12')
    if lv is not None: a(f's_mov_b32 s{TGT}, {tsched(80+12)}' if rel else f's_add_u32 s{TGT}, s{T00}, {tsched(80+12)}')
    if not (sst or sst2): stamp(9)
    a.label('L_kloop')
    a(f's_cmp_eq_u32 s{CNT}, 1')
    a(f's_cselect_b32 s{IS}, s20, s{IS}')
    a(f's_cselect_b32 s{IS+1}, s21, s{IS+1}')
    a(f's_cselect_b32 s{SOFF}, s{BASE}, s{SOFF}')
    for f in ksteps(RING, P_, True, W-1, VT2, 0, VT0, VT1, hook=lambda: ctl(step=int(round(16*sK)))): f()
    a(f'v_add_u32 v{VT2}, 256, v{VT2}')
    a(f's_sub_u32 s{CNT}, s{CNT}, 1')
    a(f's_cmp_lg_u32 s{CNT}, 0')
    a('s_cbranch_scc1 L_kloop')
    stamp(7)
    vq = [(EXA, j) for j in range(16)] + [(EXB, j) for j in range(16)]
    def pi(n=1, paced=True):
        for _ in range(n):
            if not vq: return
            if paced: pw(0)
            issue(*vq.pop(0))
    pi()
    a('s_waitcnt lgkmcnt(0)')
    for t in range(0, 16, 2):
        a(f'ds_read2st64_b32 v[{P_+t}:{P_+t+1}], v{VSC} offset0:{t} offset1:{t+1}')
    wave_reduce('v_max_f32', [VMAX], [VT0])
    pi()
    a('s_waitcnt lgkmcnt(0)')
    for t in range(16): a(f'v_sub_f32 v{P_+t}, v{P_+t}, v{VMAX}')
    for t in range(16): a(f'v_mul_f32 v{P_+t}, {f32(L2E)}, v{P_+t}')
    pi()
    for t in range(16): a(f'v_exp_f32 v{P_+t}, v{P_+t}')
    pi()
    for t in range(8): a(f'v_add_f32 v{TMP+t}, v{P_+t}, v{P_+8+t}')
    for t in range(4): a(f'v_add_f32 v{TMP+t}, v{TMP+t}, v{TMP+4+t}')
    for t in range(2): a(f'v_add_f32 v{TMP+t}, v{TMP+t}, v{TMP+2+t}')
    a(f'v_add_f32 v{VT0}, v{TMP}, v{TMP+1}')
    assert VT0 == VMAX + 1
    wave_reduce('v_add_f32', [VT0], [VT1])
    a(f's_lshl_b32 s59, s3, 3')
    a(f'v_mov_b32 v{VT1}, s59')
    a(f'ds_write_b64 v{VT1}, v[{VMAX}:{VMAX+1}] offset:{L_MX}')
    a(f'v_mov_b32 v{VT1}, 1')
    a('s_waitcnt lgkmcnt(0)')
    a('s_mov_b64 exec, 1')
    a(f'ds_add_u32 v{VZ}, v{VT1} offset:{L_CNT+12}')
    a('s_mov_b64 exec, -1')
    pi(12)
    pi(sboost, paced=False)
    a(f's_mov_b32 s{SPIN}, 0')
    a.label('L_b2')
    a(f'ds_read_b32 v{VT1}, v{VZ} offset:{L_CNT+12}')
    a('s_waitcnt lgkmcnt(0)')
    a(f'v_readfirstlane_b32 s{T0}, v{VT1}')
    a(f's_cmp_ge_u32 s{T0}, 4')
    a('s_cbranch_scc1 L_b2_ok')
    a(f's_add_u32 s{SPIN}, s{SPIN}, 1')
    a(f's_cmp_lt_u32 s{SPIN}, {SPIN_MAX*8}')
    a('s_cbranch_scc0 L_b2_ok')
    a('s_sleep 1')
    a('s_branch L_b2')
    a.label('L_b2_ok')
    a(f'ds_read_b128 v[{TMP}:{TMP+3}], v{VZ} offset:{L_MX}')
    a(f'ds_read_b128 v[{TMP+4}:{TMP+7}], v{VZ} offset:{L_MX+16}')
    a('s_waitcnt lgkmcnt(0)')
    a(f'v_max_f32 v{VT1}, v{TMP}, v{TMP+2}')
    a(f'v_max3_f32 v{VT1}, v{VT1}, v{TMP+4}, v{TMP+6}')
    for k in range(4): a(f'v_sub_f32 v{TMP+2*k}, v{TMP+2*k}, v{VT1}')
    a(f'v_sub_f32 v{VT3}, v{VMAX}, v{VT1}')
    for k in range(4): a(f'v_mul_f32 v{TMP+2*k}, {f32(L2E)}, v{TMP+2*k}')
    a(f'v_mul_f32 v{VT3}, {f32(L2E)}, v{VT3}')
    for k in range(4): a(f'v_exp_f32 v{TMP+2*k}, v{TMP+2*k}')
    a(f'v_exp_f32 v{VT3}, v{VT3}')
    a(f'v_mul_f32 v{VT0}, v{TMP}, v{TMP+1}')
    for k in range(1, 4): a(f'v_fmac_f32 v{VT0}, v{TMP+2*k}, v{TMP+2*k+1}')
    a(f'v_rcp_f32 v{VT0}, v{VT0}')
    a(f'v_mul_f32 v{VT3}, v{VT3}, v{VT0}')
    pi()
    for t in range(16): a(f'v_mul_f32 v{P_+t}, v{P_+t}, v{VT3}')
    for half in range(2):
        for t in range(8): a(f'v_mov_b32_dpp v{TMP+t}, v{P_+8*half+t} row_ror:8 row_mask:0xf bank_mask:0xf')
        for t in range(8): a(f'v_cvt_pk_bf16_f32 v{P_+8*half+t}, v{P_+8*half+t}, v{TMP+t}')
        pi()
    for t in range(4, 16, 2):
        a(f'ds_write2st64_b32 v{VSC}, v{P_+t}, v{P_+t+1} offset0:{t} offset1:{t+1}')
    for e in range(8): a(f'v_mov_b32 v{ACC+e}, 0')

    def bl(m): return 4*(m & 1) + 2*((m >> 1) & 1) + (m >> 2)
    def vstep(base, m, reissue, wait, pp, mid=None, hook=None):
        A = base + 8*m; Bq = A + 4
        if hook is not None and m == 0: mload()
        if hook is not None and m == 5: clk()
        if hook is not None and m == 7: hook()
        if wait == 'p': pw(1)
        elif wait is not None:
            a(f's_waitcnt vmcnt({wait})')
        for c in range(4):
            a(f'v_perm_b32 v{TMP+2*c}, v{Bq+c}, v{A+c}, s{SELLO}')
            a(f'v_perm_b32 v{TMP+2*c+1}, v{Bq+c}, v{A+c}, s{SELHI}')
        if reissue:
            issue(base, 2*m); issue(base, 2*m+1)
        if mid: mid()
        for e in range(8):
            a(f'v_dot2c_f32_bf16_dpp v{ACC+e}, v{pp}, v{TMP+e} row_newbcast:{bl(m)} row_mask:0xf bank_mask:0xf')
    def static_flush():
        a(f'v_lshlrev_b32 v{VT0}, 5, v{VI}')
        a(f'v_lshl_add_u32 v{VT0}, v{VG}, 3, v{VT0}')
        a(f's_lshl_b32 s59, s3, 9')
        a(f'v_add_u32 v{VT0}, s59, v{VT0}')
        a(f'ds_write_b64 v{VT0}, v[{ACC}:{ACC+1}] offset:{L_OP}')
        a(f'v_mov_b32 v{VT1}, 1')
        a('s_waitcnt lgkmcnt(0)')
        ex_mask(dry2, 1, 0)
        a(f'ds_add_u32 v{VZ}, v{VT1} offset:{L_CNT+8}')
        ex_full(dry2)
        stamp(8)

    nleft = len(vq)
    assert 1 <= nleft <= 16, nleft
    for m in range(8):
        k = (nleft*(m+1))//8 - (nleft*m)//8
        if m == 0: a(f's_waitcnt vmcnt({16 - nleft})')
        vstep(EXA, m, False, None, P_+1, mid=(lambda k=k: pi(k)))
    assert not vq
    clk(); ctl(n=304, upd=False)
    for m in range(8): vstep(RING, m, True, 'p', P_+0, hook=lambda: ctl(n=304+10))
    a(f'v_add_u32 v{VT2}, {5*256}, v{VSC}')
    for m in range(8):
        vstep(RING, m, True, 'p', P_+3, hook=lambda: ctl(n=320+10))
        vstep(EXB, m, False, None, P_+2)
    a(f'v_mov_b32 v{PP0}, v{P_+4}')
    a(f's_mov_b32 s{CNT}, 11')
    if lv is not None: a(f's_mov_b32 s{TGT}, {tsched(336+10)}' if rel else f's_add_u32 s{TGT}, s{T00}, {tsched(336+10)}')
    if not (sst or sst2): stamp(10)
    a.label('L_vloop')
    a(f'ds_read_b32 v{PP1}, v{VT2}')
    a(f'v_add_u32 v{VT2}, 256, v{VT2}')
    for m in range(8): vstep(RING, m, True, 'p', PP0, hook=lambda: ctl(step=int(round(16*sV)), th_=thv))
    a('s_waitcnt lgkmcnt(0)')
    a(f'v_mov_b32 v{PP0}, v{PP1}')
    a(f's_sub_u32 s{CNT}, s{CNT}, 1')
    a(f's_cmp_lg_u32 s{CNT}, 0')
    a('s_cbranch_scc1 L_vloop')
    if not (sst or sst2): stamp(11)
    if dry2: a.label('L_vlast', fence=False)
    for m in range(8): vstep(RING, m, False, 14 - 2*m, PP0)
    greduce8(ACC)
    static_flush()
    if dry2: a('s_cbranch_execz L_t1' if dry else 's_cbranch_execz L_real')
    if gate:
        lab = a.uid('L_nogate')
        a('s_cmp_lg_u32 s3, 0')
        a(f's_cbranch_scc1 {lab}')
        srd(SC, 40, 256)
        a('s_mov_b64 exec, 1')
        a(f'buffer_atomic_add v{VT1}, v{VZ}, s[{SC}:{SC+3}], 0 offen')
        a('s_mov_b64 exec, -1')
        a.label(lab)
    a('s_waitcnt lgkmcnt(0)')
    stamp(2)
    if dfw:
        dp = fpol if dpol is None else dpol
        roles(M1, M1+1, T0, T1)
        a(f's_cmp_lt_u32 s{M1}, {NF1}')
        a('s_cbranch_scc0 L_s_nof1')
        f1_dma(VT0, VT1, SM, 3, M1, T1, T2, STGB, False, dp)
        a('s_branch L_s_dma')
        a.label('L_s_nof1')
        a(f's_cmp_lt_u32 s{M1+1}, 32')
        a('s_cbranch_scc0 L_s_dma')
        f2_dma(VT0, VT1, SM, 3, M1+1, T1, T2, T3, STGB, False, dp)
        a.label('L_s_dma')
        a('s_waitcnt vmcnt(0)')
        stamp(8)
    finish(SWS, TMP, 's')

    a.label('L_service')
    SX = 44; SW = 48; SWS = 52; SC = 56; SST = 60; SOUT = 64; SDBG = 68
    WV = 72
    SB = 73; SH = 74; T0 = 75; T1 = 76; T2 = 77; T3 = 78; TAG = 80; SPIN = 81; SELLO = 82; SELHI = 83; LO32 = 84; STGB = 86; T4 = 87
    F1T = 88; F2T = 89; T5 = 90; T6 = 91
    VI = 2; VG = 3; VA = 4; VB = 5; VC = 6; VD = 7
    GENV = 8
    XR = 12; XP = 16; CF = 20; XF = 28
    MEAN = 36; DEN = 37; RDEN = 38; U0 = 39; U1 = 40; U2 = 41; U3 = 42; HP = 43
    ACC = 44
    D1 = 52; D2 = 56; D3 = 60; D4 = 64
    RD = 68
    BF = 76
    SPARE = 127
    WR = 128
    cv = Ctx()
    cv.VI = VI; cv.VG = VG; cv.VA = VA; cv.VB = VB; cv.VC = VC; cv.VD = VD
    cv.CF = CF; cv.XF = XF; cv.BF = BF; cv.D1 = D1; cv.D2 = D2; cv.RD = RD; cv.U0 = U0
    cv.T0 = T0; cv.T1 = T1; cv.T2 = T2; cv.T3 = T3; cv.WV = WV; cv.STGB = STGB; cv.SC = SC; cv.SM = SST; cv.SWS = SWS
    cv.LO32 = LO32; cv.TAG = TAG; cv.GENV = None; cv.WG = T4; cv.paced = SW_ < 8
    if sprio: a(f's_setprio {sprio}')
    a(f's_sub_u32 s{WV}, s3, 4')
    a(f's_lshr_b32 s{SB}, s2, 5')
    a(f's_and_b32 s{SH}, s2, 31')
    HD = 79
    head_of(HD, T0)
    roles(F1T, F2T, T0, T1)
    a(f'v_and_b32 v{VI}, 15, v0')
    a(f'v_lshrrev_b32 v{VG}, 4, v0')
    a(f'v_mov_b32 v{VA}, 0')
    a(f'v_lshlrev_b32 v{VB}, 2, v{VI}')
    a(f'ds_write_b32 v{VB}, v{VA} offset:{L_CNT}')
    a(f's_mov_b32 s{SELLO}, 0x05040100'); a(f's_mov_b32 s{SELHI}, 0x07060302')
    a(f's_mov_b32 s{LO32}, -1'); a(f's_mov_b32 s{LO32+1}, 0')
    a(f's_mul_i32 s{STGB}, s{WV}, {STGW}')
    a(f's_add_u32 s{STGB}, s{STGB}, {L_STG}')
    a('s_waitcnt lgkmcnt(0)')
    srd(SWS, 42, WS_SIZE); srd(SX, 16, 8192); srd(SW, 22, 512*4096*2)
    a(f'buffer_load_dword v{GENV}, v{VA}, s[{SWS}:{SWS+3}], 0 offen offset:{WS_GEN} sc1')
    a(f's_lshl_b32 s{T2}, s{SB}, 10')
    a(f'buffer_load_dwordx4 v[{XR}:{XR+3}], v1, s[{SX}:{SX+3}], s{T2} offen')
    a(f'v_lshlrev_b32 v{VA}, 4, v{VI}')
    a(f'v_lshl_add_u32 v{VA}, v{VG}, 2, v{VA}')
    a(f's_lshl_b32 s{T3}, s{WV}, 8')
    a(f's_add_u32 s{T2}, s{T2}, s{T3}')
    a(f'buffer_load_dword v{XP}, v{VA}, s[{SX}:{SX+3}], s{T2} offen')
    a(f'v_lshlrev_b32 v{VA}, 4, v{VI}')
    a(f'v_lshl_add_u32 v{VA}, v{VG}, 14, v{VA}')
    a(f's_lshl_b32 s{T2}, s{WV}, 20')
    a(f's_lshl_b32 s{T3}, s{HD}, 8')
    a(f's_add_u32 s{T2}, s{T2}, s{T3}')
    for j in range(32):
        if j == b0wq: a('s_barrier')
        if j >= WQ: a(f's_waitcnt vmcnt({WQ-1})')
        r = WR + 4*j
        if j == wqn: a(f's_mov_b32 s{SW+2}, 0')
        a(f'buffer_load_dwordx4 v[{r}:{r+3}], v{VA}, s[{SW}:{SW+3}], s{T2} offen {wqpol}')
        if j < 31: a(f's_add_u32 s{T2}, s{T2}, {8192 if j % 2 == 0 else 7*8192}')
    srd(SC, 34, 8192); srd(SST, 36, 512*3072*2); srd(SOUT, 38, 8192); srd(SDBG, 40, 256)
    stamp(6)
    a('s_waitcnt vmcnt(32)')
    stamp(7)
    a(f'v_readfirstlane_b32 s{TAG}, v{GENV}')
    a(f's_add_u32 s{TAG}, s{TAG}, {TAGC}')

    def ln_stats(vals, mean, den, rden, t0, t1):
        R = len(vals)
        for r in range(R):
            v = vals[r]
            a(f'v_add_f32 v{mean[r]}, v{v[0]}, v{v[1]}')
            for k in range(2, len(v)): a(f'v_add_f32 v{mean[r]}, v{mean[r]}, v{v[k]}')
        wave_reduce('v_add_f32', mean, t0)
        for r in range(R): a(f'v_mul_f32 v{mean[r]}, {f32(1/512)}, v{mean[r]}')
        for r in range(R):
            v = vals[r]
            for k in range(len(v)):
                a(f'v_sub_f32 v{t0[r]}, v{v[k]}, v{mean[r]}')
                if k == 0: a(f'v_mul_f32 v{den[r]}, v{t0[r]}, v{t0[r]}')
                else: a(f'v_fmac_f32 v{den[r]}, v{t0[r]}, v{t0[r]}')
        wave_reduce('v_add_f32', den, t0)
        for r in range(R):
            a(f'v_mul_f32 v{den[r]}, {f32(1/512)}, v{den[r]}')
            rnd2(mean[r], den[r], t0[r])
            a(f'v_add_f32 v{den[r]}, {f32(1e-5)}, v{den[r]}')
            rnd1(den[r], t0[r])
            a(f'v_sqrt_f32 v{den[r]}, v{den[r]}')
            rnd1(den[r], t0[r])
            a(f'v_rcp_f32 v{rden[r]}, v{den[r]}')
    def ln_norm2(x, y, mean, den, rden, t0, t1, t2):
        a(f'v_sub_f32 v{x}, v{x}, v{mean}')
        a(f'v_sub_f32 v{y}, v{y}, v{mean}')
        rnd2(x, y, t0)
        a(f'v_mul_f32 v{t0}, v{x}, v{rden}')
        a(f'v_mul_f32 v{t1}, v{y}, v{rden}')
        a(f'v_fma_f32 v{x}, -v{t0}, v{den}, v{x}')
        a(f'v_fma_f32 v{y}, -v{t1}, v{den}, v{y}')
        a(f'v_fma_f32 v{x}, v{x}, v{rden}, v{t0}')
        a(f'v_fma_f32 v{y}, v{y}, v{rden}, v{t1}')
        rnd2(x, y, t0)
    def modulate2(x, y, c1pair, spair, t0, t1, t2, out):
        unpack(t0, t1, c1pair)
        a(f'v_mul_f32 v{x}, v{x}, v{t0}')
        a(f'v_mul_f32 v{y}, v{y}, v{t1}')
        rnd2(x, y, t2)
        unpack(t0, t1, spair)
        a(f'v_add_f32 v{x}, v{x}, v{t0}')
        a(f'v_add_f32 v{y}, v{y}, v{t1}')
        a(f'v_cvt_pk_bf16_f32 v{out}, v{x}, v{y}')
    def one_plus(pair, t0, t1):
        unpack(t0, t1, pair)
        a(f'v_add_f32 v{t0}, 1.0, v{t0}')
        a(f'v_add_f32 v{t1}, 1.0, v{t1}')
        a(f'v_cvt_pk_bf16_f32 v{pair}, v{t0}, v{t1}')

    for r in range(4): unpack(XF+2*r, XF+2*r+1, XR+r)
    ln_stats([[XF+k for k in range(8)]], [MEAN], [DEN], [RDEN], [U0], [U1])
    unpack(U2, U3, XP)
    ln_norm2(U2, U3, MEAN, DEN, RDEN, U0, U1, HP)
    stamp(9)

    def permute_weights(wait_fn):
        wmap = []
        free = SPARE
        for m in range(16):
            A = WR + 8*m; Bq = A + 4
            w = wait_fn(m)
            if w is not None: a(f's_waitcnt vmcnt({w})')
            row = [None]*8
            for c in range(4):
                a(f'v_perm_b32 v{free}, v{Bq+c}, v{A+c}, s{SELLO}')
                a(f'v_perm_b32 v{Bq+c}, v{Bq+c}, v{A+c}, s{SELHI}')
                row[2*c] = free; row[2*c+1] = Bq + c
                free = A + c
            wmap.append(row)
        return wmap, free
    def gemv(wmap, vec):
        for e in range(8): a(f'v_mov_b32 v{ACC+e}, 0')
        for m in range(16):
            for e in range(8):
                a(f'v_dot2c_f32_bf16_dpp v{ACC+e}, v{vec}, v{wmap[m][e]} row_newbcast:{m} row_mask:0xf bank_mask:0xf')
        greduce8(ACC)
    def poll(name, loads, tagregs, sleep=1, maskreg=None, chk=None):
        a(f's_mov_b32 s{SPIN}, 0')
        a.label(name)
        for l in loads: a(l)
        a('s_waitcnt vmcnt(0)')
        if chk is not None:
            chk(); tagregs = [None]
        else:
            a(f'v_xor_b32 v{VD}, s{TAG}, v{tagregs[0]}')
        for t in tagregs[1:]:
            a(f'v_bitop3_b32 v{VD}, v{t}, s{TAG}, v{VD} bitop3:0xbe')
        if maskreg is not None:
            a(f'v_and_b32 v{VD}, v{maskreg}, v{VD}')
        a(f'v_cmp_ne_u32 vcc, 0, v{VD}')
        a(f's_cbranch_vccz {name}_ok')
        a(f's_add_u32 s{SPIN}, s{SPIN}, 1')
        a(f's_cmp_lt_u32 s{SPIN}, {SPIN_MAX}')
        a(f's_cbranch_scc0 {name}_ok')
        if sleep: a(f's_sleep {sleep}')
        a(f's_branch {name}')
        a.label(name + '_ok')
    def lds_wait(name, off_v, off, val, sleep):
        a(f's_mov_b32 s{SPIN}, 0')
        a.label(name)
        a(f'ds_read_b32 v{VD}, v{off_v} offset:{off}')
        a('s_waitcnt lgkmcnt(0)')
        a(f'v_readfirstlane_b32 s{T2}, v{VD}')
        a(f's_cmp_ge_u32 s{T2}, {val}')
        a(f's_cbranch_scc1 {name}_ok')
        a(f's_add_u32 s{SPIN}, s{SPIN}, 1')
        a(f's_cmp_lt_u32 s{SPIN}, {SPIN_MAX*4}')
        a(f's_cbranch_scc0 {name}_ok')
        if sleep: a(f's_sleep {sleep}')
        a(f's_branch {name}')
        a.label(name + '_ok')

    wmap, _ = permute_weights(lambda m: 30 - 2*m)
    a(f'v_lshrrev_b32 v{VA}, 1, v{VI}')
    a(f'v_lshlrev_b32 v{VA}, 9, v{VA}')
    a(f'v_and_b32 v{VB}, 1, v{VI}')
    a(f'v_lshl_add_u32 v{VA}, v{VB}, 5, v{VA}')
    a(f'v_lshl_add_u32 v{VA}, v{VG}, 3, v{VA}')
    a(f's_lshl_b32 s{T2}, s{SB}, 6')
    a(f's_lshl_b32 s{T3}, s{WV}, 12')
    a(f's_add_u32 s{T2}, s{T2}, s{T3}')
    a(f's_add_u32 s{T2}, s{T2}, {WS_MOD}')
    a(f's_add_u32 s{T3}, s{T2}, 16384')
    stamp(0)
    if pd:
        a.label('L_pd')
        a('s_memrealtime s[92:93]')
        a('s_waitcnt lgkmcnt(0)')
        a('s_sub_u32 s92, s92, s94')
        a(f's_cmp_ge_u32 s92, {pd}')
        a('s_cbranch_scc1 L_pd_ok')
        a('s_sleep 2')
        a('s_branch L_pd')
        a.label('L_pd_ok')
    poll('L_poll_sa', [f'buffer_load_dwordx2 v[{RD}:{RD+1}], v{VA}, s[{SWS}:{SWS+3}], s{T2} offen sc1',
                       f'buffer_load_dwordx2 v[{RD+2}:{RD+3}], v{VA}, s[{SWS}:{SWS+3}], s{T3} offen sc1'], [RD+1, RD+3])
    stamp(10)
    one_plus(RD+2, U0, U1)
    modulate2(U2, U3, RD+2, RD, U0, U1, VD, HP)
    gemv(wmap, HP)
    a(f'v_lshlrev_b32 v{VA}, 5, v{VI}')
    a(f'v_lshl_add_u32 v{VA}, v{VG}, 3, v{VA}')
    a(f's_lshl_b32 s{T2}, s{WV}, 9')
    a(f'v_add_u32 v{VB}, s{T2}, v{VA}')
    a(f'ds_write_b64 v{VB}, v[{ACC}:{ACC+1}] offset:{L_QP}')
    a('s_waitcnt lgkmcnt(0)')
    a('s_barrier')
    stamp(1)

    if nopre:
        stamp(11)
        finish(SWS, 8)
    def late_mod():
        a(f's_sub_u32 s{T4}, s2, 64')
        a(f's_cmp_lt_u32 s2, 128')
        a('s_cbranch_scc1 L_v_moddone')
        mod_issue(cv)
        mod_compute(cv, 0, L_CNT+4, 'L_v_moddone')
        a.label('L_v_moddone')
    def wait_kend(name):
        if not lpl: return
        a(f'v_mov_b32 v{VC}, 0')
        lds_wait(name, VC, L_CNT+12, 1, 16)
    if lme: late_mod()
    if tlbv:
        srd(SW, 20, 0x10000000)
        a(f's_lshl_b32 s{T2}, s2, 20')
        a(f'v_mov_b32 v{VA}, 0')
        a('s_mov_b64 exec, 1')
        a(f'buffer_load_dword v8, v{VA}, s[{SW}:{SW+3}], s{T2} offen')
        a('s_mov_b64 exec, -1')
    if tlbo:
        a(f'v_mov_b32 v{VA}, 0')
        a('s_mov_b64 exec, 1')
        a(f'buffer_load_dword v9, v{VA}, s[{SOUT}:{SOUT+3}], 0 offen sc1')
        a('s_mov_b64 exec, -1')
    srd(SW, 24, 4096*512*2)
    a(f'v_lshlrev_b32 v{VA}, 4, v{VI}')
    a(f'v_lshl_add_u32 v{VA}, v{VG}, 11, v{VA}')
    a(f's_lshl_b32 s{T2}, s{HD}, 17')
    if pre is not None and pre & 8: a(f's_mov_b32 s{T2}, 0')
    a(f's_lshl_b32 s{T3}, s{WV}, 8')
    a(f's_add_u32 s{T2}, s{T2}, s{T3}')
    for j in range(32 if (pre is None or pre & 2) else 0):
        if j >= SW_: a(f's_waitcnt vmcnt({SW_-1})')
        r = WR + 4*j
        a(f'buffer_load_dwordx4 v[{r}:{r+3}], v{VA}, s[{SW}:{SW+3}], s{T2} offen offset:{(j%2)*1024} {wopol}')
        if j % 2 == 1 and j < 31: a(f's_add_u32 s{T2}, s{T2}, 8192')
    wmap, _ = permute_weights(lambda m: 30 - 2*m)
    if not lme: late_mod()

    if pre is not None and not pre & 4:
        stamp(11)
        finish(SWS, 8)
    for r in (24, 25, 26, 27, 28, 29, 60, 61, 62, 63): a(f'v_mov_b32 v{r}, 0')
    a(f's_mov_b32 s{T5}, {WS_ACT}')
    a(f's_cmp_lt_u32 s{F1T}, {NF1}')
    a('s_cbranch_scc0 L_nof1w')
    if not dfw: f1_dma(VB, VC, SST, WV, F1T, T1, T2, STGB, SW_ < 8, fpol)
    AT = 27
    a(f'v_bfe_u32 v{VA}, v{VI}, 1, 1')
    a(f'v_mul_u32_u24 v{VA}, {2*STGW}, v{VA}')
    a(f'v_and_b32 v{VD}, 1, v{VI}')
    a(f'v_lshl_add_u32 v{VA}, v{VD}, 12, v{VA}')
    a(f'v_lshl_add_u32 v{VA}, v{VG}, 8, v{VA}')
    a(f'v_lshrrev_b32 v{VD}, 2, v{VI}')
    a(f'v_lshl_add_u32 v{VA}, v{VD}, 5, v{VA}')
    a(f's_lshl_b32 s{T2}, s{WV}, 3')
    a(f's_add_u32 s{T2}, s{T2}, {L_STG}')
    a(f'v_add_u32 v{AT}, s{T2}, v{VA}')
    def f1_tr():
        for s in range(8):
            o = (s >> 2)*STGW + (s & 3)*1024
            a(f'ds_read_b64_tr_b16 v[{BF+4*s}:{BF+4*s+1}], v{AT} offset:{o}')
            a(f'ds_read_b64_tr_b16 v[{BF+4*s+2}:{BF+4*s+3}], v{AT} offset:{o+128}')
    if not dfw:
        a(f'v_mov_b32 v{VC}, 0')
        a(f'v_mov_b32 v{VB}, 1')
        a('s_waitcnt vmcnt(0)')
        a('s_mov_b64 exec, 1')
        a(f'ds_add_u32 v{VC}, v{VB} offset:{L_CNT+20}')
        a('s_mov_b64 exec, -1')
        lds_wait('L_w_stg', VC, L_CNT+20, 4, 8)
        f1_tr()
    SBF = BF + 32; C1F = D1
    wait_kend('L_wk1')
    a(f'v_lshrrev_b32 v{VA}, 2, v0')
    a(f'v_lshlrev_b32 v{VA}, 9, v{VA}')
    a(f'v_and_b32 v{VB}, 3, v0')
    a(f'v_lshl_add_u32 v{VA}, v{VB}, 4, v{VA}')
    a(f's_lshl_b32 s{T0}, s{WV}, 7')
    SO = [T0, T1, T3, T6]
    a(f's_add_u32 s{T0}, s{T0}, {WS_MOD + 3*16384}')
    for k in range(1, 4): a(f's_add_u32 s{SO[k]}, s{T0}, {k*8192}')
    for rr in range(2):
        loads = []; tags = []
        for k in range(4):
            r = 8 + 4*k
            loads.append(f'buffer_load_dwordx4 v[{r}:{r+3}], v{VA}, s[{SWS}:{SWS+3}], s{SO[k]} offen offset:{rr*64} sc1')
            tags += [r+1, r+3]
        poll(f'L_poll_sb{rr}', loads, tags, sleep=32)
        for q in range(4):
            unpack(SBF+8*rr+2*q, SBF+8*rr+2*q+1, 8+4*(q>>1)+2*(q&1))
            c1 = C1F+8*rr+2*q
            unpack(c1, c1+1, 16+4*(q>>1)+2*(q&1))
            a(f'v_add_f32 v{c1}, 1.0, v{c1}')
            a(f'v_add_f32 v{c1+1}, 1.0, v{c1+1}')
            rnd2(c1, c1+1, U0)
    AH = 24; AA = 25; AS = 26
    a(f's_mul_i32 s{T2}, s{WV}, {2*H2S}')
    a(f'v_lshlrev_b32 v{AH}, 3, v0')
    a(f'v_add_u32 v{AH}, s{T2}, v{AH}')
    a(f'v_and_b32 v{AA}, 7, v0')
    a(f'v_mul_u32_u24 v{AA}, {H2S}, v{AA}')
    a(f'v_bfe_u32 v{VB}, v0, 3, 1')
    a(f'v_lshl_add_u32 v{AA}, v{VB}, 9, v{AA}')
    a(f'v_lshl_add_u32 v{AA}, v{VG}, 4, v{AA}')
    a(f'v_bfe_u32 v{AS}, v0, 4, 1')
    a(f'v_lshlrev_b32 v{AS}, 6, v{AS}')
    a(f'v_lshrrev_b32 v{VB}, 5, v0')
    a(f'v_lshl_add_u32 v{AS}, v{VB}, 5, v{AS}')
    a(f'v_bfe_u32 v{VB}, v0, 1, 1')
    a(f'v_lshl_add_u32 v{AS}, v{VB}, 4, v{AS}')
    a(f's_lshr_b32 s{T5}, s{F1T}, 2')
    a(f's_lshl_b32 s{T5}, s{T5}, 11')
    a(f's_bfe_u32 s{T2}, s{F1T}, 0x10001')
    a(f's_lshl_b32 s{T2}, s{T2}, 7')
    a(f's_add_u32 s{T5}, s{T5}, s{T2}')
    a(f's_and_b32 s{T2}, s{F1T}, 1')
    a(f's_lshl_b32 s{T2}, s{T2}, 9')
    a(f's_add_u32 s{T5}, s{T5}, s{T2}')
    a(f's_and_b32 s{T2}, s{WV}, 1')
    a(f's_lshl_b32 s{T2}, s{T2}, 10')
    a(f's_add_u32 s{T5}, s{T5}, s{T2}')
    a(f's_lshr_b32 s{T2}, s{WV}, 1')
    a(f's_lshl_b32 s{T2}, s{T2}, 8')
    a(f's_add_u32 s{T5}, s{T5}, s{T2}')
    a(f's_add_u32 s{T5}, s{T5}, {WS_ACT}')
    a('s_waitcnt lgkmcnt(0)')
    a('s_branch L_wdone')
    a.label('L_nof1w')
    a(f's_mov_b32 s{T0}, s{F2T}')
    a(f's_cmp_lt_u32 s{T0}, 32')
    a('s_cbranch_scc0 L_wdone')
    AT2 = 38
    tr_addr(cv, AT2)
    if not dfw:
        f2_dma(VB, VC, SST, WV, T0, T1, T2, T3, STGB, SW_ < 8, fpol)
        a('s_waitcnt vmcnt(0)')
        for s in range(12): tr_read(BF + 4*s, AT2, s)
    GBP = 125
    wait_kend('L_wk2')
    a(f'v_lshlrev_b32 v{VA}, 3, v0')
    a(f's_lshl_b32 s{T2}, s{T0}, 9')
    a(f's_add_u32 s{T2}, s{T2}, {WS_MOD + 5*16384}')
    poll('L_poll_gb', [f'buffer_load_dwordx2 v[8:9], v{VA}, s[{SWS}:{SWS+3}], s{T2} offen sc1'], [9], sleep=32)
    a(f'v_mov_b32 v{GBP}, v8')
    AD = 24; VM = 30; AX = 60; AR = 61; AO = 62; AW = 63
    a(f'v_bfe_u32 v{VB}, v0, 3, 1')
    a(f's_mul_i32 s{T3}, s{WV}, 12')
    a(f'v_add_u32 v{VB}, s{T3}, v{VB}')
    a(f'v_and_b32 v{VA}, {0x3f0 & ~0x80}, v1')
    a(f'v_add_u32 v{VA}, {21*2048}, v{VA}')
    a(f's_mul_i32 s{T3}, s{WV}, {6*2048}')
    for u in range(6):
        a(f'v_add_u32 v{VC}, {2*u}, v{VB}')
        a(f'v_cmp_gt_u32 vcc, 43, v{VC}')
        a(f'v_cndmask_b32 v{VM+u}, 0, -1, vcc')
        a(f'v_add_u32 v{VC}, s{T3}, v1')
        a(f'v_cndmask_b32 v{AD+u}, v{VA}, v{VC}, vcc')
        if u < 5: a(f's_add_u32 s{T3}, s{T3}, 2048')
    a(f'v_lshrrev_b32 v{AX}, 3, v0')
    a(f'v_lshlrev_b32 v{AO}, 10, v{AX}')
    a(f'v_lshlrev_b32 v{AX}, 12, v{AX}')
    a(f'v_and_b32 v{VB}, 7, v0')
    a(f'v_lshl_add_u32 v{AX}, v{VB}, 3, v{AX}')
    a(f'v_lshl_add_u32 v{AO}, v{VB}, 2, v{AO}')
    red_addr(cv, AR)
    a(f's_lshl_b32 s{T2}, s{WV}, 10')
    a(f'v_add_u32 v{AW}, s{T2}, v1')
    a('s_waitcnt lgkmcnt(0)')
    a.label('L_wdone')
    GAP = 124; XR1 = 126; AQ = 36; A64 = 37
    wait_kend('L_wk3')
    a(f'v_and_b32 v{VB}, 3, v0')
    a(f'v_lshrrev_b32 v{VC}, 5, v0')
    a(f'v_lshl_add_u32 v{VB}, v{VB}, 1, v{VC}')
    a(f'v_lshlrev_b32 v{AQ}, 3, v{VB}')
    a(f's_lshl_b32 s{T2}, s{SB}, 6')
    a(f's_lshl_b32 s{T3}, s{SH}, 9')
    a(f's_add_u32 s{T2}, s{T2}, s{T3}')
    a(f's_add_u32 s{T2}, s{T2}, {WS_MOD + 2*16384}')
    poll('L_poll_ga', [f'buffer_load_dwordx2 v[8:9], v{AQ}, s[{SWS}:{SWS+3}], s{T2} offen sc1'], [9], sleep=32)
    a(f'v_mov_b32 v{GAP}, v8')
    a(f'v_lshlrev_b32 v{VA}, 2, v{VB}')
    a(f's_lshl_b32 s{T2}, s{SB}, 10')
    a(f's_lshl_b32 s{T3}, s{SH}, 5')
    a(f's_add_u32 s{T2}, s{T2}, s{T3}')
    a(f'buffer_load_dword v{XR1}, v{VA}, s[{SX}:{SX+3}], s{T2} offen')
    a(f'v_lshlrev_b32 v{VA}, 5, v{VI}')
    a(f'v_lshl_add_u32 v{VA}, v{VG}, 3, v{VA}')
    a(f'v_lshrrev_b32 v{VB}, 2, v{VI}')
    a(f'v_lshlrev_b32 v{VB}, 12, v{VB}')
    a(f'v_and_b32 v{VC}, 3, v{VI}')
    a(f'v_lshl_add_u32 v{VB}, v{VC}, 5, v{VB}')
    a(f'v_lshl_add_u32 v{VB}, v{VG}, 3, v{VB}')
    a(f'v_lshrrev_b32 v{A64}, 2, v0')
    a(f'v_lshlrev_b32 v{A64}, 7, v{A64}')
    a(f'v_and_b32 v{VC}, 3, v0')
    a(f'v_lshl_add_u32 v{A64}, v{VC}, 4, v{A64}')
    a(f's_lshl_b32 s{T4}, s{SB}, 16')
    a(f's_lshl_b32 s{T3}, s{WV}, 14')
    a(f's_add_u32 s{T4}, s{T4}, s{T3}')
    a(f's_lshl_b32 s{T3}, s{HD}, 7')
    a(f's_add_u32 s{T4}, s{T4}, s{T3}')
    a(f's_add_u32 s{T4}, s{T4}, {WS_WOP}')
    NP = 8; NC = 16
    a(f'v_lshrrev_b32 v{VC}, 5, v0')
    a(f'v_lshlrev_b32 v{VC}, 4, v{VC}')
    a(f'v_lshrrev_b32 v{NP}, v{VC}, s{TAG}')
    a(f'v_and_b32 v{VC}, 1, v0')
    a(f'v_lshlrev_b32 v{VC}, 4, v{VC}')
    a(f'v_lshrrev_b32 v{NC}, v{VC}, s{TAG}')
    for k in range(1, 4):
        a(f'v_lshrrev_b32 v{NP+k}, {4*k}, v{NP}')
        a(f'v_lshrrev_b32 v{NC+k}, {4*k}, v{NC}')
    a('s_waitcnt vmcnt(0)')
    stamp(11)
    if dry or dry2:
        a(f's_mov_b64 s[{DRY}:{DRY+1}], 0')
        a('s_mov_b64 exec, 0')
        a('s_nop 4')
        a('s_branch L_vlast' if dry2 else 's_branch L_t1')
        a.label('L_real')
        a(f's_mov_b64 s[{DRY}:{DRY+1}], -1')
        a('s_mov_b64 exec, -1')
    a(f'v_mov_b32 v{VC}, 0')
    lds_wait('L_w_stat', VC, L_CNT+8, 4, 1)
    stamp(8)
    if dry: a.label('L_t1', fence=False)
    LO = L_OP
    for w in range(4):
        a(f'ds_read_b64 v[{RD+2*w}:{RD+2*w+1}], v{VA} offset:{LO + w*512}')
    a('s_waitcnt lgkmcnt(0)')
    for k in range(4): a(f'v_add_f32 v{RD+k}, v{RD+k}, v{RD+k+4}')
    for k in range(2): a(f'v_add_f32 v{RD+k}, v{RD+k}, v{RD+k+2}')
    a(f'v_cvt_pk_bf16_f32 v{HP}, v{RD}, v{RD+1}')
    if dbg:
        a(f's_lshl_b32 s{T2}, s{SB}, 5')
        a(f's_or_b32 s{T2}, s{T2}, s{HD}')
        a(f's_lshl_b32 s{T2}, s{T2}, 8')
        a(f's_add_u32 s{T2}, s{T2}, {WS_DBG + 0x10000}')
        a(f'v_lshrrev_b32 v{VC}, 1, v{VA}')
        a(f'buffer_store_dword v{HP}, v{VC}, s[{SWS}:{SWS+3}], s{T2} offen')
    gemv(wmap, HP)
    a(f'v_add_u32 v{ACC}, 8, v{ACC}')
    a(f'v_add_u32 v{ACC+1}, 8, v{ACC+1}')
    a(f'v_mov_b32 v{ACC+2}, v{ACC}')
    a(f'v_mov_b32 v{ACC+3}, v{ACC+1}')
    a(f'v_permlane16_swap_b32 v{ACC}, v{ACC+2}')
    a(f'v_permlane16_swap_b32 v{ACC+1}, v{ACC+3}')
    for k in range(4): a(f'v_bfi_b32 v{RD+k}, 15, v{NP+k}, v{ACC+k}')
    ex_mask(dry, '0xffff', '0xffff')
    a(f'buffer_store_dwordx4 v[{RD}:{RD+3}], v{VB}, s[{SWS}:{SWS+3}], s{T4} offen sc1')
    ex_full(dry)
    stamp(2)
    if notail: finish(SWS, 8)
    a(f's_cmp_lt_u32 s{F1T}, {NF1}')
    a('s_cbranch_scc1 L_gate')
    a(f's_mov_b32 s{T0}, s{F2T}')
    a(f's_cmp_lt_u32 s{T0}, 32')
    a('s_cbranch_scc1 L_gate')
    a(f's_cmp_eq_u32 s{WV}, 0')
    a('s_cbranch_scc1 L_gate')
    a('s_branch L_fin')
    a.label('L_gate')
    a(f's_cmp_lg_u32 s{WV}, 0')
    a('s_cbranch_scc1 L_r1done')
    a(f's_lshr_b32 s{T2}, s2, 1')
    a(f's_lshl_b32 s{T2}, s{T2}, 12')
    a(f's_and_b32 s{T3}, s2, 1')
    a(f's_lshl_b32 s{T3}, s{T3}, 6')
    a(f's_add_u32 s{T2}, s{T2}, s{T3}')
    a(f's_add_u32 s{T2}, s{T2}, {WS_WOP}')
    loads = [f'buffer_load_dwordx4 v[{8+4*j}:{8+4*j+3}], v{A64}, s[{SWS}:{SWS+3}], s{T2} offen offset:{j*2048} sc1' for j in range(2)]
    def chk8():
        a(f'v_xor_b32 v{VD}, v8, v{NC}')
        for r in range(9, 16): a(f'v_bitop3_b32 v{VD}, v{r}, v{NC + (r & 3)}, v{VD} bitop3:0xbe')
        a(f'v_and_b32 v{VD}, 15, v{VD}')
    if bo1 is not None:
        a(f'v_mov_b32 v{VC}, 0')
        a(f'ds_read_b32 v{VD}, v{VC} offset:{L_CNT+16}')
        a('s_waitcnt lgkmcnt(0)')
        a(f'v_readfirstlane_b32 s{T3}, v{VD}')
        a(f's_add_u32 s{T3}, s{T3}, {tsched(512) + bo1}')
        a(f's_mov_b32 s{SPIN}, 0')
        if dry: a(f's_andn2_b32 s{SPIN}, 64, s{DRY}')
        a.label('L_bo1')
        a('s_memrealtime s[92:93]')
        a('s_waitcnt lgkmcnt(0)')
        a(f's_sub_u32 s92, s92, s{T3}')
        a('s_cmp_ge_i32 s92, 0')
        a('s_cbranch_scc1 L_bo1_ok')
        a(f's_add_u32 s{SPIN}, s{SPIN}, 1')
        a(f's_cmp_lt_u32 s{SPIN}, 64')
        a('s_cbranch_scc1 L_bo1')
        a.label('L_bo1_ok')
    poll('L_poll_wop', loads, None, chk=chk8)
    if tst: stamp(6); a(f's_mov_b32 s5, s{SPIN}')
    for r in range(8, 16): a(f'v_and_b32 v{r}, -16, v{r}')
    a('v_pk_add_f32 v[8:9], v[8:9], v[12:13]')
    a('v_pk_add_f32 v[10:11], v[10:11], v[14:15]')
    a('v_permlane32_swap_b32 v8, v10')
    a('v_permlane32_swap_b32 v9, v11')
    a('v_pk_add_f32 v[8:9], v[8:9], v[10:11]')
    a('v_mov_b32 v10, v8'); a('v_mov_b32 v11, v9')
    a('v_permlane16_swap_b32 v8, v10')
    a('v_permlane16_swap_b32 v9, v11')
    a('v_pk_add_f32 v[8:9], v[8:9], v[10:11]')
    for ctl_ in ('row_ror:4', 'row_ror:8'):
        for k in range(2): a(f'v_add_f32_dpp v{8+k}, v{8+k}, v{8+k} {ctl_} row_mask:0xf bank_mask:0xf')
    rnd2(8, 9, VD)
    modulate2(8, 9, GAP, XR1, U2, U3, VD, RD)
    a(f'v_mov_b32 v{RD+1}, s{TAG}')
    a(f's_lshl_b32 s{T2}, s2, 7')
    a(f's_add_u32 s{T2}, s{T2}, {WS_X1}')
    ex_mask(dry, '0xf', '0xf')
    a(f'buffer_store_dwordx2 v[{RD}:{RD+1}], v{AQ}, s[{SWS}:{SWS+3}], s{T2} offen sc1')
    ex_full(dry)
    stamp(3)
    a.label('L_r1done')
    if g1: tbar(dry)
    a(f's_cmp_lt_u32 s{F1T}, {NF1}')
    a('s_cbranch_scc0 L_notf1')
    if dfw: f1_tr()
    a(f's_lshl_b32 s{T2}, s{WV}, 13')
    a(f's_add_u32 s{T2}, s{T2}, {WS_X1}')
    a(f's_add_u32 s{T3}, s{T2}, 4096')
    a('s_mov_b32 s32, 0x11111111'); a('s_mov_b32 s33, 0x11111111')
    loads = [f'buffer_load_dwordx4 v[{8+4*j}:{8+4*j+3}], v{A64}, s[{SWS}:{SWS+3}], s{T3 if j >> 1 else T2} offen offset:{(j&1)*2048} sc1' for j in range(4)]
    if bo2: a(f's_sleep {bo2}')
    poll('L_poll_x1', loads, [9, 11, 13, 15, 17, 19, 21, 23])
    if tst: stamp(7); a(f's_mov_b32 s15, s{SPIN}')
    XV = WR; DV = WR + 16; PS = WR + 32; X0V = WR + 44; TT = WR + 45; HO = WR + 48; AF = WR + 64
    def pr(r): return f'v[{r}:{r+1}]'
    BC = 'op_sel_hi:[1,0]'; NG = 'neg_lo:[0,1] neg_hi:[0,1]'
    for rr in range(2):
        for q in range(4):
            src = 8 + 4*(2*rr + q//2) + 2*(q % 2)
            unpack(XV + 8*rr + 2*q, XV + 8*rr + 2*q + 1, src)
            if q == 0: a(f'v_readfirstlane_b32 s{22+2*rr}, v{XV+8*rr}')
    for rr in range(2):
        for q in range(4):
            a(f'v_pk_add_f32 {pr(DV+8*rr+2*q)}, {pr(XV+8*rr+2*q)}, s[{22+2*rr}:{23+2*rr}] {BC} {NG}')
    a(f'v_mov_b32 v{X0V}, s24'); a(f'v_mov_b32 v{TT}, s22')
    a(f'v_cndmask_b32 v{X0V}, v{X0V}, v{TT}, s[{LO32}:{LO32+1}]')
    S_ = [PS, PS+2]; Q_ = [PS+4, PS+6]; Z_ = [PS+8, PS+10]
    for rr in range(2): a(f'v_pk_add_f32 {pr(S_[rr])}, {pr(DV+8*rr)}, {pr(DV+8*rr+2)}')
    for rr in range(2): a(f'v_pk_add_f32 {pr(Z_[rr])}, {pr(DV+8*rr+4)}, {pr(DV+8*rr+6)}')
    for rr in range(2): a(f'v_pk_mul_f32 {pr(Q_[rr])}, {pr(DV+8*rr)}, {pr(DV+8*rr)}')
    for rr in range(2): a(f'v_pk_add_f32 {pr(S_[rr])}, {pr(S_[rr])}, {pr(Z_[rr])}')
    for q in range(1, 4):
        for rr in range(2): a(f'v_pk_fma_f32 {pr(Q_[rr])}, {pr(DV+8*rr+2*q)}, {pr(DV+8*rr+2*q)}, {pr(Q_[rr])}')
    for r in S_ + Q_: a(f'v_add_f32 v{r}, v{r}, v{r+1}')
    a(f'v_permlane32_swap_b32 v{S_[0]}, v{S_[1]}')
    a(f'v_permlane32_swap_b32 v{Q_[0]}, v{Q_[1]}')
    a(f'v_add_f32 v{S_[0]}, v{S_[0]}, v{S_[1]}')
    a(f'v_add_f32 v{Q_[0]}, v{Q_[0]}, v{Q_[1]}')
    a(f'v_permlane16_swap_b32 v{S_[0]}, v{Q_[0]}')
    T_ = S_[0]; C_ = Q_[0]
    a(f'v_add_f32 v{T_}, v{S_[0]}, v{Q_[0]}')
    for ctl_ in ('quad_perm:[1,0,3,2]', 'quad_perm:[2,3,0,1]', 'row_half_mirror', 'row_mirror'):
        a(f'v_add_f32_dpp v{T_}, v{T_}, v{T_} {ctl_} row_mask:0xf bank_mask:0xf')
    a(f'v_mul_f32 v{T_}, {f32(1/512)}, v{T_}')
    a(f'v_mov_b32 v{C_}, v{T_}')
    a(f'v_permlane16_swap_b32 v{T_}, v{C_}')
    a(f'v_add_f32 v{X0V}, v{X0V}, v{T_}')
    a(f'v_fma_f32 v{C_}, -v{T_}, v{T_}, v{C_}')
    a(f'v_max_f32 v{C_}, 0, v{C_}')
    rnd2(X0V, C_, TT)
    a(f'v_add_f32 v{C_}, {f32(1e-5)}, v{C_}')
    a(f'v_readlane_b32 s22, v{X0V}, 0'); a(f'v_readlane_b32 s24, v{X0V}, 32')
    rnd1(C_, TT)
    a(f'v_sqrt_f32 v{C_}, v{C_}')
    P8 = [(rr, q) for rr in range(2) for q in range(4)]
    def X(rr, q): return XV + 8*rr + 2*q
    def rnd_all():
        for n_, (rr, q) in enumerate(P8): a(f'v_cvt_pk_bf16_f32 v{DV+n_}, v{X(rr,q)}, v{X(rr,q)+1}')
        for n_, (rr, q) in enumerate(P8):
            a(f'v_lshlrev_b32 v{X(rr,q)}, 16, v{DV+n_}')
            a(f'v_and_b32 v{X(rr,q)+1}, 0xffff0000, v{DV+n_}')
    for rr, q in P8[:2]: a(f'v_pk_add_f32 {pr(X(rr,q))}, {pr(X(rr,q))}, s[{22+2*rr}:{23+2*rr}] {BC} {NG}')
    rnd1(C_, TT)
    a(f'v_rcp_f32 v{C_}, v{C_}')
    for rr, q in P8[2:]: a(f'v_pk_add_f32 {pr(X(rr,q))}, {pr(X(rr,q))}, s[{22+2*rr}:{23+2*rr}] {BC} {NG}')
    a(f'v_readlane_b32 s26, v{C_}, 0'); a(f'v_readlane_b32 s28, v{C_}, 32')
    rnd_all()
    for rr, q in P8: a(f'v_pk_mul_f32 {pr(X(rr,q))}, {pr(X(rr,q))}, s[{26+2*rr}:{27+2*rr}] {BC}')
    rnd_all()
    for rr, q in P8: a(f'v_pk_mul_f32 {pr(X(rr,q))}, {pr(X(rr,q))}, {pr(C1F+8*rr+2*q)}')
    rnd_all()
    for rr, q in P8: a(f'v_pk_add_f32 {pr(X(rr,q))}, {pr(X(rr,q))}, {pr(SBF+8*rr+2*q)}')
    for rr in range(2):
        for hf in range(2):
            r = HO + 4*rr + 2*hf
            for k in range(2): a(f'v_cvt_pk_bf16_f32 v{r+k}, v{X(rr,2*hf+k)}, v{X(rr,2*hf+k)+1}')
            a(f'ds_write_b64 v{AH}, v[{r}:{r+1}] offset:{L_H2 + rr*H2S + hf*512}')
    a('s_waitcnt lgkmcnt(0)')
    if tst: stamp(9)
    tbar(dry)
    if tst: stamp(0)
    for s in range(8): a(f'ds_read_b128 v[{AF+4*s}:{AF+4*s+3}], v{AA} offset:{L_H2 + s*64}')
    a(f'v_mov_b32 v{RD+5}, s{TAG}'); a(f'v_mov_b32 v{RD+7}, s{TAG}')
    a('s_mov_b64 vcc, s[32:33]')
    for s in range(8):
        a(f's_waitcnt lgkmcnt({7-s})')
        mf(RD, AF+4*s, BF+4*s, s == 0)
    a(f'v_permlane32_swap_b32 v{RD}, v{RD+2}')
    a(f'v_permlane32_swap_b32 v{RD+1}, v{RD+3}')
    for k in range(2): a(f'v_add_f32_dpp v{RD+k}, v{RD+2+k}, v{RD+k} row_ror:8 row_mask:0xf bank_mask:0xf')
    rnd2(RD, RD+1, VD)
    for k in range(2): a(f'v_mov_b32_dpp v{U0+k}, v{RD+k} row_shl:4 row_mask:0xf bank_mask:0xf')
    silu(RD, VB, WR, WR+1); silu(RD+1, VC, WR+2, WR+3)
    rnd2(RD, RD+1, VD)
    for k in range(2): a(f'v_mul_f32 v{RD+k}, v{RD+k}, v{U0+k}')
    for k in range(2): a(f'v_mov_b32_dpp v{U0+k}, v{RD+k} quad_perm:[1,0,3,2] row_mask:0xf bank_mask:0xf')
    for k in range(2): a(f'v_cvt_pk_bf16_f32 v{RD+k}, v{RD+k}, v{U0+k}')
    a(f'v_cndmask_b32_dpp v{RD+4}, v{RD+1}, v{RD}, vcc quad_perm:[0,0,0,0] row_mask:0xf bank_mask:0xf')
    a('s_not_b64 vcc, vcc')
    a(f'v_cndmask_b32_dpp v{RD+6}, v{RD}, v{RD+1}, vcc quad_perm:[2,2,2,2] row_mask:0xf bank_mask:0xf')
    ex_mask(dry, '0x00050005', '0x00050005')
    a(f'buffer_store_dwordx4 v[{RD+4}:{RD+7}], v{AS}, s[{SWS}:{SWS+3}], s{T5} offen sc1')
    stamp(4)
    a('s_branch L_fin')
    a.label('L_notf1')
    a(f's_mov_b32 s{T0}, s{F2T}')
    a(f's_cmp_lt_u32 s{T0}, 32')
    a('s_cbranch_scc0 L_fin')
    if dfw:
        for s in range(12): tr_read(BF + 4*s, AT2, s)
    a(f's_mov_b32 s{T2}, {WS_ACT}')
    loads = []; tags = []
    for u in range(6):
        for k in range(2):
            r = WR + 8*u + 4*k
            loads.append(f'buffer_load_dwordx4 v[{r}:{r+3}], v{AD+u}, s[{SWS}:{SWS+3}], s{T2} offen offset:{1024*k} sc1')
            tags += [r+1, r+3]
    a(f's_lshl_b32 s{T1}, s{T0}, 7')
    a(f's_add_u32 s{T1}, s{T1}, {WS_X1}')
    X1R = WR + 48
    if bo2: a(f's_sleep {bo2}')
    poll('L_poll_x1b', [f'buffer_load_dwordx2 v[{X1R}:{X1R+1}], v{AX}, s[{SWS}:{SWS+3}], s{T1} offen sc1'], [X1R+1])
    def gen_update(lab):
        a(f's_or_b32 s{T3}, s{T0}, s{WV}')
        a(f's_cmp_lg_u32 s{T3}, 0')
        a(f's_cbranch_scc1 {lab}')
        a(f's_sub_u32 s{T3}, s{TAG}, {TAGC - 0x11111111}')
        a(f'v_mov_b32 v{VB}, s{T3}')
        a(f'v_mov_b32 v{VA}, 0')
        ex_mask(dry, 1, 0)
        a(f'buffer_store_dword v{VB}, v{VA}, s[{SWS}:{SWS+3}], 0 offen offset:{WS_GEN} sc1')
        ex_full(dry)
    if gene:
        gen_update('L_gen_done'); a.label('L_gen_done')
    if g2: poll('L_poll_act0', loads[:1], tags[:2])
    if bo3: a(f's_sleep {bo3}')
    poll('L_poll_act', loads, tags)
    if tst: stamp(7); a(f's_mov_b32 s15, s{SPIN}')
    AF = WR + 64
    a('s_waitcnt lgkmcnt(0)')
    for u in range(6):
        for k in range(4):
            a(f'v_and_b32 v{AF+4*u+k}, v{VM+u}, v{WR+8*u+2*k}')
        mf(D1, AF+4*u, BF+8*u, u == 0); mf(D2, AF+4*u, BF+8*u+4, u == 0)
    sel_halves(cv, RD, D1, D2)
    a(f'ds_write_b128 v{AW}, v[{RD}:{RD+3}] offset:{L_RED}')
    a('s_waitcnt lgkmcnt(0)')
    tbar(dry)
    if tst: stamp(10)
    a(f's_cmp_lg_u32 s{WV}, 0')
    a('s_cbranch_scc1 L_fin')
    red_sum(cv, U0, AR, L_RED, WR)
    rnd2(U0, U1, VD)
    modulate2(U0, U1, GBP, X1R, U2, U3, VD, RD)
    a(f's_lshl_b32 s{T2}, s{T0}, 5')
    a(f'buffer_store_dword v{RD}, v{AO}, s[{SOUT}:{SOUT+3}], s{T2} offen')
    stamp(5)
    if tst:
        a('s_waitcnt vmcnt(0)'); stamp(9)
    if not gene: gen_update('L_fin')
    if hold:
        a('s_waitcnt vmcnt(0)')
        a.label('L_hold')
        a('s_memrealtime s[92:93]')
        a('s_waitcnt lgkmcnt(0)')
        a('s_sub_u32 s92, s92, s94')
        a(f's_cmp_lt_u32 s92, {hold}')
        a('s_cbranch_scc1 L_hold')
    a.label('L_fin', fence=stamps)
    if dry: a('s_cbranch_execz L_real')
    if stamps: finish(SWS, 8)
    a.label('L_end', fence=False)
    a('s_endpgm')
    a.raw('.section .rodata,"a"')
    a.raw('.p2align 6')
    a.raw(f'.amdhsa_kernel {NAME}')
    a.raw('  .amdhsa_next_free_vgpr 256')
    a.raw('  .amdhsa_next_free_sgpr 96')
    a.raw('  .amdhsa_accum_offset 256')
    a.raw('  .amdhsa_group_segment_fixed_size 0')
    a.raw('  .amdhsa_kernarg_size 112')
    a.raw('  .amdhsa_user_sgpr_count 2')
    a.raw('  .amdhsa_user_sgpr_kernarg_segment_ptr 1')
    a.raw('  .amdhsa_system_sgpr_workgroup_id_x 1')
    a.raw('  .amdhsa_float_denorm_mode_32 3')
    a.raw('.end_amdhsa_kernel')
    return a.text()

if __name__ == '__main__':
    import json
    out = sys.argv[1] if len(sys.argv) > 1 else 'adaLN_cond__mha_block_cached__swiglu_ffn__decode.s'
    kw = json.loads(sys.argv[2]) if len(sys.argv) > 2 else {}
    open(out, 'w').write(gen(**kw))
    print('wrote', out)
```

```python
import sys, struct
from asmlib import Asm

NAME = 'adaLN_cond__mha_block_cached__swiglu_ffn__decode_kernel'

def f32(x):
    return '0x%08x' % struct.unpack('<I', struct.pack('<f', x))[0]

L2E = 1.4426950408889634
WS_GEN = 0
WS_MOD = 0x1000
WS_X1 = 0x20000
WS_ACT = 0x28000
WS_HEAD = 0x38000
WS_MST = 0x48000
WS_WOP = 0x100000
WS_P = 0x200000
WS_SLOT = 0x800000
WS_DBG = 0x2000000
WS_SIZE = 0x40000000
L_CNT = 0x0
L_MX = 0x40
L_QP = 0x100
L_OP = 0x900
L_RED = 0x1100
L_H2 = 0x3100; H2S = 1040
L_SC = 0x5200
L_OS = 0x9200
L_STG = 0x9A00; STGW = 12288
L_DUM = L_STG + 4 * STGW
LDS_SIZE = L_DUM + 4096
NF1 = 86
LAYOUT = 7
F2_BASE = 96
SPIN_MAX = 100000
NSH = 32
TAGC = 0x5bd1e995

def gen(dbg=False, W=6, VW=4, W0=6, nA=4, kpol='nt', wpol='nt', stamps=False, gate=False, notail=False,
        gsleep=4, b0wq=0, sprio=2, mprio=3, boost=2, sboost=3, n0=0, WQ=32, SW_=2,
        wqpol=None, wopol=None, mpol=None, fpol=None, nopre=False, pre=None, dst=False, perm=False, hold=0,
        lv=None, th=(70, -70), tK=900, sK=14.9, tV=4230, sV=13.46, lv0=None, g1=False, g2=False, rel=False, dl=0, MB=88, DD=2, MSTR=8192, CSTR=256, tst=False, tlbv=False, tlbo=False, mlp='', agg='mean', noml=False, nomst=False, msp='sc1', thv=None, pd=0, lme=False, lpl=False, gene=False, dfw=False, dpol=None, bo1=None, bo2=0, bo3=0, dry=False, dry2=False, nf=False, sst=False, pf=0, pfW=6, pfpol='', hmap=0, wqn=32, sst2=False, opol='', wsl=1, xa=0, xapol='sc1'):
    assert g1 or not dfw
    thv = th if thv is None else thv
    if dst: stamps = True
    wqpol = wpol if wqpol is None else wqpol; wopol = wpol if wopol is None else wopol
    mpol = wpol if mpol is None else mpol; fpol = wpol if fpol is None else fpol
    a = Asm()
    hdr = open('adaLN_cond__mha_block_cached__swiglu_ffn__decode.s.ref').read().split('\n')
    for l in hdr:
        if l.startswith('; @launch'): break
        a.raw(l)
    a.raw(f'; @launch grid=(256,1,1) block=(512,1,1) lds={LDS_SIZE}')
    a.raw('.amdgcn_target "amdgcn-amd-amdhsa--gfx950"')
    a.raw('.text')
    a.raw(f'.globl {NAME}')
    a.raw('.p2align 8')
    a.raw(f'.type {NAME},@function')
    a.raw(f'{NAME}:')

    def srd(d, p, size):
        a(f's_mov_b32 s{d}, s{p}')
        a(f's_mov_b32 s{d+1}, s{p+1}')
        a(f's_mov_b32 s{d+2}, {size}')
        a(f's_mov_b32 s{d+3}, 0x00020000')

    def rnd1(x, t):
        a(f'v_cvt_pk_bf16_f32 v{t}, v{x}, v{x}')
        a(f'v_lshlrev_b32 v{x}, 16, v{t}')
    def rnd2(x, y, t):
        a(f'v_cvt_pk_bf16_f32 v{t}, v{x}, v{y}')
        a(f'v_lshlrev_b32 v{x}, 16, v{t}')
        a(f'v_and_b32 v{y}, 0xffff0000, v{t}')
    def unpack(lo, hi, src):
        a(f'v_lshlrev_b32 v{lo}, 16, v{src}')
        a(f'v_and_b32 v{hi}, 0xffff0000, v{src}')
    def wave_reduce(op, regs, tmps):
        for ctl in ('quad_perm:[1,0,3,2]', 'quad_perm:[2,3,0,1]', 'row_half_mirror', 'row_mirror'):
            for r in regs:
                a(f'{op}_dpp v{r}, v{r}, v{r} {ctl} row_mask:0xf bank_mask:0xf')
        for sw in ('v_permlane16_swap_b32', 'v_permlane32_swap_b32'):
            for r, t in zip(regs, tmps): a(f'v_mov_b32 v{t}, v{r}')
            for r, t in zip(regs, tmps): a(f'{sw} v{r}, v{t}')
            for r, t in zip(regs, tmps): a(f'{op} v{r}, v{r}, v{t}')
    def greduce8(acc):
        for e in range(4): a(f'v_permlane32_swap_b32 v{acc+e}, v{acc+e+4}')
        for e in range(4): a(f'v_add_f32 v{acc+e}, v{acc+e}, v{acc+e+4}')
        for e in range(2): a(f'v_permlane16_swap_b32 v{acc+e}, v{acc+e+2}')
        for e in range(2): a(f'v_add_f32 v{acc+e}, v{acc+e}, v{acc+e+2}')
    def silu(x, t, t2, t3):
        a(f'v_mul_f32 v{t}, {f32(-L2E)}, v{x}')
        a(f'v_exp_f32 v{t}, v{t}')
        a(f'v_add_f32 v{t}, 1.0, v{t}')
        a(f'v_min_f32 v{t}, 0x7f7fffff, v{t}')
        a(f'v_rcp_f32 v{t2}, v{t}')
        a(f'v_mul_f32 v{t3}, v{x}, v{t2}')
        a(f'v_fma_f32 v{x}, -v{t3}, v{t}, v{x}')
        a(f'v_fma_f32 v{x}, v{x}, v{t2}, v{t3}')
    STP = 92
    def stamp(idx):
        if not stamps: return
        a(f's_memrealtime s[{STP}:{STP+1}]')
        a('s_waitcnt lgkmcnt(0)')
        a(f's_mov_b32 s{4+idx}, s{STP}')
    def finish(ws_srd, vt, role='v'):
        if dst:
            a('s_mov_b64 exec, -1')
            a(f'v_mov_b32 v{vt}, 0')
            if role == 's':
                a(f's_not_b32 s{STP}, s4'); a(f'v_writelane_b32 v{vt}, s{STP}, 0')
                a(f'v_writelane_b32 v{vt}, s4, 1')
                a(f'v_writelane_b32 v{vt}, s5, 2')
                a(f'v_writelane_b32 v{vt}, s11, 3')
                a(f'v_writelane_b32 v{vt}, s6, 4')
                a(f's_not_b32 s{STP}, s6'); a(f'v_writelane_b32 v{vt}, s{STP}, 5')
                a(f's_memtime s[{STP}:{STP+1}]'); a('s_waitcnt lgkmcnt(0)')
                a(f's_sub_u32 s{STP}, s{STP}, s14'); a(f'v_writelane_b32 v{vt}, s{STP}, 10')
                a(f's_sub_u32 s{STP}, s6, s4'); a(f'v_writelane_b32 v{vt}, s{STP}, 11')
            else:
                a(f'v_writelane_b32 v{vt}, s6, 6')
                a(f'v_writelane_b32 v{vt}, s7, 7')
                a(f'v_writelane_b32 v{vt}, s8, 8')
                a(f'v_writelane_b32 v{vt}, s9, 9')
            srd(STP-4, 40, 256)
            a(f'v_lshlrev_b32 v{vt+1}, 2, v0')
            a('s_mov_b64 exec, 0xffff')
            a(f'buffer_atomic_umax v{vt}, v{vt+1}, s[{STP-4}:{STP-1}], 0 offen')
        elif stamps:
            a('s_mov_b64 exec, -1')
            a(f'v_mov_b32 v{vt}, 0')
            for k in range(12):
                a(f'v_writelane_b32 v{vt}, s{4+k}, {k}')
            a(f's_lshl_b32 s{STP}, s2, 3')
            a(f's_add_u32 s{STP}, s{STP}, s3')
            a(f's_lshl_b32 s{STP}, s{STP}, 6')
            a(f's_add_u32 s{STP}, s{STP}, {WS_DBG + 0x100000}')
            a(f'v_lshlrev_b32 v{vt+1}, 2, v0')
            a('s_mov_b64 exec, 0xffff')
            a(f'buffer_store_dword v{vt}, v{vt+1}, s[{ws_srd}:{ws_srd+3}], s{STP} offen')
        a('s_endpgm')

    DRY = 34
    def ex_full(d):
        a(f's_mov_b64 exec, s[{DRY}:{DRY+1}]' if d else 's_mov_b64 exec, -1')
    def ex_mask(d, lo, hi):
        if d:
            a(f's_and_b32 exec_lo, {lo}, s{DRY}'); a(f's_and_b32 exec_hi, {hi}, s{DRY}')
        else:
            a(f's_mov_b32 exec_lo, {lo}'); a(f's_mov_b32 exec_hi, {hi}')
    def tbar(d):
        if d:
            lab = a.uid('L_tb')
            a(f's_cbranch_execz {lab}')
            a('s_barrier')
            a.label(lab, fence=False)
        else:
            a('s_barrier')
    def mf(d, A, Bf, first):
        c = '0' if first else f'v[{d}:{d+3}]'
        a(f'v_mfma_f32_16x16x32_bf16 v[{d}:{d+3}], v[{A}:{A+3}], v[{Bf}:{Bf+3}], {c}')
    def tr_read(dst, v, ks):
        a(f'ds_read_b64_tr_b16 v[{dst}:{dst+1}], v{v} offset:{ks*1024}')
        a(f'ds_read_b64_tr_b16 v[{dst+2}:{dst+3}], v{v} offset:{ks*1024+128}')

    class Ctx:
        pass
    def tr_addr(c, v):
        a(f'v_lshrrev_b32 v{v}, 2, v{c.VI}')
        a(f'v_lshlrev_b32 v{v}, 5, v{v}')
        a(f'v_lshl_add_u32 v{v}, v{c.VG}, 8, v{v}')
        a(f'v_and_b32 v{c.VD}, 3, v{c.VI}')
        a(f'v_lshl_add_u32 v{v}, v{c.VD}, 3, v{v}')
        a(f'v_add_u32 v{v}, s{c.STGB}, v{v}')
    def sel_halves(c, dst, d1, d2):
        for r in range(4):
            a(f'v_cndmask_b32 v{dst+r}, v{d2+r}, v{d1+r}, s[{c.LO32}:{c.LO32+1}]')
    def red_addr(c, v):
        a(f'v_and_b32 v{v}, 7, v0')
        a(f'v_lshlrev_b32 v{v}, 5, v{v}')
        a(f'v_lshrrev_b32 v{c.VD}, 5, v0')
        a(f'v_lshl_add_u32 v{v}, v{c.VD}, 8, v{v}')
        a(f'v_bfe_u32 v{c.VD}, v0, 3, 2')
        a(f'v_lshl_add_u32 v{v}, v{c.VD}, 2, v{v}')
    def red_sum(c, dst, v, off, scratch):
        a(f'v_add_u32 v{c.VD}, {off}, v{v}')
        for w in range(4):
            for hf in range(2):
                r = scratch + 2*(2*w + hf)
                a(f'ds_read2_b32 v[{r}:{r+1}], v{c.VD} offset0:{hf*128} offset1:{hf*128+4}')
            if w < 3: a(f'v_add_u32 v{c.VD}, 1024, v{c.VD}')
        a('s_waitcnt lgkmcnt(0)')
        for st in (8, 4):
            for k in range(st): a(f'v_add_f32 v{scratch+k}, v{scratch+k}, v{scratch+k+st}')
        a(f'v_add_f32 v{dst}, v{scratch}, v{scratch+2}')
        a(f'v_add_f32 v{dst+1}, v{scratch+1}, v{scratch+3}')

    def mod_issue(c):
        a(f's_and_b32 s{c.T0}, s{c.WG}, 7')
        a(f's_lshl_b32 s{c.T0}, s{c.T0}, 2')
        a(f's_lshr_b32 s{c.T1}, s{c.WG}, 3')
        a(f's_and_b32 s{c.T1}, s{c.T1}, 3')
        a(f's_add_u32 s{c.T0}, s{c.T0}, s{c.T1}')
        a(f's_and_b32 s{c.T1}, s{c.WG}, 0xe0')
        a(f's_add_u32 s{c.T1}, s{c.T1}, s{c.T0}')
        a(f's_lshl_b32 s{c.T1}, s{c.T1}, 5')
        a(f's_mul_i32 s{c.T2}, s{c.WV}, {128*6144}')
        a(f's_add_u32 s{c.T1}, s{c.T1}, s{c.T2}')
        a(f'v_and_b32 v{c.VA}, 7, v0')
        a(f'v_lshlrev_b32 v{c.VA}, 10, v{c.VA}')
        a(f'v_bfe_u32 v{c.VB}, v0, 3, 1')
        a(f'v_lshl_add_u32 v{c.VA}, v{c.VB}, 7, v{c.VA}')
        a(f'v_lshl_add_u32 v{c.VA}, v{c.VG}, 4, v{c.VA}')
        a(f's_lshl_b32 s{c.T2}, s{c.WV}, 8')
        a(f'buffer_load_dwordx4 v[{c.CF}:{c.CF+3}], v{c.VA}, s[{c.SC}:{c.SC+3}], s{c.T2} offen')
        a(f'buffer_load_dwordx4 v[{c.CF+4}:{c.CF+7}], v{c.VA}, s[{c.SC}:{c.SC+3}], s{c.T2} offen offset:64')
        a(f'v_lshrrev_b32 v{c.VB}, 1, v0')
        a(f'v_mul_u32_u24 v{c.VB}, 6144, v{c.VB}')
        a(f'v_and_b32 v{c.VC}, 1, v0')
        a(f'v_lshl_add_u32 v{c.VB}, v{c.VC}, 4, v{c.VB}')
        for s in range(4):
            a(f's_add_u32 m0, s{c.STGB}, {s*1024}')
            if c.paced: a('s_waitcnt vmcnt(0)')
            a(f'buffer_load_dwordx4 v{c.VB}, s[{c.SM}:{c.SM+3}], s{c.T1} offen {mpol} lds')
            if s < 3: a(f's_add_u32 s{c.T1}, s{c.T1}, {32*6144}')
    def mod_compute(c, younger, cnt_off, done, st=None):
        a(f's_waitcnt vmcnt({younger + 4})')
        if st: stamp(st[0])
        if c.GENV is not None:
            a(f'v_readfirstlane_b32 s{c.TAG}, v{c.GENV}')
            a(f's_add_u32 s{c.TAG}, s{c.TAG}, {TAGC}')
        XF = c.XF
        for r in range(8):
            unpack(XF, XF+1, c.CF+r)
            silu(XF, XF+2, XF+4, XF+6); silu(XF+1, XF+3, XF+5, XF+7)
            a(f'v_cvt_pk_bf16_f32 v{c.CF+r}, v{XF}, v{XF+1}')
        tr_addr(c, c.VA)
        a(f's_waitcnt vmcnt({younger})')
        if st: stamp(st[1])
        BF = c.BF
        for s in range(4): tr_read(BF + 4*s, c.VA, s)
        a('s_waitcnt lgkmcnt(0)')
        mf(c.D1, c.CF, BF, True); mf(c.D2, c.CF, BF+8, True)
        mf(c.D1, c.CF+4, BF+4, False); mf(c.D2, c.CF+4, BF+12, False)
        sel_halves(c, c.RD, c.D1, c.D2)
        a(f's_lshl_b32 s{c.T2}, s{c.WV}, 10')
        a(f'v_add_u32 v{c.VB}, s{c.T2}, v1')
        a(f'ds_write_b128 v{c.VB}, v[{c.RD}:{c.RD+3}] offset:{L_RED}')
        a(f'v_mov_b32 v{c.VC}, 0')
        a(f'v_mov_b32 v{c.VB}, 1')
        a('s_mov_b64 exec, 1')
        a(f'ds_add_rtn_u32 v{c.VB}, v{c.VC}, v{c.VB} offset:{cnt_off}')
        a('s_mov_b64 exec, -1')
        a('s_waitcnt lgkmcnt(0)')
        a(f'v_readfirstlane_b32 s{c.T2}, v{c.VB}')
        a(f's_cmp_lg_u32 s{c.T2}, 3')
        a(f's_cbranch_scc1 {done}')
        red_addr(c, c.VA)
        red_sum(c, c.U0, c.VA, L_RED, BF)
        a(f'v_cvt_pk_bf16_f32 v{c.RD}, v{c.U0}, v{c.U0+1}')
        a(f'v_mov_b32 v{c.RD+1}, s{c.TAG}')
        a(f's_and_b32 s{c.T2}, s{c.WG}, 0xe0')
        a(f's_add_u32 s{c.T2}, s{c.T2}, s{c.T0}')
        a(f's_lshl_b32 s{c.T2}, s{c.T2}, 9')
        a(f's_add_u32 s{c.T2}, s{c.T2}, {WS_MOD}')
        a(f'v_lshlrev_b32 v{c.VA}, 3, v0')
        a(f'buffer_store_dwordx2 v[{c.RD}:{c.RD+1}], v{c.VA}, s[{c.SWS}:{c.SWS+3}], s{c.T2} offen sc1')

    def head_of(d, t):
        if hmap == 0:
            a(f's_and_b32 s{d}, s2, 31')
        elif hmap == 1:
            a(f's_and_b32 s{d}, s2, 7'); a(f's_lshl_b32 s{d}, s{d}, 2')
            a(f's_bfe_u32 s{t}, s2, 0x20003'); a(f's_or_b32 s{d}, s{d}, s{t}')
        elif hmap == 2:
            a(f's_and_b32 s{d}, s2, 7'); a(f's_lshl_b32 s{d}, s{d}, 1')
            a(f's_bfe_u32 s{t}, s2, 0x10003'); a(f's_or_b32 s{d}, s{d}, s{t}')
            a(f's_and_b32 s{t}, s2, 16'); a(f's_or_b32 s{d}, s{d}, s{t}')
    def roles(F1T, F2T, T0, T1):
        a(f's_and_b32 s{T0}, s2, 7')
        a(f's_lshr_b32 s{T1}, s2, 3')
        a(f's_mul_i32 s{F1T}, s{T0}, 11')
        a(f's_add_u32 s{F1T}, s{F1T}, s{T1}')
        a(f's_cmp_lt_u32 s2, 88')
        a(f's_cselect_b32 s{F1T}, s{F1T}, 255')
        a(f's_lshl_b32 s{F2T}, s{T0}, 2')
        a(f's_add_u32 s{F2T}, s{F2T}, s{T1}')
        a(f's_sub_u32 s{F2T}, s{F2T}, {F2_BASE//8}')
        a(f's_sub_u32 s{T1}, s2, {F2_BASE}')
        a(f's_cmp_lt_u32 s{T1}, 32')
        a(f's_cselect_b32 s{F2T}, s{F2T}, 255')
    def f1_dma(VB, VC, SST, WV, F1T, T1, T2, STGB, paced, pol):
        a(f'v_lshrrev_b32 v{VB}, 1, v0')
        a(f'v_mul_u32_u24 v{VB}, 2752, v{VB}')
        a(f'v_and_b32 v{VC}, 1, v0')
        a(f'v_lshl_add_u32 v{VB}, v{VC}, 4, v{VB}')
        for which, p in enumerate((28, 30)):
            srd(SST, p, 512*1376*2)
            a(f's_mul_i32 s{T1}, s{WV}, {128*2752}')
            a(f's_lshl_b32 s{T2}, s{F1T}, 5')
            a(f's_add_u32 s{T1}, s{T1}, s{T2}')
            for s in range(4):
                a(f's_add_u32 m0, s{STGB}, {(which*4+s)*1024}')
                if paced: a('s_waitcnt vmcnt(0)')
                a(f'buffer_load_dwordx4 v{VB}, s[{SST}:{SST+3}], s{T1} offen {pol} lds')
                if s < 3: a(f's_add_u32 s{T1}, s{T1}, {32*2752}')
    def f2_dma(VB, VC, SST, WV, F2T, T1, T2, T3, STGB, paced, pol):
        srd(SST, 32, 1376*512*2)
        a(f'v_lshrrev_b32 v{VB}, 1, v0')
        a(f'v_lshlrev_b32 v{VB}, 10, v{VB}')
        a(f'v_and_b32 v{VC}, 1, v0')
        a(f'v_lshl_add_u32 v{VB}, v{VC}, 4, v{VB}')
        a(f's_mul_i32 s{T3}, s{WV}, 12')
        a(f's_lshl_b32 s{T2}, s{F2T}, 5')
        for s in range(12):
            a(f's_add_u32 s{T1}, s{T3}, {s}')
            a(f's_min_u32 s{T1}, s{T1}, 42')
            a(f's_lshl_b32 s{T1}, s{T1}, 15')
            a(f's_add_u32 s{T1}, s{T1}, s{T2}')
            a(f's_add_u32 m0, s{STGB}, {s*1024}')
            if paced: a('s_waitcnt vmcnt(0)')
            a(f'buffer_load_dwordx4 v{VB}, s[{SST}:{SST+3}], s{T1} offen {pol} lds')

    a('s_cmp_ge_u32 s2, 256')
    a('s_cbranch_scc1 L_end')
    if perm:
        a('s_lshr_b32 s3, s2, 5'); a('s_xor_b32 s2, s2, s3')
    a('s_load_dwordx16 s[16:31], s[0:1], 0')
    a('s_load_dwordx8 s[32:39], s[0:1], 64')
    a('s_load_dwordx4 s[40:43], s[0:1], 96')
    if stamps:
        for k in range(12): a(f's_mov_b32 s{4+k}, 0')
    if hold or pd:
        a('s_memrealtime s[94:95]')
    a('v_lshrrev_b32 v1, 6, v0')
    a('v_readfirstlane_b32 s3, v1')
    a('v_and_b32 v0, 63, v0')
    a('v_lshlrev_b32 v1, 4, v0')
    a('s_cmp_ge_u32 s3, 4')
    a('s_cbranch_scc1 L_service')

    Q = 4; Pq = 8; ACC = 24; TMP = 32; VMAX = 40; VT0 = 41; VT1 = 42; PP0 = 43; PP1 = 44; VSC = 2; VI = 45; VG = 46; VT2 = 47; VT3 = 48
    GENV = 3
    TK = 50; PN = 52; VPA = 54; VSA = 55; FL = 56; VZ = 60; VHA = 61
    RING = 64; EXA = 128; EXB = 192
    IS = 44; SWS = 52; SOFF = 56; CNT = 57; BASE = 58; M1 = 60; M2 = 62; SELLO = 64; SELHI = 65; SCALE = 66; TAG = 67
    SHD = 70; SLOTC = 71; SLOTN = 72; FIRST = 73; T0 = 74; T1 = 75; T2 = 76; T3 = 77; STGB = 78; SPIN = 79
    SC = 80; SM = 84; LO32 = 88
    HOME = 48; STEP = 49; QUIT = 50; ESPIN = 51
    P_ = Pq
    if lv is not None: a('s_memrealtime s[70:71]')
    head_of(58, 59)
    a('s_and_b32 s59, s2, 0xe0')
    a('s_or_b32 s58, s58, s59')
    a('s_lshl_b32 s58, s58, 20')
    a('s_lshl_b32 s59, s3, 12')
    a('s_add_u32 s58, s58, s59')
    a('s_mov_b32 s56, s58')
    a(f'v_mov_b32 v{VZ}, 0')
    a(f'v_and_b32 v{VI}, 15, v0')
    a(f'v_lshrrev_b32 v{VG}, 4, v0')
    a(f's_mul_i32 s{STGB}, s3, {STGW}')
    a(f's_add_u32 s{STGB}, s{STGB}, {L_STG}')
    a('s_waitcnt lgkmcnt(0)')
    srd(SWS, 42, WS_SIZE)
    a(f'buffer_load_dword v{GENV}, v{VZ}, s[{SWS}:{SWS+3}], 0 offen offset:{WS_GEN} sc1')
    srd(IS, 18, 0x10000000)
    srd(SC, 34, 8192)
    srd(SM, 36, 512*3072*2)
    if dry2: a(f's_mov_b64 s[{DRY}:{DRY+1}], -1')
    stamp(0)
    if dst:
        a(f's_memtime s[{STP}:{STP+1}]'); a('s_waitcnt lgkmcnt(0)'); a(f's_mov_b32 s14, s{STP}')
    cs = Ctx()
    cs.VI = VI; cs.VG = VG; cs.VA = RING; cs.VB = RING+1; cs.VC = RING+2; cs.VD = RING+3
    cs.CF = RING+4; cs.XF = RING+12; cs.BF = RING+20; cs.D1 = RING+36; cs.D2 = RING+40; cs.RD = RING+44; cs.U0 = RING+48
    cs.T0 = T0; cs.T1 = T1; cs.T2 = T2; cs.T3 = T3; cs.WV = 3; cs.STGB = STGB; cs.SC = SC; cs.SM = SM; cs.SWS = SWS
    cs.LO32 = LO32; cs.TAG = TAG; cs.GENV = GENV; cs.WG = 2; cs.paced = False
    a('s_cmp_ge_u32 s2, 64')
    a('s_cbranch_scc1 L_s_noissue')
    if mprio: a(f's_setprio {mprio}')
    mod_issue(cs)
    a.label('L_s_noissue', fence=False)

    LV = 68; TGT = 69; T00 = 70; TM = 72; LAG = 71
    def pw(d=0):
        if lv is None:
            a(f's_waitcnt vmcnt({(W-1) if d == 0 else VW})')
            return
        lab = a.uid('L_pw')
        for k, Wk in enumerate(lv):
            a(f's_waitcnt vmcnt({Wk-1-d})')
            if k < len(lv) - 1:
                a(f's_cmp_eq_u32 s{LV}, {k}')
                a(f's_cbranch_scc1 {lab}')
        a.label(lab, fence=False)
    def tsched(n):
        return int(round(tK + (n - 48) * sK)) if n <= 272 else int(round(tV + (n - 272) * sV))
    MS = 50; VBS = 52; VMA = 53; MD = 54; MT = 56; ISM = 48; CK = 49; CKS = 50
    def mload():
        if lv is None or not rel or noml: return
        lab = a.uid('L_ml')
        a('s_cmp_lg_u32 s3, 0')
        a(f's_cbranch_scc1 {lab}')
        a(f'buffer_load_dwordx2 v[{MS}:{MS+1}], v{VMA}, s[{SWS}:{SWS+3}], s{CK} offen {mlp}')
        a.label(lab, fence=False)
    def clk():
        if lv is None: return
        a(f's_memrealtime s[{TM}:{TM+1}]')
        if rel: a(f'ds_read_b32 v{VBS}, v{VZ} offset:{L_CNT+16}')
    def ctl(n=None, step=None, upd=True, th_=None):
        if lv is None: return
        th_ = th if th_ is None else th_
        a('s_waitcnt lgkmcnt(0)')
        if rel:
            a(f'v_readfirstlane_b32 s{TM+1}, v{VBS}')
            if n is not None: a(f's_sub_u32 s{TM}, s{TM}, {tsched(n)}')
            else: a(f's_sub_u32 s{TM}, s{TM}, s{TGT}')
            a(f's_sub_u32 s{LAG}, s{TM}, s{TM+1}')
        else:
            if n is not None: a(f's_add_u32 s{TGT}, s{T00}, {tsched(n)}')
            a(f's_sub_u32 s{LAG}, s{TM}, s{TGT}')
        if step is not None: a(f's_add_u32 s{TGT}, s{TGT}, {step}')
        a(f's_mov_b32 s{LV}, {len(lv)-1}')
        for k in range(len(lv) - 2, -1, -1):
            a(f's_cmp_gt_i32 s{LAG}, {th_[k]}')
            a(f's_cselect_b32 s{LV}, {k}, s{LV}')
        if rel:
            lab = a.uid('L_ct')
            a('s_cmp_lg_u32 s3, 0')
            a(f's_cbranch_scc1 {lab}')
            lab2 = a.uid('L_cm')
            a(f's_cmp_eq_u32 s{ISM}, 0')
            a(f's_cbranch_scc1 {lab2}')
            a(f'v_mov_b32 v{MD}, s{TM}')
            a(f'v_mov_b32 v{MD+1}, s{TAG}')
            a(f's_add_u32 s{CKS}, s{ISM}, s{CK}')
            a('s_mov_b64 exec, 1')
            if not nomst: a(f'buffer_store_dwordx2 v[{MD}:{MD+1}], v{VZ}, s[{SWS}:{SWS+3}], s{CKS} offen {msp}')
            a('s_mov_b64 exec, -1')
            a.label(lab2, fence=False)
            a(f's_add_u32 s{CK}, s{CK}, {CSTR}')
            if upd:
                a(f'v_cmp_ne_u32 vcc, s{TAG}, v{MS+1}')
                a(f'v_subrev_u32 v{MT}, s{T00}, v{MS}')
                for c_ in ('quad_perm:[1,0,3,2]', 'quad_perm:[2,3,0,1]', 'row_half_mirror'):
                    a(f'{"v_add_u32" if agg == "mean" else "v_max_i32"}_dpp v{MT}, v{MT}, v{MT} {c_} row_mask:0xf bank_mask:0xf')
                if agg == 'mean': a(f'v_ashrrev_i32 v{MT}, 3, v{MT}')
                a(f's_add_u32 s{TM+1}, s{T00}, {dl}')
                a(f'v_add_u32 v{MT}, s{TM+1}, v{MT}')
                a(f's_cbranch_vccnz {lab}')
                a(f'ds_write_b32 v{VZ}, v{MT} offset:{L_CNT+16}')
            a.label(lab, fence=False)
    def issue(base, j):
        r = base + 4 * j
        a(f'buffer_load_dwordx4 v[{r}:{r+3}], v1, s[{IS}:{IS+3}], s{SOFF} offen offset:{(j % 4) * 1024} {kpol}')
        if j % 4 == 3:
            a(f's_add_u32 s{SOFF}, s{SOFF}, 16384')

    seq = [(base, j) for base in (EXA, EXB, RING) for j in range(16)]
    for n in range(nA): issue(*seq[n])
    a(f's_mov_b32 s{M1}, 0xaaaaaaaa'); a(f's_mov_b32 s{M1+1}, 0xaaaaaaaa')
    a(f's_mov_b32 s{M2}, 0xcccccccc'); a(f's_mov_b32 s{M2+1}, 0xcccccccc')
    a(f's_mov_b32 s{SELLO}, 0x05040100'); a(f's_mov_b32 s{SELHI}, 0x07060302')
    a(f's_mov_b32 s{SCALE}, {f32(128 ** -0.5)}')
    a(f's_mov_b32 s{LO32}, -1'); a(f's_mov_b32 s{LO32+1}, 0')
    a(f's_lshl_b32 s59, s3, 12')
    a(f's_add_u32 s59, s59, {L_SC}')
    a(f'v_lshlrev_b32 v{VSC}, 2, v0')
    a(f'v_add_u32 v{VSC}, s59, v{VSC}')
    a(f'v_mov_b32 v{VMAX}, 0xff800000')
    if sst:
        stamp(9)
        a('s_cmp_lt_u32 s2, 64')
        a('s_cbranch_scc1 L_sst')
        a(f's_waitcnt vmcnt({nA})'); stamp(3)
        a(f's_waitcnt vmcnt({nA-1})'); stamp(4)
        a(f's_waitcnt vmcnt({nA-8})'); stamp(10)
        a(f's_waitcnt vmcnt(0)'); stamp(11)
        a.label('L_sst')
    a('s_barrier')
    a('s_cmp_ge_u32 s2, 64')
    a('s_cbranch_scc1 L_s_moddone')
    mod_compute(cs, nA, L_CNT, 'L_s_moddone', st=(3, 4))
    a.label('L_s_moddone')
    if mprio: a('s_setprio 0')
    stamp(5)
    for n in range(nA, 48):
        Wn = W0 if n < n0 else W
        if n >= Wn and n < 48 - boost:
            a(f's_waitcnt vmcnt({Wn-1})')
        if sst2 and n in (16, 24, 32, 40, 45): stamp({16: 9, 24: 3, 32: 4, 40: 10, 45: 11}[n])
        issue(*seq[n])
    if pf:
        a(f's_mov_b32 m0, {L_DUM}')
        a(f's_lshl_b32 s{T3}, s2, 2')
        a(f's_add_u32 s{T3}, s{T3}, s3')
        def pfl(srd_, so, off=0):
            a(f's_waitcnt vmcnt({pfW-1})')
            a(f'buffer_load_dwordx4 v1, s[{srd_}:{srd_+3}], s{so} offen offset:{off} {pfpol} lds')
        if pf & 1:
            srd(SC, 24, 4096*512*2)
            head_of(T0, T1)
            a(f's_lshl_b32 s{T0}, s{T0}, 17')
            a(f's_lshr_b32 s{T1}, s2, 5')
            a(f's_lshl_b32 s{T1}, s{T1}, 14')
            a(f's_add_u32 s{T0}, s{T0}, s{T1}')
            a(f's_lshl_b32 s{T1}, s3, 12')
            a(f's_add_u32 s{T0}, s{T0}, s{T1}')
            for j in range(4): pfl(SC, T0, j*1024)
        if pf & 4:
            a(f's_lshr_b32 s{T0}, s{T3}, 1')
            a(f's_mul_i32 s{T0}, s{T0}, 6144')
            a(f's_and_b32 s{T1}, s{T3}, 1')
            a(f's_lshl_b32 s{T1}, s{T1}, 11')
            a(f's_add_u32 s{T0}, s{T0}, s{T1}')
            for j in range(2): pfl(SM, T0, 2048 + j*1024)
        if pf & 2:
            a(f's_lshl_b32 s{T0}, s{T3}, 10')
            a(f's_add_u32 s{T1}, s{T0}, {1 << 20}')
            for p in (28, 30, 32):
                srd(SC, p, 512*1376*2)
                pfl(SC, T0)
                lab = a.uid('L_pf')
                a(f's_cmp_ge_u32 s{T3}, {1376-1024}')
                a(f's_cbranch_scc1 {lab}')
                pfl(SC, T1)
                a.label(lab, fence=False)
    a(f'v_readfirstlane_b32 s{TAG}, v{GENV}')
    a(f's_add_u32 s{TAG}, s{TAG}, {TAGC}')
    if lv is not None and rel:
        a(f'v_and_b32 v{VMA}, 7, v0')
        a(f'v_mul_u32_u24 v{VMA}, {MSTR}, v{VMA}')
        a(f'v_add_u32 v{VMA}, {WS_MST - DD*CSTR}, v{VMA}')
        a(f's_mov_b32 s{CK}, 0')
        a(f'v_mov_b32 v{MS}, 0'); a(f'v_not_b32 v{MS+1}, s{TAG}')
        if MB >= 0:
            a(f's_sub_u32 s{T0}, s2, {MB}')
        else:
            a(f's_lshr_b32 s{T0}, s2, 5')
        a(f's_mul_i32 s{ISM}, s{T0}, {MSTR}')
        a(f's_add_u32 s{ISM}, s{ISM}, {WS_MST}')
        if MB >= 0:
            a(f's_cmp_lt_u32 s{T0}, 8')
        else:
            a(f's_and_b32 s{T1}, s2, 31')
            a(f's_add_u32 s{T0}, s{T0}, {-MB-1}')
            a(f's_cmp_eq_u32 s{T0}, s{T1}')
        a(f's_cselect_b32 s{ISM}, s{ISM}, 0')
        a(f'v_mov_b32 v{MT}, s{T00}')
        a('s_cmp_lg_u32 s3, 0')
        a('s_cbranch_scc1 L_nobase')
        a(f'ds_write_b32 v{VZ}, v{MT} offset:{L_CNT+16}')
        a('s_waitcnt lgkmcnt(0)')
        a.label('L_nobase', fence=False)
    stamp(6)
    a('s_barrier')
    a(f'v_lshlrev_b32 v{VT0}, 5, v{VI}')
    for w in range(4):
        a(f'ds_read_b128 v[{P_+8*(w%2)}:{P_+8*(w%2)+3}], v{VT0} offset:{L_QP + w*512}')
        a(f'ds_read_b128 v[{P_+8*(w%2)+4}:{P_+8*(w%2)+7}], v{VT0} offset:{L_QP + w*512 + 16}')
        if w == 1:
            a('s_waitcnt lgkmcnt(0)')
            for e in range(8): a(f'v_add_f32 v{ACC+e}, v{P_+e}, v{P_+8+e}')
    a('s_waitcnt lgkmcnt(0)')
    for e in range(8): a(f'v_add_f32 v{P_+e}, v{P_+e}, v{P_+8+e}')
    for e in range(8): a(f'v_add_f32 v{ACC+e}, v{ACC+e}, v{P_+e}')
    for c in range(4): a(f'v_cvt_pk_bf16_f32 v{Q+c}, v{ACC+2*c}, v{ACC+2*c+1}')
    clk(); ctl(n=48, upd=False)
    if dbg:
        a(f's_lshr_b32 s{T0}, s{BASE}, 20')
        a(f's_lshl_b32 s{T0}, s{T0}, 8')
        a(f's_add_u32 s{T0}, s{T0}, {WS_DBG}')
        a(f'v_lshlrev_b32 v{VT0}, 4, v{VI}')
        a(f'buffer_store_dwordx4 v[{Q}:{Q+3}], v{VT0}, s[{SWS}:{SWS+3}], s{T0} offen')
        a('s_waitcnt vmcnt(0)')
    stamp(1)

    def ksteps(base, PB, reissue, wait, vsc, sc_off, t0, t1, hook=None):
        def l1(j):
            a(f'v_add_f32_dpp v{PB+j-1}, v{PB+j-1}, v{PB+j-1} row_ror:8 row_mask:0xf bank_mask:0x3')
            a(f'v_add_f32_dpp v{PB+j-1}, v{PB+j}, v{PB+j} row_ror:8 row_mask:0xf bank_mask:0xc')
        def l2(q):
            x = PB + 4*q; y = PB + 4*q + 2
            a(f'v_add_f32_dpp v{x}, v{x}, v{x} row_shl:4 row_mask:0xf bank_mask:0x5')
            a(f'v_add_f32_dpp v{x}, v{y}, v{y} row_shr:4 row_mask:0xf bank_mask:0xa')
        def step(j):
            r = base + 4*j
            if hook is not None and j == 0: mload()
            if hook is not None and j == 12: clk()
            if hook is not None and j == 15: hook()
            if wait is not None:
                pw(0)
            a(f'v_dot2_f32_bf16 v{PB+j}, v{r}, v{Q}, 0')
            for c in range(1, 4):
                a(f'v_dot2_f32_bf16 v{PB+j}, v{r+c}, v{Q+c}, v{PB+j}')
            if reissue: issue(base, j)
            if j >= 2 and j % 2 == 0: l1(j-1)
            if j >= 5 and j % 4 == 1: l2((j-5)//4)
        def epi():
            l1(15)
            l2(3)
            U = [PB, PB+4, PB+8, PB+12]
            for u in U: a(f'v_add_f32_dpp v{u}, v{u}, v{u} quad_perm:[2,3,0,1] row_mask:0xf bank_mask:0xf')
            a(f'v_cndmask_b32 v{U[0]}, v{U[0]}, v{U[1]}, s[{M2}:{M2+1}]')
            a(f'v_cndmask_b32 v{U[2]}, v{U[2]}, v{U[3]}, s[{M2}:{M2+1}]')
            for u in (U[0], U[2]): a(f'v_add_f32_dpp v{u}, v{u}, v{u} quad_perm:[1,0,3,2] row_mask:0xf bank_mask:0xf')
            a(f'v_cndmask_b32 v{t0}, v{U[0]}, v{U[2]}, s[{M1}:{M1+1}]')
            rnd1(t0, t1)
            a(f'v_mul_f32 v{t0}, s{SCALE}, v{t0}')
            rnd1(t0, t1)
            a(f'v_max_f32 v{VMAX}, v{VMAX}, v{t0}')
            a(f'ds_write_b32 v{vsc}, v{t0} offset:{sc_off}')
        return [lambda j=j: step(j) for j in range(16)] + [epi]
    P2 = ACC
    for it, ex in enumerate((EXA, EXB)):
        s1 = ksteps(RING, P_, True, W-1, VSC, (2+it)*256, VT0, VT1, hook=lambda it=it: ctl(n=48+16*it+12))
        s2 = ksteps(ex, P2, False, None, VSC, it*256, PP0, PP1)
        for j in range(16):
            s1[j](); s2[j]()
        s1[16](); s2[16]()
    a(f'v_add_u32 v{VT2}, {4*256}, v{VSC}')
    a(f's_mov_b32 s{CNT}, 12')
    if lv is not None: a(f's_mov_b32 s{TGT}, {tsched(80+12)}' if rel else f's_add_u32 s{TGT}, s{T00}, {tsched(80+12)}')
    if not (sst or sst2): stamp(9)
    a.label('L_kloop')
    a(f's_cmp_eq_u32 s{CNT}, 1')
    a(f's_cselect_b32 s{IS}, s20, s{IS}')
    a(f's_cselect_b32 s{IS+1}, s21, s{IS+1}')
    a(f's_cselect_b32 s{SOFF}, s{BASE}, s{SOFF}')
    for f in ksteps(RING, P_, True, W-1, VT2, 0, VT0, VT1, hook=lambda: ctl(step=int(round(16*sK)))): f()
    a(f'v_add_u32 v{VT2}, 256, v{VT2}')
    a(f's_sub_u32 s{CNT}, s{CNT}, 1')
    a(f's_cmp_lg_u32 s{CNT}, 0')
    a('s_cbranch_scc1 L_kloop')
    stamp(7)
    vq = [(EXA, j) for j in range(16)] + [(EXB, j) for j in range(16)]
    def pi(n=1, paced=True):
        for _ in range(n):
            if not vq: return
            if paced: pw(0)
            issue(*vq.pop(0))
    pi()
    a('s_waitcnt lgkmcnt(0)')
    for t in range(0, 16, 2):
        a(f'ds_read2st64_b32 v[{P_+t}:{P_+t+1}], v{VSC} offset0:{t} offset1:{t+1}')
    wave_reduce('v_max_f32', [VMAX], [VT0])
    pi()
    a('s_waitcnt lgkmcnt(0)')
    for t in range(16): a(f'v_sub_f32 v{P_+t}, v{P_+t}, v{VMAX}')
    for t in range(16): a(f'v_mul_f32 v{P_+t}, {f32(L2E)}, v{P_+t}')
    pi()
    for t in range(16): a(f'v_exp_f32 v{P_+t}, v{P_+t}')
    pi()
    for t in range(8): a(f'v_add_f32 v{TMP+t}, v{P_+t}, v{P_+8+t}')
    for t in range(4): a(f'v_add_f32 v{TMP+t}, v{TMP+t}, v{TMP+4+t}')
    for t in range(2): a(f'v_add_f32 v{TMP+t}, v{TMP+t}, v{TMP+2+t}')
    a(f'v_add_f32 v{VT0}, v{TMP}, v{TMP+1}')
    assert VT0 == VMAX + 1
    wave_reduce('v_add_f32', [VT0], [VT1])
    a(f's_lshl_b32 s59, s3, 3')
    a(f'v_mov_b32 v{VT1}, s59')
    a(f'ds_write_b64 v{VT1}, v[{VMAX}:{VMAX+1}] offset:{L_MX}')
    a(f'v_mov_b32 v{VT1}, 1')
    a('s_waitcnt lgkmcnt(0)')
    a('s_mov_b64 exec, 1')
    a(f'ds_add_u32 v{VZ}, v{VT1} offset:{L_CNT+12}')
    a('s_mov_b64 exec, -1')
    pi(12)
    pi(sboost, paced=False)
    a(f's_mov_b32 s{SPIN}, 0')
    a.label('L_b2')
    a(f'ds_read_b32 v{VT1}, v{VZ} offset:{L_CNT+12}')
    a('s_waitcnt lgkmcnt(0)')
    a(f'v_readfirstlane_b32 s{T0}, v{VT1}')
    a(f's_cmp_ge_u32 s{T0}, 4')
    a('s_cbranch_scc1 L_b2_ok')
    a(f's_add_u32 s{SPIN}, s{SPIN}, 1')
    a(f's_cmp_lt_u32 s{SPIN}, {SPIN_MAX*8}')
    a('s_cbranch_scc0 L_b2_ok')
    a('s_sleep 1')
    a('s_branch L_b2')
    a.label('L_b2_ok')
    a(f'ds_read_b128 v[{TMP}:{TMP+3}], v{VZ} offset:{L_MX}')
    a(f'ds_read_b128 v[{TMP+4}:{TMP+7}], v{VZ} offset:{L_MX+16}')
    a('s_waitcnt lgkmcnt(0)')
    a(f'v_max_f32 v{VT1}, v{TMP}, v{TMP+2}')
    a(f'v_max3_f32 v{VT1}, v{VT1}, v{TMP+4}, v{TMP+6}')
    for k in range(4): a(f'v_sub_f32 v{TMP+2*k}, v{TMP+2*k}, v{VT1}')
    a(f'v_sub_f32 v{VT3}, v{VMAX}, v{VT1}')
    for k in range(4): a(f'v_mul_f32 v{TMP+2*k}, {f32(L2E)}, v{TMP+2*k}')
    a(f'v_mul_f32 v{VT3}, {f32(L2E)}, v{VT3}')
    for k in range(4): a(f'v_exp_f32 v{TMP+2*k}, v{TMP+2*k}')
    a(f'v_exp_f32 v{VT3}, v{VT3}')
    a(f'v_mul_f32 v{VT0}, v{TMP}, v{TMP+1}')
    for k in range(1, 4): a(f'v_fmac_f32 v{VT0}, v{TMP+2*k}, v{TMP+2*k+1}')
    a(f'v_rcp_f32 v{VT0}, v{VT0}')
    a(f'v_mul_f32 v{VT3}, v{VT3}, v{VT0}')
    pi()
    for t in range(16): a(f'v_mul_f32 v{P_+t}, v{P_+t}, v{VT3}')
    for half in range(2):
        for t in range(8): a(f'v_mov_b32_dpp v{TMP+t}, v{P_+8*half+t} row_ror:8 row_mask:0xf bank_mask:0xf')
        for t in range(8): a(f'v_cvt_pk_bf16_f32 v{P_+8*half+t}, v{P_+8*half+t}, v{TMP+t}')
        pi()
    for t in range(4, 16, 2):
        a(f'ds_write2st64_b32 v{VSC}, v{P_+t}, v{P_+t+1} offset0:{t} offset1:{t+1}')
    for e in range(8): a(f'v_mov_b32 v{ACC+e}, 0')

    def bl(m): return 4*(m & 1) + 2*((m >> 1) & 1) + (m >> 2)
    def vstep(base, m, reissue, wait, pp, mid=None, hook=None):
        A = base + 8*m; Bq = A + 4
        if hook is not None and m == 0: mload()
        if hook is not None and m == 5: clk()
        if hook is not None and m == 7: hook()
        if wait == 'p': pw(1)
        elif wait is not None:
            a(f's_waitcnt vmcnt({wait})')
        for c in range(4):
            a(f'v_perm_b32 v{TMP+2*c}, v{Bq+c}, v{A+c}, s{SELLO}')
            a(f'v_perm_b32 v{TMP+2*c+1}, v{Bq+c}, v{A+c}, s{SELHI}')
        if reissue:
            issue(base, 2*m); issue(base, 2*m+1)
        if mid: mid()
        for e in range(8):
            a(f'v_dot2c_f32_bf16_dpp v{ACC+e}, v{pp}, v{TMP+e} row_newbcast:{bl(m)} row_mask:0xf bank_mask:0xf')
    def static_flush():
        a(f'v_lshlrev_b32 v{VT0}, 5, v{VI}')
        a(f'v_lshl_add_u32 v{VT0}, v{VG}, 3, v{VT0}')
        a(f's_lshl_b32 s59, s3, 9')
        a(f'v_add_u32 v{VT0}, s59, v{VT0}')
        a(f'ds_write_b64 v{VT0}, v[{ACC}:{ACC+1}] offset:{L_OP}')
        a(f'v_mov_b32 v{VT1}, 1')
        a('s_waitcnt lgkmcnt(0)')
        ex_mask(dry2, 1, 0)
        a(f'ds_add_u32 v{VZ}, v{VT1} offset:{L_CNT+8}')
        ex_full(dry2)
        stamp(8)

    nleft = len(vq)
    assert 1 <= nleft <= 16, nleft
    for m in range(8):
        k = (nleft*(m+1))//8 - (nleft*m)//8
        if m == 0: a(f's_waitcnt vmcnt({16 - nleft})')
        vstep(EXA, m, False, None, P_+1, mid=(lambda k=k: pi(k)))
    assert not vq
    clk(); ctl(n=304, upd=False)
    for m in range(8): vstep(RING, m, True, 'p', P_+0, hook=lambda: ctl(n=304+10))
    a(f'v_add_u32 v{VT2}, {5*256}, v{VSC}')
    for m in range(8):
        vstep(RING, m, True, 'p', P_+3, hook=lambda: ctl(n=320+10))
        vstep(EXB, m, False, None, P_+2)
    a(f'v_mov_b32 v{PP0}, v{P_+4}')
    a(f's_mov_b32 s{CNT}, 11')
    if lv is not None: a(f's_mov_b32 s{TGT}, {tsched(336+10)}' if rel else f's_add_u32 s{TGT}, s{T00}, {tsched(336+10)}')
    if not (sst or sst2): stamp(10)
    a.label('L_vloop')
    a(f'ds_read_b32 v{PP1}, v{VT2}')
    a(f'v_add_u32 v{VT2}, 256, v{VT2}')
    for m in range(8): vstep(RING, m, True, 'p', PP0, hook=lambda: ctl(step=int(round(16*sV)), th_=thv))
    a('s_waitcnt lgkmcnt(0)')
    a(f'v_mov_b32 v{PP0}, v{PP1}')
    a(f's_sub_u32 s{CNT}, s{CNT}, 1')
    a(f's_cmp_lg_u32 s{CNT}, 0')
    a('s_cbranch_scc1 L_vloop')
    if not (sst or sst2): stamp(11)
    if dry2: a.label('L_vlast', fence=False)
    for m in range(8): vstep(RING, m, False, 14 - 2*m, PP0)
    greduce8(ACC)
    static_flush()
    if dry2: a('s_cbranch_execz L_t1' if dry else 's_cbranch_execz L_real')
    if gate:
        lab = a.uid('L_nogate')
        a('s_cmp_lg_u32 s3, 0')
        a(f's_cbranch_scc1 {lab}')
        srd(SC, 40, 256)
        a('s_mov_b64 exec, 1')
        a(f'buffer_atomic_add v{VT1}, v{VZ}, s[{SC}:{SC+3}], 0 offen')
        a('s_mov_b64 exec, -1')
        a.label(lab)
    a('s_waitcnt lgkmcnt(0)')
    stamp(2)
    if dfw:
        dp = fpol if dpol is None else dpol
        roles(M1, M1+1, T0, T1)
        a(f's_cmp_lt_u32 s{M1}, {NF1}')
        a('s_cbranch_scc0 L_s_nof1')
        f1_dma(VT0, VT1, SM, 3, M1, T1, T2, STGB, False, dp)
        a('s_branch L_s_dma')
        a.label('L_s_nof1')
        a(f's_cmp_lt_u32 s{M1+1}, 32')
        a('s_cbranch_scc0 L_s_dma')
        f2_dma(VT0, VT1, SM, 3, M1+1, T1, T2, T3, STGB, False, dp)
        a.label('L_s_dma')
        a('s_waitcnt vmcnt(0)')
        stamp(8)
    finish(SWS, TMP, 's')

    a.label('L_service')
    SX = 44; SW = 48; SWS = 52; SC = 56; SST = 60; SOUT = 64; SDBG = 68
    WV = 72
    SB = 73; SH = 74; T0 = 75; T1 = 76; T2 = 77; T3 = 78; TAG = 80; SPIN = 81; SELLO = 82; SELHI = 83; LO32 = 84; STGB = 86; T4 = 87
    F1T = 88; F2T = 89; T5 = 90; T6 = 91
    VI = 2; VG = 3; VA = 4; VB = 5; VC = 6; VD = 7
    GENV = 8
    XR = 12; XP = 16; CF = 20; XF = 28
    MEAN = 36; DEN = 37; RDEN = 38; U0 = 39; U1 = 40; U2 = 41; U3 = 42; HP = 43
    ACC = 44
    D1 = 52; D2 = 56; D3 = 60; D4 = 64
    RD = 68
    BF = 76
    SPARE = 127
    WR = 128
    cv = Ctx()
    cv.VI = VI; cv.VG = VG; cv.VA = VA; cv.VB = VB; cv.VC = VC; cv.VD = VD
    cv.CF = CF; cv.XF = XF; cv.BF = BF; cv.D1 = D1; cv.D2 = D2; cv.RD = RD; cv.U0 = U0
    cv.T0 = T0; cv.T1 = T1; cv.T2 = T2; cv.T3 = T3; cv.WV = WV; cv.STGB = STGB; cv.SC = SC; cv.SM = SST; cv.SWS = SWS
    cv.LO32 = LO32; cv.TAG = TAG; cv.GENV = None; cv.WG = T4; cv.paced = SW_ < 8
    if sprio: a(f's_setprio {sprio}')
    a(f's_sub_u32 s{WV}, s3, 4')
    a(f's_lshr_b32 s{SB}, s2, 5')
    a(f's_and_b32 s{SH}, s2, 31')
    HD = 79
    head_of(HD, T0)
    roles(F1T, F2T, T0, T1)
    a(f'v_and_b32 v{VI}, 15, v0')
    a(f'v_lshrrev_b32 v{VG}, 4, v0')
    a(f'v_mov_b32 v{VA}, 0')
    a(f'v_lshlrev_b32 v{VB}, 2, v{VI}')
    a(f'ds_write_b32 v{VB}, v{VA} offset:{L_CNT}')
    a(f's_mov_b32 s{SELLO}, 0x05040100'); a(f's_mov_b32 s{SELHI}, 0x07060302')
    a(f's_mov_b32 s{LO32}, -1'); a(f's_mov_b32 s{LO32+1}, 0')
    a(f's_mul_i32 s{STGB}, s{WV}, {STGW}')
    a(f's_add_u32 s{STGB}, s{STGB}, {L_STG}')
    a('s_waitcnt lgkmcnt(0)')
    srd(SWS, 42, WS_SIZE); srd(SX, 16, 8192); srd(SW, 22, 512*4096*2)
    a(f'buffer_load_dword v{GENV}, v{VA}, s[{SWS}:{SWS+3}], 0 offen offset:{WS_GEN} sc1')
    a(f's_lshl_b32 s{T2}, s{SB}, 10')
    a(f'buffer_load_dwordx4 v[{XR}:{XR+3}], v1, s[{SX}:{SX+3}], s{T2} offen')
    a(f'v_lshlrev_b32 v{VA}, 4, v{VI}')
    a(f'v_lshl_add_u32 v{VA}, v{VG}, 2, v{VA}')
    a(f's_lshl_b32 s{T3}, s{WV}, 8')
    a(f's_add_u32 s{T2}, s{T2}, s{T3}')
    a(f'buffer_load_dword v{XP}, v{VA}, s[{SX}:{SX+3}], s{T2} offen')
    a(f'v_lshlrev_b32 v{VA}, 4, v{VI}')
    a(f'v_lshl_add_u32 v{VA}, v{VG}, 14, v{VA}')
    a(f's_lshl_b32 s{T2}, s{WV}, 20')
    a(f's_lshl_b32 s{T3}, s{HD}, 8')
    a(f's_add_u32 s{T2}, s{T2}, s{T3}')
    for j in range(32):
        if j == b0wq: a('s_barrier')
        if j >= WQ: a(f's_waitcnt vmcnt({WQ-1})')
        r = WR + 4*j
        if j == wqn: a(f's_mov_b32 s{SW+2}, 0')
        a(f'buffer_load_dwordx4 v[{r}:{r+3}], v{VA}, s[{SW}:{SW+3}], s{T2} offen {wqpol}')
        if j < 31: a(f's_add_u32 s{T2}, s{T2}, {8192 if j % 2 == 0 else 7*8192}')
    srd(SC, 34, 8192); srd(SST, 36, 512*3072*2); srd(SOUT, 38, 8192); srd(SDBG, 40, 256)
    stamp(6)
    a('s_waitcnt vmcnt(32)')
    stamp(7)
    a(f'v_readfirstlane_b32 s{TAG}, v{GENV}')
    a(f's_add_u32 s{TAG}, s{TAG}, {TAGC}')

    def ln_stats(vals, mean, den, rden, t0, t1):
        R = len(vals)
        for r in range(R):
            v = vals[r]
            a(f'v_add_f32 v{mean[r]}, v{v[0]}, v{v[1]}')
            for k in range(2, len(v)): a(f'v_add_f32 v{mean[r]}, v{mean[r]}, v{v[k]}')
        wave_reduce('v_add_f32', mean, t0)
        for r in range(R): a(f'v_mul_f32 v{mean[r]}, {f32(1/512)}, v{mean[r]}')
        for r in range(R):
            v = vals[r]
            for k in range(len(v)):
                a(f'v_sub_f32 v{t0[r]}, v{v[k]}, v{mean[r]}')
                if k == 0: a(f'v_mul_f32 v{den[r]}, v{t0[r]}, v{t0[r]}')
                else: a(f'v_fmac_f32 v{den[r]}, v{t0[r]}, v{t0[r]}')
        wave_reduce('v_add_f32', den, t0)
        for r in range(R):
            a(f'v_mul_f32 v{den[r]}, {f32(1/512)}, v{den[r]}')
            rnd2(mean[r], den[r], t0[r])
            a(f'v_add_f32 v{den[r]}, {f32(1e-5)}, v{den[r]}')
            rnd1(den[r], t0[r])
            a(f'v_sqrt_f32 v{den[r]}, v{den[r]}')
            rnd1(den[r], t0[r])
            a(f'v_rcp_f32 v{rden[r]}, v{den[r]}')
    def ln_norm2(x, y, mean, den, rden, t0, t1, t2):
        a(f'v_sub_f32 v{x}, v{x}, v{mean}')
        a(f'v_sub_f32 v{y}, v{y}, v{mean}')
        rnd2(x, y, t0)
        a(f'v_mul_f32 v{t0}, v{x}, v{rden}')
        a(f'v_mul_f32 v{t1}, v{y}, v{rden}')
        a(f'v_fma_f32 v{x}, -v{t0}, v{den}, v{x}')
        a(f'v_fma_f32 v{y}, -v{t1}, v{den}, v{y}')
        a(f'v_fma_f32 v{x}, v{x}, v{rden}, v{t0}')
        a(f'v_fma_f32 v{y}, v{y}, v{rden}, v{t1}')
        rnd2(x, y, t0)
    def modulate2(x, y, c1pair, spair, t0, t1, t2, out):
        unpack(t0, t1, c1pair)
        a(f'v_mul_f32 v{x}, v{x}, v{t0}')
        a(f'v_mul_f32 v{y}, v{y}, v{t1}')
        rnd2(x, y, t2)
        unpack(t0, t1, spair)
        a(f'v_add_f32 v{x}, v{x}, v{t0}')
        a(f'v_add_f32 v{y}, v{y}, v{t1}')
        a(f'v_cvt_pk_bf16_f32 v{out}, v{x}, v{y}')
    def one_plus(pair, t0, t1):
        unpack(t0, t1, pair)
        a(f'v_add_f32 v{t0}, 1.0, v{t0}')
        a(f'v_add_f32 v{t1}, 1.0, v{t1}')
        a(f'v_cvt_pk_bf16_f32 v{pair}, v{t0}, v{t1}')

    for r in range(4): unpack(XF+2*r, XF+2*r+1, XR+r)
    ln_stats([[XF+k for k in range(8)]], [MEAN], [DEN], [RDEN], [U0], [U1])
    unpack(U2, U3, XP)
    ln_norm2(U2, U3, MEAN, DEN, RDEN, U0, U1, HP)
    stamp(9)

    def permute_weights(wait_fn):
        wmap = []
        free = SPARE
        for m in range(16):
            A = WR + 8*m; Bq = A + 4
            w = wait_fn(m)
            if w is not None: a(f's_waitcnt vmcnt({w})')
            row = [None]*8
            for c in range(4):
                a(f'v_perm_b32 v{free}, v{Bq+c}, v{A+c}, s{SELLO}')
                a(f'v_perm_b32 v{Bq+c}, v{Bq+c}, v{A+c}, s{SELHI}')
                row[2*c] = free; row[2*c+1] = Bq + c
                free = A + c
            wmap.append(row)
        return wmap, free
    def gemv(wmap, vec, zero=True):
        if zero:
            for e in range(8): a(f'v_mov_b32 v{ACC+e}, 0')
        for m in range(16):
            for e in range(8):
                a(f'v_dot2c_f32_bf16_dpp v{ACC+e}, v{vec}, v{wmap[m][e]} row_newbcast:{m} row_mask:0xf bank_mask:0xf')
        greduce8(ACC)
    def poll(name, loads, tagregs, sleep=1, maskreg=None, chk=None, fence=True):
        a(f's_mov_b32 s{SPIN}, 0')
        a.label(name, fence=fence)
        for l in loads: a(l)
        a('s_waitcnt vmcnt(0)')
        if chk is not None:
            chk(); tagregs = [None]
        else:
            a(f'v_xor_b32 v{VD}, s{TAG}, v{tagregs[0]}')
        for t in tagregs[1:]:
            a(f'v_bitop3_b32 v{VD}, v{t}, s{TAG}, v{VD} bitop3:0xbe')
        if maskreg is not None:
            a(f'v_and_b32 v{VD}, v{maskreg}, v{VD}')
        a(f'v_cmp_ne_u32 vcc, 0, v{VD}')
        a(f's_cbranch_vccz {name}_ok')
        a(f's_add_u32 s{SPIN}, s{SPIN}, 1')
        a(f's_cmp_lt_u32 s{SPIN}, {SPIN_MAX}')
        a(f's_cbranch_scc0 {name}_ok')
        if sleep: a(f's_sleep {sleep}')
        a(f's_branch {name}')
        a.label(name + '_ok', fence=fence)
    def lds_wait(name, off_v, off, val, sleep, fence=True):
        a(f's_mov_b32 s{SPIN}, 0')
        a.label(name, fence=fence)
        a(f'ds_read_b32 v{VD}, v{off_v} offset:{off}')
        a('s_waitcnt lgkmcnt(0)')
        a(f'v_readfirstlane_b32 s{T2}, v{VD}')
        a(f's_cmp_ge_u32 s{T2}, {val}')
        a(f's_cbranch_scc1 {name}_ok')
        a(f's_add_u32 s{SPIN}, s{SPIN}, 1')
        a(f's_cmp_lt_u32 s{SPIN}, {SPIN_MAX*4}')
        a(f's_cbranch_scc0 {name}_ok')
        if sleep: a(f's_sleep {sleep}')
        a(f's_branch {name}')
        a.label(name + '_ok', fence=fence)

    wmap, _ = permute_weights(lambda m: 30 - 2*m)
    a(f'v_lshrrev_b32 v{VA}, 1, v{VI}')
    a(f'v_lshlrev_b32 v{VA}, 9, v{VA}')
    a(f'v_and_b32 v{VB}, 1, v{VI}')
    a(f'v_lshl_add_u32 v{VA}, v{VB}, 5, v{VA}')
    a(f'v_lshl_add_u32 v{VA}, v{VG}, 3, v{VA}')
    a(f's_lshl_b32 s{T2}, s{SB}, 6')
    a(f's_lshl_b32 s{T3}, s{WV}, 12')
    a(f's_add_u32 s{T2}, s{T2}, s{T3}')
    a(f's_add_u32 s{T2}, s{T2}, {WS_MOD}')
    a(f's_add_u32 s{T3}, s{T2}, 16384')
    stamp(0)
    if pd:
        a.label('L_pd')
        a('s_memrealtime s[92:93]')
        a('s_waitcnt lgkmcnt(0)')
        a('s_sub_u32 s92, s92, s94')
        a(f's_cmp_ge_u32 s92, {pd}')
        a('s_cbranch_scc1 L_pd_ok')
        a('s_sleep 2')
        a('s_branch L_pd')
        a.label('L_pd_ok')
    poll('L_poll_sa', [f'buffer_load_dwordx2 v[{RD}:{RD+1}], v{VA}, s[{SWS}:{SWS+3}], s{T2} offen sc1',
                       f'buffer_load_dwordx2 v[{RD+2}:{RD+3}], v{VA}, s[{SWS}:{SWS+3}], s{T3} offen sc1'], [RD+1, RD+3])
    stamp(10)
    one_plus(RD+2, U0, U1)
    modulate2(U2, U3, RD+2, RD, U0, U1, VD, HP)
    gemv(wmap, HP)
    a(f'v_lshlrev_b32 v{VA}, 5, v{VI}')
    a(f'v_lshl_add_u32 v{VA}, v{VG}, 3, v{VA}')
    a(f's_lshl_b32 s{T2}, s{WV}, 9')
    a(f'v_add_u32 v{VB}, s{T2}, v{VA}')
    a(f'ds_write_b64 v{VB}, v[{ACC}:{ACC+1}] offset:{L_QP}')
    a('s_waitcnt lgkmcnt(0)')
    a('s_barrier')
    stamp(1)

    if nopre:
        stamp(11)
        finish(SWS, 8)
    def late_mod():
        a(f's_sub_u32 s{T4}, s2, 64')
        a(f's_cmp_lt_u32 s2, 128')
        a('s_cbranch_scc1 L_v_moddone')
        mod_issue(cv)
        mod_compute(cv, 0, L_CNT+4, 'L_v_moddone')
        a.label('L_v_moddone')
    def wait_kend(name):
        if not lpl: return
        a(f'v_mov_b32 v{VC}, 0')
        lds_wait(name, VC, L_CNT+12, 1, 16)
    if lme: late_mod()
    if tlbv:
        srd(SW, 20, 0x10000000)
        a(f's_lshl_b32 s{T2}, s2, 20')
        a(f'v_mov_b32 v{VA}, 0')
        a('s_mov_b64 exec, 1')
        a(f'buffer_load_dword v8, v{VA}, s[{SW}:{SW+3}], s{T2} offen')
        a('s_mov_b64 exec, -1')
    if tlbo == 1:
        a(f'v_mov_b32 v{VA}, 0')
        a('s_mov_b64 exec, 1')
        a(f'buffer_load_dword v9, v{VA}, s[{SOUT}:{SOUT+3}], 0 offen sc1')
        a('s_mov_b64 exec, -1')
    srd(SW, 24, 4096*512*2)
    a(f'v_lshlrev_b32 v{VA}, 4, v{VI}')
    a(f'v_lshl_add_u32 v{VA}, v{VG}, 11, v{VA}')
    a(f's_lshl_b32 s{T2}, s{HD}, 17')
    if pre is not None and pre & 8: a(f's_mov_b32 s{T2}, 0')
    a(f's_lshl_b32 s{T3}, s{WV}, 8')
    a(f's_add_u32 s{T2}, s{T2}, s{T3}')
    for j in range(32 if (pre is None or pre & 2) else 0):
        if j >= SW_: a(f's_waitcnt vmcnt({SW_-1})')
        r = WR + 4*j
        a(f'buffer_load_dwordx4 v[{r}:{r+3}], v{VA}, s[{SW}:{SW+3}], s{T2} offen offset:{(j%2)*1024} {wopol}')
        if j % 2 == 1 and j < 31: a(f's_add_u32 s{T2}, s{T2}, 8192')
    wmap, _ = permute_weights(lambda m: 30 - 2*m)
    if not lme: late_mod()

    if pre is not None and not pre & 4:
        stamp(11)
        finish(SWS, 8)
    for r in (24, 25, 26, 27, 28, 29, 60, 61, 62, 63): a(f'v_mov_b32 v{r}, 0')
    a(f's_mov_b32 s{T5}, {WS_ACT}')
    a(f's_cmp_lt_u32 s{F1T}, {NF1}')
    a('s_cbranch_scc0 L_nof1w')
    if not dfw: f1_dma(VB, VC, SST, WV, F1T, T1, T2, STGB, SW_ < 8, fpol)
    AT = 27
    a(f'v_bfe_u32 v{VA}, v{VI}, 1, 1')
    a(f'v_mul_u32_u24 v{VA}, {2*STGW}, v{VA}')
    a(f'v_and_b32 v{VD}, 1, v{VI}')
    a(f'v_lshl_add_u32 v{VA}, v{VD}, 12, v{VA}')
    a(f'v_lshl_add_u32 v{VA}, v{VG}, 8, v{VA}')
    a(f'v_lshrrev_b32 v{VD}, 2, v{VI}')
    a(f'v_lshl_add_u32 v{VA}, v{VD}, 5, v{VA}')
    a(f's_lshl_b32 s{T2}, s{WV}, 3')
    a(f's_add_u32 s{T2}, s{T2}, {L_STG}')
    a(f'v_add_u32 v{AT}, s{T2}, v{VA}')
    def f1_tr():
        for s in range(8):
            o = (s >> 2)*STGW + (s & 3)*1024
            a(f'ds_read_b64_tr_b16 v[{BF+4*s}:{BF+4*s+1}], v{AT} offset:{o}')
            a(f'ds_read_b64_tr_b16 v[{BF+4*s+2}:{BF+4*s+3}], v{AT} offset:{o+128}')
    if not dfw:
        a(f'v_mov_b32 v{VC}, 0')
        a(f'v_mov_b32 v{VB}, 1')
        a('s_waitcnt vmcnt(0)')
        a('s_mov_b64 exec, 1')
        a(f'ds_add_u32 v{VC}, v{VB} offset:{L_CNT+20}')
        a('s_mov_b64 exec, -1')
        lds_wait('L_w_stg', VC, L_CNT+20, 4, 8)
        f1_tr()
    SBF = BF + 32; C1F = D1
    wait_kend('L_wk1')
    a(f'v_lshrrev_b32 v{VA}, 2, v0')
    a(f'v_lshlrev_b32 v{VA}, 9, v{VA}')
    a(f'v_and_b32 v{VB}, 3, v0')
    a(f'v_lshl_add_u32 v{VA}, v{VB}, 4, v{VA}')
    a(f's_lshl_b32 s{T0}, s{WV}, 7')
    SO = [T0, T1, T3, T6]
    a(f's_add_u32 s{T0}, s{T0}, {WS_MOD + 3*16384}')
    for k in range(1, 4): a(f's_add_u32 s{SO[k]}, s{T0}, {k*8192}')
    for rr in range(2):
        loads = []; tags = []
        for k in range(4):
            r = 8 + 4*k
            loads.append(f'buffer_load_dwordx4 v[{r}:{r+3}], v{VA}, s[{SWS}:{SWS+3}], s{SO[k]} offen offset:{rr*64} sc1')
            tags += [r+1, r+3]
        poll(f'L_poll_sb{rr}', loads, tags, sleep=32)
        for q in range(4):
            unpack(SBF+8*rr+2*q, SBF+8*rr+2*q+1, 8+4*(q>>1)+2*(q&1))
            c1 = C1F+8*rr+2*q
            unpack(c1, c1+1, 16+4*(q>>1)+2*(q&1))
            a(f'v_add_f32 v{c1}, 1.0, v{c1}')
            a(f'v_add_f32 v{c1+1}, 1.0, v{c1+1}')
            rnd2(c1, c1+1, U0)
    AH = 24; AA = 25; AS = 26
    a(f's_mul_i32 s{T2}, s{WV}, {2*H2S}')
    a(f'v_lshlrev_b32 v{AH}, 3, v0')
    a(f'v_add_u32 v{AH}, s{T2}, v{AH}')
    a(f'v_and_b32 v{AA}, 7, v0')
    a(f'v_mul_u32_u24 v{AA}, {H2S}, v{AA}')
    a(f'v_bfe_u32 v{VB}, v0, 3, 1')
    a(f'v_lshl_add_u32 v{AA}, v{VB}, 9, v{AA}')
    a(f'v_lshl_add_u32 v{AA}, v{VG}, 4, v{AA}')
    a(f'v_bfe_u32 v{AS}, v0, 4, 1')
    a(f'v_lshlrev_b32 v{AS}, 6, v{AS}')
    a(f'v_lshrrev_b32 v{VB}, 5, v0')
    a(f'v_lshl_add_u32 v{AS}, v{VB}, 5, v{AS}')
    a(f'v_bfe_u32 v{VB}, v0, 1, 1')
    a(f'v_lshl_add_u32 v{AS}, v{VB}, 4, v{AS}')
    a(f's_lshr_b32 s{T5}, s{F1T}, 2')
    a(f's_lshl_b32 s{T5}, s{T5}, 11')
    a(f's_bfe_u32 s{T2}, s{F1T}, 0x10001')
    a(f's_lshl_b32 s{T2}, s{T2}, 7')
    a(f's_add_u32 s{T5}, s{T5}, s{T2}')
    a(f's_and_b32 s{T2}, s{F1T}, 1')
    a(f's_lshl_b32 s{T2}, s{T2}, 9')
    a(f's_add_u32 s{T5}, s{T5}, s{T2}')
    a(f's_and_b32 s{T2}, s{WV}, 1')
    a(f's_lshl_b32 s{T2}, s{T2}, 10')
    a(f's_add_u32 s{T5}, s{T5}, s{T2}')
    a(f's_lshr_b32 s{T2}, s{WV}, 1')
    a(f's_lshl_b32 s{T2}, s{T2}, 8')
    a(f's_add_u32 s{T5}, s{T5}, s{T2}')
    a(f's_add_u32 s{T5}, s{T5}, {WS_ACT}')
    a('s_waitcnt lgkmcnt(0)')
    a('s_branch L_wdone')
    a.label('L_nof1w')
    a(f's_mov_b32 s{T0}, s{F2T}')
    a(f's_cmp_lt_u32 s{T0}, 32')
    a('s_cbranch_scc0 L_wdone')
    AT2 = 38
    tr_addr(cv, AT2)
    if not dfw:
        f2_dma(VB, VC, SST, WV, T0, T1, T2, T3, STGB, SW_ < 8, fpol)
        a('s_waitcnt vmcnt(0)')
        for s in range(12): tr_read(BF + 4*s, AT2, s)
    GBP = 125
    wait_kend('L_wk2')
    a(f'v_lshlrev_b32 v{VA}, 3, v0')
    a(f's_lshl_b32 s{T2}, s{T0}, 9')
    a(f's_add_u32 s{T2}, s{T2}, {WS_MOD + 5*16384}')
    poll('L_poll_gb', [f'buffer_load_dwordx2 v[8:9], v{VA}, s[{SWS}:{SWS+3}], s{T2} offen sc1'], [9], sleep=32)
    a(f'v_mov_b32 v{GBP}, v8')
    AD = 24; VM = 30; AX = 60; AR = 61; AO = 62; AW = 63
    a(f'v_bfe_u32 v{VB}, v0, 3, 1')
    a(f's_mul_i32 s{T3}, s{WV}, 12')
    a(f'v_add_u32 v{VB}, s{T3}, v{VB}')
    a(f'v_and_b32 v{VA}, {0x3f0 & ~0x80}, v1')
    a(f'v_add_u32 v{VA}, {21*2048}, v{VA}')
    a(f's_mul_i32 s{T3}, s{WV}, {6*2048}')
    for u in range(6):
        a(f'v_add_u32 v{VC}, {2*u}, v{VB}')
        a(f'v_cmp_gt_u32 vcc, 43, v{VC}')
        a(f'v_cndmask_b32 v{VM+u}, 0, -1, vcc')
        a(f'v_add_u32 v{VC}, s{T3}, v1')
        a(f'v_cndmask_b32 v{AD+u}, v{VA}, v{VC}, vcc')
        if u < 5: a(f's_add_u32 s{T3}, s{T3}, 2048')
    a(f'v_lshrrev_b32 v{AX}, 3, v0')
    a(f'v_lshlrev_b32 v{AO}, 10, v{AX}')
    a(f'v_lshlrev_b32 v{AX}, 12, v{AX}')
    a(f'v_and_b32 v{VB}, 7, v0')
    a(f'v_lshl_add_u32 v{AX}, v{VB}, 3, v{AX}')
    a(f'v_lshl_add_u32 v{AO}, v{VB}, 2, v{AO}')
    red_addr(cv, AR)
    a(f's_lshl_b32 s{T2}, s{WV}, 10')
    a(f'v_add_u32 v{AW}, s{T2}, v1')
    a('s_waitcnt lgkmcnt(0)')
    a.label('L_wdone')
    GAP = 124; XR1 = 126; AQ = 36; A64 = 37
    wait_kend('L_wk3')
    a(f'v_and_b32 v{VB}, 3, v0')
    a(f'v_lshrrev_b32 v{VC}, 5, v0')
    a(f'v_lshl_add_u32 v{VB}, v{VB}, 1, v{VC}')
    a(f'v_lshlrev_b32 v{AQ}, 3, v{VB}')
    a(f's_lshl_b32 s{T2}, s{SB}, 6')
    a(f's_lshl_b32 s{T3}, s{SH}, 9')
    a(f's_add_u32 s{T2}, s{T2}, s{T3}')
    a(f's_add_u32 s{T2}, s{T2}, {WS_MOD + 2*16384}')
    poll('L_poll_ga', [f'buffer_load_dwordx2 v[8:9], v{AQ}, s[{SWS}:{SWS+3}], s{T2} offen sc1'], [9], sleep=32)
    a(f'v_mov_b32 v{GAP}, v8')
    a(f'v_lshlrev_b32 v{VA}, 2, v{VB}')
    a(f's_lshl_b32 s{T2}, s{SB}, 10')
    a(f's_lshl_b32 s{T3}, s{SH}, 5')
    a(f's_add_u32 s{T2}, s{T2}, s{T3}')
    a(f'buffer_load_dword v{XR1}, v{VA}, s[{SX}:{SX+3}], s{T2} offen')
    a(f'v_lshlrev_b32 v{VA}, 5, v{VI}')
    a(f'v_lshl_add_u32 v{VA}, v{VG}, 3, v{VA}')
    a(f'v_lshrrev_b32 v{VB}, 2, v{VI}')
    a(f'v_lshlrev_b32 v{VB}, 12, v{VB}')
    a(f'v_and_b32 v{VC}, 3, v{VI}')
    a(f'v_lshl_add_u32 v{VB}, v{VC}, 5, v{VB}')
    a(f'v_lshl_add_u32 v{VB}, v{VG}, 3, v{VB}')
    a(f'v_lshrrev_b32 v{A64}, 2, v0')
    a(f'v_lshlrev_b32 v{A64}, 7, v{A64}')
    a(f'v_and_b32 v{VC}, 3, v0')
    a(f'v_lshl_add_u32 v{A64}, v{VC}, 4, v{A64}')
    a(f's_lshl_b32 s{T4}, s{SB}, 16')
    a(f's_lshl_b32 s{T3}, s{WV}, 14')
    a(f's_add_u32 s{T4}, s{T4}, s{T3}')
    a(f's_lshl_b32 s{T3}, s{HD}, 7')
    a(f's_add_u32 s{T4}, s{T4}, s{T3}')
    a(f's_add_u32 s{T4}, s{T4}, {WS_WOP}')
    NP = 8; NC = 16
    a(f'v_lshrrev_b32 v{VC}, 5, v0')
    a(f'v_lshlrev_b32 v{VC}, 4, v{VC}')
    a(f'v_lshrrev_b32 v{NP}, v{VC}, s{TAG}')
    a(f'v_and_b32 v{VC}, 1, v0')
    a(f'v_lshlrev_b32 v{VC}, 4, v{VC}')
    a(f'v_lshrrev_b32 v{NC}, v{VC}, s{TAG}')
    for k in range(1, 4):
        a(f'v_lshrrev_b32 v{NP+k}, {4*k}, v{NP}')
        a(f'v_lshrrev_b32 v{NC+k}, {4*k}, v{NC}')
    a('s_waitcnt vmcnt(0)')
    stamp(11)
    if dry or dry2:
        a(f's_mov_b64 s[{DRY}:{DRY+1}], 0')
        a('s_mov_b64 exec, 0')
        a('s_nop 4')
        a('s_branch L_vlast' if dry2 else 's_branch L_t1')
        a.label('L_real')
        a(f's_mov_b64 s[{DRY}:{DRY+1}], -1')
        a('s_mov_b64 exec, -1')
    a(f'v_mov_b32 v{VC}, 0')
    for e in range(8): a(f'v_mov_b32 v{ACC+e}, 0')
    lds_wait('L_w_stat', VC, L_CNT+8, 4, wsl, fence=not nf)
    stamp(8)
    if dry: a.label('L_t1', fence=False)
    LO = L_OP
    for w in range(4):
        a(f'ds_read_b64 v[{RD+2*w}:{RD+2*w+1}], v{VA} offset:{LO + w*512}')
    a('s_waitcnt lgkmcnt(0)')
    for k in range(4): a(f'v_add_f32 v{RD+k}, v{RD+k}, v{RD+k+4}')
    for k in range(2): a(f'v_add_f32 v{RD+k}, v{RD+k}, v{RD+k+2}')
    a(f'v_cvt_pk_bf16_f32 v{HP}, v{RD}, v{RD+1}')
    if dbg:
        a(f's_lshl_b32 s{T2}, s{SB}, 5')
        a(f's_or_b32 s{T2}, s{T2}, s{HD}')
        a(f's_lshl_b32 s{T2}, s{T2}, 8')
        a(f's_add_u32 s{T2}, s{T2}, {WS_DBG + 0x10000}')
        a(f'v_lshrrev_b32 v{VC}, 1, v{VA}')
        a(f'buffer_store_dword v{HP}, v{VC}, s[{SWS}:{SWS+3}], s{T2} offen')
    gemv(wmap, HP, zero=False)
    a(f'v_add_u32 v{ACC}, 8, v{ACC}')
    a(f'v_add_u32 v{ACC+1}, 8, v{ACC+1}')
    a(f'v_mov_b32 v{ACC+2}, v{ACC}')
    a(f'v_mov_b32 v{ACC+3}, v{ACC+1}')
    a(f'v_permlane16_swap_b32 v{ACC}, v{ACC+2}')
    a(f'v_permlane16_swap_b32 v{ACC+1}, v{ACC+3}')
    for k in range(4): a(f'v_bfi_b32 v{RD+k}, 15, v{NP+k}, v{ACC+k}')
    ex_mask(dry, '0xffff', '0xffff')
    a(f'buffer_store_dwordx4 v[{RD}:{RD+3}], v{VB}, s[{SWS}:{SWS+3}], s{T4} offen sc1')
    ex_full(dry)
    stamp(2)
    if notail: finish(SWS, 8)
    if xa:
        a(f'v_mov_b32 v{VC}, 0')
        a(f'ds_read_b32 v{VD}, v{VC} offset:{L_CNT+16}')
        a('s_waitcnt lgkmcnt(0)')
        a(f'v_readfirstlane_b32 s{T3}, v{VD}')
        a(f's_add_u32 s{T3}, s{T3}, {tsched(512) + bo1}')
        a(f's_mov_b32 s{SPIN}, 0')
        a.label('L_xa')
        a('s_memrealtime s[92:93]')
        a('s_waitcnt lgkmcnt(0)')
        a(f's_sub_u32 s92, s92, s{T3}')
        a('s_cmp_ge_i32 s92, 0')
        a('s_cbranch_scc1 L_xa_ok')
        a(f's_add_u32 s{SPIN}, s{SPIN}, 1')
        a(f's_cmp_lt_u32 s{SPIN}, 64')
        a('s_cbranch_scc1 L_xa')
        a.label('L_xa_ok')
        stamp(6)
        a(f's_lshl_b32 s{T2}, s{SB}, 16')
        a(f's_lshl_b32 s{T3}, s{WV}, 14')
        a(f's_add_u32 s{T2}, s{T2}, s{T3}')
        a(f's_add_u32 s{T2}, s{T2}, {WS_WOP}')
        for j in range(xa):
            a(f'buffer_load_dwordx4 v[{WR+4*j}:{WR+4*j+3}], v1, s[{SWS}:{SWS+3}], s{T2} offen offset:{(j%4)*1024} {xapol}')
            if j % 4 == 3: a(f's_add_u32 s{T2}, s{T2}, 4096')
        a('s_waitcnt vmcnt(0)')
        stamp(7)
        finish(SWS, 8)
    a(f's_cmp_lt_u32 s{F1T}, {NF1}')
    a('s_cbranch_scc1 L_gate')
    a(f's_mov_b32 s{T0}, s{F2T}')
    a(f's_cmp_lt_u32 s{T0}, 32')
    a('s_cbranch_scc1 L_gate')
    a(f's_cmp_eq_u32 s{WV}, 0')
    a('s_cbranch_scc1 L_gate')
    a('s_branch L_fin')
    a.label('L_gate')
    a(f's_cmp_lg_u32 s{WV}, 0')
    a('s_cbranch_scc1 L_r1done')
    a(f's_lshr_b32 s{T2}, s2, 1')
    a(f's_lshl_b32 s{T2}, s{T2}, 12')
    a(f's_and_b32 s{T3}, s2, 1')
    a(f's_lshl_b32 s{T3}, s{T3}, 6')
    a(f's_add_u32 s{T2}, s{T2}, s{T3}')
    a(f's_add_u32 s{T2}, s{T2}, {WS_WOP}')
    loads = [f'buffer_load_dwordx4 v[{8+4*j}:{8+4*j+3}], v{A64}, s[{SWS}:{SWS+3}], s{T2} offen offset:{j*2048} sc1' for j in range(2)]
    def chk8():
        a(f'v_xor_b32 v{VD}, v8, v{NC}')
        for r in range(9, 16): a(f'v_bitop3_b32 v{VD}, v{r}, v{NC + (r & 3)}, v{VD} bitop3:0xbe')
        a(f'v_and_b32 v{VD}, 15, v{VD}')
    if bo1 is not None:
        a(f'v_mov_b32 v{VC}, 0')
        a(f'ds_read_b32 v{VD}, v{VC} offset:{L_CNT+16}')
        a('s_waitcnt lgkmcnt(0)')
        a(f'v_readfirstlane_b32 s{T3}, v{VD}')
        a(f's_add_u32 s{T3}, s{T3}, {tsched(512) + bo1}')
        a(f's_mov_b32 s{SPIN}, 0')
        if dry: a(f's_andn2_b32 s{SPIN}, 64, s{DRY}')
        a.label('L_bo1', fence=not nf)
        a('s_memrealtime s[92:93]')
        a('s_waitcnt lgkmcnt(0)')
        a(f's_sub_u32 s92, s92, s{T3}')
        a('s_cmp_ge_i32 s92, 0')
        a('s_cbranch_scc1 L_bo1_ok')
        a(f's_add_u32 s{SPIN}, s{SPIN}, 1')
        a(f's_cmp_lt_u32 s{SPIN}, 64')
        a('s_cbranch_scc1 L_bo1')
        a.label('L_bo1_ok', fence=not nf)
    poll('L_poll_wop', loads, None, chk=chk8, fence=not nf)
    if tst: stamp(6); a(f's_mov_b32 s5, s{SPIN}')
    for r in range(8, 16): a(f'v_and_b32 v{r}, -16, v{r}')
    a('v_pk_add_f32 v[8:9], v[8:9], v[12:13]')
    a('v_pk_add_f32 v[10:11], v[10:11], v[14:15]')
    a('v_permlane32_swap_b32 v8, v10')
    a('v_permlane32_swap_b32 v9, v11')
    a('v_pk_add_f32 v[8:9], v[8:9], v[10:11]')
    a('v_mov_b32 v10, v8'); a('v_mov_b32 v11, v9')
    a('v_permlane16_swap_b32 v8, v10')
    a('v_permlane16_swap_b32 v9, v11')
    a('v_pk_add_f32 v[8:9], v[8:9], v[10:11]')
    for ctl_ in ('row_ror:4', 'row_ror:8'):
        for k in range(2): a(f'v_add_f32_dpp v{8+k}, v{8+k}, v{8+k} {ctl_} row_mask:0xf bank_mask:0xf')
    rnd2(8, 9, VD)
    modulate2(8, 9, GAP, XR1, U2, U3, VD, RD)
    a(f'v_mov_b32 v{RD+1}, s{TAG}')
    a(f's_lshl_b32 s{T2}, s2, 7')
    a(f's_add_u32 s{T2}, s{T2}, {WS_X1}')
    ex_mask(dry, '0xf', '0xf')
    a(f'buffer_store_dwordx2 v[{RD}:{RD+1}], v{AQ}, s[{SWS}:{SWS+3}], s{T2} offen sc1')
    ex_full(dry)
    stamp(3)
    a.label('L_r1done', fence=not nf)
    if g1: tbar(dry)
    a(f's_cmp_lt_u32 s{F1T}, {NF1}')
    a('s_cbranch_scc0 L_notf1')
    if dfw: f1_tr()
    a(f's_lshl_b32 s{T2}, s{WV}, 13')
    a(f's_add_u32 s{T2}, s{T2}, {WS_X1}')
    a(f's_add_u32 s{T3}, s{T2}, 4096')
    a('s_mov_b32 s32, 0x11111111'); a('s_mov_b32 s33, 0x11111111')
    loads = [f'buffer_load_dwordx4 v[{8+4*j}:{8+4*j+3}], v{A64}, s[{SWS}:{SWS+3}], s{T3 if j >> 1 else T2} offen offset:{(j&1)*2048} sc1' for j in range(4)]
    if bo2: a(f's_sleep {bo2}')
    poll('L_poll_x1', loads, [9, 11, 13, 15, 17, 19, 21, 23], fence=not nf)
    if tst: stamp(7); a(f's_mov_b32 s15, s{SPIN}')
    XV = WR; DV = WR + 16; PS = WR + 32; X0V = WR + 44; TT = WR + 45; HO = WR + 48; AF = WR + 64
    def pr(r): return f'v[{r}:{r+1}]'
    BC = 'op_sel_hi:[1,0]'; NG = 'neg_lo:[0,1] neg_hi:[0,1]'
    for rr in range(2):
        for q in range(4):
            src = 8 + 4*(2*rr + q//2) + 2*(q % 2)
            unpack(XV + 8*rr + 2*q, XV + 8*rr + 2*q + 1, src)
            if q == 0: a(f'v_readfirstlane_b32 s{22+2*rr}, v{XV+8*rr}')
    for rr in range(2):
        for q in range(4):
            a(f'v_pk_add_f32 {pr(DV+8*rr+2*q)}, {pr(XV+8*rr+2*q)}, s[{22+2*rr}:{23+2*rr}] {BC} {NG}')
    a(f'v_mov_b32 v{X0V}, s24'); a(f'v_mov_b32 v{TT}, s22')
    a(f'v_cndmask_b32 v{X0V}, v{X0V}, v{TT}, s[{LO32}:{LO32+1}]')
    S_ = [PS, PS+2]; Q_ = [PS+4, PS+6]; Z_ = [PS+8, PS+10]
    for rr in range(2): a(f'v_pk_add_f32 {pr(S_[rr])}, {pr(DV+8*rr)}, {pr(DV+8*rr+2)}')
    for rr in range(2): a(f'v_pk_add_f32 {pr(Z_[rr])}, {pr(DV+8*rr+4)}, {pr(DV+8*rr+6)}')
    for rr in range(2): a(f'v_pk_mul_f32 {pr(Q_[rr])}, {pr(DV+8*rr)}, {pr(DV+8*rr)}')
    for rr in range(2): a(f'v_pk_add_f32 {pr(S_[rr])}, {pr(S_[rr])}, {pr(Z_[rr])}')
    for q in range(1, 4):
        for rr in range(2): a(f'v_pk_fma_f32 {pr(Q_[rr])}, {pr(DV+8*rr+2*q)}, {pr(DV+8*rr+2*q)}, {pr(Q_[rr])}')
    for r in S_ + Q_: a(f'v_add_f32 v{r}, v{r}, v{r+1}')
    a(f'v_permlane32_swap_b32 v{S_[0]}, v{S_[1]}')
    a(f'v_permlane32_swap_b32 v{Q_[0]}, v{Q_[1]}')
    a(f'v_add_f32 v{S_[0]}, v{S_[0]}, v{S_[1]}')
    a(f'v_add_f32 v{Q_[0]}, v{Q_[0]}, v{Q_[1]}')
    a(f'v_permlane16_swap_b32 v{S_[0]}, v{Q_[0]}')
    T_ = S_[0]; C_ = Q_[0]
    a(f'v_add_f32 v{T_}, v{S_[0]}, v{Q_[0]}')
    for ctl_ in ('quad_perm:[1,0,3,2]', 'quad_perm:[2,3,0,1]', 'row_half_mirror', 'row_mirror'):
        a(f'v_add_f32_dpp v{T_}, v{T_}, v{T_} {ctl_} row_mask:0xf bank_mask:0xf')
    a(f'v_mul_f32 v{T_}, {f32(1/512)}, v{T_}')
    a(f'v_mov_b32 v{C_}, v{T_}')
    a(f'v_permlane16_swap_b32 v{T_}, v{C_}')
    a(f'v_add_f32 v{X0V}, v{X0V}, v{T_}')
    a(f'v_fma_f32 v{C_}, -v{T_}, v{T_}, v{C_}')
    a(f'v_max_f32 v{C_}, 0, v{C_}')
    rnd2(X0V, C_, TT)
    a(f'v_add_f32 v{C_}, {f32(1e-5)}, v{C_}')
    a(f'v_readlane_b32 s22, v{X0V}, 0'); a(f'v_readlane_b32 s24, v{X0V}, 32')
    rnd1(C_, TT)
    a(f'v_sqrt_f32 v{C_}, v{C_}')
    P8 = [(rr, q) for rr in range(2) for q in range(4)]
    def X(rr, q): return XV + 8*rr + 2*q
    def rnd_all():
        for n_, (rr, q) in enumerate(P8): a(f'v_cvt_pk_bf16_f32 v{DV+n_}, v{X(rr,q)}, v{X(rr,q)+1}')
        for n_, (rr, q) in enumerate(P8):
            a(f'v_lshlrev_b32 v{X(rr,q)}, 16, v{DV+n_}')
            a(f'v_and_b32 v{X(rr,q)+1}, 0xffff0000, v{DV+n_}')
    for rr, q in P8[:2]: a(f'v_pk_add_f32 {pr(X(rr,q))}, {pr(X(rr,q))}, s[{22+2*rr}:{23+2*rr}] {BC} {NG}')
    rnd1(C_, TT)
    a(f'v_rcp_f32 v{C_}, v{C_}')
    for rr, q in P8[2:]: a(f'v_pk_add_f32 {pr(X(rr,q))}, {pr(X(rr,q))}, s[{22+2*rr}:{23+2*rr}] {BC} {NG}')
    a(f'v_readlane_b32 s26, v{C_}, 0'); a(f'v_readlane_b32 s28, v{C_}, 32')
    rnd_all()
    for rr, q in P8: a(f'v_pk_mul_f32 {pr(X(rr,q))}, {pr(X(rr,q))}, s[{26+2*rr}:{27+2*rr}] {BC}')
    rnd_all()
    for rr, q in P8: a(f'v_pk_mul_f32 {pr(X(rr,q))}, {pr(X(rr,q))}, {pr(C1F+8*rr+2*q)}')
    rnd_all()
    for rr, q in P8: a(f'v_pk_add_f32 {pr(X(rr,q))}, {pr(X(rr,q))}, {pr(SBF+8*rr+2*q)}')
    for rr in range(2):
        for hf in range(2):
            r = HO + 4*rr + 2*hf
            for k in range(2): a(f'v_cvt_pk_bf16_f32 v{r+k}, v{X(rr,2*hf+k)}, v{X(rr,2*hf+k)+1}')
            a(f'ds_write_b64 v{AH}, v[{r}:{r+1}] offset:{L_H2 + rr*H2S + hf*512}')
    a('s_waitcnt lgkmcnt(0)')
    if tst: stamp(9)
    tbar(dry)
    if tst: stamp(0)
    for s in range(8): a(f'ds_read_b128 v[{AF+4*s}:{AF+4*s+3}], v{AA} offset:{L_H2 + s*64}')
    a(f'v_mov_b32 v{RD+5}, s{TAG}'); a(f'v_mov_b32 v{RD+7}, s{TAG}')
    a('s_mov_b64 vcc, s[32:33]')
    for s in range(8):
        a(f's_waitcnt lgkmcnt({7-s})')
        mf(RD, AF+4*s, BF+4*s, s == 0)
    a(f'v_permlane32_swap_b32 v{RD}, v{RD+2}')
    a(f'v_permlane32_swap_b32 v{RD+1}, v{RD+3}')
    for k in range(2): a(f'v_add_f32_dpp v{RD+k}, v{RD+2+k}, v{RD+k} row_ror:8 row_mask:0xf bank_mask:0xf')
    rnd2(RD, RD+1, VD)
    for k in range(2): a(f'v_mov_b32_dpp v{U0+k}, v{RD+k} row_shl:4 row_mask:0xf bank_mask:0xf')
    silu(RD, VB, WR, WR+1); silu(RD+1, VC, WR+2, WR+3)
    rnd2(RD, RD+1, VD)
    for k in range(2): a(f'v_mul_f32 v{RD+k}, v{RD+k}, v{U0+k}')
    for k in range(2): a(f'v_mov_b32_dpp v{U0+k}, v{RD+k} quad_perm:[1,0,3,2] row_mask:0xf bank_mask:0xf')
    for k in range(2): a(f'v_cvt_pk_bf16_f32 v{RD+k}, v{RD+k}, v{U0+k}')
    a(f'v_cndmask_b32_dpp v{RD+4}, v{RD+1}, v{RD}, vcc quad_perm:[0,0,0,0] row_mask:0xf bank_mask:0xf')
    a('s_not_b64 vcc, vcc')
    a(f'v_cndmask_b32_dpp v{RD+6}, v{RD}, v{RD+1}, vcc quad_perm:[2,2,2,2] row_mask:0xf bank_mask:0xf')
    ex_mask(dry, '0x00050005', '0x00050005')
    a(f'buffer_store_dwordx4 v[{RD+4}:{RD+7}], v{AS}, s[{SWS}:{SWS+3}], s{T5} offen sc1')
    stamp(4)
    a('s_branch L_fin')
    a.label('L_notf1')
    a(f's_mov_b32 s{T0}, s{F2T}')
    a(f's_cmp_lt_u32 s{T0}, 32')
    a('s_cbranch_scc0 L_fin')
    if dfw:
        for s in range(12): tr_read(BF + 4*s, AT2, s)
    a(f's_mov_b32 s{T2}, {WS_ACT}')
    loads = []; tags = []
    for u in range(6):
        for k in range(2):
            r = WR + 8*u + 4*k
            loads.append(f'buffer_load_dwordx4 v[{r}:{r+3}], v{AD+u}, s[{SWS}:{SWS+3}], s{T2} offen offset:{1024*k} sc1')
            tags += [r+1, r+3]
    a(f's_lshl_b32 s{T1}, s{T0}, 7')
    a(f's_add_u32 s{T1}, s{T1}, {WS_X1}')
    X1R = WR + 48
    if bo2: a(f's_sleep {bo2}')
    poll('L_poll_x1b', [f'buffer_load_dwordx2 v[{X1R}:{X1R+1}], v{AX}, s[{SWS}:{SWS+3}], s{T1} offen sc1'], [X1R+1])
    def gen_update(lab):
        a(f's_or_b32 s{T3}, s{T0}, s{WV}')
        a(f's_cmp_lg_u32 s{T3}, 0')
        a(f's_cbranch_scc1 {lab}')
        a(f's_sub_u32 s{T3}, s{TAG}, {TAGC - 0x11111111}')
        a(f'v_mov_b32 v{VB}, s{T3}')
        a(f'v_mov_b32 v{VA}, 0')
        ex_mask(dry, 1, 0)
        a(f'buffer_store_dword v{VB}, v{VA}, s[{SWS}:{SWS+3}], 0 offen offset:{WS_GEN} sc1')
        ex_full(dry)
    if gene:
        gen_update('L_gen_done'); a.label('L_gen_done')
    if tlbo >= 2:
        a(f's_lshl_b32 s{T3}, s{T0}, 5')
        a(f'buffer_load_dword v{X1R+2}, v{AO}, s[{SOUT}:{SOUT+3}], s{T3} offen {"sc1" if tlbo == 3 else ""}')
    if g2: poll('L_poll_act0', loads[:1], tags[:2])
    if bo3: a(f's_sleep {bo3}')
    poll('L_poll_act', loads, tags, fence=not nf)
    if tst: stamp(7); a(f's_mov_b32 s15, s{SPIN}')
    AF = WR + 64
    a('s_waitcnt lgkmcnt(0)')
    for u in range(6):
        for k in range(4):
            a(f'v_and_b32 v{AF+4*u+k}, v{VM+u}, v{WR+8*u+2*k}')
        mf(D1, AF+4*u, BF+8*u, u == 0); mf(D2, AF+4*u, BF+8*u+4, u == 0)
    sel_halves(cv, RD, D1, D2)
    a(f'ds_write_b128 v{AW}, v[{RD}:{RD+3}] offset:{L_RED}')
    a('s_waitcnt lgkmcnt(0)')
    tbar(dry)
    if tst: stamp(10)
    a(f's_cmp_lg_u32 s{WV}, 0')
    a('s_cbranch_scc1 L_fin')
    red_sum(cv, U0, AR, L_RED, WR)
    rnd2(U0, U1, VD)
    modulate2(U0, U1, GBP, X1R, U2, U3, VD, RD)
    a(f's_lshl_b32 s{T2}, s{T0}, 5')
    a(f'buffer_store_dword v{RD}, v{AO}, s[{SOUT}:{SOUT+3}], s{T2} offen {opol}')
    stamp(5)
    if tst:
        a('s_waitcnt vmcnt(0)'); stamp(9)
    if not gene: gen_update('L_fin')
    if hold:
        a('s_waitcnt vmcnt(0)')
        a.label('L_hold')
        a('s_memrealtime s[92:93]')
        a('s_waitcnt lgkmcnt(0)')
        a('s_sub_u32 s92, s92, s94')
        a(f's_cmp_lt_u32 s92, {hold}')
        a('s_cbranch_scc1 L_hold')
    a.label('L_fin', fence=stamps)
    if dry: a('s_cbranch_execz L_real')
    if stamps: finish(SWS, 8)
    a.label('L_end', fence=False)
    a('s_endpgm')
    a.raw('.section .rodata,"a"')
    a.raw('.p2align 6')
    a.raw(f'.amdhsa_kernel {NAME}')
    a.raw('  .amdhsa_next_free_vgpr 256')
    a.raw('  .amdhsa_next_free_sgpr 96')
    a.raw('  .amdhsa_accum_offset 256')
    a.raw('  .amdhsa_group_segment_fixed_size 0')
    a.raw('  .amdhsa_kernarg_size 112')
    a.raw('  .amdhsa_user_sgpr_count 2')
    a.raw('  .amdhsa_user_sgpr_kernarg_segment_ptr 1')
    a.raw('  .amdhsa_system_sgpr_workgroup_id_x 1')
    a.raw('  .amdhsa_float_denorm_mode_32 3')
    a.raw('.end_amdhsa_kernel')
    return a.text()

if __name__ == '__main__':
    import json
    out = sys.argv[1] if len(sys.argv) > 1 else 'adaLN_cond__mha_block_cached__swiglu_ffn__decode.s'
    kw = json.loads(sys.argv[2]) if len(sys.argv) > 2 else {}
    open(out, 'w').write(gen(**kw))
    print('wrote', out)
```

```python
import sys, struct
from asmlib import Asm

NAME = 'adaLN_cond__mha_block_cached__swiglu_ffn__decode_kernel'

def f32(x):
    return '0x%08x' % struct.unpack('<I', struct.pack('<f', x))[0]

L2E = 1.4426950408889634
WS_GEN = 0
WS_MOD = 0x1000
WS_X1 = 0x20000
WS_ACT = 0x28000
WS_HEAD = 0x38000
WS_MST = 0x48000
WS_WOP = 0x100000
WS_P = 0x200000
WS_SLOT = 0x800000
WS_DBG = 0x2000000
WS_SIZE = 0x40000000
L_CNT = 0x0
L_MX = 0x40
L_QP = 0x100
L_OP = 0x900
L_RED = 0x1100
L_H2 = 0x3100; H2S = 1040
L_SC = 0x5200
L_OS = 0x9200
L_STG = 0x9A00; STGW = 12288
L_DUM = L_STG + 4 * STGW
LDS_SIZE = L_DUM + 4096
NF1 = 86
LAYOUT = 7
F2_BASE = 96
SPIN_MAX = 100000
NSH = 32
TAGC = 0x5bd1e995

def gen(dbg=False, W=6, VW=4, W0=6, nA=4, kpol='nt', wpol='nt', stamps=False, gate=False, notail=False,
        gsleep=4, b0wq=0, sprio=2, mprio=3, boost=2, sboost=3, n0=0, WQ=32, SW_=2,
        wqpol=None, wopol=None, mpol=None, fpol=None, nopre=False, pre=None, dst=False, perm=False, hold=0,
        lv=None, th=(70, -70), tK=900, sK=14.9, tV=4230, sV=13.46, lv0=None, g1=False, g2=False, rel=False, dl=0, MB=88, DD=2, MSTR=8192, CSTR=256, tst=False, tlbv=False, tlbo=False, mlp='', agg='mean', noml=False, nomst=False, msp='sc1', thv=None, pd=0, lme=False, lpl=False, gene=False, dfw=False, dpol=None, bo1=None, bo2=0, bo3=0, dry=False, dry2=False, nf=False, sst=False, pf=0, pfW=6, pfpol='', hmap=0, wqn=32, sst2=False, opol='', wsl=1, xa=0, xapol='sc1', eb=None, slp=0, tpr=False, tb2=None, tb3=None, exa=12, exx=4, xs=7, acs=7, xfl=False, cmap=False, rep=0, wx=0, numa=0):
    X1B = WS_X1 if xs == 7 else 0x180000
    ACTB = WS_ACT if acs == 7 else 0x60000
    assert xs <= 11 and acs <= 10
    XCS = 32768; ACS = 0xC000
    if rep & 1:
        assert xs == 7 and xfl; X1B = 0x180000
    if rep & 2:
        assert acs == 7; ACTB = 0x60000
    assert g1 or not dfw
    thv = th if thv is None else thv
    if dst: stamps = True
    wqpol = wpol if wqpol is None else wqpol; wopol = wpol if wopol is None else wopol
    mpol = wpol if mpol is None else mpol; fpol = wpol if fpol is None else fpol
    a = Asm()
    hdr = open('adaLN_cond__mha_block_cached__swiglu_ffn__decode.s.ref').read().split('\n')
    for l in hdr:
        if l.startswith('; @launch'): break
        a.raw(l)
    a.raw(f'; @launch grid=(256,1,1) block=(512,1,1) lds={LDS_SIZE}')
    a.raw('.amdgcn_target "amdgcn-amd-amdhsa--gfx950"')
    a.raw('.text')
    a.raw(f'.globl {NAME}')
    a.raw('.p2align 8')
    a.raw(f'.type {NAME},@function')
    a.raw(f'{NAME}:')

    def srd(d, p, size):
        a(f's_mov_b32 s{d}, s{p}')
        a(f's_mov_b32 s{d+1}, s{p+1}')
        a(f's_mov_b32 s{d+2}, {size}')
        a(f's_mov_b32 s{d+3}, 0x00020000')

    def rnd1(x, t):
        a(f'v_cvt_pk_bf16_f32 v{t}, v{x}, v{x}')
        a(f'v_lshlrev_b32 v{x}, 16, v{t}')
    def rnd2(x, y, t):
        a(f'v_cvt_pk_bf16_f32 v{t}, v{x}, v{y}')
        a(f'v_lshlrev_b32 v{x}, 16, v{t}')
        a(f'v_and_b32 v{y}, 0xffff0000, v{t}')
    def unpack(lo, hi, src):
        a(f'v_lshlrev_b32 v{lo}, 16, v{src}')
        a(f'v_and_b32 v{hi}, 0xffff0000, v{src}')
    def wave_reduce(op, regs, tmps):
        for ctl in ('quad_perm:[1,0,3,2]', 'quad_perm:[2,3,0,1]', 'row_half_mirror', 'row_mirror'):
            for r in regs:
                a(f'{op}_dpp v{r}, v{r}, v{r} {ctl} row_mask:0xf bank_mask:0xf')
        for sw in ('v_permlane16_swap_b32', 'v_permlane32_swap_b32'):
            for r, t in zip(regs, tmps): a(f'v_mov_b32 v{t}, v{r}')
            for r, t in zip(regs, tmps): a(f'{sw} v{r}, v{t}')
            for r, t in zip(regs, tmps): a(f'{op} v{r}, v{r}, v{t}')
    def greduce8(acc):
        for e in range(4): a(f'v_permlane32_swap_b32 v{acc+e}, v{acc+e+4}')
        for e in range(4): a(f'v_add_f32 v{acc+e}, v{acc+e}, v{acc+e+4}')
        for e in range(2): a(f'v_permlane16_swap_b32 v{acc+e}, v{acc+e+2}')
        for e in range(2): a(f'v_add_f32 v{acc+e}, v{acc+e}, v{acc+e+2}')
    def silu(x, t, t2, t3):
        a(f'v_mul_f32 v{t}, {f32(-L2E)}, v{x}')
        a(f'v_exp_f32 v{t}, v{t}')
        a(f'v_add_f32 v{t}, 1.0, v{t}')
        a(f'v_min_f32 v{t}, 0x7f7fffff, v{t}')
        a(f'v_rcp_f32 v{t2}, v{t}')
        a(f'v_mul_f32 v{t3}, v{x}, v{t2}')
        a(f'v_fma_f32 v{x}, -v{t3}, v{t}, v{x}')
        a(f'v_fma_f32 v{x}, v{x}, v{t2}, v{t3}')
    STP = 92
    def stamp(idx):
        if not stamps: return
        a(f's_memrealtime s[{STP}:{STP+1}]')
        a('s_waitcnt lgkmcnt(0)')
        a(f's_mov_b32 s{4+idx}, s{STP}')
    def finish(ws_srd, vt, role='v'):
        if dst:
            a('s_mov_b64 exec, -1')
            a(f'v_mov_b32 v{vt}, 0')
            if role == 's':
                a(f's_not_b32 s{STP}, s4'); a(f'v_writelane_b32 v{vt}, s{STP}, 0')
                a(f'v_writelane_b32 v{vt}, s4, 1')
                a(f'v_writelane_b32 v{vt}, s5, 2')
                a(f'v_writelane_b32 v{vt}, s11, 3')
                a(f'v_writelane_b32 v{vt}, s6, 4')
                a(f's_not_b32 s{STP}, s6'); a(f'v_writelane_b32 v{vt}, s{STP}, 5')
                a(f's_memtime s[{STP}:{STP+1}]'); a('s_waitcnt lgkmcnt(0)')
                a(f's_sub_u32 s{STP}, s{STP}, s14'); a(f'v_writelane_b32 v{vt}, s{STP}, 10')
                a(f's_sub_u32 s{STP}, s6, s4'); a(f'v_writelane_b32 v{vt}, s{STP}, 11')
            else:
                a(f'v_writelane_b32 v{vt}, s6, 6')
                a(f'v_writelane_b32 v{vt}, s7, 7')
                a(f'v_writelane_b32 v{vt}, s8, 8')
                a(f'v_writelane_b32 v{vt}, s9, 9')
            srd(STP-4, 40, 256)
            a(f'v_lshlrev_b32 v{vt+1}, 2, v0')
            a('s_mov_b64 exec, 0xffff')
            a(f'buffer_atomic_umax v{vt}, v{vt+1}, s[{STP-4}:{STP-1}], 0 offen')
        elif stamps:
            a('s_mov_b64 exec, -1')
            a(f'v_mov_b32 v{vt}, 0')
            for k in range(12):
                a(f'v_writelane_b32 v{vt}, s{4+k}, {k}')
            a(f's_lshl_b32 s{STP}, s2, 3')
            a(f's_add_u32 s{STP}, s{STP}, s3')
            a(f's_lshl_b32 s{STP}, s{STP}, 6')
            a(f's_add_u32 s{STP}, s{STP}, {WS_DBG + 0x100000}')
            a(f'v_lshlrev_b32 v{vt+1}, 2, v0')
            a('s_mov_b64 exec, 0xffff')
            a(f'buffer_store_dword v{vt}, v{vt+1}, s[{ws_srd}:{ws_srd+3}], s{STP} offen')
        a('s_endpgm')

    DRY = 34
    def ex_full(d):
        a(f's_mov_b64 exec, s[{DRY}:{DRY+1}]' if d else 's_mov_b64 exec, -1')
    def ex_mask(d, lo, hi):
        if d:
            a(f's_and_b32 exec_lo, {lo}, s{DRY}'); a(f's_and_b32 exec_hi, {hi}, s{DRY}')
        else:
            a(f's_mov_b32 exec_lo, {lo}'); a(f's_mov_b32 exec_hi, {hi}')
    def tbar(d):
        if d:
            lab = a.uid('L_tb')
            a(f's_cbranch_execz {lab}')
            a('s_barrier')
            a.label(lab, fence=False)
        else:
            a('s_barrier')
    def mf(d, A, Bf, first):
        c = '0' if first else f'v[{d}:{d+3}]'
        a(f'v_mfma_f32_16x16x32_bf16 v[{d}:{d+3}], v[{A}:{A+3}], v[{Bf}:{Bf+3}], {c}')
    def tr_read(dst, v, ks):
        a(f'ds_read_b64_tr_b16 v[{dst}:{dst+1}], v{v} offset:{ks*1024}')
        a(f'ds_read_b64_tr_b16 v[{dst+2}:{dst+3}], v{v} offset:{ks*1024+128}')

    class Ctx:
        pass
    def tr_addr(c, v):
        a(f'v_lshrrev_b32 v{v}, 2, v{c.VI}')
        a(f'v_lshlrev_b32 v{v}, 5, v{v}')
        a(f'v_lshl_add_u32 v{v}, v{c.VG}, 8, v{v}')
        a(f'v_and_b32 v{c.VD}, 3, v{c.VI}')
        a(f'v_lshl_add_u32 v{v}, v{c.VD}, 3, v{v}')
        a(f'v_add_u32 v{v}, s{c.STGB}, v{v}')
    def sel_halves(c, dst, d1, d2):
        for r in range(4):
            a(f'v_cndmask_b32 v{dst+r}, v{d2+r}, v{d1+r}, s[{c.LO32}:{c.LO32+1}]')
    def red_addr(c, v):
        a(f'v_and_b32 v{v}, 7, v0')
        a(f'v_lshlrev_b32 v{v}, 5, v{v}')
        a(f'v_lshrrev_b32 v{c.VD}, 5, v0')
        a(f'v_lshl_add_u32 v{v}, v{c.VD}, 8, v{v}')
        a(f'v_bfe_u32 v{c.VD}, v0, 3, 2')
        a(f'v_lshl_add_u32 v{v}, v{c.VD}, 2, v{v}')
    def red_sum(c, dst, v, off, scratch):
        a(f'v_add_u32 v{c.VD}, {off}, v{v}')
        for w in range(4):
            for hf in range(2):
                r = scratch + 2*(2*w + hf)
                a(f'ds_read2_b32 v[{r}:{r+1}], v{c.VD} offset0:{hf*128} offset1:{hf*128+4}')
            if w < 3: a(f'v_add_u32 v{c.VD}, 1024, v{c.VD}')
        a('s_waitcnt lgkmcnt(0)')
        for st in (8, 4):
            for k in range(st): a(f'v_add_f32 v{scratch+k}, v{scratch+k}, v{scratch+k+st}')
        a(f'v_add_f32 v{dst}, v{scratch}, v{scratch+2}')
        a(f'v_add_f32 v{dst+1}, v{scratch+1}, v{scratch+3}')

    def mod_issue(c):
        a(f's_and_b32 s{c.T0}, s{c.WG}, 7')
        a(f's_lshl_b32 s{c.T0}, s{c.T0}, 2')
        a(f's_lshr_b32 s{c.T1}, s{c.WG}, 3')
        a(f's_and_b32 s{c.T1}, s{c.T1}, 3')
        a(f's_add_u32 s{c.T0}, s{c.T0}, s{c.T1}')
        a(f's_and_b32 s{c.T1}, s{c.WG}, 0xe0')
        a(f's_add_u32 s{c.T1}, s{c.T1}, s{c.T0}')
        a(f's_lshl_b32 s{c.T1}, s{c.T1}, 5')
        a(f's_mul_i32 s{c.T2}, s{c.WV}, {128*6144}')
        a(f's_add_u32 s{c.T1}, s{c.T1}, s{c.T2}')
        a(f'v_and_b32 v{c.VA}, 7, v0')
        a(f'v_lshlrev_b32 v{c.VA}, 10, v{c.VA}')
        a(f'v_bfe_u32 v{c.VB}, v0, 3, 1')
        a(f'v_lshl_add_u32 v{c.VA}, v{c.VB}, 7, v{c.VA}')
        a(f'v_lshl_add_u32 v{c.VA}, v{c.VG}, 4, v{c.VA}')
        a(f's_lshl_b32 s{c.T2}, s{c.WV}, 8')
        a(f'buffer_load_dwordx4 v[{c.CF}:{c.CF+3}], v{c.VA}, s[{c.SC}:{c.SC+3}], s{c.T2} offen')
        a(f'buffer_load_dwordx4 v[{c.CF+4}:{c.CF+7}], v{c.VA}, s[{c.SC}:{c.SC+3}], s{c.T2} offen offset:64')
        a(f'v_lshrrev_b32 v{c.VB}, 1, v0')
        a(f'v_mul_u32_u24 v{c.VB}, 6144, v{c.VB}')
        a(f'v_and_b32 v{c.VC}, 1, v0')
        a(f'v_lshl_add_u32 v{c.VB}, v{c.VC}, 4, v{c.VB}')
        for s in range(4):
            a(f's_add_u32 m0, s{c.STGB}, {s*1024}')
            if c.paced: a('s_waitcnt vmcnt(0)')
            a(f'buffer_load_dwordx4 v{c.VB}, s[{c.SM}:{c.SM+3}], s{c.T1} offen {mpol} lds')
            if s < 3: a(f's_add_u32 s{c.T1}, s{c.T1}, {32*6144}')
    def mod_compute(c, younger, cnt_off, done, st=None):
        a(f's_waitcnt vmcnt({younger + 4})')
        if st: stamp(st[0])
        if c.GENV is not None:
            a(f'v_readfirstlane_b32 s{c.TAG}, v{c.GENV}')
            a(f's_add_u32 s{c.TAG}, s{c.TAG}, {TAGC}')
        XF = c.XF
        for r in range(8):
            unpack(XF, XF+1, c.CF+r)
            silu(XF, XF+2, XF+4, XF+6); silu(XF+1, XF+3, XF+5, XF+7)
            a(f'v_cvt_pk_bf16_f32 v{c.CF+r}, v{XF}, v{XF+1}')
        tr_addr(c, c.VA)
        a(f's_waitcnt vmcnt({younger})')
        if st: stamp(st[1])
        BF = c.BF
        for s in range(4): tr_read(BF + 4*s, c.VA, s)
        a('s_waitcnt lgkmcnt(0)')
        mf(c.D1, c.CF, BF, True); mf(c.D2, c.CF, BF+8, True)
        mf(c.D1, c.CF+4, BF+4, False); mf(c.D2, c.CF+4, BF+12, False)
        sel_halves(c, c.RD, c.D1, c.D2)
        a(f's_lshl_b32 s{c.T2}, s{c.WV}, 10')
        a(f'v_add_u32 v{c.VB}, s{c.T2}, v1')
        a(f'ds_write_b128 v{c.VB}, v[{c.RD}:{c.RD+3}] offset:{L_RED}')
        a(f'v_mov_b32 v{c.VC}, 0')
        a(f'v_mov_b32 v{c.VB}, 1')
        a('s_mov_b64 exec, 1')
        a(f'ds_add_rtn_u32 v{c.VB}, v{c.VC}, v{c.VB} offset:{cnt_off}')
        a('s_mov_b64 exec, -1')
        a('s_waitcnt lgkmcnt(0)')
        a(f'v_readfirstlane_b32 s{c.T2}, v{c.VB}')
        a(f's_cmp_lg_u32 s{c.T2}, 3')
        a(f's_cbranch_scc1 {done}')
        red_addr(c, c.VA)
        red_sum(c, c.U0, c.VA, L_RED, BF)
        a(f'v_cvt_pk_bf16_f32 v{c.RD}, v{c.U0}, v{c.U0+1}')
        a(f'v_mov_b32 v{c.RD+1}, s{c.TAG}')
        a(f's_and_b32 s{c.T2}, s{c.WG}, 0xe0')
        a(f's_add_u32 s{c.T2}, s{c.T2}, s{c.T0}')
        a(f's_lshl_b32 s{c.T2}, s{c.T2}, 9')
        a(f's_add_u32 s{c.T2}, s{c.T2}, {WS_MOD}')
        a(f'v_lshlrev_b32 v{c.VA}, 3, v0')
        a(f'buffer_store_dwordx2 v[{c.RD}:{c.RD+1}], v{c.VA}, s[{c.SWS}:{c.SWS+3}], s{c.T2} offen sc1')

    def head_of(d, t):
        if hmap == 0:
            a(f's_and_b32 s{d}, s2, 31')
        elif hmap == 1:
            a(f's_and_b32 s{d}, s2, 7'); a(f's_lshl_b32 s{d}, s{d}, 2')
            a(f's_bfe_u32 s{t}, s2, 0x20003'); a(f's_or_b32 s{d}, s{d}, s{t}')
        elif hmap == 2:
            a(f's_and_b32 s{d}, s2, 7'); a(f's_lshl_b32 s{d}, s{d}, 1')
            a(f's_bfe_u32 s{t}, s2, 0x10003'); a(f's_or_b32 s{d}, s{d}, s{t}')
            a(f's_and_b32 s{t}, s2, 16'); a(f's_or_b32 s{d}, s{d}, s{t}')
    def roles(F1T, F2T, T0, T1):
        a(f's_and_b32 s{T0}, s2, 7')
        a(f's_lshr_b32 s{T1}, s2, 3')
        a(f's_mul_i32 s{F1T}, s{T0}, 11')
        a(f's_add_u32 s{F1T}, s{F1T}, s{T1}')
        a(f's_cmp_lt_u32 s2, 88')
        a(f's_cselect_b32 s{F1T}, s{F1T}, 255')
        a(f's_lshl_b32 s{F2T}, s{T0}, 2')
        a(f's_add_u32 s{F2T}, s{F2T}, s{T1}')
        a(f's_sub_u32 s{F2T}, s{F2T}, {F2_BASE//8}')
        a(f's_sub_u32 s{T1}, s2, {F2_BASE}')
        a(f's_cmp_lt_u32 s{T1}, 32')
        a(f's_cselect_b32 s{F2T}, s{F2T}, 255')
    def f1_dma(VB, VC, SST, WV, F1T, T1, T2, STGB, paced, pol):
        a(f'v_lshrrev_b32 v{VB}, 1, v0')
        a(f'v_mul_u32_u24 v{VB}, 2752, v{VB}')
        a(f'v_and_b32 v{VC}, 1, v0')
        a(f'v_lshl_add_u32 v{VB}, v{VC}, 4, v{VB}')
        for which, p in enumerate((28, 30)):
            srd(SST, p, 512*1376*2)
            a(f's_mul_i32 s{T1}, s{WV}, {128*2752}')
            a(f's_lshl_b32 s{T2}, s{F1T}, 5')
            a(f's_add_u32 s{T1}, s{T1}, s{T2}')
            for s in range(4):
                a(f's_add_u32 m0, s{STGB}, {(which*4+s)*1024}')
                if paced: a('s_waitcnt vmcnt(0)')
                a(f'buffer_load_dwordx4 v{VB}, s[{SST}:{SST+3}], s{T1} offen {pol} lds')
                if s < 3: a(f's_add_u32 s{T1}, s{T1}, {32*2752}')
    def f2_dma(VB, VC, SST, WV, F2T, T1, T2, T3, STGB, paced, pol):
        srd(SST, 32, 1376*512*2)
        a(f'v_lshrrev_b32 v{VB}, 1, v0')
        a(f'v_lshlrev_b32 v{VB}, 10, v{VB}')
        a(f'v_and_b32 v{VC}, 1, v0')
        a(f'v_lshl_add_u32 v{VB}, v{VC}, 4, v{VB}')
        a(f's_mul_i32 s{T3}, s{WV}, 12')
        a(f's_lshl_b32 s{T2}, s{F2T}, 5')
        for s in range(12):
            a(f's_add_u32 s{T1}, s{T3}, {s}')
            a(f's_min_u32 s{T1}, s{T1}, 42')
            a(f's_lshl_b32 s{T1}, s{T1}, 15')
            a(f's_add_u32 s{T1}, s{T1}, s{T2}')
            a(f's_add_u32 m0, s{STGB}, {s*1024}')
            if paced: a('s_waitcnt vmcnt(0)')
            a(f'buffer_load_dwordx4 v{VB}, s[{SST}:{SST+3}], s{T1} offen {pol} lds')

    a('s_cmp_ge_u32 s2, 256')
    a('s_cbranch_scc1 L_end')
    if perm:
        a('s_lshr_b32 s3, s2, 5'); a('s_xor_b32 s2, s2, s3')
    a('s_load_dwordx16 s[16:31], s[0:1], 0')
    a('s_load_dwordx8 s[32:39], s[0:1], 64')
    a('s_load_dwordx4 s[40:43], s[0:1], 96')
    if stamps:
        for k in range(12): a(f's_mov_b32 s{4+k}, 0')
    if hold or pd:
        a('s_memrealtime s[94:95]')
    a('v_lshrrev_b32 v1, 6, v0')
    a('v_readfirstlane_b32 s3, v1')
    a('v_and_b32 v0, 63, v0')
    a('v_lshlrev_b32 v1, 4, v0')
    a('s_cmp_ge_u32 s3, 4')
    a('s_cbranch_scc1 L_service')

    Q = 4; Pq = 8; ACC = 24; TMP = 32; VMAX = 40; VT0 = 41; VT1 = 42; PP0 = 43; PP1 = 44; VSC = 2; VI = 45; VG = 46; VT2 = 47; VT3 = 48
    GENV = 3
    TK = 50; PN = 52; VPA = 54; VSA = 55; FL = 56; VZ = 60; VHA = 61
    RING = 64; EXA = 128; EXB = 192
    IS = 44; SWS = 52; SOFF = 56; CNT = 57; BASE = 58; M1 = 60; M2 = 62; SELLO = 64; SELHI = 65; SCALE = 66; TAG = 67
    SHD = 70; SLOTC = 71; SLOTN = 72; FIRST = 73; T0 = 74; T1 = 75; T2 = 76; T3 = 77; STGB = 78; SPIN = 79
    SC = 80; SM = 84; LO32 = 88
    HOME = 48; STEP = 49; QUIT = 50; ESPIN = 51
    P_ = Pq
    if lv is not None: a('s_memrealtime s[70:71]')
    head_of(58, 59)
    a('s_and_b32 s59, s2, 0xe0')
    a('s_or_b32 s58, s58, s59')
    a('s_lshl_b32 s58, s58, 20')
    if numa:
        assert hmap == 2
        a('s_and_b32 s59, s3, 1')
        a('s_lshl_b32 s59, s59, 12')
        a('s_add_u32 s58, s58, s59')
        a('s_lshr_b32 s59, s3, 1')
        a('s_lshl_b32 s59, s59, 23')
        a('s_xor_b32 s58, s58, s59')
    else:
        a('s_lshl_b32 s59, s3, 12')
        a('s_add_u32 s58, s58, s59')
    a('s_mov_b32 s56, s58')
    a(f'v_mov_b32 v{VZ}, 0')
    a(f'v_and_b32 v{VI}, 15, v0')
    a(f'v_lshrrev_b32 v{VG}, 4, v0')
    a(f's_mul_i32 s{STGB}, s3, {STGW}')
    a(f's_add_u32 s{STGB}, s{STGB}, {L_STG}')
    a('s_waitcnt lgkmcnt(0)')
    srd(SWS, 42, WS_SIZE)
    a(f'buffer_load_dword v{GENV}, v{VZ}, s[{SWS}:{SWS+3}], 0 offen offset:{WS_GEN} sc1')
    if numa:
        for p, d in ((18, 56), (20, 58)):
            a(f's_add_u32 s59, s{p}, s{d}')
            a('s_lshr_b32 s59, s59, 21')
            a(f's_lshr_b32 s{T0}, s2, 2')
            a(f's_xor_b32 s59, s59, s{T0}')
            a(f's_xor_b32 s59, s59, {numa-1}')
            a('s_and_b32 s59, s59, 1')
            a('s_lshl_b32 s59, s59, 13')
            a(f's_add_u32 s{d}, s{d}, s59')
    srd(IS, 18, 0x10000000)
    srd(SC, 34, 8192)
    srd(SM, 36, 512*3072*2)
    if dry2: a(f's_mov_b64 s[{DRY}:{DRY+1}], -1')
    stamp(0)
    if dst:
        a(f's_memtime s[{STP}:{STP+1}]'); a('s_waitcnt lgkmcnt(0)'); a(f's_mov_b32 s14, s{STP}')
    cs = Ctx()
    cs.VI = VI; cs.VG = VG; cs.VA = RING; cs.VB = RING+1; cs.VC = RING+2; cs.VD = RING+3
    cs.CF = RING+4; cs.XF = RING+12; cs.BF = RING+20; cs.D1 = RING+36; cs.D2 = RING+40; cs.RD = RING+44; cs.U0 = RING+48
    cs.T0 = T0; cs.T1 = T1; cs.T2 = T2; cs.T3 = T3; cs.WV = 3; cs.STGB = STGB; cs.SC = SC; cs.SM = SM; cs.SWS = SWS
    cs.LO32 = LO32; cs.TAG = TAG; cs.GENV = GENV; cs.WG = 2; cs.paced = False
    a('s_cmp_ge_u32 s2, 64')
    a('s_cbranch_scc1 L_s_noissue')
    if mprio: a(f's_setprio {mprio}')
    mod_issue(cs)
    a.label('L_s_noissue', fence=False)

    LV = 68; TGT = 69; T00 = 70; TM = 72; LAG = 71
    def pw(d=0):
        if lv is None:
            a(f's_waitcnt vmcnt({(W-1) if d == 0 else VW})')
            return
        lab = a.uid('L_pw')
        for k, Wk in enumerate(lv):
            a(f's_waitcnt vmcnt({Wk-1-d})')
            if k < len(lv) - 1:
                a(f's_cmp_eq_u32 s{LV}, {k}')
                a(f's_cbranch_scc1 {lab}')
        a.label(lab, fence=False)
    def tsched(n):
        return int(round(tK + (n - 48) * sK)) if n <= 272 else int(round(tV + (n - 272) * sV))
    MS = 50; VBS = 52; VMA = 53; MD = 54; MT = 56; ISM = 48; CK = 49; CKS = 50
    def mload():
        if lv is None or not rel or noml: return
        lab = a.uid('L_ml')
        a('s_cmp_lg_u32 s3, 0')
        a(f's_cbranch_scc1 {lab}')
        a(f'buffer_load_dwordx2 v[{MS}:{MS+1}], v{VMA}, s[{SWS}:{SWS+3}], s{CK} offen {mlp}')
        a.label(lab, fence=False)
    def clk():
        if lv is None: return
        a(f's_memrealtime s[{TM}:{TM+1}]')
        if rel: a(f'ds_read_b32 v{VBS}, v{VZ} offset:{L_CNT+16}')
    B0 = 51
    def ctl(n=None, step=None, upd=True, th_=None, eb_=None, keep=False):
        if lv is None: return
        th_ = th if th_ is None else th_
        a('s_waitcnt lgkmcnt(0)')
        if rel:
            a(f'v_readfirstlane_b32 s{TM+1}, v{VBS}')
            if keep:
                a(f's_cmp_ge_u32 s{CNT}, 6')
                a(f's_cselect_b32 s{B0}, s{TM+1}, s{B0}')
            if n is not None: a(f's_sub_u32 s{TM}, s{TM}, {tsched(n)}')
            else: a(f's_sub_u32 s{TM}, s{TM}, s{TGT}')
            a(f's_sub_u32 s{LAG}, s{TM}, s{TM+1}')
        else:
            if n is not None: a(f's_add_u32 s{TGT}, s{T00}, {tsched(n)}')
            a(f's_sub_u32 s{LAG}, s{TM}, s{TGT}')
        if step is not None: a(f's_add_u32 s{TGT}, s{TGT}, {step}')
        if eb_ is not None:
            a(f's_cmp_le_u32 s{CNT}, {eb_[0]}')
            a(f's_cselect_b32 s{LV}, {eb_[1]}, 0')
            a(f's_add_u32 s{LAG}, s{LAG}, s{LV}')
        a(f's_mov_b32 s{LV}, {len(lv)-1}')
        for k in range(len(lv) - 2, -1, -1):
            a(f's_cmp_gt_i32 s{LAG}, {th_[k]}')
            a(f's_cselect_b32 s{LV}, {k}, s{LV}')
        if rel:
            lab = a.uid('L_ct')
            a('s_cmp_lg_u32 s3, 0')
            a(f's_cbranch_scc1 {lab}')
            lab2 = a.uid('L_cm')
            a(f's_cmp_eq_u32 s{ISM}, 0')
            a(f's_cbranch_scc1 {lab2}')
            a(f'v_mov_b32 v{MD}, s{TM}')
            a(f'v_mov_b32 v{MD+1}, s{TAG}')
            a(f's_add_u32 s{CKS}, s{ISM}, s{CK}')
            a('s_mov_b64 exec, 1')
            if not nomst: a(f'buffer_store_dwordx2 v[{MD}:{MD+1}], v{VZ}, s[{SWS}:{SWS+3}], s{CKS} offen {msp}')
            a('s_mov_b64 exec, -1')
            a.label(lab2, fence=False)
            a(f's_add_u32 s{CK}, s{CK}, {CSTR}')
            if upd:
                a(f'v_cmp_ne_u32 vcc, s{TAG}, v{MS+1}')
                a(f'v_subrev_u32 v{MT}, s{T00}, v{MS}')
                for c_ in ('quad_perm:[1,0,3,2]', 'quad_perm:[2,3,0,1]', 'row_half_mirror'):
                    a(f'{"v_add_u32" if agg == "mean" else "v_max_i32"}_dpp v{MT}, v{MT}, v{MT} {c_} row_mask:0xf bank_mask:0xf')
                if agg == 'mean': a(f'v_ashrrev_i32 v{MT}, 3, v{MT}')
                a(f's_add_u32 s{TM+1}, s{T00}, {dl}')
                a(f'v_add_u32 v{MT}, s{TM+1}, v{MT}')
                a(f's_cbranch_vccnz {lab}')
                a(f'ds_write_b32 v{VZ}, v{MT} offset:{L_CNT+16}')
            a.label(lab, fence=False)
    def issue(base, j):
        r = base + 4 * j
        a(f'buffer_load_dwordx4 v[{r}:{r+3}], v1, s[{IS}:{IS+3}], s{SOFF} offen offset:{(j % 4) * 1024} {kpol}')
        if j % 4 == 3:
            a(f's_add_u32 s{SOFF}, s{SOFF}, 16384')

    seq = [(base, j) for base in (EXA, EXB, RING) for j in range(16)]
    for n in range(nA): issue(*seq[n])
    a(f's_mov_b32 s{M1}, 0xaaaaaaaa'); a(f's_mov_b32 s{M1+1}, 0xaaaaaaaa')
    a(f's_mov_b32 s{M2}, 0xcccccccc'); a(f's_mov_b32 s{M2+1}, 0xcccccccc')
    a(f's_mov_b32 s{SELLO}, 0x05040100'); a(f's_mov_b32 s{SELHI}, 0x07060302')
    a(f's_mov_b32 s{SCALE}, {f32(128 ** -0.5)}')
    a(f's_mov_b32 s{LO32}, -1'); a(f's_mov_b32 s{LO32+1}, 0')
    a(f's_lshl_b32 s59, s3, 12')
    a(f's_add_u32 s59, s59, {L_SC}')
    a(f'v_lshlrev_b32 v{VSC}, 2, v0')
    a(f'v_add_u32 v{VSC}, s59, v{VSC}')
    a(f'v_mov_b32 v{VMAX}, 0xff800000')
    if sst:
        stamp(9)
        a('s_cmp_lt_u32 s2, 64')
        a('s_cbranch_scc1 L_sst')
        a(f's_waitcnt vmcnt({nA})'); stamp(3)
        a(f's_waitcnt vmcnt({nA-1})'); stamp(4)
        a(f's_waitcnt vmcnt({nA-8})'); stamp(10)
        a(f's_waitcnt vmcnt(0)'); stamp(11)
        a.label('L_sst')
    a('s_barrier')
    a('s_cmp_ge_u32 s2, 64')
    a('s_cbranch_scc1 L_s_moddone')
    mod_compute(cs, nA, L_CNT, 'L_s_moddone', st=(3, 4))
    a.label('L_s_moddone')
    if mprio: a('s_setprio 0')
    stamp(5)
    for n in range(nA, 48):
        Wn = W0 if n < n0 else W
        if n >= Wn and n < 48 - boost:
            a(f's_waitcnt vmcnt({Wn-1})')
        if sst2 and n in (16, 24, 32, 40, 45): stamp({16: 9, 24: 3, 32: 4, 40: 10, 45: 11}[n])
        issue(*seq[n])
    if pf:
        a(f's_mov_b32 m0, {L_DUM}')
        a(f's_lshl_b32 s{T3}, s2, 2')
        a(f's_add_u32 s{T3}, s{T3}, s3')
        def pfl(srd_, so, off=0):
            a(f's_waitcnt vmcnt({pfW-1})')
            a(f'buffer_load_dwordx4 v1, s[{srd_}:{srd_+3}], s{so} offen offset:{off} {pfpol} lds')
        if pf & 1:
            srd(SC, 24, 4096*512*2)
            head_of(T0, T1)
            a(f's_lshl_b32 s{T0}, s{T0}, 17')
            a(f's_lshr_b32 s{T1}, s2, 5')
            a(f's_lshl_b32 s{T1}, s{T1}, 14')
            a(f's_add_u32 s{T0}, s{T0}, s{T1}')
            a(f's_lshl_b32 s{T1}, s3, 12')
            a(f's_add_u32 s{T0}, s{T0}, s{T1}')
            for j in range(4): pfl(SC, T0, j*1024)
        if pf & 4:
            a(f's_lshr_b32 s{T0}, s{T3}, 1')
            a(f's_mul_i32 s{T0}, s{T0}, 6144')
            a(f's_and_b32 s{T1}, s{T3}, 1')
            a(f's_lshl_b32 s{T1}, s{T1}, 11')
            a(f's_add_u32 s{T0}, s{T0}, s{T1}')
            for j in range(2): pfl(SM, T0, 2048 + j*1024)
        if pf & 2:
            a(f's_lshl_b32 s{T0}, s{T3}, 10')
            a(f's_add_u32 s{T1}, s{T0}, {1 << 20}')
            for p in (28, 30, 32):
                srd(SC, p, 512*1376*2)
                pfl(SC, T0)
                lab = a.uid('L_pf')
                a(f's_cmp_ge_u32 s{T3}, {1376-1024}')
                a(f's_cbranch_scc1 {lab}')
                pfl(SC, T1)
                a.label(lab, fence=False)
    a(f'v_readfirstlane_b32 s{TAG}, v{GENV}')
    a(f's_add_u32 s{TAG}, s{TAG}, {TAGC}')
    if lv is not None and rel:
        a(f'v_and_b32 v{VMA}, 7, v0')
        a(f'v_mul_u32_u24 v{VMA}, {MSTR}, v{VMA}')
        a(f'v_add_u32 v{VMA}, {WS_MST - DD*CSTR}, v{VMA}')
        a(f's_mov_b32 s{CK}, 0')
        a(f'v_mov_b32 v{MS}, 0'); a(f'v_not_b32 v{MS+1}, s{TAG}')
        if MB >= 0:
            a(f's_sub_u32 s{T0}, s2, {MB}')
        else:
            a(f's_lshr_b32 s{T0}, s2, 5')
        a(f's_mul_i32 s{ISM}, s{T0}, {MSTR}')
        a(f's_add_u32 s{ISM}, s{ISM}, {WS_MST}')
        if MB >= 0:
            a(f's_cmp_lt_u32 s{T0}, 8')
        else:
            a(f's_and_b32 s{T1}, s2, 31')
            a(f's_add_u32 s{T0}, s{T0}, {-MB-1}')
            a(f's_cmp_eq_u32 s{T0}, s{T1}')
        a(f's_cselect_b32 s{ISM}, s{ISM}, 0')
        a(f'v_mov_b32 v{MT}, s{T00}')
        a('s_cmp_lg_u32 s3, 0')
        a('s_cbranch_scc1 L_nobase')
        a(f'ds_write_b32 v{VZ}, v{MT} offset:{L_CNT+16}')
        a('s_waitcnt lgkmcnt(0)')
        a.label('L_nobase', fence=False)
    stamp(6)
    a('s_barrier')
    a(f'v_lshlrev_b32 v{VT0}, 5, v{VI}')
    for w in range(4):
        a(f'ds_read_b128 v[{P_+8*(w%2)}:{P_+8*(w%2)+3}], v{VT0} offset:{L_QP + w*512}')
        a(f'ds_read_b128 v[{P_+8*(w%2)+4}:{P_+8*(w%2)+7}], v{VT0} offset:{L_QP + w*512 + 16}')
        if w == 1:
            a('s_waitcnt lgkmcnt(0)')
            for e in range(8): a(f'v_add_f32 v{ACC+e}, v{P_+e}, v{P_+8+e}')
    a('s_waitcnt lgkmcnt(0)')
    for e in range(8): a(f'v_add_f32 v{P_+e}, v{P_+e}, v{P_+8+e}')
    for e in range(8): a(f'v_add_f32 v{ACC+e}, v{ACC+e}, v{P_+e}')
    for c in range(4): a(f'v_cvt_pk_bf16_f32 v{Q+c}, v{ACC+2*c}, v{ACC+2*c+1}')
    clk(); ctl(n=48, upd=False)
    if dbg:
        a(f's_lshr_b32 s{T0}, s{BASE}, 20')
        a(f's_lshl_b32 s{T0}, s{T0}, 8')
        a(f's_add_u32 s{T0}, s{T0}, {WS_DBG}')
        a(f'v_lshlrev_b32 v{VT0}, 4, v{VI}')
        a(f'buffer_store_dwordx4 v[{Q}:{Q+3}], v{VT0}, s[{SWS}:{SWS+3}], s{T0} offen')
        a('s_waitcnt vmcnt(0)')
    stamp(1)

    def ksteps(base, PB, reissue, wait, vsc, sc_off, t0, t1, hook=None):
        def l1(j):
            a(f'v_add_f32_dpp v{PB+j-1}, v{PB+j-1}, v{PB+j-1} row_ror:8 row_mask:0xf bank_mask:0x3')
            a(f'v_add_f32_dpp v{PB+j-1}, v{PB+j}, v{PB+j} row_ror:8 row_mask:0xf bank_mask:0xc')
        def l2(q):
            x = PB + 4*q; y = PB + 4*q + 2
            a(f'v_add_f32_dpp v{x}, v{x}, v{x} row_shl:4 row_mask:0xf bank_mask:0x5')
            a(f'v_add_f32_dpp v{x}, v{y}, v{y} row_shr:4 row_mask:0xf bank_mask:0xa')
        def step(j):
            r = base + 4*j
            if hook is not None and j == 0: mload()
            if hook is not None and j == 12: clk()
            if hook is not None and j == 15: hook()
            if wait is not None:
                pw(0)
            a(f'v_dot2_f32_bf16 v{PB+j}, v{r}, v{Q}, 0')
            for c in range(1, 4):
                a(f'v_dot2_f32_bf16 v{PB+j}, v{r+c}, v{Q+c}, v{PB+j}')
            if reissue: issue(base, j)
            if j >= 2 and j % 2 == 0: l1(j-1)
            if j >= 5 and j % 4 == 1: l2((j-5)//4)
        def epi():
            l1(15)
            l2(3)
            U = [PB, PB+4, PB+8, PB+12]
            for u in U: a(f'v_add_f32_dpp v{u}, v{u}, v{u} quad_perm:[2,3,0,1] row_mask:0xf bank_mask:0xf')
            a(f'v_cndmask_b32 v{U[0]}, v{U[0]}, v{U[1]}, s[{M2}:{M2+1}]')
            a(f'v_cndmask_b32 v{U[2]}, v{U[2]}, v{U[3]}, s[{M2}:{M2+1}]')
            for u in (U[0], U[2]): a(f'v_add_f32_dpp v{u}, v{u}, v{u} quad_perm:[1,0,3,2] row_mask:0xf bank_mask:0xf')
            a(f'v_cndmask_b32 v{t0}, v{U[0]}, v{U[2]}, s[{M1}:{M1+1}]')
            rnd1(t0, t1)
            a(f'v_mul_f32 v{t0}, s{SCALE}, v{t0}')
            rnd1(t0, t1)
            a(f'v_max_f32 v{VMAX}, v{VMAX}, v{t0}')
            a(f'ds_write_b32 v{vsc}, v{t0} offset:{sc_off}')
        return [lambda j=j: step(j) for j in range(16)] + [epi]
    P2 = ACC
    for it, ex in enumerate((EXA, EXB)):
        s1 = ksteps(RING, P_, True, W-1, VSC, (2+it)*256, VT0, VT1, hook=lambda it=it: ctl(n=48+16*it+12))
        s2 = ksteps(ex, P2, False, None, VSC, it*256, PP0, PP1)
        for j in range(16):
            s1[j](); s2[j]()
        s1[16](); s2[16]()
    a(f'v_add_u32 v{VT2}, {4*256}, v{VSC}')
    a(f's_mov_b32 s{CNT}, 12')
    if lv is not None: a(f's_mov_b32 s{TGT}, {tsched(80+12)}' if rel else f's_add_u32 s{TGT}, s{T00}, {tsched(80+12)}')
    if not (sst or sst2): stamp(9)
    a.label('L_kloop')
    a(f's_cmp_eq_u32 s{CNT}, 1')
    a(f's_cselect_b32 s{IS}, s20, s{IS}')
    a(f's_cselect_b32 s{IS+1}, s21, s{IS+1}')
    a(f's_cselect_b32 s{SOFF}, s{BASE}, s{SOFF}')
    for f in ksteps(RING, P_, True, W-1, VT2, 0, VT0, VT1, hook=lambda: ctl(step=int(round(16*sK)))): f()
    a(f'v_add_u32 v{VT2}, 256, v{VT2}')
    a(f's_sub_u32 s{CNT}, s{CNT}, 1')
    a(f's_cmp_lg_u32 s{CNT}, 0')
    a('s_cbranch_scc1 L_kloop')
    stamp(7)
    vq = [(EXA, j) for j in range(16)] + [(EXB, j) for j in range(16)]
    def pi(n=1, paced=True):
        for _ in range(n):
            if not vq: return
            if paced: pw(0)
            issue(*vq.pop(0))
    pi()
    a('s_waitcnt lgkmcnt(0)')
    for t in range(0, 16, 2):
        a(f'ds_read2st64_b32 v[{P_+t}:{P_+t+1}], v{VSC} offset0:{t} offset1:{t+1}')
    wave_reduce('v_max_f32', [VMAX], [VT0])
    pi()
    a('s_waitcnt lgkmcnt(0)')
    for t in range(16): a(f'v_sub_f32 v{P_+t}, v{P_+t}, v{VMAX}')
    for t in range(16): a(f'v_mul_f32 v{P_+t}, {f32(L2E)}, v{P_+t}')
    pi()
    for t in range(16): a(f'v_exp_f32 v{P_+t}, v{P_+t}')
    pi()
    for t in range(8): a(f'v_add_f32 v{TMP+t}, v{P_+t}, v{P_+8+t}')
    for t in range(4): a(f'v_add_f32 v{TMP+t}, v{TMP+t}, v{TMP+4+t}')
    for t in range(2): a(f'v_add_f32 v{TMP+t}, v{TMP+t}, v{TMP+2+t}')
    a(f'v_add_f32 v{VT0}, v{TMP}, v{TMP+1}')
    assert VT0 == VMAX + 1
    wave_reduce('v_add_f32', [VT0], [VT1])
    a(f's_lshl_b32 s59, s3, 3')
    a(f'v_mov_b32 v{VT1}, s59')
    a(f'ds_write_b64 v{VT1}, v[{VMAX}:{VMAX+1}] offset:{L_MX}')
    a(f'v_mov_b32 v{VT1}, 1')
    a('s_waitcnt lgkmcnt(0)')
    a('s_mov_b64 exec, 1')
    a(f'ds_add_u32 v{VZ}, v{VT1} offset:{L_CNT+12}')
    a('s_mov_b64 exec, -1')
    pi(12)
    pi(sboost, paced=False)
    a(f's_mov_b32 s{SPIN}, 0')
    a.label('L_b2')
    a(f'ds_read_b32 v{VT1}, v{VZ} offset:{L_CNT+12}')
    a('s_waitcnt lgkmcnt(0)')
    a(f'v_readfirstlane_b32 s{T0}, v{VT1}')
    a(f's_cmp_ge_u32 s{T0}, 4')
    a('s_cbranch_scc1 L_b2_ok')
    a(f's_add_u32 s{SPIN}, s{SPIN}, 1')
    a(f's_cmp_lt_u32 s{SPIN}, {SPIN_MAX*8}')
    a('s_cbranch_scc0 L_b2_ok')
    a('s_sleep 1')
    a('s_branch L_b2')
    a.label('L_b2_ok')
    a(f'ds_read_b128 v[{TMP}:{TMP+3}], v{VZ} offset:{L_MX}')
    a(f'ds_read_b128 v[{TMP+4}:{TMP+7}], v{VZ} offset:{L_MX+16}')
    a('s_waitcnt lgkmcnt(0)')
    a(f'v_max_f32 v{VT1}, v{TMP}, v{TMP+2}')
    a(f'v_max3_f32 v{VT1}, v{VT1}, v{TMP+4}, v{TMP+6}')
    for k in range(4): a(f'v_sub_f32 v{TMP+2*k}, v{TMP+2*k}, v{VT1}')
    a(f'v_sub_f32 v{VT3}, v{VMAX}, v{VT1}')
    for k in range(4): a(f'v_mul_f32 v{TMP+2*k}, {f32(L2E)}, v{TMP+2*k}')
    a(f'v_mul_f32 v{VT3}, {f32(L2E)}, v{VT3}')
    for k in range(4): a(f'v_exp_f32 v{TMP+2*k}, v{TMP+2*k}')
    a(f'v_exp_f32 v{VT3}, v{VT3}')
    a(f'v_mul_f32 v{VT0}, v{TMP}, v{TMP+1}')
    for k in range(1, 4): a(f'v_fmac_f32 v{VT0}, v{TMP+2*k}, v{TMP+2*k+1}')
    a(f'v_rcp_f32 v{VT0}, v{VT0}')
    a(f'v_mul_f32 v{VT3}, v{VT3}, v{VT0}')
    pi()
    for t in range(16): a(f'v_mul_f32 v{P_+t}, v{P_+t}, v{VT3}')
    for half in range(2):
        for t in range(8): a(f'v_mov_b32_dpp v{TMP+t}, v{P_+8*half+t} row_ror:8 row_mask:0xf bank_mask:0xf')
        for t in range(8): a(f'v_cvt_pk_bf16_f32 v{P_+8*half+t}, v{P_+8*half+t}, v{TMP+t}')
        pi()
    for t in range(4, 16, 2):
        a(f'ds_write2st64_b32 v{VSC}, v{P_+t}, v{P_+t+1} offset0:{t} offset1:{t+1}')
    for e in range(8): a(f'v_mov_b32 v{ACC+e}, 0')

    def bl(m): return 4*(m & 1) + 2*((m >> 1) & 1) + (m >> 2)
    def vstep(base, m, reissue, wait, pp, mid=None, hook=None):
        A = base + 8*m; Bq = A + 4
        if hook is not None and m == 0: mload()
        if hook is not None and m == 5: clk()
        if hook is not None and m == 7: hook()
        if wait == 'p': pw(1)
        elif wait is not None:
            a(f's_waitcnt vmcnt({wait})')
        for c in range(4):
            a(f'v_perm_b32 v{TMP+2*c}, v{Bq+c}, v{A+c}, s{SELLO}')
            a(f'v_perm_b32 v{TMP+2*c+1}, v{Bq+c}, v{A+c}, s{SELHI}')
        if reissue:
            issue(base, 2*m); issue(base, 2*m+1)
        if mid: mid()
        for e in range(8):
            a(f'v_dot2c_f32_bf16_dpp v{ACC+e}, v{pp}, v{TMP+e} row_newbcast:{bl(m)} row_mask:0xf bank_mask:0xf')
    def static_flush():
        a(f'v_lshlrev_b32 v{VT0}, 5, v{VI}')
        a(f'v_lshl_add_u32 v{VT0}, v{VG}, 3, v{VT0}')
        a(f's_lshl_b32 s59, s3, 9')
        a(f'v_add_u32 v{VT0}, s59, v{VT0}')
        a(f'ds_write_b64 v{VT0}, v[{ACC}:{ACC+1}] offset:{L_OP}')
        a(f'v_mov_b32 v{VT1}, 1')
        a('s_waitcnt lgkmcnt(0)')
        ex_mask(dry2, 1, 0)
        a(f'ds_add_u32 v{VZ}, v{VT1} offset:{L_CNT+8}')
        ex_full(dry2)
        stamp(8)

    nleft = len(vq)
    assert 1 <= nleft <= 16, nleft
    for m in range(8):
        k = (nleft*(m+1))//8 - (nleft*m)//8
        if m == 0: a(f's_waitcnt vmcnt({16 - nleft})')
        vstep(EXA, m, False, None, P_+1, mid=(lambda k=k: pi(k)))
    assert not vq
    clk(); ctl(n=304, upd=False)
    for m in range(8): vstep(RING, m, True, 'p', P_+0, hook=lambda: ctl(n=304+10))
    a(f'v_add_u32 v{VT2}, {5*256}, v{VSC}')
    for m in range(8):
        vstep(RING, m, True, 'p', P_+3, hook=lambda: ctl(n=320+10))
        vstep(EXB, m, False, None, P_+2)
    a(f'v_mov_b32 v{PP0}, v{P_+4}')
    a(f's_mov_b32 s{CNT}, 11')
    if lv is not None: a(f's_mov_b32 s{TGT}, {tsched(336+10)}' if rel else f's_add_u32 s{TGT}, s{T00}, {tsched(336+10)}')
    if not (sst or sst2): stamp(10)
    a.label('L_vloop')
    a(f'ds_read_b32 v{PP1}, v{VT2}')
    a(f'v_add_u32 v{VT2}, 256, v{VT2}')
    for m in range(8): vstep(RING, m, True, 'p', PP0, hook=lambda: ctl(step=int(round(16*sV)), th_=thv, eb_=eb, keep=bool(slp)))
    a('s_waitcnt lgkmcnt(0)')
    a(f'v_mov_b32 v{PP0}, v{PP1}')
    a(f's_sub_u32 s{CNT}, s{CNT}, 1')
    a(f's_cmp_lg_u32 s{CNT}, 0')
    a('s_cbranch_scc1 L_vloop')
    if not (sst or sst2): stamp(11)
    if slp:
        a(f'v_mov_b32 v{VT1}, s{B0}')
        a(f'ds_write_b32 v{VZ}, v{VT1} offset:{L_CNT+24}')
    if dry2: a.label('L_vlast', fence=False)
    for m in range(8): vstep(RING, m, False, 14 - 2*m, PP0)
    greduce8(ACC)
    static_flush()
    if dry2: a('s_cbranch_execz L_t1' if dry else 's_cbranch_execz L_real')
    if gate:
        lab = a.uid('L_nogate')
        a('s_cmp_lg_u32 s3, 0')
        a(f's_cbranch_scc1 {lab}')
        srd(SC, 40, 256)
        a('s_mov_b64 exec, 1')
        a(f'buffer_atomic_add v{VT1}, v{VZ}, s[{SC}:{SC+3}], 0 offen')
        a('s_mov_b64 exec, -1')
        a.label(lab)
    a('s_waitcnt lgkmcnt(0)')
    stamp(2)
    if dfw:
        dp = fpol if dpol is None else dpol
        roles(M1, M1+1, T0, T1)
        a(f's_cmp_lt_u32 s{M1}, {NF1}')
        a('s_cbranch_scc0 L_s_nof1')
        f1_dma(VT0, VT1, SM, 3, M1, T1, T2, STGB, False, dp)
        a('s_branch L_s_dma')
        a.label('L_s_nof1')
        a(f's_cmp_lt_u32 s{M1+1}, 32')
        a('s_cbranch_scc0 L_s_dma')
        f2_dma(VT0, VT1, SM, 3, M1+1, T1, T2, T3, STGB, False, dp)
        a.label('L_s_dma')
        a('s_waitcnt vmcnt(0)')
        stamp(8)
    finish(SWS, TMP, 's')

    a.label('L_service')
    SX = 44; SW = 48; SWS = 52; SC = 56; SST = 60; SOUT = 64; SDBG = 68
    WV = 72
    SB = 73; SH = 74; T0 = 75; T1 = 76; T2 = 77; T3 = 78; TAG = 80; SPIN = 81; SELLO = 82; SELHI = 83; LO32 = 84; STGB = 86; T4 = 87
    F1T = 88; F2T = 89; T5 = 90; T6 = 91
    VI = 2; VG = 3; VA = 4; VB = 5; VC = 6; VD = 7
    GENV = 8
    XR = 12; XP = 16; CF = 20; XF = 28
    MEAN = 36; DEN = 37; RDEN = 38; U0 = 39; U1 = 40; U2 = 41; U3 = 42; HP = 43
    ACC = 44
    D1 = 52; D2 = 56; D3 = 60; D4 = 64
    RD = 68
    BF = 76
    SPARE = 127
    WR = 128
    cv = Ctx()
    cv.VI = VI; cv.VG = VG; cv.VA = VA; cv.VB = VB; cv.VC = VC; cv.VD = VD
    cv.CF = CF; cv.XF = XF; cv.BF = BF; cv.D1 = D1; cv.D2 = D2; cv.RD = RD; cv.U0 = U0
    cv.T0 = T0; cv.T1 = T1; cv.T2 = T2; cv.T3 = T3; cv.WV = WV; cv.STGB = STGB; cv.SC = SC; cv.SM = SST; cv.SWS = SWS
    cv.LO32 = LO32; cv.TAG = TAG; cv.GENV = None; cv.WG = T4; cv.paced = SW_ < 8
    if sprio: a(f's_setprio {sprio}')
    a(f's_sub_u32 s{WV}, s3, 4')
    a(f's_lshr_b32 s{SB}, s2, 5')
    a(f's_and_b32 s{SH}, s2, 31')
    HD = 79
    head_of(HD, T0)
    RW = 31
    if cmap:
        assert hmap == 2
        a(f's_mov_b32 s{SH}, s{HD}')
    roles(F1T, F2T, T0, T1)
    a(f'v_and_b32 v{VI}, 15, v0')
    a(f'v_lshrrev_b32 v{VG}, 4, v0')
    a(f'v_mov_b32 v{VA}, 0')
    a(f'v_lshlrev_b32 v{VB}, 2, v{VI}')
    a(f'ds_write_b32 v{VB}, v{VA} offset:{L_CNT}')
    a(f's_mov_b32 s{SELLO}, 0x05040100'); a(f's_mov_b32 s{SELHI}, 0x07060302')
    a(f's_mov_b32 s{LO32}, -1'); a(f's_mov_b32 s{LO32+1}, 0')
    a(f's_mul_i32 s{STGB}, s{WV}, {STGW}')
    a(f's_add_u32 s{STGB}, s{STGB}, {L_STG}')
    a('s_waitcnt lgkmcnt(0)')
    srd(SWS, 42, WS_SIZE); srd(SX, 16, 8192); srd(SW, 22, 512*4096*2)
    a(f'buffer_load_dword v{GENV}, v{VA}, s[{SWS}:{SWS+3}], 0 offen offset:{WS_GEN} sc1')
    a(f's_lshl_b32 s{T2}, s{SB}, 10')
    a(f'buffer_load_dwordx4 v[{XR}:{XR+3}], v1, s[{SX}:{SX+3}], s{T2} offen')
    a(f'v_lshlrev_b32 v{VA}, 4, v{VI}')
    a(f'v_lshl_add_u32 v{VA}, v{VG}, 2, v{VA}')
    a(f's_lshl_b32 s{T3}, s{WV}, 8')
    a(f's_add_u32 s{T2}, s{T2}, s{T3}')
    a(f'buffer_load_dword v{XP}, v{VA}, s[{SX}:{SX+3}], s{T2} offen')
    a(f'v_lshlrev_b32 v{VA}, 4, v{VI}')
    a(f'v_lshl_add_u32 v{VA}, v{VG}, 14, v{VA}')
    a(f's_lshl_b32 s{T2}, s{WV}, 20')
    a(f's_lshl_b32 s{T3}, s{HD}, 8')
    a(f's_add_u32 s{T2}, s{T2}, s{T3}')
    for j in range(32):
        if j == b0wq: a('s_barrier')
        if j >= WQ: a(f's_waitcnt vmcnt({WQ-1})')
        r = WR + 4*j
        if j == wqn: a(f's_mov_b32 s{SW+2}, 0')
        a(f'buffer_load_dwordx4 v[{r}:{r+3}], v{VA}, s[{SW}:{SW+3}], s{T2} offen {wqpol}')
        if j < 31: a(f's_add_u32 s{T2}, s{T2}, {8192 if j % 2 == 0 else 7*8192}')
    srd(SC, 34, 8192); srd(SST, 36, 512*3072*2); srd(SOUT, 38, 8192); srd(SDBG, 40, 256)
    stamp(6)
    a('s_waitcnt vmcnt(32)')
    stamp(7)
    a(f'v_readfirstlane_b32 s{TAG}, v{GENV}')
    a(f's_add_u32 s{TAG}, s{TAG}, {TAGC}')

    def ln_stats(vals, mean, den, rden, t0, t1):
        R = len(vals)
        for r in range(R):
            v = vals[r]
            a(f'v_add_f32 v{mean[r]}, v{v[0]}, v{v[1]}')
            for k in range(2, len(v)): a(f'v_add_f32 v{mean[r]}, v{mean[r]}, v{v[k]}')
        wave_reduce('v_add_f32', mean, t0)
        for r in range(R): a(f'v_mul_f32 v{mean[r]}, {f32(1/512)}, v{mean[r]}')
        for r in range(R):
            v = vals[r]
            for k in range(len(v)):
                a(f'v_sub_f32 v{t0[r]}, v{v[k]}, v{mean[r]}')
                if k == 0: a(f'v_mul_f32 v{den[r]}, v{t0[r]}, v{t0[r]}')
                else: a(f'v_fmac_f32 v{den[r]}, v{t0[r]}, v{t0[r]}')
        wave_reduce('v_add_f32', den, t0)
        for r in range(R):
            a(f'v_mul_f32 v{den[r]}, {f32(1/512)}, v{den[r]}')
            rnd2(mean[r], den[r], t0[r])
            a(f'v_add_f32 v{den[r]}, {f32(1e-5)}, v{den[r]}')
            rnd1(den[r], t0[r])
            a(f'v_sqrt_f32 v{den[r]}, v{den[r]}')
            rnd1(den[r], t0[r])
            a(f'v_rcp_f32 v{rden[r]}, v{den[r]}')
    def ln_norm2(x, y, mean, den, rden, t0, t1, t2):
        a(f'v_sub_f32 v{x}, v{x}, v{mean}')
        a(f'v_sub_f32 v{y}, v{y}, v{mean}')
        rnd2(x, y, t0)
        a(f'v_mul_f32 v{t0}, v{x}, v{rden}')
        a(f'v_mul_f32 v{t1}, v{y}, v{rden}')
        a(f'v_fma_f32 v{x}, -v{t0}, v{den}, v{x}')
        a(f'v_fma_f32 v{y}, -v{t1}, v{den}, v{y}')
        a(f'v_fma_f32 v{x}, v{x}, v{rden}, v{t0}')
        a(f'v_fma_f32 v{y}, v{y}, v{rden}, v{t1}')
        rnd2(x, y, t0)
    def modulate2(x, y, c1pair, spair, t0, t1, t2, out):
        unpack(t0, t1, c1pair)
        a(f'v_mul_f32 v{x}, v{x}, v{t0}')
        a(f'v_mul_f32 v{y}, v{y}, v{t1}')
        rnd2(x, y, t2)
        unpack(t0, t1, spair)
        a(f'v_add_f32 v{x}, v{x}, v{t0}')
        a(f'v_add_f32 v{y}, v{y}, v{t1}')
        a(f'v_cvt_pk_bf16_f32 v{out}, v{x}, v{y}')
    def one_plus(pair, t0, t1):
        unpack(t0, t1, pair)
        a(f'v_add_f32 v{t0}, 1.0, v{t0}')
        a(f'v_add_f32 v{t1}, 1.0, v{t1}')
        a(f'v_cvt_pk_bf16_f32 v{pair}, v{t0}, v{t1}')

    for r in range(4): unpack(XF+2*r, XF+2*r+1, XR+r)
    ln_stats([[XF+k for k in range(8)]], [MEAN], [DEN], [RDEN], [U0], [U1])
    unpack(U2, U3, XP)
    ln_norm2(U2, U3, MEAN, DEN, RDEN, U0, U1, HP)
    stamp(9)

    def permute_weights(wait_fn):
        wmap = []
        free = SPARE
        for m in range(16):
            A = WR + 8*m; Bq = A + 4
            w = wait_fn(m)
            if w is not None: a(f's_waitcnt vmcnt({w})')
            row = [None]*8
            for c in range(4):
                a(f'v_perm_b32 v{free}, v{Bq+c}, v{A+c}, s{SELLO}')
                a(f'v_perm_b32 v{Bq+c}, v{Bq+c}, v{A+c}, s{SELHI}')
                row[2*c] = free; row[2*c+1] = Bq + c
                free = A + c
            wmap.append(row)
        return wmap, free
    def gemv(wmap, vec, zero=True):
        if zero:
            for e in range(8): a(f'v_mov_b32 v{ACC+e}, 0')
        for m in range(16):
            for e in range(8):
                a(f'v_dot2c_f32_bf16_dpp v{ACC+e}, v{vec}, v{wmap[m][e]} row_newbcast:{m} row_mask:0xf bank_mask:0xf')
        greduce8(ACC)
    def poll(name, loads, tagregs, sleep=1, maskreg=None, chk=None, fence=True):
        a(f's_mov_b32 s{SPIN}, 0')
        a.label(name, fence=fence)
        for l in loads: a(l)
        a('s_waitcnt vmcnt(0)')
        if chk is not None:
            chk(); tagregs = [None]
        else:
            a(f'v_xor_b32 v{VD}, s{TAG}, v{tagregs[0]}')
        for t in tagregs[1:]:
            a(f'v_bitop3_b32 v{VD}, v{t}, s{TAG}, v{VD} bitop3:0xbe')
        if maskreg is not None:
            a(f'v_and_b32 v{VD}, v{maskreg}, v{VD}')
        a(f'v_cmp_ne_u32 vcc, 0, v{VD}')
        a(f's_cbranch_vccz {name}_ok')
        a(f's_add_u32 s{SPIN}, s{SPIN}, 1')
        a(f's_cmp_lt_u32 s{SPIN}, {SPIN_MAX}')
        a(f's_cbranch_scc0 {name}_ok')
        if sleep: a(f's_sleep {sleep}')
        a(f's_branch {name}')
        a.label(name + '_ok', fence=fence)
    def lds_wait(name, off_v, off, val, sleep, fence=True):
        a(f's_mov_b32 s{SPIN}, 0')
        a.label(name, fence=fence)
        a(f'ds_read_b32 v{VD}, v{off_v} offset:{off}')
        a('s_waitcnt lgkmcnt(0)')
        a(f'v_readfirstlane_b32 s{T2}, v{VD}')
        a(f's_cmp_ge_u32 s{T2}, {val}')
        a(f's_cbranch_scc1 {name}_ok')
        a(f's_add_u32 s{SPIN}, s{SPIN}, 1')
        a(f's_cmp_lt_u32 s{SPIN}, {SPIN_MAX*4}')
        a(f's_cbranch_scc0 {name}_ok')
        if sleep: a(f's_sleep {sleep}')
        a(f's_branch {name}')
        a.label(name + '_ok', fence=fence)

    wmap, _ = permute_weights(lambda m: 30 - 2*m)
    a(f'v_lshrrev_b32 v{VA}, 1, v{VI}')
    a(f'v_lshlrev_b32 v{VA}, 9, v{VA}')
    a(f'v_and_b32 v{VB}, 1, v{VI}')
    a(f'v_lshl_add_u32 v{VA}, v{VB}, 5, v{VA}')
    a(f'v_lshl_add_u32 v{VA}, v{VG}, 3, v{VA}')
    a(f's_lshl_b32 s{T2}, s{SB}, 6')
    a(f's_lshl_b32 s{T3}, s{WV}, 12')
    a(f's_add_u32 s{T2}, s{T2}, s{T3}')
    a(f's_add_u32 s{T2}, s{T2}, {WS_MOD}')
    a(f's_add_u32 s{T3}, s{T2}, 16384')
    stamp(0)
    if pd:
        a.label('L_pd')
        a('s_memrealtime s[92:93]')
        a('s_waitcnt lgkmcnt(0)')
        a('s_sub_u32 s92, s92, s94')
        a(f's_cmp_ge_u32 s92, {pd}')
        a('s_cbranch_scc1 L_pd_ok')
        a('s_sleep 2')
        a('s_branch L_pd')
        a.label('L_pd_ok')
    poll('L_poll_sa', [f'buffer_load_dwordx2 v[{RD}:{RD+1}], v{VA}, s[{SWS}:{SWS+3}], s{T2} offen sc1',
                       f'buffer_load_dwordx2 v[{RD+2}:{RD+3}], v{VA}, s[{SWS}:{SWS+3}], s{T3} offen sc1'], [RD+1, RD+3])
    stamp(10)
    one_plus(RD+2, U0, U1)
    modulate2(U2, U3, RD+2, RD, U0, U1, VD, HP)
    gemv(wmap, HP)
    a(f'v_lshlrev_b32 v{VA}, 5, v{VI}')
    a(f'v_lshl_add_u32 v{VA}, v{VG}, 3, v{VA}')
    a(f's_lshl_b32 s{T2}, s{WV}, 9')
    a(f'v_add_u32 v{VB}, s{T2}, v{VA}')
    a(f'ds_write_b64 v{VB}, v[{ACC}:{ACC+1}] offset:{L_QP}')
    a('s_waitcnt lgkmcnt(0)')
    a('s_barrier')
    stamp(1)

    if nopre:
        stamp(11)
        finish(SWS, 8)
    def late_mod():
        a(f's_sub_u32 s{T4}, s2, 64')
        a(f's_cmp_lt_u32 s2, 128')
        a('s_cbranch_scc1 L_v_moddone')
        mod_issue(cv)
        mod_compute(cv, 0, L_CNT+4, 'L_v_moddone')
        a.label('L_v_moddone')
    def wait_kend(name):
        if not lpl: return
        a(f'v_mov_b32 v{VC}, 0')
        lds_wait(name, VC, L_CNT+12, 1, 16)
    if lme: late_mod()
    if tlbv:
        srd(SW, 20, 0x10000000)
        a(f's_lshl_b32 s{T2}, s2, 20')
        a(f'v_mov_b32 v{VA}, 0')
        a('s_mov_b64 exec, 1')
        a(f'buffer_load_dword v8, v{VA}, s[{SW}:{SW+3}], s{T2} offen')
        a('s_mov_b64 exec, -1')
    if tlbo == 1:
        a(f'v_mov_b32 v{VA}, 0')
        a('s_mov_b64 exec, 1')
        a(f'buffer_load_dword v9, v{VA}, s[{SOUT}:{SOUT+3}], 0 offen sc1')
        a('s_mov_b64 exec, -1')
    srd(SW, 24, 4096*512*2)
    a(f'v_lshlrev_b32 v{VA}, 4, v{VI}')
    a(f'v_lshl_add_u32 v{VA}, v{VG}, 11, v{VA}')
    a(f's_lshl_b32 s{T2}, s{HD}, 17')
    if pre is not None and pre & 8: a(f's_mov_b32 s{T2}, 0')
    a(f's_lshl_b32 s{T3}, s{WV}, 8')
    a(f's_add_u32 s{T2}, s{T2}, s{T3}')
    for j in range(32 if (pre is None or pre & 2) else 0):
        if j >= SW_: a(f's_waitcnt vmcnt({SW_-1})')
        r = WR + 4*j
        a(f'buffer_load_dwordx4 v[{r}:{r+3}], v{VA}, s[{SW}:{SW+3}], s{T2} offen offset:{(j%2)*1024} {wopol}')
        if j % 2 == 1 and j < 31: a(f's_add_u32 s{T2}, s{T2}, 8192')
    wmap, _ = permute_weights(lambda m: 30 - 2*m)
    if not lme: late_mod()

    if pre is not None and not pre & 4:
        stamp(11)
        finish(SWS, 8)
    for r in (24, 25, 26, 27, 28, 29, 60, 61, 62, 63): a(f'v_mov_b32 v{r}, 0')
    a(f's_mov_b32 s{T5}, {ACTB}')
    a(f's_cmp_lt_u32 s{F1T}, {NF1}')
    a('s_cbranch_scc0 L_nof1w')
    if not dfw: f1_dma(VB, VC, SST, WV, F1T, T1, T2, STGB, SW_ < 8, fpol)
    AT = 27
    a(f'v_bfe_u32 v{VA}, v{VI}, 1, 1')
    a(f'v_mul_u32_u24 v{VA}, {2*STGW}, v{VA}')
    a(f'v_and_b32 v{VD}, 1, v{VI}')
    a(f'v_lshl_add_u32 v{VA}, v{VD}, 12, v{VA}')
    a(f'v_lshl_add_u32 v{VA}, v{VG}, 8, v{VA}')
    a(f'v_lshrrev_b32 v{VD}, 2, v{VI}')
    a(f'v_lshl_add_u32 v{VA}, v{VD}, 5, v{VA}')
    a(f's_lshl_b32 s{T2}, s{WV}, 3')
    a(f's_add_u32 s{T2}, s{T2}, {L_STG}')
    a(f'v_add_u32 v{AT}, s{T2}, v{VA}')
    def f1_tr():
        for s in range(8):
            o = (s >> 2)*STGW + (s & 3)*1024
            a(f'ds_read_b64_tr_b16 v[{BF+4*s}:{BF+4*s+1}], v{AT} offset:{o}')
            a(f'ds_read_b64_tr_b16 v[{BF+4*s+2}:{BF+4*s+3}], v{AT} offset:{o+128}')
    if not dfw:
        a(f'v_mov_b32 v{VC}, 0')
        a(f'v_mov_b32 v{VB}, 1')
        a('s_waitcnt vmcnt(0)')
        a('s_mov_b64 exec, 1')
        a(f'ds_add_u32 v{VC}, v{VB} offset:{L_CNT+20}')
        a('s_mov_b64 exec, -1')
        lds_wait('L_w_stg', VC, L_CNT+20, 4, 8)
        f1_tr()
    SBF = BF + 32; C1F = D1
    wait_kend('L_wk1')
    a(f'v_lshrrev_b32 v{VA}, 2, v0')
    a(f'v_lshlrev_b32 v{VA}, 9, v{VA}')
    a(f'v_and_b32 v{VB}, 3, v0')
    a(f'v_lshl_add_u32 v{VA}, v{VB}, 4, v{VA}')
    a(f's_lshl_b32 s{T0}, s{WV}, 7')
    SO = [T0, T1, T3, T6]
    a(f's_add_u32 s{T0}, s{T0}, {WS_MOD + 3*16384}')
    for k in range(1, 4): a(f's_add_u32 s{SO[k]}, s{T0}, {k*8192}')
    for rr in range(2):
        loads = []; tags = []
        for k in range(4):
            r = 8 + 4*k
            loads.append(f'buffer_load_dwordx4 v[{r}:{r+3}], v{VA}, s[{SWS}:{SWS+3}], s{SO[k]} offen offset:{rr*64} sc1')
            tags += [r+1, r+3]
        poll(f'L_poll_sb{rr}', loads, tags, sleep=32)
        for q in range(4):
            unpack(SBF+8*rr+2*q, SBF+8*rr+2*q+1, 8+4*(q>>1)+2*(q&1))
            c1 = C1F+8*rr+2*q
            unpack(c1, c1+1, 16+4*(q>>1)+2*(q&1))
            a(f'v_add_f32 v{c1}, 1.0, v{c1}')
            a(f'v_add_f32 v{c1+1}, 1.0, v{c1+1}')
            rnd2(c1, c1+1, U0)
    AH = 24; AA = 25; AS = 26
    a(f's_mul_i32 s{T2}, s{WV}, {2*H2S}')
    a(f'v_lshlrev_b32 v{AH}, 3, v0')
    a(f'v_add_u32 v{AH}, s{T2}, v{AH}')
    a(f'v_and_b32 v{AA}, 7, v0')
    a(f'v_mul_u32_u24 v{AA}, {H2S}, v{AA}')
    a(f'v_bfe_u32 v{VB}, v0, 3, 1')
    a(f'v_lshl_add_u32 v{AA}, v{VB}, 9, v{AA}')
    a(f'v_lshl_add_u32 v{AA}, v{VG}, 4, v{AA}')
    a(f'v_bfe_u32 v{AS}, v0, 4, 1')
    a(f'v_lshlrev_b32 v{AS}, 6, v{AS}')
    a(f'v_lshrrev_b32 v{VB}, 5, v0')
    a(f'v_lshl_add_u32 v{AS}, v{VB}, 5, v{AS}')
    a(f'v_bfe_u32 v{VB}, v0, 1, 1')
    a(f'v_lshl_add_u32 v{AS}, v{VB}, 4, v{AS}')
    a(f's_lshr_b32 s{T5}, s{F1T}, 2')
    a(f's_lshl_b32 s{T5}, s{T5}, 11')
    a(f's_bfe_u32 s{T2}, s{F1T}, 0x10001')
    a(f's_lshl_b32 s{T2}, s{T2}, 7')
    a(f's_add_u32 s{T5}, s{T5}, s{T2}')
    a(f's_and_b32 s{T2}, s{F1T}, 1')
    a(f's_lshl_b32 s{T2}, s{T2}, 9')
    a(f's_add_u32 s{T5}, s{T5}, s{T2}')
    a(f's_and_b32 s{T2}, s{WV}, 1')
    a(f's_lshl_b32 s{T2}, s{T2}, 10')
    a(f's_add_u32 s{T5}, s{T5}, s{T2}')
    a(f's_lshr_b32 s{T2}, s{WV}, 1')
    a(f's_lshl_b32 s{T2}, s{T2}, 8')
    a(f's_add_u32 s{T5}, s{T5}, s{T2}')
    if acs > 7: a(f's_lshl_b32 s{T5}, s{T5}, {acs-7}')
    a(f's_add_u32 s{T5}, s{T5}, {ACTB}')
    AX1 = 28
    a(f'v_lshrrev_b32 v{AX1}, 2, v0')
    a(f'v_lshlrev_b32 v{AX1}, {xs}, v{AX1}')
    a(f'v_and_b32 v{VB}, 3, v0')
    a(f'v_lshl_add_u32 v{AX1}, v{VB}, 4, v{AX1}')
    if rep & 1:
        a(f's_and_b32 s{T2}, s2, 7')
        a(f's_lshl_b32 s{T2}, s{T2}, 15')
        a(f'v_add_u32 v{AX1}, s{T2}, v{AX1}')
    if rep & 2:
        a(f'v_bfe_u32 v{AS}, v0, 4, 1')
        a(f'v_lshlrev_b32 v{AS}, 6, v{AS}')
        a(f'v_lshrrev_b32 v{VB}, 5, v0')
        a(f'v_lshl_add_u32 v{AS}, v{VB}, 5, v{AS}')
        a(f'v_bfe_u32 v{VB}, v0, 2, 1')
        a(f'v_lshl_add_u32 v{AS}, v{VB}, 4, v{AS}')
        a(f'v_bfe_u32 v{VB}, v0, 3, 1')
        a(f'v_and_b32 v{VD}, 3, v0')
        a(f'v_lshl_add_u32 v{VB}, v{VB}, 2, v{VD}')
        a(f'v_mul_u32_u24 v{VB}, {ACS}, v{VB}')
        a(f'v_add_u32 v{AS}, v{VB}, v{AS}')
    a('s_waitcnt lgkmcnt(0)')
    a('s_branch L_wdone')
    a.label('L_nof1w')
    a(f's_mov_b32 s{T0}, s{F2T}')
    a(f's_cmp_lt_u32 s{T0}, 32')
    a('s_cbranch_scc0 L_wdone')
    AT2 = 38
    tr_addr(cv, AT2)
    if not dfw:
        f2_dma(VB, VC, SST, WV, T0, T1, T2, T3, STGB, SW_ < 8, fpol)
        a('s_waitcnt vmcnt(0)')
        for s in range(12): tr_read(BF + 4*s, AT2, s)
    GBP = 125
    wait_kend('L_wk2')
    a(f'v_lshlrev_b32 v{VA}, 3, v0')
    a(f's_lshl_b32 s{T2}, s{T0}, 9')
    a(f's_add_u32 s{T2}, s{T2}, {WS_MOD + 5*16384}')
    poll('L_poll_gb', [f'buffer_load_dwordx2 v[8:9], v{VA}, s[{SWS}:{SWS+3}], s{T2} offen sc1'], [9], sleep=32)
    a(f'v_mov_b32 v{GBP}, v8')
    AD = 24; VM = 30; AX = 60; AR = 61; AO = 62; AW = 63
    a(f'v_bfe_u32 v{VB}, v0, 3, 1')
    a(f's_mul_i32 s{T3}, s{WV}, 12')
    a(f'v_add_u32 v{VB}, s{T3}, v{VB}')
    a(f'v_and_b32 v{VA}, {0x3f0 & ~0x80}, v1')
    a(f'v_add_u32 v{VA}, {21*2048}, v{VA}')
    a(f's_mul_i32 s{T3}, s{WV}, {6*2048}')
    for u in range(6):
        a(f'v_add_u32 v{VC}, {2*u}, v{VB}')
        a(f'v_cmp_gt_u32 vcc, 43, v{VC}')
        a(f'v_cndmask_b32 v{VM+u}, 0, -1, vcc')
        a(f'v_add_u32 v{VC}, s{T3}, v1')
        a(f'v_cndmask_b32 v{AD+u}, v{VA}, v{VC}, vcc')
        if acs > 7:
            a(f'v_lshrrev_b32 v{VC}, 7, v{AD+u}')
            a(f'v_and_b32 v{AD+u}, 127, v{AD+u}')
            a(f'v_lshl_add_u32 v{AD+u}, v{VC}, {acs}, v{AD+u}')
        if u < 5: a(f's_add_u32 s{T3}, s{T3}, 2048')
    a(f'v_lshrrev_b32 v{AX}, 3, v0')
    a(f'v_lshlrev_b32 v{AO}, 10, v{AX}')
    a(f'v_lshlrev_b32 v{AX}, {xs+5}, v{AX}')
    a(f'v_and_b32 v{VB}, 7, v0')
    a(f'v_lshl_add_u32 v{AX}, v{VB}, 3, v{AX}')
    if rep & 1:
        a(f's_and_b32 s{T2}, s2, 7')
        a(f's_lshl_b32 s{T2}, s{T2}, 15')
        a(f'v_add_u32 v{AX}, s{T2}, v{AX}')
    if rep & 2:
        a(f's_and_b32 s{T2}, s2, 7')
        a(f's_mul_i32 s{T2}, s{T2}, {ACS}')
        for u in range(6): a(f'v_add_u32 v{AD+u}, s{T2}, v{AD+u}')
    a(f'v_lshl_add_u32 v{AO}, v{VB}, 2, v{AO}')
    red_addr(cv, AR)
    a(f's_lshl_b32 s{T2}, s{WV}, 10')
    a(f'v_add_u32 v{AW}, s{T2}, v1')
    a('s_waitcnt lgkmcnt(0)')
    a.label('L_wdone')
    GAP = 124; XR1 = 126; AQ = 36; A64 = 37
    wait_kend('L_wk3')
    a(f'v_and_b32 v{VB}, 3, v0')
    a(f'v_lshrrev_b32 v{VC}, 5, v0')
    a(f'v_lshl_add_u32 v{VB}, v{VB}, 1, v{VC}')
    a(f'v_lshlrev_b32 v{AQ}, 3, v{VB}')
    a(f's_lshl_b32 s{T2}, s{SB}, 6')
    a(f's_lshl_b32 s{T3}, s{SH}, 9')
    a(f's_add_u32 s{T2}, s{T2}, s{T3}')
    a(f's_add_u32 s{T2}, s{T2}, {WS_MOD + 2*16384}')
    poll('L_poll_ga', [f'buffer_load_dwordx2 v[8:9], v{AQ}, s[{SWS}:{SWS+3}], s{T2} offen sc1'], [9], sleep=32)
    a(f'v_mov_b32 v{GAP}, v8')
    if xfl:
        a(f'v_bfe_u32 v{VA}, v0, 2, 1')
        a(f'v_lshl_add_u32 v{AQ}, v{VA}, 6, v{AQ}')
    if rep & 1:
        a(f'v_bfe_u32 v{VA}, v0, 3, 2')
        a(f'v_lshl_add_u32 v{AQ}, v{VA}, 15, v{AQ}')
    a(f'v_lshlrev_b32 v{VA}, 2, v{VB}')
    a(f's_lshl_b32 s{T2}, s{SB}, 10')
    a(f's_lshl_b32 s{T3}, s{SH}, 5')
    a(f's_add_u32 s{T2}, s{T2}, s{T3}')
    a(f'buffer_load_dword v{XR1}, v{VA}, s[{SX}:{SX+3}], s{T2} offen')
    a(f'v_lshlrev_b32 v{VA}, 5, v{VI}')
    a(f'v_lshl_add_u32 v{VA}, v{VG}, 3, v{VA}')
    a(f'v_lshrrev_b32 v{VB}, 2, v{VI}')
    a(f'v_lshlrev_b32 v{VB}, 12, v{VB}')
    if wx & 3: a(f'v_xor_b32 v{VB}, {(wx & 3) << 12}, v{VB}')
    a(f'v_and_b32 v{VC}, 3, v{VI}')
    a(f'v_lshl_add_u32 v{VB}, v{VC}, 5, v{VB}')
    a(f'v_lshl_add_u32 v{VB}, v{VG}, 3, v{VB}')
    a(f'v_lshrrev_b32 v{A64}, 2, v0')
    a(f'v_lshlrev_b32 v{A64}, 7, v{A64}')
    a(f'v_and_b32 v{VC}, 3, v0')
    a(f'v_lshl_add_u32 v{A64}, v{VC}, 4, v{A64}')
    a(f's_lshl_b32 s{T4}, s{SB}, 16')
    a(f's_lshl_b32 s{T3}, s{WV}, 14')
    a(f's_add_u32 s{T4}, s{T4}, s{T3}')
    a(f's_lshl_b32 s{T3}, s{HD}, 7')
    a(f's_add_u32 s{T4}, s{T4}, s{T3}')
    if wx & 12: a(f's_xor_b32 s{T4}, s{T4}, {(wx & 12) << 12}')
    a(f's_add_u32 s{T4}, s{T4}, {WS_WOP}')
    NP = 8; NC = 16
    a(f'v_lshrrev_b32 v{VC}, 5, v0')
    a(f'v_lshlrev_b32 v{VC}, 4, v{VC}')
    a(f'v_lshrrev_b32 v{NP}, v{VC}, s{TAG}')
    a(f'v_and_b32 v{VC}, 1, v0')
    a(f'v_lshlrev_b32 v{VC}, 4, v{VC}')
    a(f'v_lshrrev_b32 v{NC}, v{VC}, s{TAG}')
    for k in range(1, 4):
        a(f'v_lshrrev_b32 v{NP+k}, {4*k}, v{NP}')
        a(f'v_lshrrev_b32 v{NC+k}, {4*k}, v{NC}')
    a('s_waitcnt vmcnt(0)')
    stamp(11)
    if dry or dry2:
        a(f's_mov_b64 s[{DRY}:{DRY+1}], 0')
        a('s_mov_b64 exec, 0')
        a('s_nop 4')
        a('s_branch L_vlast' if dry2 else 's_branch L_t1')
        a.label('L_real')
        a(f's_mov_b64 s[{DRY}:{DRY+1}], -1')
        a('s_mov_b64 exec, -1')
    a(f'v_mov_b32 v{VC}, 0')
    for e in range(8): a(f'v_mov_b32 v{ACC+e}, 0')
    lds_wait('L_w_stat', VC, L_CNT+8, 4, wsl, fence=not nf)
    stamp(8)
    if dry: a.label('L_t1', fence=False)
    LO = L_OP
    for w in range(4):
        a(f'ds_read_b64 v[{RD+2*w}:{RD+2*w+1}], v{VA} offset:{LO + w*512}')
    a('s_waitcnt lgkmcnt(0)')
    for k in range(4): a(f'v_add_f32 v{RD+k}, v{RD+k}, v{RD+k+4}')
    for k in range(2): a(f'v_add_f32 v{RD+k}, v{RD+k}, v{RD+k+2}')
    a(f'v_cvt_pk_bf16_f32 v{HP}, v{RD}, v{RD+1}')
    if dbg:
        a(f's_lshl_b32 s{T2}, s{SB}, 5')
        a(f's_or_b32 s{T2}, s{T2}, s{HD}')
        a(f's_lshl_b32 s{T2}, s{T2}, 8')
        a(f's_add_u32 s{T2}, s{T2}, {WS_DBG + 0x10000}')
        a(f'v_lshrrev_b32 v{VC}, 1, v{VA}')
        a(f'buffer_store_dword v{HP}, v{VC}, s[{SWS}:{SWS+3}], s{T2} offen')
    gemv(wmap, HP, zero=False)
    a(f'v_add_u32 v{ACC}, 8, v{ACC}')
    a(f'v_add_u32 v{ACC+1}, 8, v{ACC+1}')
    a(f'v_mov_b32 v{ACC+2}, v{ACC}')
    a(f'v_mov_b32 v{ACC+3}, v{ACC+1}')
    a(f'v_permlane16_swap_b32 v{ACC}, v{ACC+2}')
    a(f'v_permlane16_swap_b32 v{ACC+1}, v{ACC+3}')
    for k in range(4): a(f'v_bfi_b32 v{RD+k}, 15, v{NP+k}, v{ACC+k}')
    ex_mask(dry, '0xffff', '0xffff')
    a(f'buffer_store_dwordx4 v[{RD}:{RD+3}], v{VB}, s[{SWS}:{SWS+3}], s{T4} offen sc1')
    ex_full(dry)
    stamp(2)
    if notail: finish(SWS, 8)
    if xa:
        a(f'v_mov_b32 v{VC}, 0')
        a(f'ds_read_b32 v{VD}, v{VC} offset:{L_CNT+16}')
        a('s_waitcnt lgkmcnt(0)')
        a(f'v_readfirstlane_b32 s{T3}, v{VD}')
        a(f's_add_u32 s{T3}, s{T3}, {tsched(512) + bo1}')
        a(f's_mov_b32 s{SPIN}, 0')
        a.label('L_xa')
        a('s_memrealtime s[92:93]')
        a('s_waitcnt lgkmcnt(0)')
        a(f's_sub_u32 s92, s92, s{T3}')
        a('s_cmp_ge_i32 s92, 0')
        a('s_cbranch_scc1 L_xa_ok')
        a(f's_add_u32 s{SPIN}, s{SPIN}, 1')
        a(f's_cmp_lt_u32 s{SPIN}, 64')
        a('s_cbranch_scc1 L_xa')
        a.label('L_xa_ok')
        stamp(6)
        a(f's_lshl_b32 s{T2}, s{SB}, 16')
        a(f's_lshl_b32 s{T3}, s{WV}, 14')
        a(f's_add_u32 s{T2}, s{T2}, s{T3}')
        a(f's_add_u32 s{T2}, s{T2}, {WS_WOP}')
        for j in range(xa):
            a(f'buffer_load_dwordx4 v[{WR+4*j}:{WR+4*j+3}], v1, s[{SWS}:{SWS+3}], s{T2} offen offset:{(j%4)*1024} {xapol}')
            if j % 4 == 3: a(f's_add_u32 s{T2}, s{T2}, 4096')
        a('s_waitcnt vmcnt(0)')
        stamp(7)
        finish(SWS, 8)
    a(f's_cmp_lt_u32 s{F1T}, {NF1}')
    a('s_cbranch_scc1 L_gate')
    a(f's_mov_b32 s{T0}, s{F2T}')
    a(f's_cmp_lt_u32 s{T0}, 32')
    a('s_cbranch_scc1 L_gate')
    a(f's_cmp_eq_u32 s{WV}, 0')
    a('s_cbranch_scc1 L_gate')
    a('s_branch L_fin')
    a.label('L_gate')
    def twait(name, off):
        a(f's_mov_b32 s{SPIN}, 0')
        if dry: a(f's_andn2_b32 s{SPIN}, 128, s{DRY}')
        a.label(name, fence=False)
        a('s_memrealtime s[92:93]')
        a('s_waitcnt lgkmcnt(0)')
        a(f's_sub_u32 s92, s92, s{T6}')
        a(f's_cmp_ge_i32 s92, {off}')
        a(f's_cbranch_scc1 {name}_ok')
        a(f's_add_u32 s{SPIN}, s{SPIN}, 1')
        a(f's_cmp_lt_u32 s{SPIN}, 128')
        a(f's_cbranch_scc1 {name}')
        a.label(name + '_ok', fence=False)
    if tb2 is not None:
        a(f'v_mov_b32 v{VC}, 0')
        a(f'ds_read_b32 v{VD}, v{VC} offset:{L_CNT+16}')
        a('s_waitcnt lgkmcnt(0)')
        a(f'v_readfirstlane_b32 s{T6}, v{VD}')
        a(f's_add_u32 s{T6}, s{T6}, {tsched(512) + bo1}')
    a(f's_cmp_lg_u32 s{WV}, 0')
    a('s_cbranch_scc1 L_r1done')
    a(f's_lshl_b32 s{RW}, s{SB}, 5')
    a(f's_or_b32 s{RW}, s{RW}, s{SH}')
    a(f's_lshr_b32 s{T2}, s{RW}, 1')
    if wx: a(f's_xor_b32 s{T2}, s{T2}, {wx}')
    a(f's_lshl_b32 s{T2}, s{T2}, 12')
    a(f's_and_b32 s{T3}, s{RW}, 1')
    a(f's_lshl_b32 s{T3}, s{T3}, 6')
    a(f's_add_u32 s{T2}, s{T2}, s{T3}')
    a(f's_add_u32 s{T2}, s{T2}, {WS_WOP}')
    loads = [f'buffer_load_dwordx4 v[{8+4*j}:{8+4*j+3}], v{A64}, s[{SWS}:{SWS+3}], s{T2} offen offset:{j*2048} sc1' for j in range(2)]
    def chk8():
        a(f'v_xor_b32 v{VD}, v8, v{NC}')
        for r in range(9, 16): a(f'v_bitop3_b32 v{VD}, v{r}, v{NC + (r & 3)}, v{VD} bitop3:0xbe')
        a(f'v_and_b32 v{VD}, 15, v{VD}')
    if tb2 is not None:
        twait('L_tw1', 0)
        if tpr: a(f's_mov_b32 s14, s{T6}')
    elif bo1 is not None:
        a(f'v_mov_b32 v{VC}, 0')
        a(f'ds_read_b32 v{VD}, v{VC} offset:{L_CNT+16}')
        if slp: a(f'ds_read_b32 v{U0}, v{VC} offset:{L_CNT+24}')
        a('s_waitcnt lgkmcnt(0)')
        a(f'v_readfirstlane_b32 s{T3}, v{VD}')
        if slp:
            a(f'v_readfirstlane_b32 s{T1}, v{U0}')
            a(f's_sub_u32 s{T1}, s{T3}, s{T1}')
            a(f's_min_i32 s{T1}, s{T1}, 80')
            a(f's_max_i32 s{T1}, s{T1}, -80')
            a(f's_mul_i32 s{T1}, s{T1}, {slp}')
            a(f's_ashr_i32 s{T1}, s{T1}, 4')
            a(f's_add_u32 s{T3}, s{T3}, s{T1}')
        a(f's_add_u32 s{T3}, s{T3}, {tsched(512) + bo1}')
        a(f's_mov_b32 s{SPIN}, 0')
        if dry: a(f's_andn2_b32 s{SPIN}, 64, s{DRY}')
        a.label('L_bo1', fence=not nf)
        a('s_memrealtime s[92:93]')
        a('s_waitcnt lgkmcnt(0)')
        a(f's_sub_u32 s92, s92, s{T3}')
        a('s_cmp_ge_i32 s92, 0')
        a('s_cbranch_scc1 L_bo1_ok')
        a(f's_add_u32 s{SPIN}, s{SPIN}, 1')
        a(f's_cmp_lt_u32 s{SPIN}, 64')
        a('s_cbranch_scc1 L_bo1')
        a.label('L_bo1_ok', fence=not nf)
        if tpr: a(f's_mov_b32 s14, s{T3}')
    poll('L_poll_wop', loads, None, chk=chk8, fence=not nf)
    if tst: stamp(6); a(f's_mov_b32 s5, s{SPIN}')
    for r in range(8, 16): a(f'v_and_b32 v{r}, -16, v{r}')
    a('v_pk_add_f32 v[8:9], v[8:9], v[12:13]')
    a('v_pk_add_f32 v[10:11], v[10:11], v[14:15]')
    a('v_permlane32_swap_b32 v8, v10')
    a('v_permlane32_swap_b32 v9, v11')
    a('v_pk_add_f32 v[8:9], v[8:9], v[10:11]')
    a('v_mov_b32 v10, v8'); a('v_mov_b32 v11, v9')
    a('v_permlane16_swap_b32 v8, v10')
    a('v_permlane16_swap_b32 v9, v11')
    a('v_pk_add_f32 v[8:9], v[8:9], v[10:11]')
    for ctl_ in ('row_ror:4', 'row_ror:8'):
        for k in range(2): a(f'v_add_f32_dpp v{8+k}, v{8+k}, v{8+k} {ctl_} row_mask:0xf bank_mask:0xf')
    rnd2(8, 9, VD)
    modulate2(8, 9, GAP, XR1, U2, U3, VD, RD)
    a(f'v_mov_b32 v{RD+1}, s{TAG}')
    a(f's_lshl_b32 s{T2}, s{RW}, {xs}')
    a(f's_add_u32 s{T2}, s{T2}, {X1B}')
    if rep & 1:
        a(f's_add_u32 s{T3}, s{T2}, {4*XCS}')
        a(f'buffer_store_dwordx2 v[{RD}:{RD+1}], v{AQ}, s[{SWS}:{SWS+3}], s{T2} offen sc1')
        a(f'buffer_store_dwordx2 v[{RD}:{RD+1}], v{AQ}, s[{SWS}:{SWS+3}], s{T3} offen sc1')
    else:
        if xfl: ex_mask(dry, '0xff', '0xff')
        else: ex_mask(dry, '0xf', '0xf')
        a(f'buffer_store_dwordx2 v[{RD}:{RD+1}], v{AQ}, s[{SWS}:{SWS+3}], s{T2} offen sc1')
        ex_full(dry)
    stamp(3)
    a.label('L_r1done', fence=not nf)
    if g1 and tb2 is None: tbar(dry)
    a(f's_cmp_lt_u32 s{F1T}, {NF1}')
    a('s_cbranch_scc0 L_notf1')
    if dfw: f1_tr()
    a(f's_lshl_b32 s{T2}, s{WV}, {xs+6}')
    a(f's_add_u32 s{T2}, s{T2}, {X1B}')
    XO = [T2, T3, T0, T1]
    for j in range(1, 4): a(f's_add_u32 s{XO[j]}, s{T2}, {(16*j) << xs}')
    a('s_mov_b32 s32, 0x11111111'); a('s_mov_b32 s33, 0x11111111')
    loads = [f'buffer_load_dwordx4 v[{8+4*j}:{8+4*j+3}], v{AX1}, s[{SWS}:{SWS+3}], s{XO[j]} offen sc1' for j in range(4)]
    if tb2 is not None: twait('L_tw2', tb2)
    elif bo2: a(f's_sleep {bo2}')
    poll('L_poll_x1', loads[:exx], [9, 11, 13, 15, 17, 19, 21, 23][:2*exx], fence=not nf)
    if tst: stamp(7); a(f's_mov_b32 s15, s{SPIN}')
    XV = WR; DV = WR + 16; PS = WR + 32; X0V = WR + 44; TT = WR + 45; HO = WR + 48; AF = WR + 64
    def pr(r): return f'v[{r}:{r+1}]'
    BC = 'op_sel_hi:[1,0]'; NG = 'neg_lo:[0,1] neg_hi:[0,1]'
    for rr in range(2):
        for q in range(4):
            src = 8 + 4*(2*rr + q//2) + 2*(q % 2)
            unpack(XV + 8*rr + 2*q, XV + 8*rr + 2*q + 1, src)
            if q == 0: a(f'v_readfirstlane_b32 s{22+2*rr}, v{XV+8*rr}')
    for rr in range(2):
        for q in range(4):
            a(f'v_pk_add_f32 {pr(DV+8*rr+2*q)}, {pr(XV+8*rr+2*q)}, s[{22+2*rr}:{23+2*rr}] {BC} {NG}')
    a(f'v_mov_b32 v{X0V}, s24'); a(f'v_mov_b32 v{TT}, s22')
    a(f'v_cndmask_b32 v{X0V}, v{X0V}, v{TT}, s[{LO32}:{LO32+1}]')
    S_ = [PS, PS+2]; Q_ = [PS+4, PS+6]; Z_ = [PS+8, PS+10]
    for rr in range(2): a(f'v_pk_add_f32 {pr(S_[rr])}, {pr(DV+8*rr)}, {pr(DV+8*rr+2)}')
    for rr in range(2): a(f'v_pk_add_f32 {pr(Z_[rr])}, {pr(DV+8*rr+4)}, {pr(DV+8*rr+6)}')
    for rr in range(2): a(f'v_pk_mul_f32 {pr(Q_[rr])}, {pr(DV+8*rr)}, {pr(DV+8*rr)}')
    for rr in range(2): a(f'v_pk_add_f32 {pr(S_[rr])}, {pr(S_[rr])}, {pr(Z_[rr])}')
    for q in range(1, 4):
        for rr in range(2): a(f'v_pk_fma_f32 {pr(Q_[rr])}, {pr(DV+8*rr+2*q)}, {pr(DV+8*rr+2*q)}, {pr(Q_[rr])}')
    for r in S_ + Q_: a(f'v_add_f32 v{r}, v{r}, v{r+1}')
    a(f'v_permlane32_swap_b32 v{S_[0]}, v{S_[1]}')
    a(f'v_permlane32_swap_b32 v{Q_[0]}, v{Q_[1]}')
    a(f'v_add_f32 v{S_[0]}, v{S_[0]}, v{S_[1]}')
    a(f'v_add_f32 v{Q_[0]}, v{Q_[0]}, v{Q_[1]}')
    a(f'v_permlane16_swap_b32 v{S_[0]}, v{Q_[0]}')
    T_ = S_[0]; C_ = Q_[0]
    a(f'v_add_f32 v{T_}, v{S_[0]}, v{Q_[0]}')
    for ctl_ in ('quad_perm:[1,0,3,2]', 'quad_perm:[2,3,0,1]', 'row_half_mirror', 'row_mirror'):
        a(f'v_add_f32_dpp v{T_}, v{T_}, v{T_} {ctl_} row_mask:0xf bank_mask:0xf')
    a(f'v_mul_f32 v{T_}, {f32(1/512)}, v{T_}')
    a(f'v_mov_b32 v{C_}, v{T_}')
    a(f'v_permlane16_swap_b32 v{T_}, v{C_}')
    a(f'v_add_f32 v{X0V}, v{X0V}, v{T_}')
    a(f'v_fma_f32 v{C_}, -v{T_}, v{T_}, v{C_}')
    a(f'v_max_f32 v{C_}, 0, v{C_}')
    rnd2(X0V, C_, TT)
    a(f'v_add_f32 v{C_}, {f32(1e-5)}, v{C_}')
    a(f'v_readlane_b32 s22, v{X0V}, 0'); a(f'v_readlane_b32 s24, v{X0V}, 32')
    rnd1(C_, TT)
    a(f'v_sqrt_f32 v{C_}, v{C_}')
    P8 = [(rr, q) for rr in range(2) for q in range(4)]
    def X(rr, q): return XV + 8*rr + 2*q
    def rnd_all():
        for n_, (rr, q) in enumerate(P8): a(f'v_cvt_pk_bf16_f32 v{DV+n_}, v{X(rr,q)}, v{X(rr,q)+1}')
        for n_, (rr, q) in enumerate(P8):
            a(f'v_lshlrev_b32 v{X(rr,q)}, 16, v{DV+n_}')
            a(f'v_and_b32 v{X(rr,q)+1}, 0xffff0000, v{DV+n_}')
    for rr, q in P8[:2]: a(f'v_pk_add_f32 {pr(X(rr,q))}, {pr(X(rr,q))}, s[{22+2*rr}:{23+2*rr}] {BC} {NG}')
    rnd1(C_, TT)
    a(f'v_rcp_f32 v{C_}, v{C_}')
    for rr, q in P8[2:]: a(f'v_pk_add_f32 {pr(X(rr,q))}, {pr(X(rr,q))}, s[{22+2*rr}:{23+2*rr}] {BC} {NG}')
    a(f'v_readlane_b32 s26, v{C_}, 0'); a(f'v_readlane_b32 s28, v{C_}, 32')
    rnd_all()
    for rr, q in P8: a(f'v_pk_mul_f32 {pr(X(rr,q))}, {pr(X(rr,q))}, s[{26+2*rr}:{27+2*rr}] {BC}')
    rnd_all()
    for rr, q in P8: a(f'v_pk_mul_f32 {pr(X(rr,q))}, {pr(X(rr,q))}, {pr(C1F+8*rr+2*q)}')
    rnd_all()
    for rr, q in P8: a(f'v_pk_add_f32 {pr(X(rr,q))}, {pr(X(rr,q))}, {pr(SBF+8*rr+2*q)}')
    for rr in range(2):
        for hf in range(2):
            r = HO + 4*rr + 2*hf
            for k in range(2): a(f'v_cvt_pk_bf16_f32 v{r+k}, v{X(rr,2*hf+k)}, v{X(rr,2*hf+k)+1}')
            a(f'ds_write_b64 v{AH}, v[{r}:{r+1}] offset:{L_H2 + rr*H2S + hf*512}')
    a('s_waitcnt lgkmcnt(0)')
    if tst: stamp(9)
    tbar(dry)
    if tst: stamp(0)
    for s in range(8): a(f'ds_read_b128 v[{AF+4*s}:{AF+4*s+3}], v{AA} offset:{L_H2 + s*64}')
    a(f'v_mov_b32 v{RD+5}, s{TAG}'); a(f'v_mov_b32 v{RD+7}, s{TAG}')
    a('s_mov_b64 vcc, s[32:33]')
    for s in range(8):
        a(f's_waitcnt lgkmcnt({7-s})')
        mf(RD, AF+4*s, BF+4*s, s == 0)
    a(f'v_permlane32_swap_b32 v{RD}, v{RD+2}')
    a(f'v_permlane32_swap_b32 v{RD+1}, v{RD+3}')
    for k in range(2): a(f'v_add_f32_dpp v{RD+k}, v{RD+2+k}, v{RD+k} row_ror:8 row_mask:0xf bank_mask:0xf')
    rnd2(RD, RD+1, VD)
    for k in range(2): a(f'v_mov_b32_dpp v{U0+k}, v{RD+k} row_shl:4 row_mask:0xf bank_mask:0xf')
    silu(RD, VB, WR, WR+1); silu(RD+1, VC, WR+2, WR+3)
    rnd2(RD, RD+1, VD)
    for k in range(2): a(f'v_mul_f32 v{RD+k}, v{RD+k}, v{U0+k}')
    for k in range(2): a(f'v_mov_b32_dpp v{U0+k}, v{RD+k} quad_perm:[1,0,3,2] row_mask:0xf bank_mask:0xf')
    for k in range(2): a(f'v_cvt_pk_bf16_f32 v{RD+k}, v{RD+k}, v{U0+k}')
    a(f'v_cndmask_b32_dpp v{RD+4}, v{RD+1}, v{RD}, vcc quad_perm:[0,0,0,0] row_mask:0xf bank_mask:0xf')
    a('s_not_b64 vcc, vcc')
    a(f'v_cndmask_b32_dpp v{RD+6}, v{RD}, v{RD+1}, vcc quad_perm:[2,2,2,2] row_mask:0xf bank_mask:0xf')
    if rep & 2:
        for k in (0, 2):
            a(f'v_mov_b32_dpp v{RD+k}, v{RD+4+k} row_newbcast:0 row_mask:0xf bank_mask:0x5')
        for k in (0, 2):
            a(f'v_mov_b32_dpp v{RD+k}, v{RD+4+k} row_newbcast:2 row_mask:0xf bank_mask:0xa')
        a(f'v_mov_b32 v{RD+1}, s{TAG}'); a(f'v_mov_b32 v{RD+3}, s{TAG}')
        a(f'buffer_store_dwordx4 v[{RD}:{RD+3}], v{AS}, s[{SWS}:{SWS+3}], s{T5} offen sc1')
    else:
        ex_mask(dry, '0x00050005', '0x00050005')
        a(f'buffer_store_dwordx4 v[{RD+4}:{RD+7}], v{AS}, s[{SWS}:{SWS+3}], s{T5} offen sc1')
    stamp(4)
    a('s_branch L_fin')
    a.label('L_notf1')
    a(f's_mov_b32 s{T0}, s{F2T}')
    a(f's_cmp_lt_u32 s{T0}, 32')
    a('s_cbranch_scc0 L_fin')
    if dfw:
        for s in range(12): tr_read(BF + 4*s, AT2, s)
    a(f's_mov_b32 s{T2}, {ACTB}')
    a(f's_mov_b32 s30, {ACTB + (8 << acs)}')
    loads = []; tags = []
    for u in range(6):
        for k in range(2):
            r = WR + 8*u + 4*k
            loads.append(f'buffer_load_dwordx4 v[{r}:{r+3}], v{AD+u}, s[{SWS}:{SWS+3}], s{30 if k else T2} offen sc1')
            tags += [r+1, r+3]
    a(f's_lshl_b32 s{T1}, s{T0}, {xs}')
    a(f's_add_u32 s{T1}, s{T1}, {X1B}')
    X1R = WR + 48
    if tb2 is not None: twait('L_tw2b', tb2 + 20)
    elif bo2: a(f's_sleep {bo2}')
    poll('L_poll_x1b', [f'buffer_load_dwordx2 v[{X1R}:{X1R+1}], v{AX}, s[{SWS}:{SWS+3}], s{T1} offen sc1'], [X1R+1])
    def gen_update(lab):
        a(f's_or_b32 s{T3}, s{T0}, s{WV}')
        a(f's_cmp_lg_u32 s{T3}, 0')
        a(f's_cbranch_scc1 {lab}')
        a(f's_sub_u32 s{T3}, s{TAG}, {TAGC - 0x11111111}')
        a(f'v_mov_b32 v{VB}, s{T3}')
        a(f'v_mov_b32 v{VA}, 0')
        ex_mask(dry, 1, 0)
        a(f'buffer_store_dword v{VB}, v{VA}, s[{SWS}:{SWS+3}], 0 offen offset:{WS_GEN} sc1')
        ex_full(dry)
    if gene:
        gen_update('L_gen_done'); a.label('L_gen_done')
    if tlbo >= 2:
        a(f's_lshl_b32 s{T3}, s{T0}, 5')
        a(f'buffer_load_dword v{X1R+2}, v{AO}, s[{SOUT}:{SOUT+3}], s{T3} offen {"sc1" if tlbo == 3 else ""}')
    if g2: poll('L_poll_act0', loads[:1], tags[:2])
    if tb3 is not None: twait('L_tw3', tb3)
    elif bo3: a(f's_sleep {bo3}')
    poll('L_poll_act', loads[:exa], tags[:2*exa], fence=not nf)
    if tst: stamp(7); a(f's_mov_b32 s15, s{SPIN}')
    AF = WR + 64
    a('s_waitcnt lgkmcnt(0)')
    for u in range(6):
        for k in range(4):
            a(f'v_and_b32 v{AF+4*u+k}, v{VM+u}, v{WR+8*u+2*k}')
        mf(D1, AF+4*u, BF+8*u, u == 0); mf(D2, AF+4*u, BF+8*u+4, u == 0)
    sel_halves(cv, RD, D1, D2)
    a(f'ds_write_b128 v{AW}, v[{RD}:{RD+3}] offset:{L_RED}')
    a('s_waitcnt lgkmcnt(0)')
    tbar(dry)
    if tst: stamp(10)
    a(f's_cmp_lg_u32 s{WV}, 0')
    a('s_cbranch_scc1 L_fin')
    red_sum(cv, U0, AR, L_RED, WR)
    rnd2(U0, U1, VD)
    modulate2(U0, U1, GBP, X1R, U2, U3, VD, RD)
    a(f's_lshl_b32 s{T2}, s{T0}, 5')
    a(f'buffer_store_dword v{RD}, v{AO}, s[{SOUT}:{SOUT+3}], s{T2} offen {opol}')
    stamp(5)
    if tst:
        a('s_waitcnt vmcnt(0)'); stamp(9)
    if not gene: gen_update('L_fin')
    if hold:
        a('s_waitcnt vmcnt(0)')
        a.label('L_hold')
        a('s_memrealtime s[92:93]')
        a('s_waitcnt lgkmcnt(0)')
        a('s_sub_u32 s92, s92, s94')
        a(f's_cmp_lt_u32 s92, {hold}')
        a('s_cbranch_scc1 L_hold')
    a.label('L_fin', fence=stamps)
    if dry: a('s_cbranch_execz L_real')
    if stamps: finish(SWS, 8)
    a.label('L_end', fence=False)
    a('s_endpgm')
    a.raw('.section .rodata,"a"')
    a.raw('.p2align 6')
    a.raw(f'.amdhsa_kernel {NAME}')
    a.raw('  .amdhsa_next_free_vgpr 256')
    a.raw('  .amdhsa_next_free_sgpr 96')
    a.raw('  .amdhsa_accum_offset 256')
    a.raw('  .amdhsa_group_segment_fixed_size 0')
    a.raw('  .amdhsa_kernarg_size 112')
    a.raw('  .amdhsa_user_sgpr_count 2')
    a.raw('  .amdhsa_user_sgpr_kernarg_segment_ptr 1')
    a.raw('  .amdhsa_system_sgpr_workgroup_id_x 1')
    a.raw('  .amdhsa_float_denorm_mode_32 3')
    a.raw('.end_amdhsa_kernel')
    return a.text()

if __name__ == '__main__':
    import json
    out = sys.argv[1] if len(sys.argv) > 1 else 'adaLN_cond__mha_block_cached__swiglu_ffn__decode.s'
    kw = json.loads(sys.argv[2]) if len(sys.argv) > 2 else {}
    open(out, 'w').write(gen(**kw))
    print('wrote', out)
```

```python
import sys, struct
from asmlib import Asm

NAME = 'adaLN_cond__mha_block_cached__swiglu_ffn__decode_kernel'

def f32(x):
    return '0x%08x' % struct.unpack('<I', struct.pack('<f', x))[0]

L2E = 1.4426950408889634
WS_GEN = 0
WS_MOD = 0x1000
WS_X1 = 0x20000
WS_ACT = 0x28000
WS_HEAD = 0x38000
WS_MST = 0x48000
WS_WOP = 0x100000
WS_P = 0x200000
WS_SLOT = 0x800000
WS_DBG = 0x2000000
WS_SIZE = 0x40000000
L_CNT = 0x0
L_MX = 0x40
L_QP = 0x100
L_OP = 0x900
L_RED = 0x1100
L_H2 = 0x3100; H2S = 1040
L_SC = 0x5200
L_OS = 0x9200
L_STG = 0x9A00; STGW = 12288
L_DUM = L_STG + 4 * STGW
LDS_SIZE = L_DUM + 4096
NF1 = 86
LAYOUT = 7
F2_BASE = 96
SPIN_MAX = 100000
NSH = 32
TAGC = 0x5bd1e995

def gen(dbg=False, W=6, VW=4, W0=6, nA=4, kpol='nt', wpol='nt', stamps=False, gate=False, notail=False,
        gsleep=4, b0wq=0, sprio=2, mprio=3, boost=2, sboost=3, n0=0, WQ=32, SW_=2,
        wqpol=None, wopol=None, mpol=None, fpol=None, nopre=False, pre=None, dst=False, perm=False, hold=0,
        lv=None, th=(70, -70), tK=900, sK=14.9, tV=4230, sV=13.46, lv0=None, g1=False, g2=False, rel=False, dl=0, MB=88, DD=2, MSTR=8192, CSTR=256, tst=False, tlbv=False, tlbo=False, mlp='', agg='mean', noml=False, nomst=False, msp='sc1', thv=None, pd=0, lme=False, lpl=False, gene=False, dfw=False, dpol=None, bo1=None, bo2=0, bo3=0, dry=False, dry2=False, nf=False, sst=False, pf=0, pfW=6, pfpol='', hmap=0, wqn=32, sst2=False, opol='', wsl=1, xa=0, xapol='sc1', eb=None, slp=0, tpr=False, tb2=None, tb3=None, exa=12, exx=4, xs=7, acs=7, xfl=False, cmap=False, rep=0, wx=0, numa=0, lms=0, xw=0, xwW=2, xwx=7, lb=0, ib=0, n1=99, W1=6, nm=0, rot=0, WQ0=None, qd=0, qch=False, psl=1, ep=None, epm=0, wol=0):
    X1B = WS_X1 if xs == 7 else 0x180000
    ACTB = WS_ACT if acs == 7 else 0x60000
    assert xs <= 11 and acs <= 10
    XCS = 32768; ACS = 0xC000
    if rep & 1:
        assert xs == 7 and xfl; X1B = 0x180000
    if rep & 2:
        assert acs == 7; ACTB = 0x60000
    assert g1 or not dfw
    thv = th if thv is None else thv
    if dst: stamps = True
    wqpol = wpol if wqpol is None else wqpol; wopol = wpol if wopol is None else wopol
    mpol = wpol if mpol is None else mpol; fpol = wpol if fpol is None else fpol
    a = Asm()
    hdr = open('adaLN_cond__mha_block_cached__swiglu_ffn__decode.s.ref').read().split('\n')
    for l in hdr:
        if l.startswith('; @launch'): break
        a.raw(l)
    L_KB = LDS_SIZE
    a.raw(f'; @launch grid=(256,1,1) block=(512,1,1) lds={LDS_SIZE + (65536 if lb else 0)}')
    a.raw('.amdgcn_target "amdgcn-amd-amdhsa--gfx950"')
    a.raw('.text')
    a.raw(f'.globl {NAME}')
    a.raw('.p2align 8')
    a.raw(f'.type {NAME},@function')
    a.raw(f'{NAME}:')

    def srd(d, p, size):
        a(f's_mov_b32 s{d}, s{p}')
        a(f's_mov_b32 s{d+1}, s{p+1}')
        a(f's_mov_b32 s{d+2}, {size}')
        a(f's_mov_b32 s{d+3}, 0x00020000')

    def rnd1(x, t):
        a(f'v_cvt_pk_bf16_f32 v{t}, v{x}, v{x}')
        a(f'v_lshlrev_b32 v{x}, 16, v{t}')
    def rnd2(x, y, t):
        a(f'v_cvt_pk_bf16_f32 v{t}, v{x}, v{y}')
        a(f'v_lshlrev_b32 v{x}, 16, v{t}')
        a(f'v_and_b32 v{y}, 0xffff0000, v{t}')
    def unpack(lo, hi, src):
        a(f'v_lshlrev_b32 v{lo}, 16, v{src}')
        a(f'v_and_b32 v{hi}, 0xffff0000, v{src}')
    def wave_reduce(op, regs, tmps):
        for ctl in ('quad_perm:[1,0,3,2]', 'quad_perm:[2,3,0,1]', 'row_half_mirror', 'row_mirror'):
            for r in regs:
                a(f'{op}_dpp v{r}, v{r}, v{r} {ctl} row_mask:0xf bank_mask:0xf')
        for sw in ('v_permlane16_swap_b32', 'v_permlane32_swap_b32'):
            for r, t in zip(regs, tmps): a(f'v_mov_b32 v{t}, v{r}')
            for r, t in zip(regs, tmps): a(f'{sw} v{r}, v{t}')
            for r, t in zip(regs, tmps): a(f'{op} v{r}, v{r}, v{t}')
    def greduce8(acc):
        for e in range(4): a(f'v_permlane32_swap_b32 v{acc+e}, v{acc+e+4}')
        for e in range(4): a(f'v_add_f32 v{acc+e}, v{acc+e}, v{acc+e+4}')
        for e in range(2): a(f'v_permlane16_swap_b32 v{acc+e}, v{acc+e+2}')
        for e in range(2): a(f'v_add_f32 v{acc+e}, v{acc+e}, v{acc+e+2}')
    def silu(x, t, t2, t3):
        a(f'v_mul_f32 v{t}, {f32(-L2E)}, v{x}')
        a(f'v_exp_f32 v{t}, v{t}')
        a(f'v_add_f32 v{t}, 1.0, v{t}')
        a(f'v_min_f32 v{t}, 0x7f7fffff, v{t}')
        a(f'v_rcp_f32 v{t2}, v{t}')
        a(f'v_mul_f32 v{t3}, v{x}, v{t2}')
        a(f'v_fma_f32 v{x}, -v{t3}, v{t}, v{x}')
        a(f'v_fma_f32 v{x}, v{x}, v{t2}, v{t3}')
    STP = 92
    def stamp(idx):
        if not stamps: return
        a(f's_memrealtime s[{STP}:{STP+1}]')
        a('s_waitcnt lgkmcnt(0)')
        a(f's_mov_b32 s{4+idx}, s{STP}')
    def finish(ws_srd, vt, role='v'):
        if dst:
            a('s_mov_b64 exec, -1')
            a(f'v_mov_b32 v{vt}, 0')
            if role == 's':
                a(f's_not_b32 s{STP}, s4'); a(f'v_writelane_b32 v{vt}, s{STP}, 0')
                a(f'v_writelane_b32 v{vt}, s4, 1')
                a(f'v_writelane_b32 v{vt}, s5, 2')
                a(f'v_writelane_b32 v{vt}, s11, 3')
                a(f'v_writelane_b32 v{vt}, s6, 4')
                a(f's_not_b32 s{STP}, s6'); a(f'v_writelane_b32 v{vt}, s{STP}, 5')
                a(f's_memtime s[{STP}:{STP+1}]'); a('s_waitcnt lgkmcnt(0)')
                a(f's_sub_u32 s{STP}, s{STP}, s14'); a(f'v_writelane_b32 v{vt}, s{STP}, 10')
                a(f's_sub_u32 s{STP}, s6, s4'); a(f'v_writelane_b32 v{vt}, s{STP}, 11')
            else:
                a(f'v_writelane_b32 v{vt}, s6, 6')
                a(f'v_writelane_b32 v{vt}, s7, 7')
                a(f'v_writelane_b32 v{vt}, s8, 8')
                a(f'v_writelane_b32 v{vt}, s9, 9')
            srd(STP-4, 40, 256)
            a(f'v_lshlrev_b32 v{vt+1}, 2, v0')
            a('s_mov_b64 exec, 0xffff')
            a(f'buffer_atomic_umax v{vt}, v{vt+1}, s[{STP-4}:{STP-1}], 0 offen')
        elif stamps:
            a('s_mov_b64 exec, -1')
            a(f'v_mov_b32 v{vt}, 0')
            for k in range(12):
                a(f'v_writelane_b32 v{vt}, s{4+k}, {k}')
            a(f's_lshl_b32 s{STP}, s2, 3')
            a(f's_add_u32 s{STP}, s{STP}, s3')
            a(f's_lshl_b32 s{STP}, s{STP}, 6')
            a(f's_add_u32 s{STP}, s{STP}, {WS_DBG + 0x100000}')
            a(f'v_lshlrev_b32 v{vt+1}, 2, v0')
            a('s_mov_b64 exec, 0xffff')
            a(f'buffer_store_dword v{vt}, v{vt+1}, s[{ws_srd}:{ws_srd+3}], s{STP} offen')
        a('s_endpgm')

    DRY = 34
    def ex_full(d):
        a(f's_mov_b64 exec, s[{DRY}:{DRY+1}]' if d else 's_mov_b64 exec, -1')
    def ex_mask(d, lo, hi):
        if d:
            a(f's_and_b32 exec_lo, {lo}, s{DRY}'); a(f's_and_b32 exec_hi, {hi}, s{DRY}')
        else:
            a(f's_mov_b32 exec_lo, {lo}'); a(f's_mov_b32 exec_hi, {hi}')
    def tbar(d):
        if d:
            lab = a.uid('L_tb')
            a(f's_cbranch_execz {lab}')
            a('s_barrier')
            a.label(lab, fence=False)
        else:
            a('s_barrier')
    def mf(d, A, Bf, first):
        c = '0' if first else f'v[{d}:{d+3}]'
        a(f'v_mfma_f32_16x16x32_bf16 v[{d}:{d+3}], v[{A}:{A+3}], v[{Bf}:{Bf+3}], {c}')
    def tr_read(dst, v, ks):
        a(f'ds_read_b64_tr_b16 v[{dst}:{dst+1}], v{v} offset:{ks*1024}')
        a(f'ds_read_b64_tr_b16 v[{dst+2}:{dst+3}], v{v} offset:{ks*1024+128}')

    class Ctx:
        pass
    def tr_addr(c, v):
        a(f'v_lshrrev_b32 v{v}, 2, v{c.VI}')
        a(f'v_lshlrev_b32 v{v}, 5, v{v}')
        a(f'v_lshl_add_u32 v{v}, v{c.VG}, 8, v{v}')
        a(f'v_and_b32 v{c.VD}, 3, v{c.VI}')
        a(f'v_lshl_add_u32 v{v}, v{c.VD}, 3, v{v}')
        a(f'v_add_u32 v{v}, s{c.STGB}, v{v}')
    def sel_halves(c, dst, d1, d2):
        for r in range(4):
            a(f'v_cndmask_b32 v{dst+r}, v{d2+r}, v{d1+r}, s[{c.LO32}:{c.LO32+1}]')
    def red_addr(c, v):
        a(f'v_and_b32 v{v}, 7, v0')
        a(f'v_lshlrev_b32 v{v}, 5, v{v}')
        a(f'v_lshrrev_b32 v{c.VD}, 5, v0')
        a(f'v_lshl_add_u32 v{v}, v{c.VD}, 8, v{v}')
        a(f'v_bfe_u32 v{c.VD}, v0, 3, 2')
        a(f'v_lshl_add_u32 v{v}, v{c.VD}, 2, v{v}')
    def red_sum(c, dst, v, off, scratch):
        a(f'v_add_u32 v{c.VD}, {off}, v{v}')
        for w in range(4):
            for hf in range(2):
                r = scratch + 2*(2*w + hf)
                a(f'ds_read2_b32 v[{r}:{r+1}], v{c.VD} offset0:{hf*128} offset1:{hf*128+4}')
            if w < 3: a(f'v_add_u32 v{c.VD}, 1024, v{c.VD}')
        a('s_waitcnt lgkmcnt(0)')
        for st in (8, 4):
            for k in range(st): a(f'v_add_f32 v{scratch+k}, v{scratch+k}, v{scratch+k+st}')
        a(f'v_add_f32 v{dst}, v{scratch}, v{scratch+2}')
        a(f'v_add_f32 v{dst+1}, v{scratch+1}, v{scratch+3}')

    def mod_issue(c):
        a(f's_and_b32 s{c.T0}, s{c.WG}, 7')
        a(f's_lshl_b32 s{c.T0}, s{c.T0}, 2')
        a(f's_lshr_b32 s{c.T1}, s{c.WG}, 3')
        a(f's_and_b32 s{c.T1}, s{c.T1}, 3')
        a(f's_add_u32 s{c.T0}, s{c.T0}, s{c.T1}')
        a(f's_and_b32 s{c.T1}, s{c.WG}, 0xe0')
        a(f's_add_u32 s{c.T1}, s{c.T1}, s{c.T0}')
        a(f's_lshl_b32 s{c.T1}, s{c.T1}, 5')
        a(f's_mul_i32 s{c.T2}, s{c.WV}, {128*6144}')
        a(f's_add_u32 s{c.T1}, s{c.T1}, s{c.T2}')
        a(f'v_and_b32 v{c.VA}, 7, v0')
        a(f'v_lshlrev_b32 v{c.VA}, 10, v{c.VA}')
        a(f'v_bfe_u32 v{c.VB}, v0, 3, 1')
        a(f'v_lshl_add_u32 v{c.VA}, v{c.VB}, 7, v{c.VA}')
        a(f'v_lshl_add_u32 v{c.VA}, v{c.VG}, 4, v{c.VA}')
        a(f's_lshl_b32 s{c.T2}, s{c.WV}, 8')
        a(f'buffer_load_dwordx4 v[{c.CF}:{c.CF+3}], v{c.VA}, s[{c.SC}:{c.SC+3}], s{c.T2} offen')
        a(f'buffer_load_dwordx4 v[{c.CF+4}:{c.CF+7}], v{c.VA}, s[{c.SC}:{c.SC+3}], s{c.T2} offen offset:64')
        a(f'v_lshrrev_b32 v{c.VB}, 1, v0')
        a(f'v_mul_u32_u24 v{c.VB}, 6144, v{c.VB}')
        a(f'v_and_b32 v{c.VC}, 1, v0')
        a(f'v_lshl_add_u32 v{c.VB}, v{c.VC}, 4, v{c.VB}')
        for s in range(4):
            a(f's_add_u32 m0, s{c.STGB}, {s*1024}')
            if c.paced: a('s_waitcnt vmcnt(0)')
            a(f'buffer_load_dwordx4 v{c.VB}, s[{c.SM}:{c.SM+3}], s{c.T1} offen {mpol} lds')
            if s < 3: a(f's_add_u32 s{c.T1}, s{c.T1}, {32*6144}')
    def mod_compute(c, younger, cnt_off, done, st=None):
        a(f's_waitcnt vmcnt({younger + 4})')
        if st: stamp(st[0])
        if c.GENV is not None:
            a(f'v_readfirstlane_b32 s{c.TAG}, v{c.GENV}')
            a(f's_add_u32 s{c.TAG}, s{c.TAG}, {TAGC}')
        XF = c.XF
        for r in range(8):
            unpack(XF, XF+1, c.CF+r)
            silu(XF, XF+2, XF+4, XF+6); silu(XF+1, XF+3, XF+5, XF+7)
            a(f'v_cvt_pk_bf16_f32 v{c.CF+r}, v{XF}, v{XF+1}')
        tr_addr(c, c.VA)
        a(f's_waitcnt vmcnt({younger})')
        if st: stamp(st[1])
        BF = c.BF
        for s in range(4): tr_read(BF + 4*s, c.VA, s)
        a('s_waitcnt lgkmcnt(0)')
        mf(c.D1, c.CF, BF, True); mf(c.D2, c.CF, BF+8, True)
        mf(c.D1, c.CF+4, BF+4, False); mf(c.D2, c.CF+4, BF+12, False)
        sel_halves(c, c.RD, c.D1, c.D2)
        a(f's_lshl_b32 s{c.T2}, s{c.WV}, 10')
        a(f'v_add_u32 v{c.VB}, s{c.T2}, v1')
        a(f'ds_write_b128 v{c.VB}, v[{c.RD}:{c.RD+3}] offset:{L_RED}')
        a(f'v_mov_b32 v{c.VC}, 0')
        a(f'v_mov_b32 v{c.VB}, 1')
        a('s_mov_b64 exec, 1')
        a(f'ds_add_rtn_u32 v{c.VB}, v{c.VC}, v{c.VB} offset:{cnt_off}')
        a('s_mov_b64 exec, -1')
        a('s_waitcnt lgkmcnt(0)')
        a(f'v_readfirstlane_b32 s{c.T2}, v{c.VB}')
        a(f's_cmp_lg_u32 s{c.T2}, 3')
        a(f's_cbranch_scc1 {done}')
        red_addr(c, c.VA)
        red_sum(c, c.U0, c.VA, L_RED, BF)
        a(f'v_cvt_pk_bf16_f32 v{c.RD}, v{c.U0}, v{c.U0+1}')
        a(f'v_mov_b32 v{c.RD+1}, s{c.TAG}')
        a(f's_and_b32 s{c.T2}, s{c.WG}, 0xe0')
        a(f's_add_u32 s{c.T2}, s{c.T2}, s{c.T0}')
        a(f's_lshl_b32 s{c.T2}, s{c.T2}, 9')
        a(f's_add_u32 s{c.T2}, s{c.T2}, {WS_MOD}')
        a(f'v_lshlrev_b32 v{c.VA}, 3, v0')
        a(f'buffer_store_dwordx2 v[{c.RD}:{c.RD+1}], v{c.VA}, s[{c.SWS}:{c.SWS+3}], s{c.T2} offen sc1')

    def head_of(d, t):
        if hmap == 0:
            a(f's_and_b32 s{d}, s2, 31')
        elif hmap == 1:
            a(f's_and_b32 s{d}, s2, 7'); a(f's_lshl_b32 s{d}, s{d}, 2')
            a(f's_bfe_u32 s{t}, s2, 0x20003'); a(f's_or_b32 s{d}, s{d}, s{t}')
        elif hmap == 3:
            a(f's_lshr_b32 s{d}, s2, 3')
        elif hmap == 2:
            a(f's_and_b32 s{d}, s2, 7'); a(f's_lshl_b32 s{d}, s{d}, 1')
            a(f's_bfe_u32 s{t}, s2, 0x10003'); a(f's_or_b32 s{d}, s{d}, s{t}')
            a(f's_and_b32 s{t}, s2, 16'); a(f's_or_b32 s{d}, s{d}, s{t}')
    def roles(F1T, F2T, T0, T1):
        a(f's_and_b32 s{T0}, s2, 7')
        a(f's_lshr_b32 s{T1}, s2, 3')
        a(f's_mul_i32 s{F1T}, s{T0}, 11')
        a(f's_add_u32 s{F1T}, s{F1T}, s{T1}')
        a(f's_cmp_lt_u32 s2, 88')
        a(f's_cselect_b32 s{F1T}, s{F1T}, 255')
        a(f's_lshl_b32 s{F2T}, s{T0}, 2')
        a(f's_add_u32 s{F2T}, s{F2T}, s{T1}')
        a(f's_sub_u32 s{F2T}, s{F2T}, {F2_BASE//8}')
        a(f's_sub_u32 s{T1}, s2, {F2_BASE}')
        a(f's_cmp_lt_u32 s{T1}, 32')
        a(f's_cselect_b32 s{F2T}, s{F2T}, 255')
    def f1_dma(VB, VC, SST, WV, F1T, T1, T2, STGB, paced, pol):
        a(f'v_lshrrev_b32 v{VB}, 1, v0')
        a(f'v_mul_u32_u24 v{VB}, 2752, v{VB}')
        a(f'v_and_b32 v{VC}, 1, v0')
        a(f'v_lshl_add_u32 v{VB}, v{VC}, 4, v{VB}')
        for which, p in enumerate((28, 30)):
            srd(SST, p, 512*1376*2)
            a(f's_mul_i32 s{T1}, s{WV}, {128*2752}')
            a(f's_lshl_b32 s{T2}, s{F1T}, 5')
            a(f's_add_u32 s{T1}, s{T1}, s{T2}')
            for s in range(4):
                a(f's_add_u32 m0, s{STGB}, {(which*4+s)*1024}')
                if paced: a('s_waitcnt vmcnt(0)')
                a(f'buffer_load_dwordx4 v{VB}, s[{SST}:{SST+3}], s{T1} offen {pol} lds')
                if s < 3: a(f's_add_u32 s{T1}, s{T1}, {32*2752}')
    def f2_dma(VB, VC, SST, WV, F2T, T1, T2, T3, STGB, paced, pol):
        srd(SST, 32, 1376*512*2)
        a(f'v_lshrrev_b32 v{VB}, 1, v0')
        a(f'v_lshlrev_b32 v{VB}, 10, v{VB}')
        a(f'v_and_b32 v{VC}, 1, v0')
        a(f'v_lshl_add_u32 v{VB}, v{VC}, 4, v{VB}')
        a(f's_mul_i32 s{T3}, s{WV}, 12')
        a(f's_lshl_b32 s{T2}, s{F2T}, 5')
        for s in range(12):
            a(f's_add_u32 s{T1}, s{T3}, {s}')
            a(f's_min_u32 s{T1}, s{T1}, 42')
            a(f's_lshl_b32 s{T1}, s{T1}, 15')
            a(f's_add_u32 s{T1}, s{T1}, s{T2}')
            a(f's_add_u32 m0, s{STGB}, {s*1024}')
            if paced: a('s_waitcnt vmcnt(0)')
            a(f'buffer_load_dwordx4 v{VB}, s[{SST}:{SST+3}], s{T1} offen {pol} lds')

    a('s_cmp_ge_u32 s2, 256')
    a('s_cbranch_scc1 L_end')
    if perm:
        a('s_lshr_b32 s3, s2, 5'); a('s_xor_b32 s2, s2, s3')
    a('s_load_dwordx16 s[16:31], s[0:1], 0')
    a('s_load_dwordx8 s[32:39], s[0:1], 64')
    a('s_load_dwordx4 s[40:43], s[0:1], 96')
    if stamps:
        for k in range(12): a(f's_mov_b32 s{4+k}, 0')
    if hold or pd:
        a('s_memrealtime s[94:95]')
    a('v_lshrrev_b32 v1, 6, v0')
    a('v_readfirstlane_b32 s3, v1')
    a('v_and_b32 v0, 63, v0')
    a('v_lshlrev_b32 v1, 4, v0')
    a('s_cmp_ge_u32 s3, 4')
    a('s_cbranch_scc1 L_service')

    Q = 4; Pq = 8; ACC = 24; TMP = 32; VMAX = 40; VT0 = 41; VT1 = 42; PP0 = 43; PP1 = 44; VSC = 2; VI = 45; VG = 46; VT2 = 47; VT3 = 48
    GENV = 3
    TK = 50; PN = 52; VPA = 54; VSA = 55; FL = 56; VZ = 60; VHA = 61
    RING = 64; EXA = 128; EXB = 192
    IS = 44; SWS = 52; SOFF = 56; CNT = 57; BASE = 58; M1 = 60; M2 = 62; SELLO = 64; SELHI = 65; SCALE = 66; TAG = 67
    SHD = 70; SLOTC = 71; SLOTN = 72; FIRST = 73; T0 = 74; T1 = 75; T2 = 76; T3 = 77; STGB = 78; SPIN = 79
    SC = 80; SM = 84; LO32 = 88
    HOME = 48; STEP = 49; QUIT = 50; ESPIN = 51
    P_ = Pq
    if lv is not None: a('s_memrealtime s[70:71]')
    head_of(58, 59)
    if hmap == 3:
        a('s_and_b32 s59, s2, 7'); a('s_lshl_b32 s59, s59, 5')
    else:
        a('s_and_b32 s59, s2, 0xe0')
    a('s_or_b32 s58, s58, s59')
    a('s_lshl_b32 s58, s58, 20')
    if numa:
        assert hmap == 2
        a('s_and_b32 s59, s3, 1')
        a('s_lshl_b32 s59, s59, 12')
        a('s_add_u32 s58, s58, s59')
        a('s_lshr_b32 s59, s3, 1')
        a('s_lshl_b32 s59, s59, 23')
        a('s_xor_b32 s58, s58, s59')
    else:
        a('s_lshl_b32 s59, s3, 12')
        a('s_add_u32 s58, s58, s59')
    a('s_mov_b32 s56, s58')
    a(f'v_mov_b32 v{VZ}, 0')
    a(f'v_and_b32 v{VI}, 15, v0')
    a(f'v_lshrrev_b32 v{VG}, 4, v0')
    a(f's_mul_i32 s{STGB}, s3, {STGW}')
    a(f's_add_u32 s{STGB}, s{STGB}, {L_STG}')
    a('s_waitcnt lgkmcnt(0)')
    srd(SWS, 42, WS_SIZE)
    a(f'buffer_load_dword v{GENV}, v{VZ}, s[{SWS}:{SWS+3}], 0 offen offset:{WS_GEN} sc1')
    if numa:
        for p, d in ((18, 56), (20, 58)):
            a(f's_add_u32 s59, s{p}, s{d}')
            a('s_lshr_b32 s59, s59, 21')
            a(f's_lshr_b32 s{T0}, s2, 2')
            a(f's_xor_b32 s59, s59, s{T0}')
            a(f's_xor_b32 s59, s59, {numa-1}')
            a('s_and_b32 s59, s59, 1')
            a('s_lshl_b32 s59, s59, 13')
            a(f's_add_u32 s{d}, s{d}, s59')
    srd(IS, 18, 0x10000000)
    srd(SC, 34, 8192)
    srd(SM, 36, 512*3072*2)
    if dry2: a(f's_mov_b64 s[{DRY}:{DRY+1}], -1')
    stamp(0)
    if dst:
        a(f's_memtime s[{STP}:{STP+1}]'); a('s_waitcnt lgkmcnt(0)'); a(f's_mov_b32 s14, s{STP}')
    cs = Ctx()
    cs.VI = VI; cs.VG = VG; cs.VA = RING; cs.VB = RING+1; cs.VC = RING+2; cs.VD = RING+3
    cs.CF = RING+4; cs.XF = RING+12; cs.BF = RING+20; cs.D1 = RING+36; cs.D2 = RING+40; cs.RD = RING+44; cs.U0 = RING+48
    cs.T0 = T0; cs.T1 = T1; cs.T2 = T2; cs.T3 = T3; cs.WV = 3; cs.STGB = STGB; cs.SC = SC; cs.SM = SM; cs.SWS = SWS
    cs.LO32 = LO32; cs.TAG = TAG; cs.GENV = GENV; cs.WG = 2; cs.paced = False
    a('s_cmp_ge_u32 s2, 64')
    a('s_cbranch_scc1 L_s_noissue')
    if mprio: a(f's_setprio {mprio}')
    mod_issue(cs)
    a.label('L_s_noissue', fence=False)

    LV = 68; TGT = 69; T00 = 70; TM = 72; LAG = 71
    def pw(d=0):
        if lv is None:
            a(f's_waitcnt vmcnt({(W-1) if d == 0 else VW})')
            return
        lab = a.uid('L_pw')
        for k, Wk in enumerate(lv):
            a(f's_waitcnt vmcnt({Wk-1-d})')
            if k < len(lv) - 1:
                a(f's_cmp_eq_u32 s{LV}, {k}')
                a(f's_cbranch_scc1 {lab}')
        a.label(lab, fence=False)
    def tsched(n):
        return int(round(tK + (n - 48) * sK)) if n <= 272 else int(round(tV + (n - 272) * sV))
    MS = 50; VBS = 52; VMA = 53; MD = 54; MT = 56; ISM = 48; CK = 49; CKS = 50
    def mload():
        if lv is None or not rel or noml: return
        lab = a.uid('L_ml')
        a('s_cmp_lg_u32 s3, 0')
        a(f's_cbranch_scc1 {lab}')
        a(f'buffer_load_dwordx2 v[{MS}:{MS+1}], v{VMA}, s[{SWS}:{SWS+3}], s{CK} offen {mlp}')
        a.label(lab, fence=False)
    def clk():
        if lv is None: return
        a(f's_memrealtime s[{TM}:{TM+1}]')
        if rel: a(f'ds_read_b32 v{VBS}, v{VZ} offset:{L_CNT+16}')
    B0 = 51
    def ctl(n=None, step=None, upd=True, th_=None, eb_=None, keep=False):
        if lv is None: return
        th_ = th if th_ is None else th_
        a('s_waitcnt lgkmcnt(0)')
        if rel:
            a(f'v_readfirstlane_b32 s{TM+1}, v{VBS}')
            if keep:
                a(f's_cmp_ge_u32 s{CNT}, 6')
                a(f's_cselect_b32 s{B0}, s{TM+1}, s{B0}')
            if n is not None: a(f's_sub_u32 s{TM}, s{TM}, {tsched(n)}')
            else: a(f's_sub_u32 s{TM}, s{TM}, s{TGT}')
            a(f's_sub_u32 s{LAG}, s{TM}, s{TM+1}')
        else:
            if n is not None: a(f's_add_u32 s{TGT}, s{T00}, {tsched(n)}')
            a(f's_sub_u32 s{LAG}, s{TM}, s{TGT}')
        if step is not None: a(f's_add_u32 s{TGT}, s{TGT}, {step}')
        if eb_ is not None:
            a(f's_cmp_le_u32 s{CNT}, {eb_[0]}')
            a(f's_cselect_b32 s{LV}, {eb_[1]}, 0')
            a(f's_add_u32 s{LAG}, s{LAG}, s{LV}')
        a(f's_mov_b32 s{LV}, {len(lv)-1}')
        for k in range(len(lv) - 2, -1, -1):
            a(f's_cmp_gt_i32 s{LAG}, {th_[k]}')
            a(f's_cselect_b32 s{LV}, {k}, s{LV}')
        if rel:
            lab = a.uid('L_ct')
            a('s_cmp_lg_u32 s3, 0')
            a(f's_cbranch_scc1 {lab}')
            lab2 = a.uid('L_cm')
            a(f's_cmp_eq_u32 s{ISM}, 0')
            a(f's_cbranch_scc1 {lab2}')
            a(f'v_mov_b32 v{MD}, s{TM}')
            a(f'v_mov_b32 v{MD+1}, s{TAG}')
            a(f's_add_u32 s{CKS}, s{ISM}, s{CK}')
            a('s_mov_b64 exec, 1')
            if not nomst: a(f'buffer_store_dwordx2 v[{MD}:{MD+1}], v{VZ}, s[{SWS}:{SWS+3}], s{CKS} offen {msp}')
            a('s_mov_b64 exec, -1')
            a.label(lab2, fence=False)
            a(f's_add_u32 s{CK}, s{CK}, {CSTR}')
            if upd:
                a(f'v_cmp_ne_u32 vcc, s{TAG}, v{MS+1}')
                a(f'v_subrev_u32 v{MT}, s{T00}, v{MS}')
                for c_ in ('quad_perm:[1,0,3,2]', 'quad_perm:[2,3,0,1]', 'row_half_mirror'):
                    a(f'{"v_add_u32" if agg == "mean" else "v_max_i32"}_dpp v{MT}, v{MT}, v{MT} {c_} row_mask:0xf bank_mask:0xf')
                if agg == 'mean': a(f'v_ashrrev_i32 v{MT}, 3, v{MT}')
                a(f's_add_u32 s{TM+1}, s{T00}, {dl}')
                a(f'v_add_u32 v{MT}, s{TM+1}, v{MT}')
                a(f's_cbranch_vccnz {lab}')
                a(f'ds_write_b32 v{VZ}, v{MT} offset:{L_CNT+16}')
            a.label(lab, fence=False)
    VKB = 57
    def issue(base, j):
        if base is None:
            if j % 4 == 0:
                a(f's_lshl_b32 s{T3}, s3, 14')
                a(f's_add_u32 m0, s{T3}, {L_KB + (j//4)*4096}')
            a(f'buffer_load_dwordx4 v1, s[{IS}:{IS+3}], s{SOFF} offen offset:{(j % 4) * 1024} {kpol} lds')
            if j % 4 == 3:
                a(f's_add_u32 s{SOFF}, s{SOFF}, 16384')
            return
        r = base + 4 * j
        a(f'buffer_load_dwordx4 v[{r}:{r+3}], v1, s[{IS}:{IS+3}], s{SOFF} offen offset:{(j % 4) * 1024} {kpol}')
        if j % 4 == 3:
            a(f's_add_u32 s{SOFF}, s{SOFF}, 16384')

    seq = [(base, j) for base in ((EXA, EXB, RING, None) if lb else (EXA, EXB, RING)) for j in range(16)]
    NI = len(seq)
    for n in range(nA):
        if nm < 0 and n == nA + nm:
            a('s_cmp_lt_u32 s2, 64'); a('s_cbranch_scc1 L_s_skip')
        issue(*seq[n])
    if nm < 0: a.label('L_s_skip', fence=False)
    a(f's_mov_b32 s{M1}, 0xaaaaaaaa'); a(f's_mov_b32 s{M1+1}, 0xaaaaaaaa')
    a(f's_mov_b32 s{M2}, 0xcccccccc'); a(f's_mov_b32 s{M2+1}, 0xcccccccc')
    a(f's_mov_b32 s{SELLO}, 0x05040100'); a(f's_mov_b32 s{SELHI}, 0x07060302')
    a(f's_mov_b32 s{SCALE}, {f32(128 ** -0.5)}')
    a(f's_mov_b32 s{LO32}, -1'); a(f's_mov_b32 s{LO32+1}, 0')
    a(f's_lshl_b32 s59, s3, 12')
    a(f's_add_u32 s59, s59, {L_SC}')
    a(f'v_lshlrev_b32 v{VSC}, 2, v0')
    a(f'v_add_u32 v{VSC}, s59, v{VSC}')
    a(f'v_mov_b32 v{VMAX}, 0xff800000')
    if sst:
        stamp(9)
        a('s_cmp_lt_u32 s2, 64')
        a('s_cbranch_scc1 L_sst')
        a(f's_waitcnt vmcnt({nA})'); stamp(3)
        a(f's_waitcnt vmcnt({nA-1})'); stamp(4)
        a(f's_waitcnt vmcnt({nA-8})'); stamp(10)
        a(f's_waitcnt vmcnt(0)'); stamp(11)
        a.label('L_sst')
    a('s_barrier')
    a('s_cmp_ge_u32 s2, 64')
    a('s_cbranch_scc1 L_s_moddone')
    if nm < 0:
        mod_compute(cs, nA + nm, L_CNT, 'L_s_moddone2', st=(3, 4))
        a.label('L_s_moddone2')
        if qch: stamp(9)
        for n in range(nA + nm, nA): issue(*seq[n])
    elif nm:
        assert nA + nm <= 32
        for n in range(nA, nA + nm): issue(*seq[n])
        mod_compute(cs, nA + nm, L_CNT, 'L_s_moddone2', st=(3, 4))
        a.label('L_s_moddone2')
        if mprio: a('s_setprio 0')
        a('s_branch L_s_join')
    else:
        mod_compute(cs, nA, L_CNT, 'L_s_moddone', st=(3, 4))
    a.label('L_s_moddone')
    if mprio: a('s_setprio 0')
    stamp(5)
    if qch and nm >= 0: a('s_mov_b32 s13, s9')
    for n in range(nA, NI):
        if nm > 0 and n == nA + nm: a.label('L_s_join')
        Wn = W0 if n < n0 else (W if n < n1 else W1)
        if n >= Wn and n < NI - boost:
            a(f's_waitcnt vmcnt({Wn-1})')
        if sst2 and n in (16, 24, 32, 40, 48 if lb else 45): stamp({16: 9, 24: 3, 32: 4, 40: 10, 45: 11, 48: 11}[n])
        issue(*seq[n])
    if lb:
        a(f's_lshl_b32 s{T3}, s3, 14')
        a(f's_add_u32 s{T3}, s{T3}, {L_KB}')
        a(f'v_add_u32 v{VKB}, s{T3}, v1')
    if pf:
        a(f's_mov_b32 m0, {L_DUM}')
        a(f's_lshl_b32 s{T3}, s2, 2')
        a(f's_add_u32 s{T3}, s{T3}, s3')
        def pfl(srd_, so, off=0):
            a(f's_waitcnt vmcnt({pfW-1})')
            a(f'buffer_load_dwordx4 v1, s[{srd_}:{srd_+3}], s{so} offen offset:{off} {pfpol} lds')
        if pf & 1:
            srd(SC, 24, 4096*512*2)
            head_of(T0, T1)
            a(f's_lshl_b32 s{T0}, s{T0}, 17')
            a(f's_lshr_b32 s{T1}, s2, 5')
            a(f's_lshl_b32 s{T1}, s{T1}, 14')
            a(f's_add_u32 s{T0}, s{T0}, s{T1}')
            a(f's_lshl_b32 s{T1}, s3, 12')
            a(f's_add_u32 s{T0}, s{T0}, s{T1}')
            for j in range(4): pfl(SC, T0, j*1024)
        if pf & 4:
            a(f's_lshr_b32 s{T0}, s{T3}, 1')
            a(f's_mul_i32 s{T0}, s{T0}, 6144')
            a(f's_and_b32 s{T1}, s{T3}, 1')
            a(f's_lshl_b32 s{T1}, s{T1}, 11')
            a(f's_add_u32 s{T0}, s{T0}, s{T1}')
            for j in range(2): pfl(SM, T0, 2048 + j*1024)
        if pf & 2:
            a(f's_lshl_b32 s{T0}, s{T3}, 10')
            a(f's_add_u32 s{T1}, s{T0}, {1 << 20}')
            for p in (28, 30, 32):
                srd(SC, p, 512*1376*2)
                pfl(SC, T0)
                lab = a.uid('L_pf')
                a(f's_cmp_ge_u32 s{T3}, {1376-1024}')
                a(f's_cbranch_scc1 {lab}')
                pfl(SC, T1)
                a.label(lab, fence=False)
    a(f'v_readfirstlane_b32 s{TAG}, v{GENV}')
    a(f's_add_u32 s{TAG}, s{TAG}, {TAGC}')
    if lv is not None and rel:
        a(f'v_and_b32 v{VMA}, 7, v0')
        a(f'v_mul_u32_u24 v{VMA}, {MSTR}, v{VMA}')
        a(f'v_add_u32 v{VMA}, {WS_MST - DD*CSTR}, v{VMA}')
        a(f's_mov_b32 s{CK}, 0')
        a(f'v_mov_b32 v{MS}, 0'); a(f'v_not_b32 v{MS+1}, s{TAG}')
        if MB >= 0:
            a(f's_sub_u32 s{T0}, s2, {MB}')
        else:
            a(f's_lshr_b32 s{T0}, s2, 5')
        a(f's_mul_i32 s{ISM}, s{T0}, {MSTR}')
        a(f's_add_u32 s{ISM}, s{ISM}, {WS_MST}')
        if MB >= 0:
            a(f's_cmp_lt_u32 s{T0}, 8')
        else:
            a(f's_and_b32 s{T1}, s2, 31')
            a(f's_add_u32 s{T0}, s{T0}, {-MB-1}')
            a(f's_cmp_eq_u32 s{T0}, s{T1}')
        a(f's_cselect_b32 s{ISM}, s{ISM}, 0')
        a(f'v_mov_b32 v{MT}, s{T00}')
        if ib: a(f'v_subrev_u32 v{MT}, {ib}, v{MT}')
        a('s_cmp_lg_u32 s3, 0')
        a('s_cbranch_scc1 L_nobase')
        a(f'ds_write_b32 v{VZ}, v{MT} offset:{L_CNT+16}')
        a('s_waitcnt lgkmcnt(0)')
        a.label('L_nobase', fence=False)
    stamp(6)
    a('s_barrier')
    a(f'v_lshlrev_b32 v{VT0}, 5, v{VI}')
    for w in range(4):
        a(f'ds_read_b128 v[{P_+8*(w%2)}:{P_+8*(w%2)+3}], v{VT0} offset:{L_QP + w*512}')
        a(f'ds_read_b128 v[{P_+8*(w%2)+4}:{P_+8*(w%2)+7}], v{VT0} offset:{L_QP + w*512 + 16}')
        if w == 1:
            a('s_waitcnt lgkmcnt(0)')
            for e in range(8): a(f'v_add_f32 v{ACC+e}, v{P_+e}, v{P_+8+e}')
    a('s_waitcnt lgkmcnt(0)')
    for e in range(8): a(f'v_add_f32 v{P_+e}, v{P_+e}, v{P_+8+e}')
    for e in range(8): a(f'v_add_f32 v{ACC+e}, v{ACC+e}, v{P_+e}')
    for c in range(4): a(f'v_cvt_pk_bf16_f32 v{Q+c}, v{ACC+2*c}, v{ACC+2*c+1}')
    clk(); ctl(n=NI, upd=False)
    if dbg:
        a(f's_lshr_b32 s{T0}, s{BASE}, 20')
        a(f's_lshl_b32 s{T0}, s{T0}, 8')
        a(f's_add_u32 s{T0}, s{T0}, {WS_DBG}')
        a(f'v_lshlrev_b32 v{VT0}, 4, v{VI}')
        a(f'buffer_store_dwordx4 v[{Q}:{Q+3}], v{VT0}, s[{SWS}:{SWS+3}], s{T0} offen')
        a('s_waitcnt vmcnt(0)')
    stamp(1)

    def ksteps(base, PB, reissue, wait, vsc, sc_off, t0, t1, hook=None):
        def l1(j):
            a(f'v_add_f32_dpp v{PB+j-1}, v{PB+j-1}, v{PB+j-1} row_ror:8 row_mask:0xf bank_mask:0x3')
            a(f'v_add_f32_dpp v{PB+j-1}, v{PB+j}, v{PB+j} row_ror:8 row_mask:0xf bank_mask:0xc')
        def l2(q):
            x = PB + 4*q; y = PB + 4*q + 2
            a(f'v_add_f32_dpp v{x}, v{x}, v{x} row_shl:4 row_mask:0xf bank_mask:0x5')
            a(f'v_add_f32_dpp v{x}, v{y}, v{y} row_shr:4 row_mask:0xf bank_mask:0xa')
        def step(j):
            r = base + 4*j
            if hook is not None and j == 0: mload()
            if hook is not None and j == 12: clk()
            if hook is not None and j == 15: hook()
            if wait is not None:
                pw(0)
            a(f'v_dot2_f32_bf16 v{PB+j}, v{r}, v{Q}, 0')
            for c in range(1, 4):
                a(f'v_dot2_f32_bf16 v{PB+j}, v{r+c}, v{Q+c}, v{PB+j}')
            if reissue: issue(base, j)
            if j >= 2 and j % 2 == 0: l1(j-1)
            if j >= 5 and j % 4 == 1: l2((j-5)//4)
        def epi():
            l1(15)
            l2(3)
            U = [PB, PB+4, PB+8, PB+12]
            for u in U: a(f'v_add_f32_dpp v{u}, v{u}, v{u} quad_perm:[2,3,0,1] row_mask:0xf bank_mask:0xf')
            a(f'v_cndmask_b32 v{U[0]}, v{U[0]}, v{U[1]}, s[{M2}:{M2+1}]')
            a(f'v_cndmask_b32 v{U[2]}, v{U[2]}, v{U[3]}, s[{M2}:{M2+1}]')
            for u in (U[0], U[2]): a(f'v_add_f32_dpp v{u}, v{u}, v{u} quad_perm:[1,0,3,2] row_mask:0xf bank_mask:0xf')
            a(f'v_cndmask_b32 v{t0}, v{U[0]}, v{U[2]}, s[{M1}:{M1+1}]')
            rnd1(t0, t1)
            a(f'v_mul_f32 v{t0}, s{SCALE}, v{t0}')
            rnd1(t0, t1)
            a(f'v_max_f32 v{VMAX}, v{VMAX}, v{t0}')
            a(f'ds_write_b32 v{vsc}, v{t0} offset:{sc_off}')
        return [lambda j=j: step(j) for j in range(16)] + [epi]
    P2 = ACC
    plan = [(EXA, 0, 2), (EXB, 1, 4), (EXA, 3, 5)] if lb else [(EXA, 0, 2), (EXB, 1, 3)]
    for it, (ex, be, br) in enumerate(plan):
        s1 = ksteps(RING, P_, True, W-1, VSC, br*256, VT0, VT1, hook=lambda it=it: ctl(n=NI+16*it+12))
        s2 = ksteps(ex, P2, False, None, VSC, be*256, PP0, PP1)
        if lb and it == 2: a('s_waitcnt lgkmcnt(0)')
        for j in range(16):
            s1[j](); s2[j]()
            if lb and it == 1 and j < 8:
                for jj in (2*j, 2*j+1):
                    a(f'ds_read_b128 v[{EXA+4*jj}:{EXA+4*jj+3}], v{VKB} offset:{jj*1024}')
        s1[16](); s2[16]()
    nb0 = plan[-1][2] + 1
    a(f'v_add_u32 v{VT2}, {nb0*256}, v{VSC}')
    a(f's_mov_b32 s{CNT}, {16-nb0}')
    n_l = 16*(nb0+1) + 12
    if lv is not None: a(f's_mov_b32 s{TGT}, {tsched(n_l)}' if rel else f's_add_u32 s{TGT}, s{T00}, {tsched(n_l)}')
    if not (sst or sst2 or qch): stamp(9)
    a.label('L_kloop')
    a(f's_cmp_eq_u32 s{CNT}, 1')
    a(f's_cselect_b32 s{IS}, s20, s{IS}')
    a(f's_cselect_b32 s{IS+1}, s21, s{IS+1}')
    a(f's_cselect_b32 s{SOFF}, s{BASE}, s{SOFF}')
    for f in ksteps(RING, P_, True, W-1, VT2, 0, VT0, VT1, hook=lambda: ctl(step=int(round(16*sK)))): f()
    a(f'v_add_u32 v{VT2}, 256, v{VT2}')
    a(f's_sub_u32 s{CNT}, s{CNT}, 1')
    a(f's_cmp_lg_u32 s{CNT}, 0')
    a('s_cbranch_scc1 L_kloop')
    stamp(7)
    vq = [(EXA, j) for j in range(16)] + [(EXB, j) for j in range(16)]
    def pi(n=1, paced=True):
        for _ in range(n):
            if not vq: return
            if paced: pw(0)
            issue(*vq.pop(0))
    pi()
    a('s_waitcnt lgkmcnt(0)')
    for t in range(0, 16, 2):
        a(f'ds_read2st64_b32 v[{P_+t}:{P_+t+1}], v{VSC} offset0:{t} offset1:{t+1}')
    wave_reduce('v_max_f32', [VMAX], [VT0])
    pi()
    a('s_waitcnt lgkmcnt(0)')
    for t in range(16): a(f'v_sub_f32 v{P_+t}, v{P_+t}, v{VMAX}')
    for t in range(16): a(f'v_mul_f32 v{P_+t}, {f32(L2E)}, v{P_+t}')
    pi()
    for t in range(16): a(f'v_exp_f32 v{P_+t}, v{P_+t}')
    pi()
    for t in range(8): a(f'v_add_f32 v{TMP+t}, v{P_+t}, v{P_+8+t}')
    for t in range(4): a(f'v_add_f32 v{TMP+t}, v{TMP+t}, v{TMP+4+t}')
    for t in range(2): a(f'v_add_f32 v{TMP+t}, v{TMP+t}, v{TMP+2+t}')
    a(f'v_add_f32 v{VT0}, v{TMP}, v{TMP+1}')
    assert VT0 == VMAX + 1
    wave_reduce('v_add_f32', [VT0], [VT1])
    a(f's_lshl_b32 s59, s3, 3')
    a(f'v_mov_b32 v{VT1}, s59')
    a(f'ds_write_b64 v{VT1}, v[{VMAX}:{VMAX+1}] offset:{L_MX}')
    a(f'v_mov_b32 v{VT1}, 1')
    a('s_waitcnt lgkmcnt(0)')
    a('s_mov_b64 exec, 1')
    a(f'ds_add_u32 v{VZ}, v{VT1} offset:{L_CNT+12}')
    a('s_mov_b64 exec, -1')
    pi(12)
    pi(sboost, paced=False)
    a(f's_mov_b32 s{SPIN}, 0')
    a.label('L_b2')
    a(f'ds_read_b32 v{VT1}, v{VZ} offset:{L_CNT+12}')
    a('s_waitcnt lgkmcnt(0)')
    a(f'v_readfirstlane_b32 s{T0}, v{VT1}')
    a(f's_cmp_ge_u32 s{T0}, 4')
    a('s_cbranch_scc1 L_b2_ok')
    a(f's_add_u32 s{SPIN}, s{SPIN}, 1')
    a(f's_cmp_lt_u32 s{SPIN}, {SPIN_MAX*8}')
    a('s_cbranch_scc0 L_b2_ok')
    a('s_sleep 1')
    a('s_branch L_b2')
    a.label('L_b2_ok')
    a(f'ds_read_b128 v[{TMP}:{TMP+3}], v{VZ} offset:{L_MX}')
    a(f'ds_read_b128 v[{TMP+4}:{TMP+7}], v{VZ} offset:{L_MX+16}')
    a('s_waitcnt lgkmcnt(0)')
    a(f'v_max_f32 v{VT1}, v{TMP}, v{TMP+2}')
    a(f'v_max3_f32 v{VT1}, v{VT1}, v{TMP+4}, v{TMP+6}')
    for k in range(4): a(f'v_sub_f32 v{TMP+2*k}, v{TMP+2*k}, v{VT1}')
    a(f'v_sub_f32 v{VT3}, v{VMAX}, v{VT1}')
    for k in range(4): a(f'v_mul_f32 v{TMP+2*k}, {f32(L2E)}, v{TMP+2*k}')
    a(f'v_mul_f32 v{VT3}, {f32(L2E)}, v{VT3}')
    for k in range(4): a(f'v_exp_f32 v{TMP+2*k}, v{TMP+2*k}')
    a(f'v_exp_f32 v{VT3}, v{VT3}')
    a(f'v_mul_f32 v{VT0}, v{TMP}, v{TMP+1}')
    for k in range(1, 4): a(f'v_fmac_f32 v{VT0}, v{TMP+2*k}, v{TMP+2*k+1}')
    a(f'v_rcp_f32 v{VT0}, v{VT0}')
    a(f'v_mul_f32 v{VT3}, v{VT3}, v{VT0}')
    pi()
    for t in range(16): a(f'v_mul_f32 v{P_+t}, v{P_+t}, v{VT3}')
    for half in range(2):
        for t in range(8): a(f'v_mov_b32_dpp v{TMP+t}, v{P_+8*half+t} row_ror:8 row_mask:0xf bank_mask:0xf')
        for t in range(8): a(f'v_cvt_pk_bf16_f32 v{P_+8*half+t}, v{P_+8*half+t}, v{TMP+t}')
        pi()
    for t in range(4, 16, 2):
        a(f'ds_write2st64_b32 v{VSC}, v{P_+t}, v{P_+t+1} offset0:{t} offset1:{t+1}')
    for e in range(8): a(f'v_mov_b32 v{ACC+e}, 0')

    def bl(m): return 4*(m & 1) + 2*((m >> 1) & 1) + (m >> 2)
    def vstep(base, m, reissue, wait, pp, mid=None, hook=None):
        A = base + 8*m; Bq = A + 4
        if hook is not None and m == 0: mload()
        if hook is not None and m == 5: clk()
        if hook is not None and m == 7: hook()
        if wait == 'p': pw(1)
        elif wait is not None:
            a(f's_waitcnt vmcnt({wait})')
        for c in range(4):
            a(f'v_perm_b32 v{TMP+2*c}, v{Bq+c}, v{A+c}, s{SELLO}')
            a(f'v_perm_b32 v{TMP+2*c+1}, v{Bq+c}, v{A+c}, s{SELHI}')
        if reissue:
            issue(base, 2*m); issue(base, 2*m+1)
        if mid: mid()
        for e in range(8):
            a(f'v_dot2c_f32_bf16_dpp v{ACC+e}, v{pp}, v{TMP+e} row_newbcast:{bl(m)} row_mask:0xf bank_mask:0xf')
    def static_flush():
        a(f'v_lshlrev_b32 v{VT0}, 5, v{VI}')
        a(f'v_lshl_add_u32 v{VT0}, v{VG}, 3, v{VT0}')
        a(f's_lshl_b32 s59, s3, 9')
        a(f'v_add_u32 v{VT0}, s59, v{VT0}')
        a(f'ds_write_b64 v{VT0}, v[{ACC}:{ACC+1}] offset:{L_OP}')
        a(f'v_mov_b32 v{VT1}, 1')
        a('s_waitcnt lgkmcnt(0)')
        ex_mask(dry2, 1, 0)
        a(f'ds_add_u32 v{VZ}, v{VT1} offset:{L_CNT+8}')
        ex_full(dry2)
        stamp(8)

    nleft = len(vq)
    assert 1 <= nleft <= 16, nleft
    for m in range(8):
        k = (nleft*(m+1))//8 - (nleft*m)//8
        if m == 0: a(f's_waitcnt vmcnt({16 - nleft})')
        vstep(EXA, m, False, None, P_+1, mid=(lambda k=k: pi(k)))
    assert not vq
    clk(); ctl(n=304, upd=False)
    for m in range(8): vstep(RING, m, True, 'p', P_+0, hook=lambda: ctl(n=304+10))
    a(f'v_add_u32 v{VT2}, {5*256}, v{VSC}')
    for m in range(8):
        vstep(RING, m, True, 'p', P_+3, hook=lambda: ctl(n=320+10))
        vstep(EXB, m, False, None, P_+2)
    a(f'v_mov_b32 v{PP0}, v{P_+4}')
    a(f's_mov_b32 s{CNT}, 11')
    if lv is not None: a(f's_mov_b32 s{TGT}, {tsched(336+10)}' if rel else f's_add_u32 s{TGT}, s{T00}, {tsched(336+10)}')
    if not (sst or sst2): stamp(10)
    a.label('L_vloop')
    a(f'ds_read_b32 v{PP1}, v{VT2}')
    a(f'v_add_u32 v{VT2}, 256, v{VT2}')
    for m in range(8): vstep(RING, m, True, 'p', PP0, hook=lambda: ctl(step=int(round(16*sV)), th_=thv, eb_=eb, keep=bool(slp)))
    a('s_waitcnt lgkmcnt(0)')
    a(f'v_mov_b32 v{PP0}, v{PP1}')
    a(f's_sub_u32 s{CNT}, s{CNT}, 1')
    a(f's_cmp_lg_u32 s{CNT}, 0')
    a('s_cbranch_scc1 L_vloop')
    if not (sst or sst2): stamp(11)
    if slp:
        a(f'v_mov_b32 v{VT1}, s{B0}')
        a(f'ds_write_b32 v{VZ}, v{VT1} offset:{L_CNT+24}')
    if dry2: a.label('L_vlast', fence=False)
    for m in range(8): vstep(RING, m, False, 14 - 2*m, PP0)
    greduce8(ACC)
    static_flush()
    if dry2: a('s_cbranch_execz L_t1' if dry else 's_cbranch_execz L_real')
    if gate:
        lab = a.uid('L_nogate')
        a('s_cmp_lg_u32 s3, 0')
        a(f's_cbranch_scc1 {lab}')
        srd(SC, 40, 256)
        a('s_mov_b64 exec, 1')
        a(f'buffer_atomic_add v{VT1}, v{VZ}, s[{SC}:{SC+3}], 0 offen')
        a('s_mov_b64 exec, -1')
        a.label(lab)
    a('s_waitcnt lgkmcnt(0)')
    stamp(2)
    if dfw:
        dp = fpol if dpol is None else dpol
        roles(M1, M1+1, T0, T1)
        a(f's_cmp_lt_u32 s{M1}, {NF1}')
        a('s_cbranch_scc0 L_s_nof1')
        f1_dma(VT0, VT1, SM, 3, M1, T1, T2, STGB, False, dp)
        a('s_branch L_s_dma')
        a.label('L_s_nof1')
        a(f's_cmp_lt_u32 s{M1+1}, 32')
        a('s_cbranch_scc0 L_s_dma')
        f2_dma(VT0, VT1, SM, 3, M1+1, T1, T2, T3, STGB, False, dp)
        a.label('L_s_dma')
        a('s_waitcnt vmcnt(0)')
        stamp(8)
    finish(SWS, TMP, 's')

    a.label('L_service')
    SX = 44; SW = 48; SWS = 52; SC = 56; SST = 60; SOUT = 64; SDBG = 68
    WV = 72
    SB = 73; SH = 74; T0 = 75; T1 = 76; T2 = 77; T3 = 78; TAG = 80; SPIN = 81; SELLO = 82; SELHI = 83; LO32 = 84; STGB = 86; T4 = 87
    F1T = 88; F2T = 89; T5 = 90; T6 = 91
    VI = 2; VG = 3; VA = 4; VB = 5; VC = 6; VD = 7
    GENV = 8
    XR = 12; XP = 16; CF = 20; XF = 28
    MEAN = 36; DEN = 37; RDEN = 38; U0 = 39; U1 = 40; U2 = 41; U3 = 42; HP = 43
    ACC = 44
    D1 = 52; D2 = 56; D3 = 60; D4 = 64
    RD = 68
    BF = 76
    SPARE = 127
    WR = 128
    VR = 9 if rot else VI
    VRO = 123 if rot & 2 else VI
    cv = Ctx()
    cv.VI = VI; cv.VG = VG; cv.VA = VA; cv.VB = VB; cv.VC = VC; cv.VD = VD
    cv.CF = CF; cv.XF = XF; cv.BF = BF; cv.D1 = D1; cv.D2 = D2; cv.RD = RD; cv.U0 = U0
    cv.T0 = T0; cv.T1 = T1; cv.T2 = T2; cv.T3 = T3; cv.WV = WV; cv.STGB = STGB; cv.SC = SC; cv.SM = SST; cv.SWS = SWS
    cv.LO32 = LO32; cv.TAG = TAG; cv.GENV = None; cv.WG = T4; cv.paced = SW_ < 8
    if sprio: a(f's_setprio {sprio}')
    a(f's_sub_u32 s{WV}, s3, 4')
    if hmap == 3:
        a(f's_and_b32 s{SB}, s2, 7')
        a(f's_lshr_b32 s{SH}, s2, 3')
    else:
        a(f's_lshr_b32 s{SB}, s2, 5')
        a(f's_and_b32 s{SH}, s2, 31')
    HD = 79
    head_of(HD, T0)
    RW = 31
    if cmap:
        assert hmap in (2, 3)
        a(f's_mov_b32 s{SH}, s{HD}')
    roles(F1T, F2T, T0, T1)
    a(f'v_and_b32 v{VI}, 15, v0')
    a(f'v_lshrrev_b32 v{VG}, 4, v0')
    if rot:
        a(f's_lshl_b32 s{T2}, s{SB}, 1')
        a(f'v_add_u32 v123, s{T2}, v{VI}')
        a(f'v_and_b32 v123, 15, v123')
        a(f'v_mov_b32 v{VR}, v123' if rot & 1 else f'v_mov_b32 v{VR}, v{VI}')
    a(f'v_mov_b32 v{VA}, 0')
    a(f'v_lshlrev_b32 v{VB}, 2, v{VI}')
    a(f'ds_write_b32 v{VB}, v{VA} offset:{L_CNT}')
    a(f's_mov_b32 s{SELLO}, 0x05040100'); a(f's_mov_b32 s{SELHI}, 0x07060302')
    a(f's_mov_b32 s{LO32}, -1'); a(f's_mov_b32 s{LO32+1}, 0')
    a(f's_mul_i32 s{STGB}, s{WV}, {STGW}')
    a(f's_add_u32 s{STGB}, s{STGB}, {L_STG}')
    a('s_waitcnt lgkmcnt(0)')
    srd(SWS, 42, WS_SIZE); srd(SX, 16, 8192); srd(SW, 22, 512*4096*2)
    a(f'buffer_load_dword v{GENV}, v{VA}, s[{SWS}:{SWS+3}], 0 offen offset:{WS_GEN} sc1')
    a(f's_lshl_b32 s{T2}, s{SB}, 10')
    a(f'buffer_load_dwordx4 v[{XR}:{XR+3}], v1, s[{SX}:{SX+3}], s{T2} offen')
    a(f'v_lshlrev_b32 v{VA}, 4, v{VR}')
    a(f'v_lshl_add_u32 v{VA}, v{VG}, 2, v{VA}')
    a(f's_lshl_b32 s{T3}, s{WV}, 8')
    a(f's_add_u32 s{T2}, s{T2}, s{T3}')
    a(f'buffer_load_dword v{XP}, v{VA}, s[{SX}:{SX+3}], s{T2} offen')
    a(f'v_lshlrev_b32 v{VA}, 4, v{VI}')
    a(f'v_lshl_add_u32 v{VA}, v{VG}, 14, v{VA}')
    a(f's_lshl_b32 s{T2}, s{WV}, 20')
    a(f's_lshl_b32 s{T3}, s{HD}, 8')
    a(f's_add_u32 s{T2}, s{T2}, s{T3}')
    if rot & 1:
        a(f's_mov_b32 s{T0}, s{T2}')
        a(f's_lshl_b32 s{T1}, s{SB}, 17')
        a(f's_add_u32 s{T2}, s{T0}, s{T1}')
    VP = 10
    sa_loads = [f'buffer_load_dwordx2 v[{RD}:{RD+1}], v{VP}, s[{SWS}:{SWS+3}], s{T5} offen sc1',
                f'buffer_load_dwordx2 v[{RD+2}:{RD+3}], v{VP}, s[{SWS}:{SWS+3}], s{T6} offen sc1']
    def sa_addr():
        a(f'v_lshrrev_b32 v{VP}, 1, v{VR}')
        a(f'v_lshlrev_b32 v{VP}, 9, v{VP}')
        a(f'v_and_b32 v{VB}, 1, v{VR}')
        a(f'v_lshl_add_u32 v{VP}, v{VB}, 5, v{VP}')
        a(f'v_lshl_add_u32 v{VP}, v{VG}, 3, v{VP}')
        a(f's_lshl_b32 s{T5}, s{SB}, 6')
        a(f's_lshl_b32 s{T6}, s{WV}, 12')
        a(f's_add_u32 s{T5}, s{T5}, s{T6}')
        a(f's_add_u32 s{T5}, s{T5}, {WS_MOD}')
        a(f's_add_u32 s{T6}, s{T5}, 16384')
    for j in range(33):
        if ep is not None and j == 4: sa_addr()
        if ep is not None and j == ep:
            if qch: stamp(0)
            for l in sa_loads: a(l)
        if j == 32: break
        if j == b0wq: a('s_barrier')
        if WQ0 is not None and j == 4: a(f's_waitcnt vmcnt({WQ0})')
        if j >= WQ: a(f's_waitcnt vmcnt({WQ-1})')
        r = WR + 4*j
        if j == wqn: a(f's_mov_b32 s{SW+2}, 0')
        a(f'buffer_load_dwordx4 v[{r}:{r+3}], v{VA}, s[{SW}:{SW+3}], s{T2} offen {wqpol}')
        if rot & 1 and j % 4 == 3:
            if j < 31:
                a(f's_add_u32 s{T1}, s{T1}, {1 << 17}')
                a(f's_and_b32 s{T1}, s{T1}, 0xfffff')
                a(f's_add_u32 s{T2}, s{T0}, s{T1}')
        elif j < 31: a(f's_add_u32 s{T2}, s{T2}, {8192 if j % 2 == 0 else 7*8192}')
    srd(SC, 34, 8192); srd(SST, 36, 512*3072*2); srd(SOUT, 38, 8192); srd(SDBG, 40, 256)
    stamp(6)
    a('s_waitcnt vmcnt(32)')
    stamp(7)
    a(f'v_readfirstlane_b32 s{TAG}, v{GENV}')
    a(f's_add_u32 s{TAG}, s{TAG}, {TAGC}')

    def ln_stats(vals, mean, den, rden, t0, t1):
        R = len(vals)
        for r in range(R):
            v = vals[r]
            a(f'v_add_f32 v{mean[r]}, v{v[0]}, v{v[1]}')
            for k in range(2, len(v)): a(f'v_add_f32 v{mean[r]}, v{mean[r]}, v{v[k]}')
        wave_reduce('v_add_f32', mean, t0)
        for r in range(R): a(f'v_mul_f32 v{mean[r]}, {f32(1/512)}, v{mean[r]}')
        for r in range(R):
            v = vals[r]
            for k in range(len(v)):
                a(f'v_sub_f32 v{t0[r]}, v{v[k]}, v{mean[r]}')
                if k == 0: a(f'v_mul_f32 v{den[r]}, v{t0[r]}, v{t0[r]}')
                else: a(f'v_fmac_f32 v{den[r]}, v{t0[r]}, v{t0[r]}')
        wave_reduce('v_add_f32', den, t0)
        for r in range(R):
            a(f'v_mul_f32 v{den[r]}, {f32(1/512)}, v{den[r]}')
            rnd2(mean[r], den[r], t0[r])
            a(f'v_add_f32 v{den[r]}, {f32(1e-5)}, v{den[r]}')
            rnd1(den[r], t0[r])
            a(f'v_sqrt_f32 v{den[r]}, v{den[r]}')
            rnd1(den[r], t0[r])
            a(f'v_rcp_f32 v{rden[r]}, v{den[r]}')
    def ln_norm2(x, y, mean, den, rden, t0, t1, t2):
        a(f'v_sub_f32 v{x}, v{x}, v{mean}')
        a(f'v_sub_f32 v{y}, v{y}, v{mean}')
        rnd2(x, y, t0)
        a(f'v_mul_f32 v{t0}, v{x}, v{rden}')
        a(f'v_mul_f32 v{t1}, v{y}, v{rden}')
        a(f'v_fma_f32 v{x}, -v{t0}, v{den}, v{x}')
        a(f'v_fma_f32 v{y}, -v{t1}, v{den}, v{y}')
        a(f'v_fma_f32 v{x}, v{x}, v{rden}, v{t0}')
        a(f'v_fma_f32 v{y}, v{y}, v{rden}, v{t1}')
        rnd2(x, y, t0)
    def modulate2(x, y, c1pair, spair, t0, t1, t2, out):
        unpack(t0, t1, c1pair)
        a(f'v_mul_f32 v{x}, v{x}, v{t0}')
        a(f'v_mul_f32 v{y}, v{y}, v{t1}')
        rnd2(x, y, t2)
        unpack(t0, t1, spair)
        a(f'v_add_f32 v{x}, v{x}, v{t0}')
        a(f'v_add_f32 v{y}, v{y}, v{t1}')
        a(f'v_cvt_pk_bf16_f32 v{out}, v{x}, v{y}')
    def one_plus(pair, t0, t1):
        unpack(t0, t1, pair)
        a(f'v_add_f32 v{t0}, 1.0, v{t0}')
        a(f'v_add_f32 v{t1}, 1.0, v{t1}')
        a(f'v_cvt_pk_bf16_f32 v{pair}, v{t0}, v{t1}')

    for r in range(4): unpack(XF+2*r, XF+2*r+1, XR+r)
    ln_stats([[XF+k for k in range(8)]], [MEAN], [DEN], [RDEN], [U0], [U1])
    unpack(U2, U3, XP)
    ln_norm2(U2, U3, MEAN, DEN, RDEN, U0, U1, HP)
    stamp(9)

    def permute_weights(wait_fn):
        wmap = []
        free = SPARE
        for m in range(16):
            A = WR + 8*m; Bq = A + 4
            w = wait_fn(m)
            if w is not None: a(f's_waitcnt vmcnt({w})')
            row = [None]*8
            for c in range(4):
                a(f'v_perm_b32 v{free}, v{Bq+c}, v{A+c}, s{SELLO}')
                a(f'v_perm_b32 v{Bq+c}, v{Bq+c}, v{A+c}, s{SELHI}')
                row[2*c] = free; row[2*c+1] = Bq + c
                free = A + c
            wmap.append(row)
        return wmap, free
    def gemv(wmap, vec, zero=True):
        if zero:
            for e in range(8): a(f'v_mov_b32 v{ACC+e}, 0')
        for m in range(16):
            for e in range(8):
                a(f'v_dot2c_f32_bf16_dpp v{ACC+e}, v{vec}, v{wmap[m][e]} row_newbcast:{m} row_mask:0xf bank_mask:0xf')
        greduce8(ACC)
    def poll(name, loads, tagregs, sleep=1, maskreg=None, chk=None, fence=True, pre=None):
        a(f's_mov_b32 s{SPIN}, 0')
        if pre is not None:
            a(f's_waitcnt vmcnt({pre})')
            a(f's_branch {name}_chk')
        a.label(name, fence=fence)
        for l in loads: a(l)
        a('s_waitcnt vmcnt(0)')
        if pre is not None: a.label(name + '_chk', fence=fence)
        if chk is not None:
            chk(); tagregs = [None]
        else:
            a(f'v_xor_b32 v{VD}, s{TAG}, v{tagregs[0]}')
        for t in tagregs[1:]:
            a(f'v_bitop3_b32 v{VD}, v{t}, s{TAG}, v{VD} bitop3:0xbe')
        if maskreg is not None:
            a(f'v_and_b32 v{VD}, v{maskreg}, v{VD}')
        a(f'v_cmp_ne_u32 vcc, 0, v{VD}')
        a(f's_cbranch_vccz {name}_ok')
        a(f's_add_u32 s{SPIN}, s{SPIN}, 1')
        a(f's_cmp_lt_u32 s{SPIN}, {SPIN_MAX}')
        a(f's_cbranch_scc0 {name}_ok')
        if sleep: a(f's_sleep {sleep}')
        a(f's_branch {name}')
        a.label(name + '_ok', fence=fence)
    def lds_wait(name, off_v, off, val, sleep, fence=True):
        a(f's_mov_b32 s{SPIN}, 0')
        a.label(name, fence=fence)
        a(f'ds_read_b32 v{VD}, v{off_v} offset:{off}')
        a('s_waitcnt lgkmcnt(0)')
        a(f'v_readfirstlane_b32 s{T2}, v{VD}')
        a(f's_cmp_ge_u32 s{T2}, {val}')
        a(f's_cbranch_scc1 {name}_ok')
        a(f's_add_u32 s{SPIN}, s{SPIN}, 1')
        a(f's_cmp_lt_u32 s{SPIN}, {SPIN_MAX*4}')
        a(f's_cbranch_scc0 {name}_ok')
        if sleep: a(f's_sleep {sleep}')
        a(f's_branch {name}')
        a.label(name + '_ok', fence=fence)

    if ep is None:
        wmap, _ = permute_weights(lambda m: 30 - 2*m)
        a(f'v_lshrrev_b32 v{VA}, 1, v{VR}')
        a(f'v_lshlrev_b32 v{VA}, 9, v{VA}')
        a(f'v_and_b32 v{VB}, 1, v{VR}')
        a(f'v_lshl_add_u32 v{VA}, v{VB}, 5, v{VA}')
        a(f'v_lshl_add_u32 v{VA}, v{VG}, 3, v{VA}')
        a(f's_lshl_b32 s{T2}, s{SB}, 6')
        a(f's_lshl_b32 s{T3}, s{WV}, 12')
        a(f's_add_u32 s{T2}, s{T2}, s{T3}')
        a(f's_add_u32 s{T2}, s{T2}, {WS_MOD}')
        a(f's_add_u32 s{T3}, s{T2}, 16384')
        stamp(0)
        if pd:
            a.label('L_pd')
            a('s_memrealtime s[92:93]')
            a('s_waitcnt lgkmcnt(0)')
            a('s_sub_u32 s92, s92, s94')
            a(f's_cmp_ge_u32 s92, {pd}')
            a('s_cbranch_scc1 L_pd_ok')
            a('s_sleep 2')
            a('s_branch L_pd')
            a.label('L_pd_ok')
        poll('L_poll_sa', [f'buffer_load_dwordx2 v[{RD}:{RD+1}], v{VA}, s[{SWS}:{SWS+3}], s{T2} offen sc1',
                           f'buffer_load_dwordx2 v[{RD+2}:{RD+3}], v{VA}, s[{SWS}:{SWS+3}], s{T3} offen sc1'], [RD+1, RD+3], sleep=psl)
        stamp(10)
        if qch: a(f's_mov_b32 s13, s{SPIN}')
        one_plus(RD+2, U0, U1)
        modulate2(U2, U3, RD+2, RD, U0, U1, VD, HP)
        gemv(wmap, HP)
    else:
        m0 = max(0, min(16, (ep - WQ) // 2 + epm))
        wmap = []
        free = SPARE
        def perm_m(m):
            nonlocal free
            A = WR + 8*m; Bq = A + 4
            a(f's_waitcnt vmcnt({30 - 2*m + (2 if 2*m+1 < ep else 0)})')
            row = [None]*8
            for c in range(4):
                a(f'v_perm_b32 v{free}, v{Bq+c}, v{A+c}, s{SELLO}')
                a(f'v_perm_b32 v{Bq+c}, v{Bq+c}, v{A+c}, s{SELHI}')
                row[2*c] = free; row[2*c+1] = Bq + c
                free = A + c
            wmap.append(row)
        for m in range(m0): perm_m(m)
        for e in range(8): a(f'v_mov_b32 v{ACC+e}, 0')
        poll('L_poll_sa', sa_loads, [RD+1, RD+3], sleep=psl, pre=32-ep)
        stamp(10)
        if qch: a(f's_mov_b32 s13, s{SPIN}')
        one_plus(RD+2, U0, U1)
        modulate2(U2, U3, RD+2, RD, U0, U1, VD, HP)
        for m in range(16):
            if m >= m0: perm_m(m)
            for e in range(8):
                a(f'v_dot2c_f32_bf16_dpp v{ACC+e}, v{HP}, v{wmap[m][e]} row_newbcast:{m} row_mask:0xf bank_mask:0xf')
        greduce8(ACC)
    a(f'v_lshlrev_b32 v{VA}, 5, v{VI}')
    a(f'v_lshl_add_u32 v{VA}, v{VG}, 3, v{VA}')
    a(f's_lshl_b32 s{T2}, s{WV}, 9')
    a(f'v_add_u32 v{VB}, s{T2}, v{VA}')
    a(f'ds_write_b64 v{VB}, v[{ACC}:{ACC+1}] offset:{L_QP}')
    a('s_waitcnt lgkmcnt(0)')
    if qd:
        a('s_memrealtime s[94:95]')
        a('s_waitcnt lgkmcnt(0)')
        a.label('L_qd')
        a('s_memrealtime s[92:93]')
        a('s_waitcnt lgkmcnt(0)')
        a('s_sub_u32 s92, s92, s94')
        a(f's_cmp_lt_u32 s92, {qd}')
        a('s_cbranch_scc1 L_qd')
    a('s_barrier')
    stamp(1)

    if nopre:
        stamp(11)
        finish(SWS, 8)
    def late_mod():
        a(f's_sub_u32 s{T4}, s2, 64')
        a(f's_cmp_lt_u32 s2, 128')
        a('s_cbranch_scc1 L_v_moddone')
        mod_issue(cv)
        mod_compute(cv, 0, L_CNT+4, 'L_v_moddone')
        a.label('L_v_moddone')
    def wait_kend(name):
        if not lpl: return
        a(f'v_mov_b32 v{VC}, 0')
        lds_wait(name, VC, L_CNT+12, 1, 16)
    if lme: late_mod()
    if tlbv:
        srd(SW, 20, 0x10000000)
        a(f's_lshl_b32 s{T2}, s2, 20')
        a(f'v_mov_b32 v{VA}, 0')
        a('s_mov_b64 exec, 1')
        a(f'buffer_load_dword v8, v{VA}, s[{SW}:{SW+3}], s{T2} offen')
        a('s_mov_b64 exec, -1')
    if tlbo == 1:
        a(f'v_mov_b32 v{VA}, 0')
        a('s_mov_b64 exec, 1')
        a(f'buffer_load_dword v9, v{VA}, s[{SOUT}:{SOUT+3}], 0 offen sc1')
        a('s_mov_b64 exec, -1')
    srd(SW, 24, 4096*512*2)
    a(f'v_lshlrev_b32 v{VA}, 4, v{VI}')
    a(f'v_lshl_add_u32 v{VA}, v{VG}, 11, v{VA}')
    a(f's_lshl_b32 s{T2}, s{HD}, 17')
    if pre is not None and pre & 8: a(f's_mov_b32 s{T2}, 0')
    a(f's_lshl_b32 s{T3}, s{WV}, 8')
    a(f's_add_u32 s{T2}, s{T2}, s{T3}')
    if wol:
        a(f'v_mov_b32 v{VA}, v1')
        a(f's_lshl_b32 s{T2}, s{HD}, 17')
        a(f's_lshl_b32 s{T3}, s{WV}, {15 if wol == 1 else 11}')
        a(f's_add_u32 s{T2}, s{T2}, s{T3}')
    if rot & 2:
        a(f's_mov_b32 s{T0}, s{T2}')
        a(f's_lshl_b32 s{T1}, s{SB}, 14')
        a(f's_add_u32 s{T2}, s{T0}, s{T1}')
    for j in range(32 if (pre is None or pre & 2) else 0):
        if j >= SW_: a(f's_waitcnt vmcnt({SW_-1})')
        r = WR + 4*j
        a(f'buffer_load_dwordx4 v[{r}:{r+3}], v{VA}, s[{SW}:{SW+3}], s{T2} offen offset:{(j%2)*1024} {wopol}')
        if rot & 2 and j % 4 == 3:
            if j < 31:
                a(f's_add_u32 s{T1}, s{T1}, {1 << 14}')
                a(f's_and_b32 s{T1}, s{T1}, 0x1ffff')
                a(f's_add_u32 s{T2}, s{T0}, s{T1}')
        elif j % 2 == 1 and j < 31: a(f's_add_u32 s{T2}, s{T2}, {2048 if wol == 1 else 8192}')
    wmap, _ = permute_weights(lambda m: 30 - 2*m)
    if not lme: late_mod()
    if xw:
        a(f's_mov_b32 m0, {L_DUM}')
        a(f's_and_b32 s{T0}, s2, 7')
        a(f's_cmp_gt_u32 s{T0}, {xwx}')
        a('s_cbranch_scc1 L_noxw')
        a(f's_lshr_b32 s{T0}, s2, 3')
        a(f's_lshl_b32 s{T0}, s{T0}, 2')
        a(f's_add_u32 s{T0}, s{T0}, s{WV}')
        a(f's_mul_i32 s{T0}, s{T0}, 11008')
        for p in (28, 30, 32):
            srd(SW, p, 512*1376*2)
            for j in range(xw):
                a(f's_waitcnt vmcnt({xwW-1})')
                a(f's_add_u32 s{T1}, s{T0}, {j*1024}')
                a(f'buffer_load_dwordx4 v1, s[{SW}:{SW+3}], s{T1} offen {fpol} lds')
        a('s_waitcnt vmcnt(0)')
        a.label('L_noxw')

    if pre is not None and not pre & 4:
        stamp(11)
        finish(SWS, 8)
    for r in (24, 25, 26, 27, 28, 29, 60, 61, 62, 63): a(f'v_mov_b32 v{r}, 0')
    a(f's_mov_b32 s{T5}, {ACTB}')
    a(f's_cmp_lt_u32 s{F1T}, {NF1}')
    a('s_cbranch_scc0 L_nof1w')
    if not dfw: f1_dma(VB, VC, SST, WV, F1T, T1, T2, STGB, SW_ < 8, fpol)
    AT = 27
    a(f'v_bfe_u32 v{VA}, v{VI}, 1, 1')
    a(f'v_mul_u32_u24 v{VA}, {2*STGW}, v{VA}')
    a(f'v_and_b32 v{VD}, 1, v{VI}')
    a(f'v_lshl_add_u32 v{VA}, v{VD}, 12, v{VA}')
    a(f'v_lshl_add_u32 v{VA}, v{VG}, 8, v{VA}')
    a(f'v_lshrrev_b32 v{VD}, 2, v{VI}')
    a(f'v_lshl_add_u32 v{VA}, v{VD}, 5, v{VA}')
    a(f's_lshl_b32 s{T2}, s{WV}, 3')
    a(f's_add_u32 s{T2}, s{T2}, {L_STG}')
    a(f'v_add_u32 v{AT}, s{T2}, v{VA}')
    def f1_tr():
        for s in range(8):
            o = (s >> 2)*STGW + (s & 3)*1024
            a(f'ds_read_b64_tr_b16 v[{BF+4*s}:{BF+4*s+1}], v{AT} offset:{o}')
            a(f'ds_read_b64_tr_b16 v[{BF+4*s+2}:{BF+4*s+3}], v{AT} offset:{o+128}')
    if not dfw:
        a(f'v_mov_b32 v{VC}, 0')
        a(f'v_mov_b32 v{VB}, 1')
        a('s_waitcnt vmcnt(0)')
        a('s_mov_b64 exec, 1')
        a(f'ds_add_u32 v{VC}, v{VB} offset:{L_CNT+20}')
        a('s_mov_b64 exec, -1')
        lds_wait('L_w_stg', VC, L_CNT+20, 4, 8)
        f1_tr()
    SBF = BF + 32; C1F = D1
    wait_kend('L_wk1')
    a(f'v_lshrrev_b32 v{VA}, 2, v0')
    a(f'v_lshlrev_b32 v{VA}, 9, v{VA}')
    a(f'v_and_b32 v{VB}, 3, v0')
    a(f'v_lshl_add_u32 v{VA}, v{VB}, 4, v{VA}')
    a(f's_lshl_b32 s{T0}, s{WV}, 7')
    SO = [T0, T1, T3, T6]
    a(f's_add_u32 s{T0}, s{T0}, {WS_MOD + 3*16384}')
    for k in range(1, 4): a(f's_add_u32 s{SO[k]}, s{T0}, {k*8192}')
    for rr in range(2):
        loads = []; tags = []
        for k in range(4):
            r = 8 + 4*k
            loads.append(f'buffer_load_dwordx4 v[{r}:{r+3}], v{VA}, s[{SWS}:{SWS+3}], s{SO[k]} offen offset:{rr*64} sc1')
            tags += [r+1, r+3]
        poll(f'L_poll_sb{rr}', loads, tags, sleep=32)
        for q in range(4):
            unpack(SBF+8*rr+2*q, SBF+8*rr+2*q+1, 8+4*(q>>1)+2*(q&1))
            c1 = C1F+8*rr+2*q
            unpack(c1, c1+1, 16+4*(q>>1)+2*(q&1))
            a(f'v_add_f32 v{c1}, 1.0, v{c1}')
            a(f'v_add_f32 v{c1+1}, 1.0, v{c1+1}')
            rnd2(c1, c1+1, U0)
    AH = 24; AA = 25; AS = 26
    a(f's_mul_i32 s{T2}, s{WV}, {2*H2S}')
    a(f'v_lshlrev_b32 v{AH}, 3, v0')
    a(f'v_add_u32 v{AH}, s{T2}, v{AH}')
    a(f'v_and_b32 v{AA}, 7, v0')
    a(f'v_mul_u32_u24 v{AA}, {H2S}, v{AA}')
    a(f'v_bfe_u32 v{VB}, v0, 3, 1')
    a(f'v_lshl_add_u32 v{AA}, v{VB}, 9, v{AA}')
    a(f'v_lshl_add_u32 v{AA}, v{VG}, 4, v{AA}')
    a(f'v_bfe_u32 v{AS}, v0, 4, 1')
    a(f'v_lshlrev_b32 v{AS}, 6, v{AS}')
    a(f'v_lshrrev_b32 v{VB}, 5, v0')
    a(f'v_lshl_add_u32 v{AS}, v{VB}, 5, v{AS}')
    a(f'v_bfe_u32 v{VB}, v0, 1, 1')
    a(f'v_lshl_add_u32 v{AS}, v{VB}, 4, v{AS}')
    a(f's_lshr_b32 s{T5}, s{F1T}, 2')
    a(f's_lshl_b32 s{T5}, s{T5}, 11')
    a(f's_bfe_u32 s{T2}, s{F1T}, 0x10001')
    a(f's_lshl_b32 s{T2}, s{T2}, 7')
    a(f's_add_u32 s{T5}, s{T5}, s{T2}')
    a(f's_and_b32 s{T2}, s{F1T}, 1')
    a(f's_lshl_b32 s{T2}, s{T2}, 9')
    a(f's_add_u32 s{T5}, s{T5}, s{T2}')
    a(f's_and_b32 s{T2}, s{WV}, 1')
    a(f's_lshl_b32 s{T2}, s{T2}, 10')
    a(f's_add_u32 s{T5}, s{T5}, s{T2}')
    a(f's_lshr_b32 s{T2}, s{WV}, 1')
    a(f's_lshl_b32 s{T2}, s{T2}, 8')
    a(f's_add_u32 s{T5}, s{T5}, s{T2}')
    if acs > 7: a(f's_lshl_b32 s{T5}, s{T5}, {acs-7}')
    a(f's_add_u32 s{T5}, s{T5}, {ACTB}')
    AX1 = 28
    a(f'v_lshrrev_b32 v{AX1}, 2, v0')
    a(f'v_lshlrev_b32 v{AX1}, {xs}, v{AX1}')
    a(f'v_and_b32 v{VB}, 3, v0')
    a(f'v_lshl_add_u32 v{AX1}, v{VB}, 4, v{AX1}')
    if rep & 1:
        a(f's_and_b32 s{T2}, s2, 7')
        a(f's_lshl_b32 s{T2}, s{T2}, 15')
        a(f'v_add_u32 v{AX1}, s{T2}, v{AX1}')
    if rep & 2:
        a(f'v_bfe_u32 v{AS}, v0, 4, 1')
        a(f'v_lshlrev_b32 v{AS}, 6, v{AS}')
        a(f'v_lshrrev_b32 v{VB}, 5, v0')
        a(f'v_lshl_add_u32 v{AS}, v{VB}, 5, v{AS}')
        a(f'v_bfe_u32 v{VB}, v0, 2, 1')
        a(f'v_lshl_add_u32 v{AS}, v{VB}, 4, v{AS}')
        a(f'v_bfe_u32 v{VB}, v0, 3, 1')
        a(f'v_and_b32 v{VD}, 3, v0')
        a(f'v_lshl_add_u32 v{VB}, v{VB}, 2, v{VD}')
        a(f'v_mul_u32_u24 v{VB}, {ACS}, v{VB}')
        a(f'v_add_u32 v{AS}, v{VB}, v{AS}')
    a('s_waitcnt lgkmcnt(0)')
    a('s_branch L_wdone')
    a.label('L_nof1w')
    a(f's_mov_b32 s{T0}, s{F2T}')
    a(f's_cmp_lt_u32 s{T0}, 32')
    a('s_cbranch_scc0 L_wdone')
    AT2 = 38
    tr_addr(cv, AT2)
    if not dfw:
        f2_dma(VB, VC, SST, WV, T0, T1, T2, T3, STGB, SW_ < 8, fpol)
        a('s_waitcnt vmcnt(0)')
        for s in range(12): tr_read(BF + 4*s, AT2, s)
    GBP = 125
    wait_kend('L_wk2')
    a(f'v_lshlrev_b32 v{VA}, 3, v0')
    a(f's_lshl_b32 s{T2}, s{T0}, 9')
    a(f's_add_u32 s{T2}, s{T2}, {WS_MOD + 5*16384}')
    poll('L_poll_gb', [f'buffer_load_dwordx2 v[8:9], v{VA}, s[{SWS}:{SWS+3}], s{T2} offen sc1'], [9], sleep=32)
    a(f'v_mov_b32 v{GBP}, v8')
    AD = 24; VM = 30; AX = 60; AR = 61; AO = 62; AW = 63
    a(f'v_bfe_u32 v{VB}, v0, 3, 1')
    a(f's_mul_i32 s{T3}, s{WV}, 12')
    a(f'v_add_u32 v{VB}, s{T3}, v{VB}')
    a(f'v_and_b32 v{VA}, {0x3f0 & ~0x80}, v1')
    a(f'v_add_u32 v{VA}, {21*2048}, v{VA}')
    a(f's_mul_i32 s{T3}, s{WV}, {6*2048}')
    for u in range(6):
        a(f'v_add_u32 v{VC}, {2*u}, v{VB}')
        a(f'v_cmp_gt_u32 vcc, 43, v{VC}')
        a(f'v_cndmask_b32 v{VM+u}, 0, -1, vcc')
        a(f'v_add_u32 v{VC}, s{T3}, v1')
        a(f'v_cndmask_b32 v{AD+u}, v{VA}, v{VC}, vcc')
        if acs > 7:
            a(f'v_lshrrev_b32 v{VC}, 7, v{AD+u}')
            a(f'v_and_b32 v{AD+u}, 127, v{AD+u}')
            a(f'v_lshl_add_u32 v{AD+u}, v{VC}, {acs}, v{AD+u}')
        if u < 5: a(f's_add_u32 s{T3}, s{T3}, 2048')
    a(f'v_lshrrev_b32 v{AX}, 3, v0')
    a(f'v_lshlrev_b32 v{AO}, 10, v{AX}')
    a(f'v_lshlrev_b32 v{AX}, {xs+5}, v{AX}')
    a(f'v_and_b32 v{VB}, 7, v0')
    a(f'v_lshl_add_u32 v{AX}, v{VB}, 3, v{AX}')
    if rep & 1:
        a(f's_and_b32 s{T2}, s2, 7')
        a(f's_lshl_b32 s{T2}, s{T2}, 15')
        a(f'v_add_u32 v{AX}, s{T2}, v{AX}')
    if rep & 2:
        a(f's_and_b32 s{T2}, s2, 7')
        a(f's_mul_i32 s{T2}, s{T2}, {ACS}')
        for u in range(6): a(f'v_add_u32 v{AD+u}, s{T2}, v{AD+u}')
    a(f'v_lshl_add_u32 v{AO}, v{VB}, 2, v{AO}')
    red_addr(cv, AR)
    a(f's_lshl_b32 s{T2}, s{WV}, 10')
    a(f'v_add_u32 v{AW}, s{T2}, v1')
    a('s_waitcnt lgkmcnt(0)')
    a.label('L_wdone')
    GAP = 124; XR1 = 126; AQ = 36; A64 = 37
    wait_kend('L_wk3')
    a(f'v_and_b32 v{VB}, 3, v0')
    a(f'v_lshrrev_b32 v{VC}, 5, v0')
    a(f'v_lshl_add_u32 v{VB}, v{VB}, 1, v{VC}')
    a(f'v_lshlrev_b32 v{AQ}, 3, v{VB}')
    a(f's_lshl_b32 s{T2}, s{SB}, 6')
    a(f's_lshl_b32 s{T3}, s{SH}, 9')
    a(f's_add_u32 s{T2}, s{T2}, s{T3}')
    a(f's_add_u32 s{T2}, s{T2}, {WS_MOD + 2*16384}')
    poll('L_poll_ga', [f'buffer_load_dwordx2 v[8:9], v{AQ}, s[{SWS}:{SWS+3}], s{T2} offen sc1'], [9], sleep=32)
    a(f'v_mov_b32 v{GAP}, v8')
    if xfl:
        a(f'v_bfe_u32 v{VA}, v0, 2, 1')
        a(f'v_lshl_add_u32 v{AQ}, v{VA}, 6, v{AQ}')
    if rep & 1:
        a(f'v_bfe_u32 v{VA}, v0, 3, 2')
        a(f'v_lshl_add_u32 v{AQ}, v{VA}, 15, v{AQ}')
    a(f'v_lshlrev_b32 v{VA}, 2, v{VB}')
    a(f's_lshl_b32 s{T2}, s{SB}, 10')
    a(f's_lshl_b32 s{T3}, s{SH}, 5')
    a(f's_add_u32 s{T2}, s{T2}, s{T3}')
    a(f'buffer_load_dword v{XR1}, v{VA}, s[{SX}:{SX+3}], s{T2} offen')
    if rot & 2:
        a(f's_lshl_b32 s{T2}, s{SB}, 1')
        a(f'v_add_u32 v{VB}, s{T2}, v{VI}')
        a(f'v_and_b32 v{VB}, 15, v{VB}')
        a(f'v_lshlrev_b32 v{VA}, 5, v{VB}')
    else:
        a(f'v_lshlrev_b32 v{VA}, 5, v{VI}')
    a(f'v_lshl_add_u32 v{VA}, v{VG}, 3, v{VA}')
    a(f'v_lshrrev_b32 v{VB}, 2, v{VI}')
    a(f'v_lshlrev_b32 v{VB}, 12, v{VB}')
    if wx & 3: a(f'v_xor_b32 v{VB}, {(wx & 3) << 12}, v{VB}')
    a(f'v_and_b32 v{VC}, 3, v{VI}')
    a(f'v_lshl_add_u32 v{VB}, v{VC}, 5, v{VB}')
    a(f'v_lshl_add_u32 v{VB}, v{VG}, 3, v{VB}')
    a(f'v_lshrrev_b32 v{A64}, 2, v0')
    a(f'v_lshlrev_b32 v{A64}, 7, v{A64}')
    a(f'v_and_b32 v{VC}, 3, v0')
    a(f'v_lshl_add_u32 v{A64}, v{VC}, 4, v{A64}')
    a(f's_lshl_b32 s{T4}, s{SB}, 16')
    a(f's_lshl_b32 s{T3}, s{WV}, 14')
    a(f's_add_u32 s{T4}, s{T4}, s{T3}')
    a(f's_lshl_b32 s{T3}, s{HD}, 7')
    a(f's_add_u32 s{T4}, s{T4}, s{T3}')
    if wx & 12: a(f's_xor_b32 s{T4}, s{T4}, {(wx & 12) << 12}')
    a(f's_add_u32 s{T4}, s{T4}, {WS_WOP}')
    NP = 8; NC = 16
    a(f'v_lshrrev_b32 v{VC}, 5, v0')
    a(f'v_lshlrev_b32 v{VC}, 4, v{VC}')
    a(f'v_lshrrev_b32 v{NP}, v{VC}, s{TAG}')
    a(f'v_and_b32 v{VC}, 1, v0')
    a(f'v_lshlrev_b32 v{VC}, 4, v{VC}')
    a(f'v_lshrrev_b32 v{NC}, v{VC}, s{TAG}')
    for k in range(1, 4):
        a(f'v_lshrrev_b32 v{NP+k}, {4*k}, v{NP}')
        a(f'v_lshrrev_b32 v{NC+k}, {4*k}, v{NC}')
    a('s_waitcnt vmcnt(0)')
    stamp(11)
    if lms:
        a(f's_lshr_b32 s{T2}, s2, 3')
        a(f's_lshl_b32 s{T2}, s{T2}, 2')
        a(f's_add_u32 s{T2}, s{T2}, s{WV}')
        a(f's_mul_i32 s{T2}, s{T2}, {lms}')
        a(f'v_mov_b32 v{VC}, 0')
        a('s_mov_b32 s10, 0'); a('s_mov_b32 s11, 0'); a('s_mov_b32 s13, -1'); a('s_mov_b32 s4, -1')
        a(f's_mov_b32 s{SPIN}, 0')
        a('s_mov_b64 exec, 1')
        a.label('L_lms')
        a(f's_and_b32 s{T3}, s{T2}, 63')
        a(f's_lshl_b32 s{T3}, s{T3}, 7')
        a(f's_lshr_b32 s{T1}, s{T2}, 6')
        a(f's_lshl_b32 s{T1}, s{T1}, 14')
        a(f's_add_u32 s{T3}, s{T3}, s{T1}')
        a(f's_add_u32 s{T3}, s{T3}, {0x200000}')
        for pol, (sm, mn) in enumerate(((10, 13), (11, 4))):
            a('s_memtime s[92:93]')
            a('s_waitcnt lgkmcnt(0)')
            a(f'buffer_load_dword v{VD}, v{VC}, s[{SWS}:{SWS+3}], s{T3} offen sc1')
            a('s_waitcnt vmcnt(0)')
            a('s_memtime s[94:95]')
            a('s_waitcnt lgkmcnt(0)')
            a('s_sub_u32 s92, s94, s92')
            a(f's_add_u32 s{sm}, s{sm}, s92')
            a(f's_min_u32 s{mn}, s{mn}, s92')
            a(f's_add_u32 s{T3}, s{T3}, 8192')
        a(f's_add_u32 s{T2}, s{T2}, 1')
        a(f's_add_u32 s{SPIN}, s{SPIN}, 1')
        a(f's_cmp_lt_u32 s{SPIN}, {lms}')
        a('s_cbranch_scc1 L_lms')
        a('s_mov_b64 exec, -1')
    if dry or dry2:
        a(f's_mov_b64 s[{DRY}:{DRY+1}], 0')
        a('s_mov_b64 exec, 0')
        a('s_nop 4')
        a('s_branch L_vlast' if dry2 else 's_branch L_t1')
        a.label('L_real')
        a(f's_mov_b64 s[{DRY}:{DRY+1}], -1')
        a('s_mov_b64 exec, -1')
    a(f'v_mov_b32 v{VC}, 0')
    for e in range(8): a(f'v_mov_b32 v{ACC+e}, 0')
    lds_wait('L_w_stat', VC, L_CNT+8, 4, wsl, fence=not nf)
    stamp(8)
    if dry: a.label('L_t1', fence=False)
    LO = L_OP
    for w in range(4):
        a(f'ds_read_b64 v[{RD+2*w}:{RD+2*w+1}], v{VA} offset:{LO + w*512}')
    a('s_waitcnt lgkmcnt(0)')
    for k in range(4): a(f'v_add_f32 v{RD+k}, v{RD+k}, v{RD+k+4}')
    for k in range(2): a(f'v_add_f32 v{RD+k}, v{RD+k}, v{RD+k+2}')
    a(f'v_cvt_pk_bf16_f32 v{HP}, v{RD}, v{RD+1}')
    if dbg:
        a(f's_lshl_b32 s{T2}, s{SB}, 5')
        a(f's_or_b32 s{T2}, s{T2}, s{HD}')
        a(f's_lshl_b32 s{T2}, s{T2}, 8')
        a(f's_add_u32 s{T2}, s{T2}, {WS_DBG + 0x10000}')
        a(f'v_lshrrev_b32 v{VC}, 1, v{VA}')
        a(f'buffer_store_dword v{HP}, v{VC}, s[{SWS}:{SWS+3}], s{T2} offen')
    gemv(wmap, HP, zero=False)
    a(f'v_add_u32 v{ACC}, 8, v{ACC}')
    a(f'v_add_u32 v{ACC+1}, 8, v{ACC+1}')
    a(f'v_mov_b32 v{ACC+2}, v{ACC}')
    a(f'v_mov_b32 v{ACC+3}, v{ACC+1}')
    a(f'v_permlane16_swap_b32 v{ACC}, v{ACC+2}')
    a(f'v_permlane16_swap_b32 v{ACC+1}, v{ACC+3}')
    for k in range(4): a(f'v_bfi_b32 v{RD+k}, 15, v{NP+k}, v{ACC+k}')
    ex_mask(dry, '0xffff', '0xffff')
    a(f'buffer_store_dwordx4 v[{RD}:{RD+3}], v{VB}, s[{SWS}:{SWS+3}], s{T4} offen sc1')
    ex_full(dry)
    stamp(2)
    if notail: finish(SWS, 8)
    if xa:
        a(f'v_mov_b32 v{VC}, 0')
        a(f'ds_read_b32 v{VD}, v{VC} offset:{L_CNT+16}')
        a('s_waitcnt lgkmcnt(0)')
        a(f'v_readfirstlane_b32 s{T3}, v{VD}')
        a(f's_add_u32 s{T3}, s{T3}, {tsched(512) + bo1}')
        a(f's_mov_b32 s{SPIN}, 0')
        a.label('L_xa')
        a('s_memrealtime s[92:93]')
        a('s_waitcnt lgkmcnt(0)')
        a(f's_sub_u32 s92, s92, s{T3}')
        a('s_cmp_ge_i32 s92, 0')
        a('s_cbranch_scc1 L_xa_ok')
        a(f's_add_u32 s{SPIN}, s{SPIN}, 1')
        a(f's_cmp_lt_u32 s{SPIN}, 64')
        a('s_cbranch_scc1 L_xa')
        a.label('L_xa_ok')
        stamp(6)
        a(f's_lshl_b32 s{T2}, s{SB}, 16')
        a(f's_lshl_b32 s{T3}, s{WV}, 14')
        a(f's_add_u32 s{T2}, s{T2}, s{T3}')
        a(f's_add_u32 s{T2}, s{T2}, {WS_WOP}')
        for j in range(xa):
            a(f'buffer_load_dwordx4 v[{WR+4*j}:{WR+4*j+3}], v1, s[{SWS}:{SWS+3}], s{T2} offen offset:{(j%4)*1024} {xapol}')
            if j % 4 == 3: a(f's_add_u32 s{T2}, s{T2}, 4096')
        a('s_waitcnt vmcnt(0)')
        stamp(7)
        finish(SWS, 8)
    a(f's_cmp_lt_u32 s{F1T}, {NF1}')
    a('s_cbranch_scc1 L_gate')
    a(f's_mov_b32 s{T0}, s{F2T}')
    a(f's_cmp_lt_u32 s{T0}, 32')
    a('s_cbranch_scc1 L_gate')
    a(f's_cmp_eq_u32 s{WV}, 0')
    a('s_cbranch_scc1 L_gate')
    a('s_branch L_fin')
    a.label('L_gate')
    def twait(name, off):
        a(f's_mov_b32 s{SPIN}, 0')
        if dry: a(f's_andn2_b32 s{SPIN}, 128, s{DRY}')
        a.label(name, fence=False)
        a('s_memrealtime s[92:93]')
        a('s_waitcnt lgkmcnt(0)')
        a(f's_sub_u32 s92, s92, s{T6}')
        a(f's_cmp_ge_i32 s92, {off}')
        a(f's_cbranch_scc1 {name}_ok')
        a(f's_add_u32 s{SPIN}, s{SPIN}, 1')
        a(f's_cmp_lt_u32 s{SPIN}, 128')
        a(f's_cbranch_scc1 {name}')
        a.label(name + '_ok', fence=False)
    if tb2 is not None:
        a(f'v_mov_b32 v{VC}, 0')
        a(f'ds_read_b32 v{VD}, v{VC} offset:{L_CNT+16}')
        a('s_waitcnt lgkmcnt(0)')
        a(f'v_readfirstlane_b32 s{T6}, v{VD}')
        a(f's_add_u32 s{T6}, s{T6}, {tsched(512) + bo1}')
    a(f's_cmp_lg_u32 s{WV}, 0')
    a('s_cbranch_scc1 L_r1done')
    a(f's_lshl_b32 s{RW}, s{SB}, 5')
    a(f's_or_b32 s{RW}, s{RW}, s{SH}')
    a(f's_lshr_b32 s{T2}, s{RW}, 1')
    if wx: a(f's_xor_b32 s{T2}, s{T2}, {wx}')
    a(f's_lshl_b32 s{T2}, s{T2}, 12')
    a(f's_and_b32 s{T3}, s{RW}, 1')
    a(f's_lshl_b32 s{T3}, s{T3}, 6')
    a(f's_add_u32 s{T2}, s{T2}, s{T3}')
    a(f's_add_u32 s{T2}, s{T2}, {WS_WOP}')
    loads = [f'buffer_load_dwordx4 v[{8+4*j}:{8+4*j+3}], v{A64}, s[{SWS}:{SWS+3}], s{T2} offen offset:{j*2048} sc1' for j in range(2)]
    def chk8():
        a(f'v_xor_b32 v{VD}, v8, v{NC}')
        for r in range(9, 16): a(f'v_bitop3_b32 v{VD}, v{r}, v{NC + (r & 3)}, v{VD} bitop3:0xbe')
        a(f'v_and_b32 v{VD}, 15, v{VD}')
    if tb2 is not None:
        twait('L_tw1', 0)
        if tpr: a(f's_mov_b32 s14, s{T6}')
    elif bo1 is not None:
        a(f'v_mov_b32 v{VC}, 0')
        a(f'ds_read_b32 v{VD}, v{VC} offset:{L_CNT+16}')
        if slp: a(f'ds_read_b32 v{U0}, v{VC} offset:{L_CNT+24}')
        a('s_waitcnt lgkmcnt(0)')
        a(f'v_readfirstlane_b32 s{T3}, v{VD}')
        if slp:
            a(f'v_readfirstlane_b32 s{T1}, v{U0}')
            a(f's_sub_u32 s{T1}, s{T3}, s{T1}')
            a(f's_min_i32 s{T1}, s{T1}, 80')
            a(f's_max_i32 s{T1}, s{T1}, -80')
            a(f's_mul_i32 s{T1}, s{T1}, {slp}')
            a(f's_ashr_i32 s{T1}, s{T1}, 4')
            a(f's_add_u32 s{T3}, s{T3}, s{T1}')
        a(f's_add_u32 s{T3}, s{T3}, {tsched(512) + bo1}')
        a(f's_mov_b32 s{SPIN}, 0')
        if dry: a(f's_andn2_b32 s{SPIN}, 64, s{DRY}')
        a.label('L_bo1', fence=not nf)
        a('s_memrealtime s[92:93]')
        a('s_waitcnt lgkmcnt(0)')
        a(f's_sub_u32 s92, s92, s{T3}')
        a('s_cmp_ge_i32 s92, 0')
        a('s_cbranch_scc1 L_bo1_ok')
        a(f's_add_u32 s{SPIN}, s{SPIN}, 1')
        a(f's_cmp_lt_u32 s{SPIN}, 64')
        a('s_cbranch_scc1 L_bo1')
        a.label('L_bo1_ok', fence=not nf)
        if tpr: a(f's_mov_b32 s14, s{T3}')
    poll('L_poll_wop', loads, None, chk=chk8, fence=not nf)
    if tst: stamp(6); a(f's_mov_b32 s5, s{SPIN}')
    for r in range(8, 16): a(f'v_and_b32 v{r}, -16, v{r}')
    a('v_pk_add_f32 v[8:9], v[8:9], v[12:13]')
    a('v_pk_add_f32 v[10:11], v[10:11], v[14:15]')
    a('v_permlane32_swap_b32 v8, v10')
    a('v_permlane32_swap_b32 v9, v11')
    a('v_pk_add_f32 v[8:9], v[8:9], v[10:11]')
    a('v_mov_b32 v10, v8'); a('v_mov_b32 v11, v9')
    a('v_permlane16_swap_b32 v8, v10')
    a('v_permlane16_swap_b32 v9, v11')
    a('v_pk_add_f32 v[8:9], v[8:9], v[10:11]')
    for ctl_ in ('row_ror:4', 'row_ror:8'):
        for k in range(2): a(f'v_add_f32_dpp v{8+k}, v{8+k}, v{8+k} {ctl_} row_mask:0xf bank_mask:0xf')
    rnd2(8, 9, VD)
    modulate2(8, 9, GAP, XR1, U2, U3, VD, RD)
    a(f'v_mov_b32 v{RD+1}, s{TAG}')
    a(f's_lshl_b32 s{T2}, s{RW}, {xs}')
    a(f's_add_u32 s{T2}, s{T2}, {X1B}')
    if rep & 1:
        a(f's_add_u32 s{T3}, s{T2}, {4*XCS}')
        a(f'buffer_store_dwordx2 v[{RD}:{RD+1}], v{AQ}, s[{SWS}:{SWS+3}], s{T2} offen sc1')
        a(f'buffer_store_dwordx2 v[{RD}:{RD+1}], v{AQ}, s[{SWS}:{SWS+3}], s{T3} offen sc1')
    else:
        if xfl: ex_mask(dry, '0xff', '0xff')
        else: ex_mask(dry, '0xf', '0xf')
        a(f'buffer_store_dwordx2 v[{RD}:{RD+1}], v{AQ}, s[{SWS}:{SWS+3}], s{T2} offen sc1')
        ex_full(dry)
    stamp(3)
    a.label('L_r1done', fence=not nf)
    if g1 and tb2 is None: tbar(dry)
    a(f's_cmp_lt_u32 s{F1T}, {NF1}')
    a('s_cbranch_scc0 L_notf1')
    if dfw: f1_tr()
    a(f's_lshl_b32 s{T2}, s{WV}, {xs+6}')
    a(f's_add_u32 s{T2}, s{T2}, {X1B}')
    XO = [T2, T3, T0, T1]
    for j in range(1, 4): a(f's_add_u32 s{XO[j]}, s{T2}, {(16*j) << xs}')
    a('s_mov_b32 s32, 0x11111111'); a('s_mov_b32 s33, 0x11111111')
    loads = [f'buffer_load_dwordx4 v[{8+4*j}:{8+4*j+3}], v{AX1}, s[{SWS}:{SWS+3}], s{XO[j]} offen sc1' for j in range(4)]
    if tb2 is not None: twait('L_tw2', tb2)
    elif bo2: a(f's_sleep {bo2}')
    poll('L_poll_x1', loads[:exx], [9, 11, 13, 15, 17, 19, 21, 23][:2*exx], fence=not nf)
    if tst: stamp(7); a(f's_mov_b32 s15, s{SPIN}')
    XV = WR; DV = WR + 16; PS = WR + 32; X0V = WR + 44; TT = WR + 45; HO = WR + 48; AF = WR + 64
    def pr(r): return f'v[{r}:{r+1}]'
    BC = 'op_sel_hi:[1,0]'; NG = 'neg_lo:[0,1] neg_hi:[0,1]'
    for rr in range(2):
        for q in range(4):
            src = 8 + 4*(2*rr + q//2) + 2*(q % 2)
            unpack(XV + 8*rr + 2*q, XV + 8*rr + 2*q + 1, src)
            if q == 0: a(f'v_readfirstlane_b32 s{22+2*rr}, v{XV+8*rr}')
    for rr in range(2):
        for q in range(4):
            a(f'v_pk_add_f32 {pr(DV+8*rr+2*q)}, {pr(XV+8*rr+2*q)}, s[{22+2*rr}:{23+2*rr}] {BC} {NG}')
    a(f'v_mov_b32 v{X0V}, s24'); a(f'v_mov_b32 v{TT}, s22')
    a(f'v_cndmask_b32 v{X0V}, v{X0V}, v{TT}, s[{LO32}:{LO32+1}]')
    S_ = [PS, PS+2]; Q_ = [PS+4, PS+6]; Z_ = [PS+8, PS+10]
    for rr in range(2): a(f'v_pk_add_f32 {pr(S_[rr])}, {pr(DV+8*rr)}, {pr(DV+8*rr+2)}')
    for rr in range(2): a(f'v_pk_add_f32 {pr(Z_[rr])}, {pr(DV+8*rr+4)}, {pr(DV+8*rr+6)}')
    for rr in range(2): a(f'v_pk_mul_f32 {pr(Q_[rr])}, {pr(DV+8*rr)}, {pr(DV+8*rr)}')
    for rr in range(2): a(f'v_pk_add_f32 {pr(S_[rr])}, {pr(S_[rr])}, {pr(Z_[rr])}')
    for q in range(1, 4):
        for rr in range(2): a(f'v_pk_fma_f32 {pr(Q_[rr])}, {pr(DV+8*rr+2*q)}, {pr(DV+8*rr+2*q)}, {pr(Q_[rr])}')
    for r in S_ + Q_: a(f'v_add_f32 v{r}, v{r}, v{r+1}')
    a(f'v_permlane32_swap_b32 v{S_[0]}, v{S_[1]}')
    a(f'v_permlane32_swap_b32 v{Q_[0]}, v{Q_[1]}')
    a(f'v_add_f32 v{S_[0]}, v{S_[0]}, v{S_[1]}')
    a(f'v_add_f32 v{Q_[0]}, v{Q_[0]}, v{Q_[1]}')
    a(f'v_permlane16_swap_b32 v{S_[0]}, v{Q_[0]}')
    T_ = S_[0]; C_ = Q_[0]
    a(f'v_add_f32 v{T_}, v{S_[0]}, v{Q_[0]}')
    for ctl_ in ('quad_perm:[1,0,3,2]', 'quad_perm:[2,3,0,1]', 'row_half_mirror', 'row_mirror'):
        a(f'v_add_f32_dpp v{T_}, v{T_}, v{T_} {ctl_} row_mask:0xf bank_mask:0xf')
    a(f'v_mul_f32 v{T_}, {f32(1/512)}, v{T_}')
    a(f'v_mov_b32 v{C_}, v{T_}')
    a(f'v_permlane16_swap_b32 v{T_}, v{C_}')
    a(f'v_add_f32 v{X0V}, v{X0V}, v{T_}')
    a(f'v_fma_f32 v{C_}, -v{T_}, v{T_}, v{C_}')
    a(f'v_max_f32 v{C_}, 0, v{C_}')
    rnd2(X0V, C_, TT)
    a(f'v_add_f32 v{C_}, {f32(1e-5)}, v{C_}')
    a(f'v_readlane_b32 s22, v{X0V}, 0'); a(f'v_readlane_b32 s24, v{X0V}, 32')
    rnd1(C_, TT)
    a(f'v_sqrt_f32 v{C_}, v{C_}')
    P8 = [(rr, q) for rr in range(2) for q in range(4)]
    def X(rr, q): return XV + 8*rr + 2*q
    def rnd_all():
        for n_, (rr, q) in enumerate(P8): a(f'v_cvt_pk_bf16_f32 v{DV+n_}, v{X(rr,q)}, v{X(rr,q)+1}')
        for n_, (rr, q) in enumerate(P8):
            a(f'v_lshlrev_b32 v{X(rr,q)}, 16, v{DV+n_}')
            a(f'v_and_b32 v{X(rr,q)+1}, 0xffff0000, v{DV+n_}')
    for rr, q in P8[:2]: a(f'v_pk_add_f32 {pr(X(rr,q))}, {pr(X(rr,q))}, s[{22+2*rr}:{23+2*rr}] {BC} {NG}')
    rnd1(C_, TT)
    a(f'v_rcp_f32 v{C_}, v{C_}')
    for rr, q in P8[2:]: a(f'v_pk_add_f32 {pr(X(rr,q))}, {pr(X(rr,q))}, s[{22+2*rr}:{23+2*rr}] {BC} {NG}')
    a(f'v_readlane_b32 s26, v{C_}, 0'); a(f'v_readlane_b32 s28, v{C_}, 32')
    rnd_all()
    for rr, q in P8: a(f'v_pk_mul_f32 {pr(X(rr,q))}, {pr(X(rr,q))}, s[{26+2*rr}:{27+2*rr}] {BC}')
    rnd_all()
    for rr, q in P8: a(f'v_pk_mul_f32 {pr(X(rr,q))}, {pr(X(rr,q))}, {pr(C1F+8*rr+2*q)}')
    rnd_all()
    for rr, q in P8: a(f'v_pk_add_f32 {pr(X(rr,q))}, {pr(X(rr,q))}, {pr(SBF+8*rr+2*q)}')
    for rr in range(2):
        for hf in range(2):
            r = HO + 4*rr + 2*hf
            for k in range(2): a(f'v_cvt_pk_bf16_f32 v{r+k}, v{X(rr,2*hf+k)}, v{X(rr,2*hf+k)+1}')
            a(f'ds_write_b64 v{AH}, v[{r}:{r+1}] offset:{L_H2 + rr*H2S + hf*512}')
    a('s_waitcnt lgkmcnt(0)')
    if tst: stamp(9)
    tbar(dry)
    if tst: stamp(0)
    for s in range(8): a(f'ds_read_b128 v[{AF+4*s}:{AF+4*s+3}], v{AA} offset:{L_H2 + s*64}')
    a(f'v_mov_b32 v{RD+5}, s{TAG}'); a(f'v_mov_b32 v{RD+7}, s{TAG}')
    a('s_mov_b64 vcc, s[32:33]')
    for s in range(8):
        a(f's_waitcnt lgkmcnt({7-s})')
        mf(RD, AF+4*s, BF+4*s, s == 0)
    a(f'v_permlane32_swap_b32 v{RD}, v{RD+2}')
    a(f'v_permlane32_swap_b32 v{RD+1}, v{RD+3}')
    for k in range(2): a(f'v_add_f32_dpp v{RD+k}, v{RD+2+k}, v{RD+k} row_ror:8 row_mask:0xf bank_mask:0xf')
    rnd2(RD, RD+1, VD)
    for k in range(2): a(f'v_mov_b32_dpp v{U0+k}, v{RD+k} row_shl:4 row_mask:0xf bank_mask:0xf')
    silu(RD, VB, WR, WR+1); silu(RD+1, VC, WR+2, WR+3)
    rnd2(RD, RD+1, VD)
    for k in range(2): a(f'v_mul_f32 v{RD+k}, v{RD+k}, v{U0+k}')
    for k in range(2): a(f'v_mov_b32_dpp v{U0+k}, v{RD+k} quad_perm:[1,0,3,2] row_mask:0xf bank_mask:0xf')
    for k in range(2): a(f'v_cvt_pk_bf16_f32 v{RD+k}, v{RD+k}, v{U0+k}')
    a(f'v_cndmask_b32_dpp v{RD+4}, v{RD+1}, v{RD}, vcc quad_perm:[0,0,0,0] row_mask:0xf bank_mask:0xf')
    a('s_not_b64 vcc, vcc')
    a(f'v_cndmask_b32_dpp v{RD+6}, v{RD}, v{RD+1}, vcc quad_perm:[2,2,2,2] row_mask:0xf bank_mask:0xf')
    if rep & 2:
        for k in (0, 2):
            a(f'v_mov_b32_dpp v{RD+k}, v{RD+4+k} row_newbcast:0 row_mask:0xf bank_mask:0x5')
        for k in (0, 2):
            a(f'v_mov_b32_dpp v{RD+k}, v{RD+4+k} row_newbcast:2 row_mask:0xf bank_mask:0xa')
        a(f'v_mov_b32 v{RD+1}, s{TAG}'); a(f'v_mov_b32 v{RD+3}, s{TAG}')
        a(f'buffer_store_dwordx4 v[{RD}:{RD+3}], v{AS}, s[{SWS}:{SWS+3}], s{T5} offen sc1')
    else:
        ex_mask(dry, '0x00050005', '0x00050005')
        a(f'buffer_store_dwordx4 v[{RD+4}:{RD+7}], v{AS}, s[{SWS}:{SWS+3}], s{T5} offen sc1')
    stamp(4)
    a('s_branch L_fin')
    a.label('L_notf1')
    a(f's_mov_b32 s{T0}, s{F2T}')
    a(f's_cmp_lt_u32 s{T0}, 32')
    a('s_cbranch_scc0 L_fin')
    if dfw:
        for s in range(12): tr_read(BF + 4*s, AT2, s)
    a(f's_mov_b32 s{T2}, {ACTB}')
    a(f's_mov_b32 s30, {ACTB + (8 << acs)}')
    loads = []; tags = []
    for u in range(6):
        for k in range(2):
            r = WR + 8*u + 4*k
            loads.append(f'buffer_load_dwordx4 v[{r}:{r+3}], v{AD+u}, s[{SWS}:{SWS+3}], s{30 if k else T2} offen sc1')
            tags += [r+1, r+3]
    a(f's_lshl_b32 s{T1}, s{T0}, {xs}')
    a(f's_add_u32 s{T1}, s{T1}, {X1B}')
    X1R = WR + 48
    if tb2 is not None: twait('L_tw2b', tb2 + 20)
    elif bo2: a(f's_sleep {bo2}')
    poll('L_poll_x1b', [f'buffer_load_dwordx2 v[{X1R}:{X1R+1}], v{AX}, s[{SWS}:{SWS+3}], s{T1} offen sc1'], [X1R+1])
    def gen_update(lab):
        a(f's_or_b32 s{T3}, s{T0}, s{WV}')
        a(f's_cmp_lg_u32 s{T3}, 0')
        a(f's_cbranch_scc1 {lab}')
        a(f's_sub_u32 s{T3}, s{TAG}, {TAGC - 0x11111111}')
        a(f'v_mov_b32 v{VB}, s{T3}')
        a(f'v_mov_b32 v{VA}, 0')
        ex_mask(dry, 1, 0)
        a(f'buffer_store_dword v{VB}, v{VA}, s[{SWS}:{SWS+3}], 0 offen offset:{WS_GEN} sc1')
        ex_full(dry)
    if gene:
        gen_update('L_gen_done'); a.label('L_gen_done')
    if tlbo >= 2:
        a(f's_lshl_b32 s{T3}, s{T0}, 5')
        a(f'buffer_load_dword v{X1R+2}, v{AO}, s[{SOUT}:{SOUT+3}], s{T3} offen {"sc1" if tlbo == 3 else ""}')
    if g2: poll('L_poll_act0', loads[:1], tags[:2])
    if tb3 is not None: twait('L_tw3', tb3)
    elif bo3: a(f's_sleep {bo3}')
    poll('L_poll_act', loads[:exa], tags[:2*exa], fence=not nf)
    if tst: stamp(7); a(f's_mov_b32 s15, s{SPIN}')
    AF = WR + 64
    a('s_waitcnt lgkmcnt(0)')
    for u in range(6):
        for k in range(4):
            a(f'v_and_b32 v{AF+4*u+k}, v{VM+u}, v{WR+8*u+2*k}')
        mf(D1, AF+4*u, BF+8*u, u == 0); mf(D2, AF+4*u, BF+8*u+4, u == 0)
    sel_halves(cv, RD, D1, D2)
    a(f'ds_write_b128 v{AW}, v[{RD}:{RD+3}] offset:{L_RED}')
    a('s_waitcnt lgkmcnt(0)')
    tbar(dry)
    if tst: stamp(10)
    a(f's_cmp_lg_u32 s{WV}, 0')
    a('s_cbranch_scc1 L_fin')
    red_sum(cv, U0, AR, L_RED, WR)
    rnd2(U0, U1, VD)
    modulate2(U0, U1, GBP, X1R, U2, U3, VD, RD)
    a(f's_lshl_b32 s{T2}, s{T0}, 5')
    a(f'buffer_store_dword v{RD}, v{AO}, s[{SOUT}:{SOUT+3}], s{T2} offen {opol}')
    stamp(5)
    if tst:
        a('s_waitcnt vmcnt(0)'); stamp(9)
    if not gene: gen_update('L_fin')
    if hold:
        a('s_waitcnt vmcnt(0)')
        a.label('L_hold')
        a('s_memrealtime s[92:93]')
        a('s_waitcnt lgkmcnt(0)')
        a('s_sub_u32 s92, s92, s94')
        a(f's_cmp_lt_u32 s92, {hold}')
        a('s_cbranch_scc1 L_hold')
    a.label('L_fin', fence=stamps)
    if dry: a('s_cbranch_execz L_real')
    if stamps: finish(SWS, 8)
    a.label('L_end', fence=False)
    a('s_endpgm')
    a.raw('.section .rodata,"a"')
    a.raw('.p2align 6')
    a.raw(f'.amdhsa_kernel {NAME}')
    a.raw('  .amdhsa_next_free_vgpr 256')
    a.raw('  .amdhsa_next_free_sgpr 96')
    a.raw('  .amdhsa_accum_offset 256')
    a.raw('  .amdhsa_group_segment_fixed_size 0')
    a.raw('  .amdhsa_kernarg_size 112')
    a.raw('  .amdhsa_user_sgpr_count 2')
    a.raw('  .amdhsa_user_sgpr_kernarg_segment_ptr 1')
    a.raw('  .amdhsa_system_sgpr_workgroup_id_x 1')
    a.raw('  .amdhsa_float_denorm_mode_32 3')
    a.raw('.end_amdhsa_kernel')
    return a.text()

if __name__ == '__main__':
    import json
    out = sys.argv[1] if len(sys.argv) > 1 else 'adaLN_cond__mha_block_cached__swiglu_ffn__decode.s'
    kw = json.loads(sys.argv[2]) if len(sys.argv) > 2 else {}
    open(out, 'w').write(gen(**kw))
    print('wrote', out)
```

```python
import sys, struct
from asmlib import Asm

NAME = 'adaLN_cond__mha_block_cached__swiglu_ffn__decode_kernel'

def f32(x):
    return '0x%08x' % struct.unpack('<I', struct.pack('<f', x))[0]

L2E = 1.4426950408889634
WS_GEN = 0
WS_MOD = 0x1000
WS_X1 = 0x20000
WS_ACT = 0x28000
WS_HEAD = 0x38000
WS_MST = 0x48000
WS_WOP = 0x100000
WS_P = 0x200000
WS_SLOT = 0x800000
WS_DBG = 0x2000000
WS_SIZE = 0x40000000
L_CNT = 0x0
L_MX = 0x40
L_QP = 0x100
L_OP = 0x900
L_RED = 0x1100
L_H2 = 0x3100; H2S = 1040
L_SC = 0x5200
L_OS = 0x9200
L_STG = 0x9A00; STGW = 12288
L_DUM = L_STG + 4 * STGW
LDS_SIZE = L_DUM + 4096
NF1 = 86
LAYOUT = 7
F2_BASE = 96
SPIN_MAX = 100000
NSH = 32
TAGC = 0x5bd1e995

def gen(dbg=False, W=6, VW=4, W0=6, nA=4, kpol='nt', wpol='nt', stamps=False, gate=False, notail=False,
        gsleep=4, b0wq=0, sprio=2, mprio=3, boost=2, sboost=3, n0=0, WQ=32, SW_=2,
        wqpol=None, wopol=None, mpol=None, fpol=None, nopre=False, pre=None, dst=False, perm=False, hold=0,
        lv=None, th=(70, -70), tK=900, sK=14.9, tV=4230, sV=13.46, lv0=None, g1=False, g2=False, rel=False, dl=0, MB=88, DD=2, MSTR=8192, CSTR=256, tst=False, tlbv=False, tlbo=False, mlp='', agg='mean', noml=False, nomst=False, msp='sc1', thv=None, pd=0, lme=False, lpl=False, gene=False, dfw=False, dpol=None, bo1=None, bo2=0, bo3=0, dry=False, dry2=False, nf=False, sst=False, pf=0, pfW=6, pfpol='', hmap=0, wqn=32, sst2=False, opol='', wsl=1, xa=0, xapol='sc1', eb=None, slp=0, tpr=False, tb2=None, tb3=None, exa=12, exx=4, xs=7, acs=7, xfl=False, cmap=False, rep=0, wx=0, numa=0, lms=0, xw=0, xwW=2, xwx=7, lb=0, ib=0, n1=99, W1=6, nm=0, rot=0, WQ0=None, qd=0, qch=False, psl=1, ep=None, epm=0, wol=0, wqs=32, est=False, c2=0, c2k=0, p2=None, sK2=None, cK=5, tht=None, dc=None, f2p=False, mo=0, lm2=0, lm2b=0x80000):
    X1B = WS_X1 if xs == 7 else 0x180000
    ACTB = WS_ACT if acs == 7 else 0x60000
    assert xs <= 11 and acs <= 10
    XCS = 32768; ACS = 0xC000
    if rep & 1:
        assert xs == 7 and xfl; X1B = 0x180000
    if rep & 2:
        assert acs == 7; ACTB = 0x60000
    assert g1 or not dfw
    thv = th if thv is None else thv
    if dst: stamps = True
    wqpol = wpol if wqpol is None else wqpol; wopol = wpol if wopol is None else wopol
    mpol = wpol if mpol is None else mpol; fpol = wpol if fpol is None else fpol
    a = Asm()
    hdr = open('adaLN_cond__mha_block_cached__swiglu_ffn__decode.s.ref').read().split('\n')
    for l in hdr:
        if l.startswith('; @launch'): break
        a.raw(l)
    L_KB = LDS_SIZE
    a.raw(f'; @launch grid=(256,1,1) block=(512,1,1) lds={LDS_SIZE + (65536 if lb else 0)}')
    a.raw('.amdgcn_target "amdgcn-amd-amdhsa--gfx950"')
    a.raw('.text')
    a.raw(f'.globl {NAME}')
    a.raw('.p2align 8')
    a.raw(f'.type {NAME},@function')
    a.raw(f'{NAME}:')

    def srd(d, p, size):
        a(f's_mov_b32 s{d}, s{p}')
        a(f's_mov_b32 s{d+1}, s{p+1}')
        a(f's_mov_b32 s{d+2}, {size}')
        a(f's_mov_b32 s{d+3}, 0x00020000')

    def rnd1(x, t):
        a(f'v_cvt_pk_bf16_f32 v{t}, v{x}, v{x}')
        a(f'v_lshlrev_b32 v{x}, 16, v{t}')
    def rnd2(x, y, t):
        a(f'v_cvt_pk_bf16_f32 v{t}, v{x}, v{y}')
        a(f'v_lshlrev_b32 v{x}, 16, v{t}')
        a(f'v_and_b32 v{y}, 0xffff0000, v{t}')
    def rq(x, src=None):
        a(f'v_cvt_pk_bf16_f32 v{x}, 0, v{x if src is None else src}')
    def unpack(lo, hi, src):
        a(f'v_lshlrev_b32 v{lo}, 16, v{src}')
        a(f'v_and_b32 v{hi}, 0xffff0000, v{src}')
    def wave_reduce(op, regs, tmps):
        for ctl in ('quad_perm:[1,0,3,2]', 'quad_perm:[2,3,0,1]', 'row_half_mirror', 'row_mirror'):
            for r in regs:
                a(f'{op}_dpp v{r}, v{r}, v{r} {ctl} row_mask:0xf bank_mask:0xf')
        for sw in ('v_permlane16_swap_b32', 'v_permlane32_swap_b32'):
            for r, t in zip(regs, tmps): a(f'v_mov_b32 v{t}, v{r}')
            for r, t in zip(regs, tmps): a(f'{sw} v{r}, v{t}')
            for r, t in zip(regs, tmps): a(f'{op} v{r}, v{r}, v{t}')
    def greduce8(acc):
        for e in range(4): a(f'v_permlane32_swap_b32 v{acc+e}, v{acc+e+4}')
        for e in range(4): a(f'v_add_f32 v{acc+e}, v{acc+e}, v{acc+e+4}')
        for e in range(2): a(f'v_permlane16_swap_b32 v{acc+e}, v{acc+e+2}')
        for e in range(2): a(f'v_add_f32 v{acc+e}, v{acc+e}, v{acc+e+2}')
    def silu(x, t, t2, t3):
        a(f'v_mul_f32 v{t}, {f32(-L2E)}, v{x}')
        a(f'v_exp_f32 v{t}, v{t}')
        a(f'v_add_f32 v{t}, 1.0, v{t}')
        a(f'v_min_f32 v{t}, 0x7f7fffff, v{t}')
        a(f'v_rcp_f32 v{t2}, v{t}')
        a(f'v_mul_f32 v{t3}, v{x}, v{t2}')
        a(f'v_fma_f32 v{x}, -v{t3}, v{t}, v{x}')
        a(f'v_fma_f32 v{x}, v{x}, v{t2}, v{t3}')
    STP = 92
    nost = set()
    def qstamp(idx):
        if stamps and est: a(f's_memrealtime s[{4+idx}:{5+idx}]')
    def stamp(idx):
        if not stamps or idx in nost: return
        a(f's_memrealtime s[{STP}:{STP+1}]')
        a('s_waitcnt lgkmcnt(0)')
        a(f's_mov_b32 s{4+idx}, s{STP}')
    def finish(ws_srd, vt, role='v'):
        if dst:
            a('s_mov_b64 exec, -1')
            a(f'v_mov_b32 v{vt}, 0')
            if role == 's':
                a(f's_not_b32 s{STP}, s4'); a(f'v_writelane_b32 v{vt}, s{STP}, 0')
                a(f'v_writelane_b32 v{vt}, s4, 1')
                a(f'v_writelane_b32 v{vt}, s5, 2')
                a(f'v_writelane_b32 v{vt}, s11, 3')
                a(f'v_writelane_b32 v{vt}, s6, 4')
                a(f's_not_b32 s{STP}, s6'); a(f'v_writelane_b32 v{vt}, s{STP}, 5')
                a(f's_memtime s[{STP}:{STP+1}]'); a('s_waitcnt lgkmcnt(0)')
                a(f's_sub_u32 s{STP}, s{STP}, s14'); a(f'v_writelane_b32 v{vt}, s{STP}, 10')
                a(f's_sub_u32 s{STP}, s6, s4'); a(f'v_writelane_b32 v{vt}, s{STP}, 11')
            else:
                a(f'v_writelane_b32 v{vt}, s6, 6')
                a(f'v_writelane_b32 v{vt}, s7, 7')
                a(f'v_writelane_b32 v{vt}, s8, 8')
                a(f'v_writelane_b32 v{vt}, s9, 9')
            srd(STP-4, 40, 256)
            a(f'v_lshlrev_b32 v{vt+1}, 2, v0')
            a('s_mov_b64 exec, 0xffff')
            a(f'buffer_atomic_umax v{vt}, v{vt+1}, s[{STP-4}:{STP-1}], 0 offen')
        elif stamps:
            a('s_mov_b64 exec, -1')
            a(f'v_mov_b32 v{vt}, 0')
            for k in range(12):
                a(f'v_writelane_b32 v{vt}, s{4+k}, {k}')
            a(f's_lshl_b32 s{STP}, s2, 3')
            a(f's_add_u32 s{STP}, s{STP}, s3')
            a(f's_lshl_b32 s{STP}, s{STP}, 6')
            a(f's_add_u32 s{STP}, s{STP}, {WS_DBG + 0x100000}')
            a(f'v_lshlrev_b32 v{vt+1}, 2, v0')
            a('s_mov_b64 exec, 0xffff')
            a(f'buffer_store_dword v{vt}, v{vt+1}, s[{ws_srd}:{ws_srd+3}], s{STP} offen')
        a('s_endpgm')

    DRY = 34
    def ex_full(d):
        a(f's_mov_b64 exec, s[{DRY}:{DRY+1}]' if d else 's_mov_b64 exec, -1')
    def ex_mask(d, lo, hi):
        if d:
            a(f's_and_b32 exec_lo, {lo}, s{DRY}'); a(f's_and_b32 exec_hi, {hi}, s{DRY}')
        else:
            a(f's_mov_b32 exec_lo, {lo}'); a(f's_mov_b32 exec_hi, {hi}')
    def tbar(d):
        if d:
            lab = a.uid('L_tb')
            a(f's_cbranch_execz {lab}')
            a('s_barrier')
            a.label(lab, fence=False)
        else:
            a('s_barrier')
    def mf(d, A, Bf, first):
        c = '0' if first else f'v[{d}:{d+3}]'
        a(f'v_mfma_f32_16x16x32_bf16 v[{d}:{d+3}], v[{A}:{A+3}], v[{Bf}:{Bf+3}], {c}')
    def tr_read(dst, v, ks):
        a(f'ds_read_b64_tr_b16 v[{dst}:{dst+1}], v{v} offset:{ks*1024}')
        a(f'ds_read_b64_tr_b16 v[{dst+2}:{dst+3}], v{v} offset:{ks*1024+128}')

    class Ctx:
        pass
    def tr_addr(c, v):
        a(f'v_lshrrev_b32 v{v}, 2, v{c.VI}')
        a(f'v_lshlrev_b32 v{v}, 5, v{v}')
        a(f'v_lshl_add_u32 v{v}, v{c.VG}, 8, v{v}')
        a(f'v_and_b32 v{c.VD}, 3, v{c.VI}')
        a(f'v_lshl_add_u32 v{v}, v{c.VD}, 3, v{v}')
        a(f'v_add_u32 v{v}, s{c.STGB}, v{v}')
    def sel_halves(c, dst, d1, d2):
        for r in range(4):
            a(f'v_cndmask_b32 v{dst+r}, v{d2+r}, v{d1+r}, s[{c.LO32}:{c.LO32+1}]')
    def red_addr(c, v):
        a(f'v_and_b32 v{v}, 7, v0')
        a(f'v_lshlrev_b32 v{v}, 5, v{v}')
        a(f'v_lshrrev_b32 v{c.VD}, 5, v0')
        a(f'v_lshl_add_u32 v{v}, v{c.VD}, 8, v{v}')
        a(f'v_bfe_u32 v{c.VD}, v0, 3, 2')
        a(f'v_lshl_add_u32 v{v}, v{c.VD}, 2, v{v}')
    def red_sum(c, dst, v, off, scratch):
        a(f'v_add_u32 v{c.VD}, {off}, v{v}')
        for w in range(4):
            for hf in range(2):
                r = scratch + 2*(2*w + hf)
                a(f'ds_read2_b32 v[{r}:{r+1}], v{c.VD} offset0:{hf*128} offset1:{hf*128+4}')
            if w < 3: a(f'v_add_u32 v{c.VD}, 1024, v{c.VD}')
        a('s_waitcnt lgkmcnt(0)')
        for st in (8, 4):
            for k in range(st): a(f'v_add_f32 v{scratch+k}, v{scratch+k}, v{scratch+k+st}')
        a(f'v_add_f32 v{dst}, v{scratch}, v{scratch+2}')
        a(f'v_add_f32 v{dst+1}, v{scratch+1}, v{scratch+3}')

    def mod_issue(c):
        a(f's_and_b32 s{c.T0}, s{c.WG}, 7')
        a(f's_lshl_b32 s{c.T0}, s{c.T0}, 2')
        a(f's_lshr_b32 s{c.T1}, s{c.WG}, 3')
        a(f's_and_b32 s{c.T1}, s{c.T1}, 3')
        a(f's_add_u32 s{c.T0}, s{c.T0}, s{c.T1}')
        a(f's_and_b32 s{c.T1}, s{c.WG}, 0xe0')
        a(f's_add_u32 s{c.T1}, s{c.T1}, s{c.T0}')
        a(f's_lshl_b32 s{c.T1}, s{c.T1}, 5')
        a(f's_mul_i32 s{c.T2}, s{c.WV}, {128*6144}')
        a(f's_add_u32 s{c.T1}, s{c.T1}, s{c.T2}')
        a(f'v_and_b32 v{c.VA}, 7, v0')
        a(f'v_lshlrev_b32 v{c.VA}, 10, v{c.VA}')
        a(f'v_bfe_u32 v{c.VB}, v0, 3, 1')
        a(f'v_lshl_add_u32 v{c.VA}, v{c.VB}, 7, v{c.VA}')
        a(f'v_lshl_add_u32 v{c.VA}, v{c.VG}, 4, v{c.VA}')
        a(f's_lshl_b32 s{c.T2}, s{c.WV}, 8')
        a(f'buffer_load_dwordx4 v[{c.CF}:{c.CF+3}], v{c.VA}, s[{c.SC}:{c.SC+3}], s{c.T2} offen')
        a(f'buffer_load_dwordx4 v[{c.CF+4}:{c.CF+7}], v{c.VA}, s[{c.SC}:{c.SC+3}], s{c.T2} offen offset:64')
        a(f'v_lshrrev_b32 v{c.VB}, 1, v0')
        a(f'v_mul_u32_u24 v{c.VB}, 6144, v{c.VB}')
        a(f'v_and_b32 v{c.VC}, 1, v0')
        a(f'v_lshl_add_u32 v{c.VB}, v{c.VC}, 4, v{c.VB}')
        for s in range(4):
            a(f's_add_u32 m0, s{c.STGB}, {s*1024}')
            if c.paced: a('s_waitcnt vmcnt(0)')
            a(f'buffer_load_dwordx4 v{c.VB}, s[{c.SM}:{c.SM+3}], s{c.T1} offen {mpol} lds')
            if s < 3: a(f's_add_u32 s{c.T1}, s{c.T1}, {32*6144}')
    def mod_compute(c, younger, cnt_off, done, st=None):
        a(f's_waitcnt vmcnt({younger + 4})')
        if st: stamp(st[0])
        if c.GENV is not None:
            a(f'v_readfirstlane_b32 s{c.TAG}, v{c.GENV}')
            a(f's_add_u32 s{c.TAG}, s{c.TAG}, {TAGC}')
        XF = c.XF
        for r in range(8):
            unpack(XF, XF+1, c.CF+r)
            silu(XF, XF+2, XF+4, XF+6); silu(XF+1, XF+3, XF+5, XF+7)
            a(f'v_cvt_pk_bf16_f32 v{c.CF+r}, v{XF}, v{XF+1}')
        tr_addr(c, c.VA)
        a(f's_waitcnt vmcnt({younger})')
        if st: stamp(st[1])
        BF = c.BF
        for s in range(4): tr_read(BF + 4*s, c.VA, s)
        a('s_waitcnt lgkmcnt(0)')
        mf(c.D1, c.CF, BF, True); mf(c.D2, c.CF, BF+8, True)
        mf(c.D1, c.CF+4, BF+4, False); mf(c.D2, c.CF+4, BF+12, False)
        sel_halves(c, c.RD, c.D1, c.D2)
        a(f's_lshl_b32 s{c.T2}, s{c.WV}, 10')
        a(f'v_add_u32 v{c.VB}, s{c.T2}, v1')
        a(f'ds_write_b128 v{c.VB}, v[{c.RD}:{c.RD+3}] offset:{L_RED}')
        a(f'v_mov_b32 v{c.VC}, 0')
        a(f'v_mov_b32 v{c.VB}, 1')
        a('s_mov_b64 exec, 1')
        a(f'ds_add_rtn_u32 v{c.VB}, v{c.VC}, v{c.VB} offset:{cnt_off}')
        a('s_mov_b64 exec, -1')
        a('s_waitcnt lgkmcnt(0)')
        a(f'v_readfirstlane_b32 s{c.T2}, v{c.VB}')
        a(f's_cmp_lg_u32 s{c.T2}, 3')
        a(f's_cbranch_scc1 {done}')
        red_addr(c, c.VA)
        red_sum(c, c.U0, c.VA, L_RED, BF)
        a(f'v_cvt_pk_bf16_f32 v{c.RD}, v{c.U0}, v{c.U0+1}')
        a(f'v_mov_b32 v{c.RD+1}, s{c.TAG}')
        a(f's_and_b32 s{c.T2}, s{c.WG}, 0xe0')
        a(f's_add_u32 s{c.T2}, s{c.T2}, s{c.T0}')
        a(f's_lshl_b32 s{c.T2}, s{c.T2}, 9')
        a(f's_add_u32 s{c.T2}, s{c.T2}, {WS_MOD}')
        a(f'v_lshlrev_b32 v{c.VA}, 3, v0')
        a(f'buffer_store_dwordx2 v[{c.RD}:{c.RD+1}], v{c.VA}, s[{c.SWS}:{c.SWS+3}], s{c.T2} offen sc1')

    def head_of(d, t):
        if hmap == 0:
            a(f's_and_b32 s{d}, s2, 31')
        elif hmap == 1:
            a(f's_and_b32 s{d}, s2, 7'); a(f's_lshl_b32 s{d}, s{d}, 2')
            a(f's_bfe_u32 s{t}, s2, 0x20003'); a(f's_or_b32 s{d}, s{d}, s{t}')
        elif hmap == 3:
            a(f's_lshr_b32 s{d}, s2, 3')
        elif hmap == 2:
            a(f's_and_b32 s{d}, s2, 7'); a(f's_lshl_b32 s{d}, s{d}, 1')
            a(f's_bfe_u32 s{t}, s2, 0x10003'); a(f's_or_b32 s{d}, s{d}, s{t}')
            a(f's_and_b32 s{t}, s2, 16'); a(f's_or_b32 s{d}, s{d}, s{t}')
    def roles(F1T, F2T, T0, T1):
        a(f's_and_b32 s{T0}, s2, 7')
        a(f's_lshr_b32 s{T1}, s2, 3')
        a(f's_mul_i32 s{F1T}, s{T0}, 11')
        a(f's_add_u32 s{F1T}, s{F1T}, s{T1}')
        a(f's_cmp_lt_u32 s2, 88')
        a(f's_cselect_b32 s{F1T}, s{F1T}, 255')
        a(f's_lshl_b32 s{F2T}, s{T0}, 2')
        a(f's_add_u32 s{F2T}, s{F2T}, s{T1}')
        a(f's_sub_u32 s{F2T}, s{F2T}, {F2_BASE//8}')
        a(f's_sub_u32 s{T1}, s2, {F2_BASE}')
        a(f's_cmp_lt_u32 s{T1}, 32')
        a(f's_cselect_b32 s{F2T}, s{F2T}, 255')
    def f1_dma(VB, VC, SST, WV, F1T, T1, T2, STGB, paced, pol):
        a(f'v_lshrrev_b32 v{VB}, 1, v0')
        a(f'v_mul_u32_u24 v{VB}, 2752, v{VB}')
        a(f'v_and_b32 v{VC}, 1, v0')
        a(f'v_lshl_add_u32 v{VB}, v{VC}, 4, v{VB}')
        for which, p in enumerate((28, 30)):
            srd(SST, p, 512*1376*2)
            a(f's_mul_i32 s{T1}, s{WV}, {128*2752}')
            a(f's_lshl_b32 s{T2}, s{F1T}, 5')
            a(f's_add_u32 s{T1}, s{T1}, s{T2}')
            for s in range(4):
                a(f's_add_u32 m0, s{STGB}, {(which*4+s)*1024}')
                if paced: a('s_waitcnt vmcnt(0)')
                a(f'buffer_load_dwordx4 v{VB}, s[{SST}:{SST+3}], s{T1} offen {pol} lds')
                if s < 3: a(f's_add_u32 s{T1}, s{T1}, {32*2752}')
    def f2_dma(VB, VC, SST, WV, F2T, T1, T2, T3, STGB, paced, pol):
        srd(SST, 32, 1376*512*2)
        a(f'v_lshrrev_b32 v{VB}, 1, v0')
        a(f'v_lshlrev_b32 v{VB}, 10, v{VB}')
        a(f'v_and_b32 v{VC}, 1, v0')
        a(f'v_lshl_add_u32 v{VB}, v{VC}, 4, v{VB}')
        a(f's_mul_i32 s{T3}, s{WV}, 12')
        a(f's_lshl_b32 s{T2}, s{F2T}, 5')
        for s in range(12):
            a(f's_add_u32 s{T1}, s{T3}, {s}')
            a(f's_min_u32 s{T1}, s{T1}, 42')
            a(f's_lshl_b32 s{T1}, s{T1}, 15')
            a(f's_add_u32 s{T1}, s{T1}, s{T2}')
            a(f's_add_u32 m0, s{STGB}, {s*1024}')
            if paced: a('s_waitcnt vmcnt(0)')
            a(f'buffer_load_dwordx4 v{VB}, s[{SST}:{SST+3}], s{T1} offen {pol} lds')

    if est and stamps: a('s_memrealtime s[90:91]')
    a('s_cmp_ge_u32 s2, 256')
    a('s_cbranch_scc1 L_end')
    if perm:
        a('s_lshr_b32 s3, s2, 5'); a('s_xor_b32 s2, s2, s3')
    a('s_load_dwordx16 s[16:31], s[0:1], 0')
    a('s_load_dwordx8 s[32:39], s[0:1], 64')
    a('s_load_dwordx4 s[40:43], s[0:1], 96')
    if stamps:
        for k in range(12): a(f's_mov_b32 s{4+k}, 0')
    if hold or pd:
        a('s_memrealtime s[94:95]')
    a('v_lshrrev_b32 v1, 6, v0')
    a('v_readfirstlane_b32 s3, v1')
    a('v_and_b32 v0, 63, v0')
    a('v_lshlrev_b32 v1, 4, v0')
    a('s_cmp_ge_u32 s3, 4')
    a('s_cbranch_scc1 L_service')

    Q = 4; Pq = 8; ACC = 24; TMP = 32; VMAX = 40; VT0 = 41; VT1 = 42; PP0 = 43; PP1 = 44; VSC = 2; VI = 45; VG = 46; VT2 = 47; VT3 = 48
    GENV = 3
    TK = 50; PN = 52; VPA = 54; VSA = 55; FL = 56; VZ = 60; VHA = 61
    RING = 64; EXA = 128; EXB = 192
    IS = 44; SWS = 52; SOFF = 56; CNT = 57; BASE = 58; M1 = 60; M2 = 62; SELLO = 64; SELHI = 65; SCALE = 66; TAG = 67
    SHD = 70; SLOTC = 71; SLOTN = 72; FIRST = 73; T0 = 74; T1 = 75; T2 = 76; T3 = 77; STGB = 78; SPIN = 79
    SC = 80; SM = 84; LO32 = 88
    HOME = 48; STEP = 49; QUIT = 50; ESPIN = 51
    P_ = Pq
    if lv is not None: a('s_memrealtime s[70:71]')
    head_of(58, 59)
    if hmap == 3:
        a('s_and_b32 s59, s2, 7'); a('s_lshl_b32 s59, s59, 5')
    else:
        a('s_and_b32 s59, s2, 0xe0')
    a('s_or_b32 s58, s58, s59')
    a('s_lshl_b32 s58, s58, 20')
    if numa:
        assert hmap == 2
        a('s_and_b32 s59, s3, 1')
        a('s_lshl_b32 s59, s59, 12')
        a('s_add_u32 s58, s58, s59')
        a('s_lshr_b32 s59, s3, 1')
        a('s_lshl_b32 s59, s59, 23')
        a('s_xor_b32 s58, s58, s59')
    else:
        a('s_lshl_b32 s59, s3, 12')
        a('s_add_u32 s58, s58, s59')
    a('s_mov_b32 s56, s58')
    a(f'v_mov_b32 v{VZ}, 0')
    a(f'v_and_b32 v{VI}, 15, v0')
    a(f'v_lshrrev_b32 v{VG}, 4, v0')
    a(f's_mul_i32 s{STGB}, s3, {STGW}')
    a(f's_add_u32 s{STGB}, s{STGB}, {L_STG}')
    a('s_waitcnt lgkmcnt(0)')
    srd(SWS, 42, WS_SIZE)
    a(f'buffer_load_dword v{GENV}, v{VZ}, s[{SWS}:{SWS+3}], 0 offen offset:{WS_GEN} sc1')
    if numa:
        for p, d in ((18, 56), (20, 58)):
            a(f's_add_u32 s59, s{p}, s{d}')
            a('s_lshr_b32 s59, s59, 21')
            a(f's_lshr_b32 s{T0}, s2, 2')
            a(f's_xor_b32 s59, s59, s{T0}')
            a(f's_xor_b32 s59, s59, {numa-1}')
            a('s_and_b32 s59, s59, 1')
            a('s_lshl_b32 s59, s59, 13')
            a(f's_add_u32 s{d}, s{d}, s59')
    srd(IS, 18, 0x10000000)
    srd(SC, 34, 8192)
    srd(SM, 36, 512*3072*2)
    if dry2: a(f's_mov_b64 s[{DRY}:{DRY+1}], -1')
    if est:
        nost.update((8, 9, 10, 11, 4, 3))
        if stamps: a('s_mov_b32 s12, s90')
        qstamp(0)
    else: stamp(0)
    if dst:
        a(f's_memtime s[{STP}:{STP+1}]'); a('s_waitcnt lgkmcnt(0)'); a(f's_mov_b32 s14, s{STP}')
    cs = Ctx()
    cs.VI = VI; cs.VG = VG; cs.VA = RING; cs.VB = RING+1; cs.VC = RING+2; cs.VD = RING+3
    cs.CF = RING+4; cs.XF = RING+12; cs.BF = RING+20; cs.D1 = RING+36; cs.D2 = RING+40; cs.RD = RING+44; cs.U0 = RING+48
    cs.T0 = T0; cs.T1 = T1; cs.T2 = T2; cs.T3 = T3; cs.WV = 3; cs.STGB = STGB; cs.SC = SC; cs.SM = SM; cs.SWS = SWS
    cs.LO32 = LO32; cs.TAG = TAG; cs.GENV = GENV; cs.WG = 2; cs.paced = False
    a('s_cmp_ge_u32 s2, 64')
    a('s_cbranch_scc1 L_s_noissue')
    if mprio: a(f's_setprio {mprio}')
    mod_issue(cs)
    a.label('L_s_noissue', fence=False)

    LV = 68; TGT = 69; T00 = 70; TM = 72; LAG = 71
    def pw(d=0):
        if lv is None:
            a(f's_waitcnt vmcnt({(W-1) if d == 0 else VW})')
            return
        lab = a.uid('L_pw')
        for k, Wk in enumerate(lv):
            a(f's_waitcnt vmcnt({Wk-1-d})')
            if k < len(lv) - 1:
                a(f's_cmp_eq_u32 s{LV}, {k}')
                a(f's_cbranch_scc1 {lab}')
        a.label(lab, fence=False)
    def tsched(n):
        return int(round(tK + (n - 48) * sK)) if n <= 272 else int(round(tV + (n - 272) * sV))
    MS = 50; VBS = 52; VMA = 53; MD = 54; MT = 56; ISM = 48; CK = 49; CKS = 50
    def mload():
        if lv is None or not rel or noml: return
        lab = a.uid('L_ml')
        a('s_cmp_lg_u32 s3, 0')
        a(f's_cbranch_scc1 {lab}')
        a(f'buffer_load_dwordx2 v[{MS}:{MS+1}], v{VMA}, s[{SWS}:{SWS+3}], s{CK} offen {mlp}')
        a.label(lab, fence=False)
    def clk():
        if lv is None: return
        a(f's_memrealtime s[{TM}:{TM+1}]')
        if rel: a(f'ds_read_b32 v{VBS}, v{VZ} offset:{L_CNT+16}')
    B0 = 51
    def ctl(n=None, step=None, upd=True, th_=None, eb_=None, keep=False, drift=False):
        if lv is None: return
        th_ = th if th_ is None else th_
        a('s_waitcnt lgkmcnt(0)')
        if rel:
            a(f'v_readfirstlane_b32 s{TM+1}, v{VBS}')
            if keep:
                a(f's_cmp_ge_u32 s{CNT}, 6')
                a(f's_cselect_b32 s{B0}, s{TM+1}, s{B0}')
            if n is not None: a(f's_sub_u32 s{TM}, s{TM}, {tsched(n)}')
            else: a(f's_sub_u32 s{TM}, s{TM}, s{TGT}')
            a(f's_sub_u32 s{LAG}, s{TM}, s{TM+1}')
        else:
            if n is not None: a(f's_add_u32 s{TGT}, s{T00}, {tsched(n)}')
            a(f's_sub_u32 s{LAG}, s{TM}, s{TGT}')
        if step is not None: a(f's_add_u32 s{TGT}, s{TGT}, {step}')
        if eb_ is not None:
            a(f's_cmp_le_u32 s{CNT}, {eb_[0]}')
            a(f's_cselect_b32 s{LV}, {eb_[1]}, 0')
            a(f's_add_u32 s{LAG}, s{LAG}, s{LV}')
        a(f's_mov_b32 s{LV}, {len(lv)-1}')
        for k in range(len(lv) - 2, -1, -1):
            a(f's_cmp_gt_i32 s{LAG}, {th_[k]}')
            a(f's_cselect_b32 s{LV}, {k}, s{LV}')
        if rel:
            lab = a.uid('L_ct')
            a('s_cmp_lg_u32 s3, 0')
            a(f's_cbranch_scc1 {lab}')
            lab2 = a.uid('L_cm')
            a(f's_cmp_eq_u32 s{ISM}, 0')
            a(f's_cbranch_scc1 {lab2}')
            a(f'v_mov_b32 v{MD}, s{TM}')
            a(f'v_mov_b32 v{MD+1}, s{TAG}')
            a(f's_add_u32 s{CKS}, s{ISM}, s{CK}')
            a('s_mov_b64 exec, 1')
            if not nomst: a(f'buffer_store_dwordx2 v[{MD}:{MD+1}], v{VZ}, s[{SWS}:{SWS+3}], s{CKS} offen {msp}')
            a('s_mov_b64 exec, -1')
            a.label(lab2, fence=False)
            a(f's_add_u32 s{CK}, s{CK}, {CSTR}')
            if upd:
                a(f'v_cmp_ne_u32 vcc, s{TAG}, v{MS+1}')
                a(f'v_subrev_u32 v{MT}, s{T00}, v{MS}')
                for c_ in ('quad_perm:[1,0,3,2]', 'quad_perm:[2,3,0,1]', 'row_half_mirror'):
                    a(f'{"v_add_u32" if agg == "mean" else "v_max_i32"}_dpp v{MT}, v{MT}, v{MT} {c_} row_mask:0xf bank_mask:0xf')
                if agg == 'mean': a(f'v_ashrrev_i32 v{MT}, 3, v{MT}')
                a(f's_add_u32 s{TM+1}, s{T00}, {dl}')
                a(f'v_add_u32 v{MT}, s{TM+1}, v{MT}')
                a(f's_cbranch_vccnz {lab}')
                if drift:
                    g_, c0_, cap_, d0_ = dc
                    a(f'v_sub_u32 v{MD}, v{MT}, v58')
                    a(f'v_mov_b32 v58, v{MT}')
                    a(f'v_med3_i32 v{MD}, v{MD}, {-cap_}, {cap_}')
                    a(f's_cmp_gt_u32 s{CNT}, {c0_}')
                    a(f's_cselect_b64 vcc, -1, 0')
                    a(f'v_cndmask_b32 v{MD}, v{MD}, v59, vcc')
                    a(f'v_add_u32 v59, v59, v{MD}')
                    a('v_ashrrev_i32 v59, 1, v59')
                    a(f'v_max_i32 v{MD}, 0, v59')
                    a(f'v_mad_u32_u24 v{MT}, v{MD}, {g_}, v{MT}')
                a(f'ds_write_b32 v{VZ}, v{MT} offset:{L_CNT+16}')
            a.label(lab, fence=False)
    def ctl_light(back, th_, sl=None):
        sl = sV if sl is None else sl
        a('s_waitcnt lgkmcnt(0)')
        a(f'v_readfirstlane_b32 s{TM+1}, v{VBS}')
        a(f's_sub_u32 s{TM}, s{TM}, s{TGT}')
        a(f's_sub_u32 s{LAG}, s{TM}, s{TM+1}')
        a(f's_mov_b32 s{LV}, {len(lv)-1}')
        for k in range(len(lv) - 2, -1, -1):
            a(f's_cmp_gt_i32 s{LAG}, {th_[k] - int(round(back*sl))}')
            a(f's_cselect_b32 s{LV}, {k}, s{LV}')
    VKB = 57
    def issue(base, j):
        if base is None:
            if j % 4 == 0:
                a(f's_lshl_b32 s{T3}, s3, 14')
                a(f's_add_u32 m0, s{T3}, {L_KB + (j//4)*4096}')
            a(f'buffer_load_dwordx4 v1, s[{IS}:{IS+3}], s{SOFF} offen offset:{(j % 4) * 1024} {kpol} lds')
            if j % 4 == 3:
                a(f's_add_u32 s{SOFF}, s{SOFF}, 16384')
            return
        r = base + 4 * j
        a(f'buffer_load_dwordx4 v[{r}:{r+3}], v1, s[{IS}:{IS+3}], s{SOFF} offen offset:{(j % 4) * 1024} {kpol}')
        if j % 4 == 3:
            a(f's_add_u32 s{SOFF}, s{SOFF}, 16384')

    seq = [(base, j) for base in ((EXA, EXB, RING, None) if lb else (EXA, EXB, RING)) for j in range(16)]
    NI = len(seq)
    for n in range(nA):
        if nm < 0 and n == nA + nm:
            a('s_cmp_lt_u32 s2, 64'); a('s_cbranch_scc1 L_s_skip')
        issue(*seq[n])
        if n == 0: qstamp(10)
    qstamp(4)
    if est and stamps:
        a(f's_waitcnt vmcnt({nA-1})')
        a('s_memrealtime s[90:91]'); a('s_waitcnt lgkmcnt(0)'); a('s_mov_b32 s7, s90')
    if nm < 0: a.label('L_s_skip', fence=False)
    a(f's_mov_b32 s{M1}, 0xaaaaaaaa'); a(f's_mov_b32 s{M1+1}, 0xaaaaaaaa')
    a(f's_mov_b32 s{M2}, 0xcccccccc'); a(f's_mov_b32 s{M2+1}, 0xcccccccc')
    a(f's_mov_b32 s{SELLO}, 0x05040100'); a(f's_mov_b32 s{SELHI}, 0x07060302')
    a(f's_mov_b32 s{SCALE}, {f32(128 ** -0.5)}')
    a(f's_mov_b32 s{LO32}, -1'); a(f's_mov_b32 s{LO32+1}, 0')
    a(f's_lshl_b32 s59, s3, 12')
    a(f's_add_u32 s59, s59, {L_SC}')
    a(f'v_lshlrev_b32 v{VSC}, 2, v0')
    a(f'v_add_u32 v{VSC}, s59, v{VSC}')
    a(f'v_mov_b32 v{VMAX}, 0xff800000')
    if sst:
        stamp(9)
        a('s_cmp_lt_u32 s2, 64')
        a('s_cbranch_scc1 L_sst')
        a(f's_waitcnt vmcnt({nA})'); stamp(3)
        a(f's_waitcnt vmcnt({nA-1})'); stamp(4)
        a(f's_waitcnt vmcnt({nA-8})'); stamp(10)
        a(f's_waitcnt vmcnt(0)'); stamp(11)
        a.label('L_sst')
    a('s_barrier')
    a('s_cmp_ge_u32 s2, 64')
    a('s_cbranch_scc1 L_s_moddone')
    if nm < 0:
        mod_compute(cs, nA + nm, L_CNT, 'L_s_moddone2', st=(3, 4))
        a.label('L_s_moddone2')
        if qch: stamp(9)
        for n in range(nA + nm, nA): issue(*seq[n])
    elif nm:
        assert nA + nm <= 32
        for n in range(nA, nA + nm): issue(*seq[n])
        mod_compute(cs, nA + nm, L_CNT, 'L_s_moddone2', st=(3, 4))
        a.label('L_s_moddone2')
        if mprio: a('s_setprio 0')
        a('s_branch L_s_join')
    else:
        mod_compute(cs, nA, L_CNT, 'L_s_moddone', st=(3, 4))
    a.label('L_s_moddone')
    if mprio: a('s_setprio 0')
    stamp(5)
    if qch and nm >= 0: a('s_mov_b32 s13, s9')
    for n in range(nA, NI):
        if nm > 0 and n == nA + nm: a.label('L_s_join')
        Wn = W0 if n < n0 else (W if n < n1 else W1)
        if n >= Wn and n < NI - boost:
            a(f's_waitcnt vmcnt({Wn-1})')
        if sst2 and n in (16, 24, 32, 40, 48 if lb else 45): stamp({16: 9, 24: 3, 32: 4, 40: 10, 45: 11, 48: 11}[n])
        issue(*seq[n])
    if lb:
        a(f's_lshl_b32 s{T3}, s3, 14')
        a(f's_add_u32 s{T3}, s{T3}, {L_KB}')
        a(f'v_add_u32 v{VKB}, s{T3}, v1')
    if pf:
        a(f's_mov_b32 m0, {L_DUM}')
        a(f's_lshl_b32 s{T3}, s2, 2')
        a(f's_add_u32 s{T3}, s{T3}, s3')
        def pfl(srd_, so, off=0):
            a(f's_waitcnt vmcnt({pfW-1})')
            a(f'buffer_load_dwordx4 v1, s[{srd_}:{srd_+3}], s{so} offen offset:{off} {pfpol} lds')
        if pf & 1:
            srd(SC, 24, 4096*512*2)
            head_of(T0, T1)
            a(f's_lshl_b32 s{T0}, s{T0}, 17')
            a(f's_lshr_b32 s{T1}, s2, 5')
            a(f's_lshl_b32 s{T1}, s{T1}, 14')
            a(f's_add_u32 s{T0}, s{T0}, s{T1}')
            a(f's_lshl_b32 s{T1}, s3, 12')
            a(f's_add_u32 s{T0}, s{T0}, s{T1}')
            for j in range(4): pfl(SC, T0, j*1024)
        if pf & 4:
            a(f's_lshr_b32 s{T0}, s{T3}, 1')
            a(f's_mul_i32 s{T0}, s{T0}, 6144')
            a(f's_and_b32 s{T1}, s{T3}, 1')
            a(f's_lshl_b32 s{T1}, s{T1}, 11')
            a(f's_add_u32 s{T0}, s{T0}, s{T1}')
            for j in range(2): pfl(SM, T0, 2048 + j*1024)
        if pf & 2:
            a(f's_lshl_b32 s{T0}, s{T3}, 10')
            a(f's_add_u32 s{T1}, s{T0}, {1 << 20}')
            for p in (28, 30, 32):
                srd(SC, p, 512*1376*2)
                pfl(SC, T0)
                lab = a.uid('L_pf')
                a(f's_cmp_ge_u32 s{T3}, {1376-1024}')
                a(f's_cbranch_scc1 {lab}')
                pfl(SC, T1)
                a.label(lab, fence=False)
    a(f'v_readfirstlane_b32 s{TAG}, v{GENV}')
    a(f's_add_u32 s{TAG}, s{TAG}, {TAGC}')
    if lv is not None and rel:
        a(f'v_and_b32 v{VMA}, 7, v0')
        a(f'v_mul_u32_u24 v{VMA}, {MSTR}, v{VMA}')
        a(f'v_add_u32 v{VMA}, {WS_MST - DD*CSTR}, v{VMA}')
        a(f's_mov_b32 s{CK}, 0')
        a(f'v_mov_b32 v{MS}, 0'); a(f'v_not_b32 v{MS+1}, s{TAG}')
        if MB >= 0:
            a(f's_sub_u32 s{T0}, s2, {MB}')
        else:
            a(f's_lshr_b32 s{T0}, s2, 5')
        a(f's_mul_i32 s{ISM}, s{T0}, {MSTR}')
        a(f's_add_u32 s{ISM}, s{ISM}, {WS_MST}')
        if MB >= 0:
            a(f's_cmp_lt_u32 s{T0}, 8')
        else:
            a(f's_and_b32 s{T1}, s2, 31')
            a(f's_add_u32 s{T0}, s{T0}, {-MB-1}')
            a(f's_cmp_eq_u32 s{T0}, s{T1}')
        a(f's_cselect_b32 s{ISM}, s{ISM}, 0')
        a(f'v_mov_b32 v{MT}, s{T00}')
        if ib: a(f'v_subrev_u32 v{MT}, {ib}, v{MT}')
        a('s_cmp_lg_u32 s3, 0')
        a('s_cbranch_scc1 L_nobase')
        a(f'ds_write_b32 v{VZ}, v{MT} offset:{L_CNT+16}')
        a('s_waitcnt lgkmcnt(0)')
        a.label('L_nobase', fence=False)
    stamp(6)
    a('s_barrier')
    a(f'v_lshlrev_b32 v{VT0}, 5, v{VI}')
    for w in range(4):
        a(f'ds_read_b128 v[{P_+8*(w%2)}:{P_+8*(w%2)+3}], v{VT0} offset:{L_QP + w*512}')
        a(f'ds_read_b128 v[{P_+8*(w%2)+4}:{P_+8*(w%2)+7}], v{VT0} offset:{L_QP + w*512 + 16}')
        if w == 1:
            a('s_waitcnt lgkmcnt(0)')
            for e in range(8): a(f'v_add_f32 v{ACC+e}, v{P_+e}, v{P_+8+e}')
    a('s_waitcnt lgkmcnt(0)')
    for e in range(8): a(f'v_add_f32 v{P_+e}, v{P_+e}, v{P_+8+e}')
    for e in range(8): a(f'v_add_f32 v{ACC+e}, v{ACC+e}, v{P_+e}')
    for c in range(4): a(f'v_cvt_pk_bf16_f32 v{Q+c}, v{ACC+2*c}, v{ACC+2*c+1}')
    clk(); ctl(n=NI, upd=False)
    if dbg:
        a(f's_lshr_b32 s{T0}, s{BASE}, 20')
        a(f's_lshl_b32 s{T0}, s{T0}, 8')
        a(f's_add_u32 s{T0}, s{T0}, {WS_DBG}')
        a(f'v_lshlrev_b32 v{VT0}, 4, v{VI}')
        a(f'buffer_store_dwordx4 v[{Q}:{Q+3}], v{VT0}, s[{SWS}:{SWS+3}], s{T0} offen')
        a('s_waitcnt vmcnt(0)')
    stamp(1)

    def ksteps(base, PB, reissue, wait, vsc, sc_off, t0, t1, hook=None, fine=0):
        def l1(j):
            a(f'v_add_f32_dpp v{PB+j-1}, v{PB+j-1}, v{PB+j-1} row_ror:8 row_mask:0xf bank_mask:0x3')
            a(f'v_add_f32_dpp v{PB+j-1}, v{PB+j}, v{PB+j} row_ror:8 row_mask:0xf bank_mask:0xc')
        def l2(q):
            x = PB + 4*q; y = PB + 4*q + 2
            a(f'v_add_f32_dpp v{x}, v{x}, v{x} row_shl:4 row_mask:0xf bank_mask:0x5')
            a(f'v_add_f32_dpp v{x}, v{y}, v{y} row_shr:4 row_mask:0xf bank_mask:0xa')
        def step(j):
            r = base + 4*j
            if hook is not None and j == 0: mload()
            if fine:
                if j in (0, 4, 8): clk()
                if j in (2, 6, 10): ctl_light(12 - (j-2), th, sK)
            if hook is not None and j == 12: clk()
            if hook is not None and j == 15: hook()
            if wait is not None:
                pw(0)
            a(f'v_dot2_f32_bf16 v{PB+j}, v{r}, v{Q}, 0')
            for c in range(1, 4):
                a(f'v_dot2_f32_bf16 v{PB+j}, v{r+c}, v{Q+c}, v{PB+j}')
            if reissue: issue(base, j)
            if j >= 2 and j % 2 == 0: l1(j-1)
            if j >= 5 and j % 4 == 1: l2((j-5)//4)
        def epi():
            l1(15)
            l2(3)
            U = [PB, PB+4, PB+8, PB+12]
            for u in U: a(f'v_add_f32_dpp v{u}, v{u}, v{u} quad_perm:[2,3,0,1] row_mask:0xf bank_mask:0xf')
            a(f'v_cndmask_b32 v{U[0]}, v{U[0]}, v{U[1]}, s[{M2}:{M2+1}]')
            a(f'v_cndmask_b32 v{U[2]}, v{U[2]}, v{U[3]}, s[{M2}:{M2+1}]')
            for u in (U[0], U[2]): a(f'v_add_f32_dpp v{u}, v{u}, v{u} quad_perm:[1,0,3,2] row_mask:0xf bank_mask:0xf')
            a(f'v_cndmask_b32 v{t0}, v{U[0]}, v{U[2]}, s[{M1}:{M1+1}]')
            rnd1(t0, t1)
            a(f'v_mul_f32 v{t0}, s{SCALE}, v{t0}')
            rnd1(t0, t1)
            a(f'v_max_f32 v{VMAX}, v{VMAX}, v{t0}')
            a(f'ds_write_b32 v{vsc}, v{t0} offset:{sc_off}')
        return [lambda j=j: step(j) for j in range(16)] + [epi]
    P2 = ACC
    plan = [(EXA, 0, 2), (EXB, 1, 4), (EXA, 3, 5)] if lb else [(EXA, 0, 2), (EXB, 1, 3)]
    for it, (ex, be, br) in enumerate(plan):
        s1 = ksteps(RING, P_, True, W-1, VSC, br*256, VT0, VT1, hook=lambda it=it: ctl(n=NI+16*it+12))
        s2 = ksteps(ex, P2, False, None, VSC, be*256, PP0, PP1)
        if lb and it == 2: a('s_waitcnt lgkmcnt(0)')
        for j in range(16):
            s1[j](); s2[j]()
            if lb and it == 1 and j < 8:
                for jj in (2*j, 2*j+1):
                    a(f'ds_read_b128 v[{EXA+4*jj}:{EXA+4*jj+3}], v{VKB} offset:{jj*1024}')
        s1[16](); s2[16]()
    nb0 = plan[-1][2] + 1
    a(f'v_add_u32 v{VT2}, {nb0*256}, v{VSC}')
    a(f's_mov_b32 s{CNT}, {16-nb0}')
    n_l = 16*(nb0+1) + 12
    if lv is not None: a(f's_mov_b32 s{TGT}, {tsched(n_l)}' if rel else f's_add_u32 s{TGT}, s{T00}, {tsched(n_l)}')
    if not (sst or sst2 or qch): stamp(9)
    a.label('L_kloop')
    a(f's_cmp_eq_u32 s{CNT}, 1')
    a(f's_cselect_b32 s{IS}, s20, s{IS}')
    a(f's_cselect_b32 s{IS+1}, s21, s{IS+1}')
    a(f's_cselect_b32 s{SOFF}, s{BASE}, s{SOFF}')
    if sK2 is not None:
        a(f's_cmp_le_u32 s{CNT}, {cK}')
        a(f's_movk_i32 s91, {int(round(16*sK))}')
        a(f's_cselect_b32 s90, {int(round(16*sK2))}, s91')
    for f in ksteps(RING, P_, True, W-1, VT2, 0, VT0, VT1, hook=lambda: ctl(step=('s90' if sK2 is not None else int(round(16*sK)))), fine=c2k): f()
    a(f'v_add_u32 v{VT2}, 256, v{VT2}')
    a(f's_sub_u32 s{CNT}, s{CNT}, 1')
    a(f's_cmp_lg_u32 s{CNT}, 0')
    a('s_cbranch_scc1 L_kloop')
    stamp(7)
    vq = [(EXA, j) for j in range(16)] + [(EXB, j) for j in range(16)]
    def pi(n=1, paced=True):
        for _ in range(n):
            if not vq: return
            if paced: pw(0)
            issue(*vq.pop(0))
    pi()
    a('s_waitcnt lgkmcnt(0)')
    for t in range(0, 16, 2):
        a(f'ds_read2st64_b32 v[{P_+t}:{P_+t+1}], v{VSC} offset0:{t} offset1:{t+1}')
    wave_reduce('v_max_f32', [VMAX], [VT0])
    pi()
    a('s_waitcnt lgkmcnt(0)')
    for t in range(16): a(f'v_sub_f32 v{P_+t}, v{P_+t}, v{VMAX}')
    for t in range(16): a(f'v_mul_f32 v{P_+t}, {f32(L2E)}, v{P_+t}')
    pi()
    for t in range(16): a(f'v_exp_f32 v{P_+t}, v{P_+t}')
    pi()
    for t in range(8): a(f'v_add_f32 v{TMP+t}, v{P_+t}, v{P_+8+t}')
    for t in range(4): a(f'v_add_f32 v{TMP+t}, v{TMP+t}, v{TMP+4+t}')
    for t in range(2): a(f'v_add_f32 v{TMP+t}, v{TMP+t}, v{TMP+2+t}')
    a(f'v_add_f32 v{VT0}, v{TMP}, v{TMP+1}')
    assert VT0 == VMAX + 1
    wave_reduce('v_add_f32', [VT0], [VT1])
    a(f's_lshl_b32 s59, s3, 3')
    a(f'v_mov_b32 v{VT1}, s59')
    a(f'ds_write_b64 v{VT1}, v[{VMAX}:{VMAX+1}] offset:{L_MX}')
    a(f'v_mov_b32 v{VT1}, 1')
    a('s_waitcnt lgkmcnt(0)')
    a('s_mov_b64 exec, 1')
    a(f'ds_add_u32 v{VZ}, v{VT1} offset:{L_CNT+12}')
    a('s_mov_b64 exec, -1')
    pi(12)
    pi(sboost, paced=False)
    a(f's_mov_b32 s{SPIN}, 0')
    a.label('L_b2')
    a(f'ds_read_b32 v{VT1}, v{VZ} offset:{L_CNT+12}')
    a('s_waitcnt lgkmcnt(0)')
    a(f'v_readfirstlane_b32 s{T0}, v{VT1}')
    a(f's_cmp_ge_u32 s{T0}, 4')
    a('s_cbranch_scc1 L_b2_ok')
    a(f's_add_u32 s{SPIN}, s{SPIN}, 1')
    a(f's_cmp_lt_u32 s{SPIN}, {SPIN_MAX*8}')
    a('s_cbranch_scc0 L_b2_ok')
    a('s_sleep 1')
    a('s_branch L_b2')
    a.label('L_b2_ok')
    a(f'ds_read_b128 v[{TMP}:{TMP+3}], v{VZ} offset:{L_MX}')
    a(f'ds_read_b128 v[{TMP+4}:{TMP+7}], v{VZ} offset:{L_MX+16}')
    a('s_waitcnt lgkmcnt(0)')
    a(f'v_max_f32 v{VT1}, v{TMP}, v{TMP+2}')
    a(f'v_max3_f32 v{VT1}, v{VT1}, v{TMP+4}, v{TMP+6}')
    for k in range(4): a(f'v_sub_f32 v{TMP+2*k}, v{TMP+2*k}, v{VT1}')
    a(f'v_sub_f32 v{VT3}, v{VMAX}, v{VT1}')
    for k in range(4): a(f'v_mul_f32 v{TMP+2*k}, {f32(L2E)}, v{TMP+2*k}')
    a(f'v_mul_f32 v{VT3}, {f32(L2E)}, v{VT3}')
    for k in range(4): a(f'v_exp_f32 v{TMP+2*k}, v{TMP+2*k}')
    a(f'v_exp_f32 v{VT3}, v{VT3}')
    a(f'v_mul_f32 v{VT0}, v{TMP}, v{TMP+1}')
    for k in range(1, 4): a(f'v_fmac_f32 v{VT0}, v{TMP+2*k}, v{TMP+2*k+1}')
    a(f'v_rcp_f32 v{VT0}, v{VT0}')
    a(f'v_mul_f32 v{VT3}, v{VT3}, v{VT0}')
    pi()
    for t in range(16): a(f'v_mul_f32 v{P_+t}, v{P_+t}, v{VT3}')
    for half in range(2):
        for t in range(8): a(f'v_mov_b32_dpp v{TMP+t}, v{P_+8*half+t} row_ror:8 row_mask:0xf bank_mask:0xf')
        for t in range(8): a(f'v_cvt_pk_bf16_f32 v{P_+8*half+t}, v{P_+8*half+t}, v{TMP+t}')
        pi()
    for t in range(4, 16, 2):
        a(f'ds_write2st64_b32 v{VSC}, v{P_+t}, v{P_+t+1} offset0:{t} offset1:{t+1}')
    for e in range(8): a(f'v_mov_b32 v{ACC+e}, 0')

    def bl(m): return 4*(m & 1) + 2*((m >> 1) & 1) + (m >> 2)
    def vstep(base, m, reissue, wait, pp, mid=None, hook=None, fine=0):
        A = base + 8*m; Bq = A + 4
        if hook is not None and m == 0: mload()
        if fine == 1:
            if m == 1: clk()
            if m == 3: ctl_light(8, thv)
        if fine == 2:
            if m in (1, 3, 5): ctl_light(12 - 2*(m-1), thv)
            if m in (0, 2, 4): clk()
            if m == 6: clk()
        elif hook is not None and m == 5: clk()
        if hook is not None and m == 7: hook()
        if wait == 'p': pw(1)
        elif wait is not None:
            a(f's_waitcnt vmcnt({wait})')
        for c in range(4):
            a(f'v_perm_b32 v{TMP+2*c}, v{Bq+c}, v{A+c}, s{SELLO}')
            a(f'v_perm_b32 v{TMP+2*c+1}, v{Bq+c}, v{A+c}, s{SELHI}')
        if reissue:
            issue(base, 2*m); issue(base, 2*m+1)
        if mid: mid()
        for e in range(8):
            a(f'v_dot2c_f32_bf16_dpp v{ACC+e}, v{pp}, v{TMP+e} row_newbcast:{bl(m)} row_mask:0xf bank_mask:0xf')
    def static_flush():
        a(f'v_lshlrev_b32 v{VT0}, 5, v{VI}')
        a(f'v_lshl_add_u32 v{VT0}, v{VG}, 3, v{VT0}')
        a(f's_lshl_b32 s59, s3, 9')
        a(f'v_add_u32 v{VT0}, s59, v{VT0}')
        a(f'ds_write_b64 v{VT0}, v[{ACC}:{ACC+1}] offset:{L_OP}')
        a(f'v_mov_b32 v{VT1}, 1')
        a('s_waitcnt lgkmcnt(0)')
        ex_mask(dry2, 1, 0)
        a(f'ds_add_u32 v{VZ}, v{VT1} offset:{L_CNT+8}')
        ex_full(dry2)
        stamp(8)

    nleft = len(vq)
    assert 1 <= nleft <= 16, nleft
    for m in range(8):
        k = (nleft*(m+1))//8 - (nleft*m)//8
        if m == 0: a(f's_waitcnt vmcnt({16 - nleft})')
        vstep(EXA, m, False, None, P_+1, mid=(lambda k=k: pi(k)))
    assert not vq
    clk(); ctl(n=304, upd=False, th_=tht)
    for m in range(8): vstep(RING, m, True, 'p', P_+0, hook=lambda: ctl(n=304+10, th_=tht))
    a(f'v_add_u32 v{VT2}, {5*256}, v{VSC}')
    for m in range(8):
        vstep(RING, m, True, 'p', P_+3, hook=lambda: ctl(n=320+10, th_=tht))
        vstep(EXB, m, False, None, P_+2)
    a(f'v_mov_b32 v{PP0}, v{P_+4}')
    a(f's_mov_b32 s{CNT}, 11')
    if dc is not None:
        a('v_mov_b32 v58, 0'); a(f'v_mov_b32 v59, {dc[3]}')
    if lv is not None: a(f's_mov_b32 s{TGT}, {tsched(336+(12 if c2 == 2 else 10))}' if rel else f's_add_u32 s{TGT}, s{T00}, {tsched(336+10)}')
    if not (sst or sst2): stamp(10)
    a.label('L_vloop')
    a(f'ds_read_b32 v{PP1}, v{VT2}')
    a(f'v_add_u32 v{VT2}, 256, v{VT2}')
    for m in range(8): vstep(RING, m, True, 'p', PP0, hook=lambda: ctl(step=int(round(16*sV)), th_=thv, eb_=eb, keep=bool(slp), drift=dc is not None), fine=c2)
    a('s_waitcnt lgkmcnt(0)')
    a(f'v_mov_b32 v{PP0}, v{PP1}')
    a(f's_sub_u32 s{CNT}, s{CNT}, 1')
    a(f's_cmp_lg_u32 s{CNT}, 0')
    a('s_cbranch_scc1 L_vloop')
    if not (sst or sst2): stamp(11)
    if slp:
        a(f'v_mov_b32 v{VT1}, s{B0}')
        a(f'ds_write_b32 v{VZ}, v{VT1} offset:{L_CNT+24}')
    if dry2: a.label('L_vlast', fence=False)
    for m in range(8): vstep(RING, m, False, 14 - 2*m, PP0)
    greduce8(ACC)
    static_flush()
    if dry2: a('s_cbranch_execz L_t1' if dry else 's_cbranch_execz L_real')
    if gate:
        lab = a.uid('L_nogate')
        a('s_cmp_lg_u32 s3, 0')
        a(f's_cbranch_scc1 {lab}')
        srd(SC, 40, 256)
        a('s_mov_b64 exec, 1')
        a(f'buffer_atomic_add v{VT1}, v{VZ}, s[{SC}:{SC+3}], 0 offen')
        a('s_mov_b64 exec, -1')
        a.label(lab)
    a('s_waitcnt lgkmcnt(0)')
    stamp(2)
    if dfw:
        dp = fpol if dpol is None else dpol
        roles(M1, M1+1, T0, T1)
        a(f's_cmp_lt_u32 s{M1}, {NF1}')
        a('s_cbranch_scc0 L_s_nof1')
        f1_dma(VT0, VT1, SM, 3, M1, T1, T2, STGB, False, dp)
        a('s_branch L_s_dma')
        a.label('L_s_nof1')
        a(f's_cmp_lt_u32 s{M1+1}, 32')
        a('s_cbranch_scc0 L_s_dma')
        f2_dma(VT0, VT1, SM, 3, M1+1, T1, T2, T3, STGB, False, dp)
        a.label('L_s_dma')
        a('s_waitcnt vmcnt(0)')
        stamp(8)
    finish(SWS, TMP, 's')

    a.label('L_service')
    nost.clear()
    SX = 44; SW = 48; SWS = 52; SC = 56; SST = 60; SOUT = 64; SDBG = 68
    WV = 72
    SB = 73; SH = 74; T0 = 75; T1 = 76; T2 = 77; T3 = 78; TAG = 80; SPIN = 81; SELLO = 82; SELHI = 83; LO32 = 84; STGB = 86; T4 = 87
    F1T = 88; F2T = 89; T5 = 90; T6 = 91
    VI = 2; VG = 3; VA = 4; VB = 5; VC = 6; VD = 7
    GENV = 8
    XR = 12; XP = 16; CF = 20; XF = 28
    MEAN = 36; DEN = 37; RDEN = 38; U0 = 39; U1 = 40; U2 = 41; U3 = 42; HP = 43
    ACC = 44
    D1 = 52; D2 = 56; D3 = 60; D4 = 64
    RD = 68
    BF = 76
    SPARE = 127
    WR = 128
    VR = 9 if rot else VI
    VRO = 123 if rot & 2 else VI
    cv = Ctx()
    cv.VI = VI; cv.VG = VG; cv.VA = VA; cv.VB = VB; cv.VC = VC; cv.VD = VD
    cv.CF = CF; cv.XF = XF; cv.BF = BF; cv.D1 = D1; cv.D2 = D2; cv.RD = RD; cv.U0 = U0
    cv.T0 = T0; cv.T1 = T1; cv.T2 = T2; cv.T3 = T3; cv.WV = WV; cv.STGB = STGB; cv.SC = SC; cv.SM = SST; cv.SWS = SWS
    cv.LO32 = LO32; cv.TAG = TAG; cv.GENV = None; cv.WG = T4; cv.paced = SW_ < 8
    if sprio: a(f's_setprio {sprio}')
    a(f's_sub_u32 s{WV}, s3, 4')
    if hmap == 3:
        a(f's_and_b32 s{SB}, s2, 7')
        a(f's_lshr_b32 s{SH}, s2, 3')
    else:
        a(f's_lshr_b32 s{SB}, s2, 5')
        a(f's_and_b32 s{SH}, s2, 31')
    HD = 79
    head_of(HD, T0)
    RW = 31
    if cmap:
        assert hmap in (2, 3)
        a(f's_mov_b32 s{SH}, s{HD}')
    roles(F1T, F2T, T0, T1)
    a(f'v_and_b32 v{VI}, 15, v0')
    a(f'v_lshrrev_b32 v{VG}, 4, v0')
    if rot:
        a(f's_lshl_b32 s{T2}, s{SB}, 1')
        a(f'v_add_u32 v123, s{T2}, v{VI}')
        a(f'v_and_b32 v123, 15, v123')
        a(f'v_mov_b32 v{VR}, v123' if rot & 1 else f'v_mov_b32 v{VR}, v{VI}')
    a(f'v_mov_b32 v{VA}, 0')
    a(f'v_lshlrev_b32 v{VB}, 2, v{VI}')
    a(f'ds_write_b32 v{VB}, v{VA} offset:{L_CNT}')
    a(f's_mov_b32 s{SELLO}, 0x05040100'); a(f's_mov_b32 s{SELHI}, 0x07060302')
    a(f's_mov_b32 s{LO32}, -1'); a(f's_mov_b32 s{LO32+1}, 0')
    a(f's_mul_i32 s{STGB}, s{WV}, {STGW}')
    a(f's_add_u32 s{STGB}, s{STGB}, {L_STG}')
    a('s_waitcnt lgkmcnt(0)')
    srd(SWS, 42, WS_SIZE); srd(SX, 16, 8192); srd(SW, 22, 512*4096*2)
    a(f'buffer_load_dword v{GENV}, v{VA}, s[{SWS}:{SWS+3}], 0 offen offset:{WS_GEN} sc1')
    a(f's_lshl_b32 s{T2}, s{SB}, 10')
    a(f'buffer_load_dwordx4 v[{XR}:{XR+3}], v1, s[{SX}:{SX+3}], s{T2} offen')
    a(f'v_lshlrev_b32 v{VA}, 4, v{VR}')
    a(f'v_lshl_add_u32 v{VA}, v{VG}, 2, v{VA}')
    a(f's_lshl_b32 s{T3}, s{WV}, 8')
    a(f's_add_u32 s{T2}, s{T2}, s{T3}')
    a(f'buffer_load_dword v{XP}, v{VA}, s[{SX}:{SX+3}], s{T2} offen')
    a(f'v_lshlrev_b32 v{VA}, 4, v{VI}')
    a(f'v_lshl_add_u32 v{VA}, v{VG}, 14, v{VA}')
    a(f's_lshl_b32 s{T2}, s{WV}, 20')
    a(f's_lshl_b32 s{T3}, s{HD}, 8')
    a(f's_add_u32 s{T2}, s{T2}, s{T3}')
    if rot & 1:
        a(f's_mov_b32 s{T0}, s{T2}')
        a(f's_lshl_b32 s{T1}, s{SB}, 17')
        a(f's_add_u32 s{T2}, s{T0}, s{T1}')
    VP = 10
    sa_loads = [f'buffer_load_dwordx2 v[{RD}:{RD+1}], v{VP}, s[{SWS}:{SWS+3}], s{T5} offen sc1',
                f'buffer_load_dwordx2 v[{RD+2}:{RD+3}], v{VP}, s[{SWS}:{SWS+3}], s{T6} offen sc1']
    def sa_addr():
        a(f'v_lshrrev_b32 v{VP}, 1, v{VR}')
        a(f'v_lshlrev_b32 v{VP}, 9, v{VP}')
        a(f'v_and_b32 v{VB}, 1, v{VR}')
        a(f'v_lshl_add_u32 v{VP}, v{VB}, 5, v{VP}')
        a(f'v_lshl_add_u32 v{VP}, v{VG}, 3, v{VP}')
        a(f's_lshl_b32 s{T5}, s{SB}, 6')
        a(f's_lshl_b32 s{T6}, s{WV}, 12')
        a(f's_add_u32 s{T5}, s{T5}, s{T6}')
        a(f's_add_u32 s{T5}, s{T5}, {WS_MOD}')
        a(f's_add_u32 s{T6}, s{T5}, 16384')
    for j in range(33):
        if ep is not None and j == 4: sa_addr()
        if ep is not None and j == ep:
            if qch: stamp(0)
            for l in sa_loads: a(l)
        if j == 32: break
        if j >= wqs: continue
        if j == b0wq: a('s_barrier')
        if WQ0 is not None and j == 4: a(f's_waitcnt vmcnt({WQ0})')
        if j >= WQ: a(f's_waitcnt vmcnt({WQ-1})')
        r = WR + 4*j
        if j == wqn: a(f's_mov_b32 s{SW+2}, 0')
        a(f'buffer_load_dwordx4 v[{r}:{r+3}], v{VA}, s[{SW}:{SW+3}], s{T2} offen {wqpol}')
        if rot & 1 and j % 4 == 3:
            if j < 31:
                a(f's_add_u32 s{T1}, s{T1}, {1 << 17}')
                a(f's_and_b32 s{T1}, s{T1}, 0xfffff')
                a(f's_add_u32 s{T2}, s{T0}, s{T1}')
        elif j < 31: a(f's_add_u32 s{T2}, s{T2}, {8192 if j % 2 == 0 else 7*8192}')
    srd(SC, 34, 8192); srd(SST, 36, 512*3072*2); srd(SOUT, 38, 8192); srd(SDBG, 40, 256)
    stamp(6)
    a(f's_waitcnt vmcnt({wqs})')
    stamp(7)
    a(f'v_readfirstlane_b32 s{TAG}, v{GENV}')
    a(f's_add_u32 s{TAG}, s{TAG}, {TAGC}')

    def ln_stats(vals, mean, den, rden, t0, t1):
        R = len(vals)
        for r in range(R):
            v = vals[r]
            a(f'v_add_f32 v{mean[r]}, v{v[0]}, v{v[1]}')
            for k in range(2, len(v)): a(f'v_add_f32 v{mean[r]}, v{mean[r]}, v{v[k]}')
        wave_reduce('v_add_f32', mean, t0)
        for r in range(R): a(f'v_mul_f32 v{mean[r]}, {f32(1/512)}, v{mean[r]}')
        for r in range(R):
            v = vals[r]
            for k in range(len(v)):
                a(f'v_sub_f32 v{t0[r]}, v{v[k]}, v{mean[r]}')
                if k == 0: a(f'v_mul_f32 v{den[r]}, v{t0[r]}, v{t0[r]}')
                else: a(f'v_fmac_f32 v{den[r]}, v{t0[r]}, v{t0[r]}')
        wave_reduce('v_add_f32', den, t0)
        for r in range(R):
            a(f'v_mul_f32 v{den[r]}, {f32(1/512)}, v{den[r]}')
            rnd2(mean[r], den[r], t0[r])
            a(f'v_add_f32 v{den[r]}, {f32(1e-5)}, v{den[r]}')
            rnd1(den[r], t0[r])
            a(f'v_sqrt_f32 v{den[r]}, v{den[r]}')
            rnd1(den[r], t0[r])
            a(f'v_rcp_f32 v{rden[r]}, v{den[r]}')
    def ln_norm2(x, y, mean, den, rden, t0, t1, t2):
        a(f'v_sub_f32 v{x}, v{x}, v{mean}')
        a(f'v_sub_f32 v{y}, v{y}, v{mean}')
        rnd2(x, y, t0)
        a(f'v_mul_f32 v{t0}, v{x}, v{rden}')
        a(f'v_mul_f32 v{t1}, v{y}, v{rden}')
        a(f'v_fma_f32 v{x}, -v{t0}, v{den}, v{x}')
        a(f'v_fma_f32 v{y}, -v{t1}, v{den}, v{y}')
        a(f'v_fma_f32 v{x}, v{x}, v{rden}, v{t0}')
        a(f'v_fma_f32 v{y}, v{y}, v{rden}, v{t1}')
        rnd2(x, y, t0)
    def modulate2(x, y, c1pair, spair, t0, t1, t2, out):
        unpack(t0, t1, c1pair)
        a(f'v_mul_f32 v{x}, v{x}, v{t0}')
        a(f'v_mul_f32 v{y}, v{y}, v{t1}')
        rnd2(x, y, t2)
        unpack(t0, t1, spair)
        a(f'v_add_f32 v{x}, v{x}, v{t0}')
        a(f'v_add_f32 v{y}, v{y}, v{t1}')
        a(f'v_cvt_pk_bf16_f32 v{out}, v{x}, v{y}')
    def one_plus(pair, t0, t1):
        unpack(t0, t1, pair)
        a(f'v_add_f32 v{t0}, 1.0, v{t0}')
        a(f'v_add_f32 v{t1}, 1.0, v{t1}')
        a(f'v_cvt_pk_bf16_f32 v{pair}, v{t0}, v{t1}')

    for r in range(4): unpack(XF+2*r, XF+2*r+1, XR+r)
    ln_stats([[XF+k for k in range(8)]], [MEAN], [DEN], [RDEN], [U0], [U1])
    unpack(U2, U3, XP)
    ln_norm2(U2, U3, MEAN, DEN, RDEN, U0, U1, HP)
    stamp(9)

    def permute_weights(wait_fn):
        wmap = []
        free = SPARE
        for m in range(16):
            A = WR + 8*m; Bq = A + 4
            w = wait_fn(m)
            if w is not None: a(f's_waitcnt vmcnt({w})')
            row = [None]*8
            for c in range(4):
                a(f'v_perm_b32 v{free}, v{Bq+c}, v{A+c}, s{SELLO}')
                a(f'v_perm_b32 v{Bq+c}, v{Bq+c}, v{A+c}, s{SELHI}')
                row[2*c] = free; row[2*c+1] = Bq + c
                free = A + c
            wmap.append(row)
        return wmap, free
    def gemv(wmap, vec, zero=True):
        if zero:
            for e in range(8): a(f'v_mov_b32 v{ACC+e}, 0')
        for m in range(16):
            for e in range(8):
                a(f'v_dot2c_f32_bf16_dpp v{ACC+e}, v{vec}, v{wmap[m][e]} row_newbcast:{m} row_mask:0xf bank_mask:0xf')
        greduce8(ACC)
    def poll(name, loads, tagregs, sleep=1, maskreg=None, chk=None, fence=True, pre=None):
        a(f's_mov_b32 s{SPIN}, 0')
        if pre is not None:
            a(f's_waitcnt vmcnt({pre})')
            a(f's_branch {name}_chk')
        a.label(name, fence=fence)
        for l in loads: a(l)
        a('s_waitcnt vmcnt(0)')
        if pre is not None: a.label(name + '_chk', fence=fence)
        if chk is not None:
            chk(); tagregs = [None]
        else:
            a(f'v_xor_b32 v{VD}, s{TAG}, v{tagregs[0]}')
        for t in tagregs[1:]:
            a(f'v_bitop3_b32 v{VD}, v{t}, s{TAG}, v{VD} bitop3:0xbe')
        if maskreg is not None:
            a(f'v_and_b32 v{VD}, v{maskreg}, v{VD}')
        a(f'v_cmp_ne_u32 vcc, 0, v{VD}')
        a(f's_cbranch_vccz {name}_ok')
        a(f's_add_u32 s{SPIN}, s{SPIN}, 1')
        a(f's_cmp_lt_u32 s{SPIN}, {SPIN_MAX}')
        a(f's_cbranch_scc0 {name}_ok')
        if sleep: a(f's_sleep {sleep}')
        a(f's_branch {name}')
        a.label(name + '_ok', fence=fence)
    def lds_wait(name, off_v, off, val, sleep, fence=True):
        a(f's_mov_b32 s{SPIN}, 0')
        a.label(name, fence=fence)
        a(f'ds_read_b32 v{VD}, v{off_v} offset:{off}')
        a('s_waitcnt lgkmcnt(0)')
        a(f'v_readfirstlane_b32 s{T2}, v{VD}')
        a(f's_cmp_ge_u32 s{T2}, {val}')
        a(f's_cbranch_scc1 {name}_ok')
        a(f's_add_u32 s{SPIN}, s{SPIN}, 1')
        a(f's_cmp_lt_u32 s{SPIN}, {SPIN_MAX*4}')
        a(f's_cbranch_scc0 {name}_ok')
        if sleep: a(f's_sleep {sleep}')
        a(f's_branch {name}')
        a.label(name + '_ok', fence=fence)

    if ep is None:
        wmap, _ = permute_weights(lambda m: 30 - 2*m)
        a(f'v_lshrrev_b32 v{VA}, 1, v{VR}')
        a(f'v_lshlrev_b32 v{VA}, 9, v{VA}')
        a(f'v_and_b32 v{VB}, 1, v{VR}')
        a(f'v_lshl_add_u32 v{VA}, v{VB}, 5, v{VA}')
        a(f'v_lshl_add_u32 v{VA}, v{VG}, 3, v{VA}')
        a(f's_lshl_b32 s{T2}, s{SB}, 6')
        a(f's_lshl_b32 s{T3}, s{WV}, 12')
        a(f's_add_u32 s{T2}, s{T2}, s{T3}')
        a(f's_add_u32 s{T2}, s{T2}, {WS_MOD}')
        a(f's_add_u32 s{T3}, s{T2}, 16384')
        stamp(0)
        if pd:
            a.label('L_pd')
            a('s_memrealtime s[92:93]')
            a('s_waitcnt lgkmcnt(0)')
            a('s_sub_u32 s92, s92, s94')
            a(f's_cmp_ge_u32 s92, {pd}')
            a('s_cbranch_scc1 L_pd_ok')
            a('s_sleep 2')
            a('s_branch L_pd')
            a.label('L_pd_ok')
        poll('L_poll_sa', [f'buffer_load_dwordx2 v[{RD}:{RD+1}], v{VA}, s[{SWS}:{SWS+3}], s{T2} offen sc1',
                           f'buffer_load_dwordx2 v[{RD+2}:{RD+3}], v{VA}, s[{SWS}:{SWS+3}], s{T3} offen sc1'], [RD+1, RD+3], sleep=psl)
        stamp(10)
        if qch: a(f's_mov_b32 s13, s{SPIN}')
        one_plus(RD+2, U0, U1)
        modulate2(U2, U3, RD+2, RD, U0, U1, VD, HP)
        gemv(wmap, HP)
    else:
        m0 = max(0, min(16, (ep - WQ) // 2 + epm))
        wmap = []
        free = SPARE
        def perm_m(m):
            nonlocal free
            A = WR + 8*m; Bq = A + 4
            a(f's_waitcnt vmcnt({30 - 2*m + (2 if 2*m+1 < ep else 0)})')
            row = [None]*8
            for c in range(4):
                a(f'v_perm_b32 v{free}, v{Bq+c}, v{A+c}, s{SELLO}')
                a(f'v_perm_b32 v{Bq+c}, v{Bq+c}, v{A+c}, s{SELHI}')
                row[2*c] = free; row[2*c+1] = Bq + c
                free = A + c
            wmap.append(row)
        for m in range(m0): perm_m(m)
        for e in range(8): a(f'v_mov_b32 v{ACC+e}, 0')
        poll('L_poll_sa', sa_loads, [RD+1, RD+3], sleep=psl, pre=32-ep)
        stamp(10)
        if qch: a(f's_mov_b32 s13, s{SPIN}')
        one_plus(RD+2, U0, U1)
        modulate2(U2, U3, RD+2, RD, U0, U1, VD, HP)
        for m in range(16):
            if m >= m0: perm_m(m)
            for e in range(8):
                a(f'v_dot2c_f32_bf16_dpp v{ACC+e}, v{HP}, v{wmap[m][e]} row_newbcast:{m} row_mask:0xf bank_mask:0xf')
        greduce8(ACC)
    a(f'v_lshlrev_b32 v{VA}, 5, v{VI}')
    a(f'v_lshl_add_u32 v{VA}, v{VG}, 3, v{VA}')
    a(f's_lshl_b32 s{T2}, s{WV}, 9')
    a(f'v_add_u32 v{VB}, s{T2}, v{VA}')
    a(f'ds_write_b64 v{VB}, v[{ACC}:{ACC+1}] offset:{L_QP}')
    a('s_waitcnt lgkmcnt(0)')
    if qd:
        a('s_memrealtime s[94:95]')
        a('s_waitcnt lgkmcnt(0)')
        a.label('L_qd')
        a('s_memrealtime s[92:93]')
        a('s_waitcnt lgkmcnt(0)')
        a('s_sub_u32 s92, s92, s94')
        a(f's_cmp_lt_u32 s92, {qd}')
        a('s_cbranch_scc1 L_qd')
    a('s_barrier')
    stamp(1)

    if nopre:
        stamp(11)
        finish(SWS, 8)
    def late_mod():
        a(f's_sub_u32 s{T4}, s2, 64')
        a(f's_cmp_lt_u32 s2, 128')
        a('s_cbranch_scc1 L_v_moddone')
        mod_issue(cv)
        mod_compute(cv, 0, L_CNT+4, 'L_v_moddone')
        a.label('L_v_moddone')
    def wait_kend(name):
        if not lpl: return
        a(f'v_mov_b32 v{VC}, 0')
        lds_wait(name, VC, L_CNT+12, 1, 16)
    if lme: late_mod()
    if tlbv:
        srd(SW, 20, 0x10000000)
        a(f's_lshl_b32 s{T2}, s2, 20')
        a(f'v_mov_b32 v{VA}, 0')
        a('s_mov_b64 exec, 1')
        a(f'buffer_load_dword v8, v{VA}, s[{SW}:{SW+3}], s{T2} offen')
        a('s_mov_b64 exec, -1')
    if tlbo == 1:
        a(f'v_mov_b32 v{VA}, 0')
        a('s_mov_b64 exec, 1')
        a(f'buffer_load_dword v9, v{VA}, s[{SOUT}:{SOUT+3}], 0 offen sc1')
        a('s_mov_b64 exec, -1')
    srd(SW, 24, 4096*512*2)
    a(f'v_lshlrev_b32 v{VA}, 4, v{VI}')
    a(f'v_lshl_add_u32 v{VA}, v{VG}, 11, v{VA}')
    a(f's_lshl_b32 s{T2}, s{HD}, 17')
    if pre is not None and pre & 8: a(f's_mov_b32 s{T2}, 0')
    a(f's_lshl_b32 s{T3}, s{WV}, 8')
    a(f's_add_u32 s{T2}, s{T2}, s{T3}')
    if wol:
        a(f'v_mov_b32 v{VA}, v1')
        a(f's_lshl_b32 s{T2}, s{HD}, 17')
        a(f's_lshl_b32 s{T3}, s{WV}, {15 if wol == 1 else 11}')
        a(f's_add_u32 s{T2}, s{T2}, s{T3}')
    if rot & 2:
        a(f's_mov_b32 s{T0}, s{T2}')
        a(f's_lshl_b32 s{T1}, s{SB}, 14')
        a(f's_add_u32 s{T2}, s{T0}, s{T1}')
    for j in range(32 if (pre is None or pre & 2) else 0):
        if j >= SW_: a(f's_waitcnt vmcnt({SW_-1})')
        r = WR + 4*j
        a(f'buffer_load_dwordx4 v[{r}:{r+3}], v{VA}, s[{SW}:{SW+3}], s{T2} offen offset:{(j%2)*1024} {wopol}')
        if rot & 2 and j % 4 == 3:
            if j < 31:
                a(f's_add_u32 s{T1}, s{T1}, {1 << 14}')
                a(f's_and_b32 s{T1}, s{T1}, 0x1ffff')
                a(f's_add_u32 s{T2}, s{T0}, s{T1}')
        elif j % 2 == 1 and j < 31: a(f's_add_u32 s{T2}, s{T2}, {2048 if wol == 1 else 8192}')
    wmap, _ = permute_weights(lambda m: 30 - 2*m)
    if not lme: late_mod()
    if xw:
        a(f's_mov_b32 m0, {L_DUM}')
        a(f's_and_b32 s{T0}, s2, 7')
        a(f's_cmp_gt_u32 s{T0}, {xwx}')
        a('s_cbranch_scc1 L_noxw')
        a(f's_lshr_b32 s{T0}, s2, 3')
        a(f's_lshl_b32 s{T0}, s{T0}, 2')
        a(f's_add_u32 s{T0}, s{T0}, s{WV}')
        a(f's_mul_i32 s{T0}, s{T0}, 11008')
        for p in (28, 30, 32):
            srd(SW, p, 512*1376*2)
            for j in range(xw):
                a(f's_waitcnt vmcnt({xwW-1})')
                a(f's_add_u32 s{T1}, s{T0}, {j*1024}')
                a(f'buffer_load_dwordx4 v1, s[{SW}:{SW+3}], s{T1} offen {fpol} lds')
        a('s_waitcnt vmcnt(0)')
        a.label('L_noxw')

    if pre is not None and not pre & 4:
        stamp(11)
        finish(SWS, 8)
    for r in (24, 25, 26, 27, 28, 29, 60, 61, 62, 63): a(f'v_mov_b32 v{r}, 0')
    a(f's_mov_b32 s{T5}, {ACTB}')
    a(f's_cmp_lt_u32 s{F1T}, {NF1}')
    a('s_cbranch_scc0 L_nof1w')
    if not dfw: f1_dma(VB, VC, SST, WV, F1T, T1, T2, STGB, SW_ < 8, fpol)
    AT = 27
    a(f'v_bfe_u32 v{VA}, v{VI}, 1, 1')
    a(f'v_mul_u32_u24 v{VA}, {2*STGW}, v{VA}')
    a(f'v_and_b32 v{VD}, 1, v{VI}')
    a(f'v_lshl_add_u32 v{VA}, v{VD}, 12, v{VA}')
    a(f'v_lshl_add_u32 v{VA}, v{VG}, 8, v{VA}')
    a(f'v_lshrrev_b32 v{VD}, 2, v{VI}')
    a(f'v_lshl_add_u32 v{VA}, v{VD}, 5, v{VA}')
    a(f's_lshl_b32 s{T2}, s{WV}, 3')
    a(f's_add_u32 s{T2}, s{T2}, {L_STG}')
    a(f'v_add_u32 v{AT}, s{T2}, v{VA}')
    def f1_tr():
        for s in range(8):
            o = (s >> 2)*STGW + (s & 3)*1024
            a(f'ds_read_b64_tr_b16 v[{BF+4*s}:{BF+4*s+1}], v{AT} offset:{o}')
            a(f'ds_read_b64_tr_b16 v[{BF+4*s+2}:{BF+4*s+3}], v{AT} offset:{o+128}')
    if not dfw:
        a(f'v_mov_b32 v{VC}, 0')
        a(f'v_mov_b32 v{VB}, 1')
        a('s_waitcnt vmcnt(0)')
        a('s_mov_b64 exec, 1')
        a(f'ds_add_u32 v{VC}, v{VB} offset:{L_CNT+20}')
        a('s_mov_b64 exec, -1')
        lds_wait('L_w_stg', VC, L_CNT+20, 4, 8)
        f1_tr()
    SBF = BF + 32; C1F = D1
    wait_kend('L_wk1')
    a(f'v_lshrrev_b32 v{VA}, 2, v0')
    a(f'v_lshlrev_b32 v{VA}, 9, v{VA}')
    a(f'v_and_b32 v{VB}, 3, v0')
    a(f'v_lshl_add_u32 v{VA}, v{VB}, 4, v{VA}')
    a(f's_lshl_b32 s{T0}, s{WV}, 7')
    SO = [T0, T1, T3, T6]
    a(f's_add_u32 s{T0}, s{T0}, {WS_MOD + 3*16384}')
    for k in range(1, 4): a(f's_add_u32 s{SO[k]}, s{T0}, {k*8192}')
    for rr in range(2):
        loads = []; tags = []
        for k in range(4):
            r = 8 + 4*k
            loads.append(f'buffer_load_dwordx4 v[{r}:{r+3}], v{VA}, s[{SWS}:{SWS+3}], s{SO[k]} offen offset:{rr*64} sc1')
            tags += [r+1, r+3]
        poll(f'L_poll_sb{rr}', loads, tags, sleep=32)
        for q in range(4):
            unpack(SBF+8*rr+2*q, SBF+8*rr+2*q+1, 8+4*(q>>1)+2*(q&1))
            c1 = C1F+8*rr+2*q
            unpack(c1, c1+1, 16+4*(q>>1)+2*(q&1))
            a(f'v_add_f32 v{c1}, 1.0, v{c1}')
            a(f'v_add_f32 v{c1+1}, 1.0, v{c1+1}')
            rnd2(c1, c1+1, U0)
    AH = 24; AA = 25; AS = 26
    a(f's_mul_i32 s{T2}, s{WV}, {2*H2S}')
    a(f'v_lshlrev_b32 v{AH}, 3, v0')
    a(f'v_add_u32 v{AH}, s{T2}, v{AH}')
    a(f'v_and_b32 v{AA}, 7, v0')
    a(f'v_mul_u32_u24 v{AA}, {H2S}, v{AA}')
    a(f'v_bfe_u32 v{VB}, v0, 3, 1')
    a(f'v_lshl_add_u32 v{AA}, v{VB}, 9, v{AA}')
    a(f'v_lshl_add_u32 v{AA}, v{VG}, 4, v{AA}')
    a(f'v_bfe_u32 v{AS}, v0, 4, 1')
    a(f'v_lshlrev_b32 v{AS}, 6, v{AS}')
    a(f'v_lshrrev_b32 v{VB}, 5, v0')
    a(f'v_lshl_add_u32 v{AS}, v{VB}, 5, v{AS}')
    a(f'v_bfe_u32 v{VB}, v0, 1, 1')
    a(f'v_lshl_add_u32 v{AS}, v{VB}, 4, v{AS}')
    a(f's_lshr_b32 s{T5}, s{F1T}, 2')
    a(f's_lshl_b32 s{T5}, s{T5}, 11')
    a(f's_bfe_u32 s{T2}, s{F1T}, 0x10001')
    a(f's_lshl_b32 s{T2}, s{T2}, 7')
    a(f's_add_u32 s{T5}, s{T5}, s{T2}')
    a(f's_and_b32 s{T2}, s{F1T}, 1')
    a(f's_lshl_b32 s{T2}, s{T2}, 9')
    a(f's_add_u32 s{T5}, s{T5}, s{T2}')
    a(f's_and_b32 s{T2}, s{WV}, 1')
    a(f's_lshl_b32 s{T2}, s{T2}, 10')
    a(f's_add_u32 s{T5}, s{T5}, s{T2}')
    a(f's_lshr_b32 s{T2}, s{WV}, 1')
    a(f's_lshl_b32 s{T2}, s{T2}, 8')
    a(f's_add_u32 s{T5}, s{T5}, s{T2}')
    if acs > 7: a(f's_lshl_b32 s{T5}, s{T5}, {acs-7}')
    a(f's_add_u32 s{T5}, s{T5}, {ACTB}')
    AX1 = 28
    a(f'v_lshrrev_b32 v{AX1}, 2, v0')
    a(f'v_lshlrev_b32 v{AX1}, {xs}, v{AX1}')
    a(f'v_and_b32 v{VB}, 3, v0')
    a(f'v_lshl_add_u32 v{AX1}, v{VB}, 4, v{AX1}')
    if rep & 1:
        a(f's_and_b32 s{T2}, s2, 7')
        a(f's_lshl_b32 s{T2}, s{T2}, 15')
        a(f'v_add_u32 v{AX1}, s{T2}, v{AX1}')
    if rep & 2:
        a(f'v_bfe_u32 v{AS}, v0, 4, 1')
        a(f'v_lshlrev_b32 v{AS}, 6, v{AS}')
        a(f'v_lshrrev_b32 v{VB}, 5, v0')
        a(f'v_lshl_add_u32 v{AS}, v{VB}, 5, v{AS}')
        a(f'v_bfe_u32 v{VB}, v0, 2, 1')
        a(f'v_lshl_add_u32 v{AS}, v{VB}, 4, v{AS}')
        a(f'v_bfe_u32 v{VB}, v0, 3, 1')
        a(f'v_and_b32 v{VD}, 3, v0')
        a(f'v_lshl_add_u32 v{VB}, v{VB}, 2, v{VD}')
        a(f'v_mul_u32_u24 v{VB}, {ACS}, v{VB}')
        a(f'v_add_u32 v{AS}, v{VB}, v{AS}')
    a('s_waitcnt lgkmcnt(0)')
    a('s_branch L_wdone')
    a.label('L_nof1w')
    a(f's_mov_b32 s{T0}, s{F2T}')
    a(f's_cmp_lt_u32 s{T0}, 32')
    a('s_cbranch_scc0 L_wdone')
    AT2 = 38
    tr_addr(cv, AT2)
    if not dfw:
        f2_dma(VB, VC, SST, WV, T0, T1, T2, T3, STGB, SW_ < 8, fpol)
        a('s_waitcnt vmcnt(0)')
        for s in range(12): tr_read(BF + 4*s, AT2, s)
    GBP = 125
    wait_kend('L_wk2')
    a(f'v_lshlrev_b32 v{VA}, 3, v0')
    a(f's_lshl_b32 s{T2}, s{T0}, 9')
    a(f's_add_u32 s{T2}, s{T2}, {WS_MOD + 5*16384}')
    poll('L_poll_gb', [f'buffer_load_dwordx2 v[8:9], v{VA}, s[{SWS}:{SWS+3}], s{T2} offen sc1'], [9], sleep=32)
    a(f'v_mov_b32 v{GBP}, v8')
    AD = 24; VM = 30; AX = 60; AR = 61; AO = 62; AW = 63
    a(f'v_bfe_u32 v{VB}, v0, 3, 1')
    a(f's_mul_i32 s{T3}, s{WV}, 12')
    a(f'v_add_u32 v{VB}, s{T3}, v{VB}')
    a(f'v_and_b32 v{VA}, {0x3f0 & ~0x80}, v1')
    a(f'v_add_u32 v{VA}, {21*2048}, v{VA}')
    a(f's_mul_i32 s{T3}, s{WV}, {6*2048}')
    for u in range(6):
        a(f'v_add_u32 v{VC}, {2*u}, v{VB}')
        a(f'v_cmp_gt_u32 vcc, 43, v{VC}')
        a(f'v_cndmask_b32 v{VM+u}, 0, -1, vcc')
        a(f'v_add_u32 v{VC}, s{T3}, v1')
        a(f'v_cndmask_b32 v{AD+u}, v{VA}, v{VC}, vcc')
        if acs > 7:
            a(f'v_lshrrev_b32 v{VC}, 7, v{AD+u}')
            a(f'v_and_b32 v{AD+u}, 127, v{AD+u}')
            a(f'v_lshl_add_u32 v{AD+u}, v{VC}, {acs}, v{AD+u}')
        if u < 5: a(f's_add_u32 s{T3}, s{T3}, 2048')
    a(f'v_lshrrev_b32 v{AX}, 3, v0')
    a(f'v_lshlrev_b32 v{AO}, 10, v{AX}')
    a(f'v_lshlrev_b32 v{AX}, {xs+5}, v{AX}')
    a(f'v_and_b32 v{VB}, 7, v0')
    a(f'v_lshl_add_u32 v{AX}, v{VB}, 3, v{AX}')
    if rep & 1:
        a(f's_and_b32 s{T2}, s2, 7')
        a(f's_lshl_b32 s{T2}, s{T2}, 15')
        a(f'v_add_u32 v{AX}, s{T2}, v{AX}')
    if rep & 2:
        a(f's_and_b32 s{T2}, s2, 7')
        a(f's_mul_i32 s{T2}, s{T2}, {ACS}')
        for u in range(6): a(f'v_add_u32 v{AD+u}, s{T2}, v{AD+u}')
    a(f'v_lshl_add_u32 v{AO}, v{VB}, 2, v{AO}')
    red_addr(cv, AR)
    a(f's_lshl_b32 s{T2}, s{WV}, 10')
    a(f'v_add_u32 v{AW}, s{T2}, v1')
    a('s_waitcnt lgkmcnt(0)')
    a.label('L_wdone')
    GAP = 124; XR1 = 126; AQ = 36; A64 = 37
    wait_kend('L_wk3')
    a(f'v_and_b32 v{VB}, 3, v0')
    a(f'v_lshrrev_b32 v{VC}, 5, v0')
    a(f'v_lshl_add_u32 v{VB}, v{VB}, 1, v{VC}')
    a(f'v_lshlrev_b32 v{AQ}, 3, v{VB}')
    a(f's_lshl_b32 s{T2}, s{SB}, 6')
    a(f's_lshl_b32 s{T3}, s{SH}, 9')
    a(f's_add_u32 s{T2}, s{T2}, s{T3}')
    a(f's_add_u32 s{T2}, s{T2}, {WS_MOD + 2*16384}')
    poll('L_poll_ga', [f'buffer_load_dwordx2 v[8:9], v{AQ}, s[{SWS}:{SWS+3}], s{T2} offen sc1'], [9], sleep=32)
    a(f'v_mov_b32 v{GAP}, v8')
    if xfl:
        a(f'v_bfe_u32 v{VA}, v0, 2, 1')
        a(f'v_lshl_add_u32 v{AQ}, v{VA}, 6, v{AQ}')
    if rep & 1:
        a(f'v_bfe_u32 v{VA}, v0, 3, 2')
        a(f'v_lshl_add_u32 v{AQ}, v{VA}, 15, v{AQ}')
    a(f'v_lshlrev_b32 v{VA}, 2, v{VB}')
    a(f's_lshl_b32 s{T2}, s{SB}, 10')
    a(f's_lshl_b32 s{T3}, s{SH}, 5')
    a(f's_add_u32 s{T2}, s{T2}, s{T3}')
    a(f'buffer_load_dword v{XR1}, v{VA}, s[{SX}:{SX+3}], s{T2} offen')
    if rot & 2:
        a(f's_lshl_b32 s{T2}, s{SB}, 1')
        a(f'v_add_u32 v{VB}, s{T2}, v{VI}')
        a(f'v_and_b32 v{VB}, 15, v{VB}')
        a(f'v_lshlrev_b32 v{VA}, 5, v{VB}')
    else:
        a(f'v_lshlrev_b32 v{VA}, 5, v{VI}')
    a(f'v_lshl_add_u32 v{VA}, v{VG}, 3, v{VA}')
    a(f'v_lshrrev_b32 v{VB}, 2, v{VI}')
    a(f'v_lshlrev_b32 v{VB}, 12, v{VB}')
    if wx & 3: a(f'v_xor_b32 v{VB}, {(wx & 3) << 12}, v{VB}')
    a(f'v_and_b32 v{VC}, 3, v{VI}')
    a(f'v_lshl_add_u32 v{VB}, v{VC}, 5, v{VB}')
    a(f'v_lshl_add_u32 v{VB}, v{VG}, 3, v{VB}')
    a(f'v_lshrrev_b32 v{A64}, 2, v0')
    a(f'v_lshlrev_b32 v{A64}, 7, v{A64}')
    a(f'v_and_b32 v{VC}, 3, v0')
    a(f'v_lshl_add_u32 v{A64}, v{VC}, 4, v{A64}')
    a(f's_lshl_b32 s{T4}, s{SB}, 16')
    a(f's_lshl_b32 s{T3}, s{WV}, 14')
    a(f's_add_u32 s{T4}, s{T4}, s{T3}')
    a(f's_lshl_b32 s{T3}, s{HD}, 7')
    a(f's_add_u32 s{T4}, s{T4}, s{T3}')
    if wx & 12: a(f's_xor_b32 s{T4}, s{T4}, {(wx & 12) << 12}')
    a(f's_add_u32 s{T4}, s{T4}, {WS_WOP}')
    NP = 8; NC = 16
    a(f'v_lshrrev_b32 v{VC}, 5, v0')
    a(f'v_lshlrev_b32 v{VC}, 4, v{VC}')
    a(f'v_lshrrev_b32 v{NP}, v{VC}, s{TAG}')
    a(f'v_and_b32 v{VC}, 1, v0')
    a(f'v_lshlrev_b32 v{VC}, 4, v{VC}')
    a(f'v_lshrrev_b32 v{NC}, v{VC}, s{TAG}')
    for k in range(1, 4):
        a(f'v_lshrrev_b32 v{NP+k}, {4*k}, v{NP}')
        a(f'v_lshrrev_b32 v{NC+k}, {4*k}, v{NC}')
    if mo:
        for k in range(4): a(f'v_and_b32 v{NC+k}, 15, v{NC+k}')
    a('s_waitcnt vmcnt(0)')
    stamp(11)
    if lms:
        a(f's_lshr_b32 s{T2}, s2, 3')
        a(f's_lshl_b32 s{T2}, s{T2}, 2')
        a(f's_add_u32 s{T2}, s{T2}, s{WV}')
        a(f's_mul_i32 s{T2}, s{T2}, {lms}')
        a(f'v_mov_b32 v{VC}, 0')
        a('s_mov_b32 s10, 0'); a('s_mov_b32 s11, 0'); a('s_mov_b32 s13, -1'); a('s_mov_b32 s4, -1')
        a(f's_mov_b32 s{SPIN}, 0')
        a('s_mov_b64 exec, 1')
        a.label('L_lms')
        a(f's_and_b32 s{T3}, s{T2}, 63')
        a(f's_lshl_b32 s{T3}, s{T3}, 7')
        a(f's_lshr_b32 s{T1}, s{T2}, 6')
        a(f's_lshl_b32 s{T1}, s{T1}, 14')
        a(f's_add_u32 s{T3}, s{T3}, s{T1}')
        a(f's_add_u32 s{T3}, s{T3}, {0x200000}')
        for pol, (sm, mn) in enumerate(((10, 13), (11, 4))):
            a('s_memtime s[92:93]')
            a('s_waitcnt lgkmcnt(0)')
            a(f'buffer_load_dword v{VD}, v{VC}, s[{SWS}:{SWS+3}], s{T3} offen sc1')
            a('s_waitcnt vmcnt(0)')
            a('s_memtime s[94:95]')
            a('s_waitcnt lgkmcnt(0)')
            a('s_sub_u32 s92, s94, s92')
            a(f's_add_u32 s{sm}, s{sm}, s92')
            a(f's_min_u32 s{mn}, s{mn}, s92')
            a(f's_add_u32 s{T3}, s{T3}, 8192')
        a(f's_add_u32 s{T2}, s{T2}, 1')
        a(f's_add_u32 s{SPIN}, s{SPIN}, 1')
        a(f's_cmp_lt_u32 s{SPIN}, {lms}')
        a('s_cbranch_scc1 L_lms')
        a('s_mov_b64 exec, -1')
    if lm2:
        a(f's_cmp_lg_u32 s{WV}, 0')
        a('s_cbranch_scc1 L_lm2_end')
        a(f's_mul_i32 s{T2}, s2, {lm2}')
        a('s_mov_b32 s10, 0'); a('s_mov_b32 s11, 0'); a('s_mov_b32 s13, -1'); a('s_mov_b32 s4, -1')
        a(f's_mov_b32 s{SPIN}, 0')
        a.label('L_lm2')
        a(f's_and_b32 s{T3}, s{T2}, 63')
        a(f's_lshl_b32 s{T3}, s{T3}, 7')
        a(f's_lshr_b32 s{T1}, s{T2}, 6')
        a(f's_lshl_b32 s{T1}, s{T1}, 14')
        a(f's_add_u32 s{T3}, s{T3}, s{T1}')
        a(f's_add_u32 s{T3}, s{T3}, {lm2b}')
        for pol, (sm, mn) in enumerate(((10, 13), (11, 4))):
            a('s_memtime s[92:93]')
            a('s_waitcnt lgkmcnt(0)')
            a(f's_buffer_load_dword s{T1}, s[{SWS}:{SWS+3}], s{T3}')
            a('s_waitcnt lgkmcnt(0)')
            a('s_memtime s[94:95]')
            a('s_waitcnt lgkmcnt(0)')
            a('s_sub_u32 s92, s94, s92')
            a(f's_add_u32 s{sm}, s{sm}, s92')
            a(f's_min_u32 s{mn}, s{mn}, s92')
            a(f's_add_u32 s{T3}, s{T3}, 8192')
        a(f's_add_u32 s{T2}, s{T2}, 1')
        a(f's_add_u32 s{SPIN}, s{SPIN}, 1')
        a(f's_cmp_lt_u32 s{SPIN}, {lm2}')
        a('s_cbranch_scc1 L_lm2')
        a.label('L_lm2_end')
    if dry or dry2:
        a(f's_mov_b64 s[{DRY}:{DRY+1}], 0')
        a('s_mov_b64 exec, 0')
        a('s_nop 4')
        a('s_branch L_vlast' if dry2 else 's_branch L_t1')
        a.label('L_real')
        a(f's_mov_b64 s[{DRY}:{DRY+1}], -1')
        a('s_mov_b64 exec, -1')
    a(f'v_mov_b32 v{VC}, 0')
    for e in range(8): a(f'v_mov_b32 v{ACC+e}, 0')
    lds_wait('L_w_stat', VC, L_CNT+8, 4, wsl, fence=not nf)
    stamp(8)
    if dry: a.label('L_t1', fence=False)
    LO = L_OP
    for w in range(4):
        a(f'ds_read_b64 v[{RD+2*w}:{RD+2*w+1}], v{VA} offset:{LO + w*512}')
    a('s_waitcnt lgkmcnt(0)')
    for k in range(4): a(f'v_add_f32 v{RD+k}, v{RD+k}, v{RD+k+4}')
    for k in range(2): a(f'v_add_f32 v{RD+k}, v{RD+k}, v{RD+k+2}')
    a(f'v_cvt_pk_bf16_f32 v{HP}, v{RD}, v{RD+1}')
    if dbg:
        a(f's_lshl_b32 s{T2}, s{SB}, 5')
        a(f's_or_b32 s{T2}, s{T2}, s{HD}')
        a(f's_lshl_b32 s{T2}, s{T2}, 8')
        a(f's_add_u32 s{T2}, s{T2}, {WS_DBG + 0x10000}')
        a(f'v_lshrrev_b32 v{VC}, 1, v{VA}')
        a(f'buffer_store_dword v{HP}, v{VC}, s[{SWS}:{SWS+3}], s{T2} offen')
    gemv(wmap, HP, zero=False)
    a(f'v_add_u32 v{ACC}, 8, v{ACC}')
    a(f'v_add_u32 v{ACC+1}, 8, v{ACC+1}')
    a(f'v_mov_b32 v{ACC+2}, v{ACC}')
    a(f'v_mov_b32 v{ACC+3}, v{ACC+1}')
    a(f'v_permlane16_swap_b32 v{ACC}, v{ACC+2}')
    a(f'v_permlane16_swap_b32 v{ACC+1}, v{ACC+3}')
    for k in range(4): a(f'v_bfi_b32 v{RD+k}, 15, v{NP+k}, v{ACC+k}')
    ex_mask(dry, '0xffff', '0xffff')
    a(f'buffer_store_dwordx4 v[{RD}:{RD+3}], v{VB}, s[{SWS}:{SWS+3}], s{T4} offen sc1')
    ex_full(dry)
    stamp(2)
    if notail: finish(SWS, 8)
    if xa:
        a(f'v_mov_b32 v{VC}, 0')
        a(f'ds_read_b32 v{VD}, v{VC} offset:{L_CNT+16}')
        a('s_waitcnt lgkmcnt(0)')
        a(f'v_readfirstlane_b32 s{T3}, v{VD}')
        a(f's_add_u32 s{T3}, s{T3}, {tsched(512) + bo1}')
        a(f's_mov_b32 s{SPIN}, 0')
        a.label('L_xa')
        a('s_memrealtime s[92:93]')
        a('s_waitcnt lgkmcnt(0)')
        a(f's_sub_u32 s92, s92, s{T3}')
        a('s_cmp_ge_i32 s92, 0')
        a('s_cbranch_scc1 L_xa_ok')
        a(f's_add_u32 s{SPIN}, s{SPIN}, 1')
        a(f's_cmp_lt_u32 s{SPIN}, 64')
        a('s_cbranch_scc1 L_xa')
        a.label('L_xa_ok')
        stamp(6)
        a(f's_lshl_b32 s{T2}, s{SB}, 16')
        a(f's_lshl_b32 s{T3}, s{WV}, 14')
        a(f's_add_u32 s{T2}, s{T2}, s{T3}')
        a(f's_add_u32 s{T2}, s{T2}, {WS_WOP}')
        for j in range(xa):
            a(f'buffer_load_dwordx4 v[{WR+4*j}:{WR+4*j+3}], v1, s[{SWS}:{SWS+3}], s{T2} offen offset:{(j%4)*1024} {xapol}')
            if j % 4 == 3: a(f's_add_u32 s{T2}, s{T2}, 4096')
        a('s_waitcnt vmcnt(0)')
        stamp(7)
        finish(SWS, 8)
    a(f's_cmp_lt_u32 s{F1T}, {NF1}')
    a('s_cbranch_scc1 L_gate')
    a(f's_mov_b32 s{T0}, s{F2T}')
    a(f's_cmp_lt_u32 s{T0}, 32')
    a('s_cbranch_scc1 L_gate')
    a(f's_cmp_eq_u32 s{WV}, 0')
    a('s_cbranch_scc1 L_gate')
    a('s_branch L_fin')
    a.label('L_gate')
    def twait(name, off):
        a(f's_mov_b32 s{SPIN}, 0')
        if dry: a(f's_andn2_b32 s{SPIN}, 128, s{DRY}')
        a.label(name, fence=False)
        a('s_memrealtime s[92:93]')
        a('s_waitcnt lgkmcnt(0)')
        a(f's_sub_u32 s92, s92, s{T6}')
        a(f's_cmp_ge_i32 s92, {off}')
        a(f's_cbranch_scc1 {name}_ok')
        a(f's_add_u32 s{SPIN}, s{SPIN}, 1')
        a(f's_cmp_lt_u32 s{SPIN}, 128')
        a(f's_cbranch_scc1 {name}')
        a.label(name + '_ok', fence=False)
    def poll2(name, t0, dt, mk_loads, mk_chk, A, B, data):
        twait(name + '_t0', t0)
        for l in mk_loads(A): a(l)
        twait(name + '_t1', t0 + dt)
        for l in mk_loads(B): a(l)
        a(f's_mov_b32 s{SPIN}, 0')
        a(f's_waitcnt vmcnt({len(mk_loads(B))})')
        mk_chk(A)
        a(f'v_cmp_ne_u32 vcc, 0, v{VD}')
        if dry: a(f's_cbranch_execz {name}_b')
        a(f's_cbranch_vccz {name}_ok')
        a.label(name + '_b', fence=False)
        a(f's_mov_b32 s{SPIN}, 1')
        a('s_waitcnt vmcnt(0)')
        mk_chk(B)
        a(f'v_cmp_ne_u32 vcc, 0, v{VD}')
        for d in data: a(f'v_mov_b32 v{A+d}, v{B+d}')
        a(f's_cbranch_vccz {name}_ok')
        a.label(name, fence=False)
        for l in mk_loads(A): a(l)
        a('s_waitcnt vmcnt(0)')
        mk_chk(A)
        a(f'v_cmp_ne_u32 vcc, 0, v{VD}')
        a(f's_add_u32 s{SPIN}, s{SPIN}, 1')
        a(f's_cbranch_vccz {name}_ok')
        a(f's_cmp_lt_u32 s{SPIN}, {SPIN_MAX}')
        a(f's_cbranch_scc0 {name}_ok')
        a('s_sleep 1')
        a(f's_branch {name}')
        a.label(name + '_ok', fence=False)
    def tagchk(regs):
        a(f'v_xor_b32 v{VD}, s{TAG}, v{regs[0]}')
        for t in regs[1:]: a(f'v_bitop3_b32 v{VD}, v{t}, s{TAG}, v{VD} bitop3:0xbe')
    if tb2 is not None:
        a(f'v_mov_b32 v{VC}, 0')
        a(f'ds_read_b32 v{VD}, v{VC} offset:{L_CNT+16}')
        a('s_waitcnt lgkmcnt(0)')
        a(f'v_readfirstlane_b32 s{T6}, v{VD}')
        a(f's_add_u32 s{T6}, s{T6}, {tsched(512) + bo1}')
    a(f's_cmp_lg_u32 s{WV}, 0')
    a('s_cbranch_scc1 L_r1done')
    GAU = ACC; XRU = ACC + 2
    if mo:
        unpack(GAU, GAU+1, GAP); unpack(XRU, XRU+1, XR1)
        a(f'v_mov_b32 v{RD+1}, s{TAG}')
    a(f's_lshl_b32 s{RW}, s{SB}, 5')
    a(f's_or_b32 s{RW}, s{RW}, s{SH}')
    a(f's_lshr_b32 s{T2}, s{RW}, 1')
    if wx: a(f's_xor_b32 s{T2}, s{T2}, {wx}')
    a(f's_lshl_b32 s{T2}, s{T2}, 12')
    a(f's_and_b32 s{T3}, s{RW}, 1')
    a(f's_lshl_b32 s{T3}, s{T3}, 6')
    a(f's_add_u32 s{T2}, s{T2}, s{T3}')
    a(f's_add_u32 s{T2}, s{T2}, {WS_WOP}')
    loads = [f'buffer_load_dwordx4 v[{8+4*j}:{8+4*j+3}], v{A64}, s[{SWS}:{SWS+3}], s{T2} offen offset:{j*2048} sc1' for j in range(2)]
    def chk8():
        a(f'v_xor_b32 v{VD}, v8, v{NC}')
        for r in range(9, 16): a(f'v_bitop3_b32 v{VD}, v{r}, v{NC + (r & 3)}, v{VD} bitop3:0xbe')
        a(f'v_and_b32 v{VD}, 15, v{VD}')
    if p2 is not None and p2[0]:
        if tpr: a(f's_mov_b32 s14, s{T6}')
        def chk8b(R):
            a(f'v_xor_b32 v{VD}, v{R}, v{NC}')
            for r in range(1, 8): a(f'v_bitop3_b32 v{VD}, v{R+r}, v{NC + (r & 3)}, v{VD} bitop3:0xbe')
            a(f'v_and_b32 v{VD}, 15, v{VD}')
        poll2('L_poll_wop', 0, p2[0], lambda R: [f'buffer_load_dwordx4 v[{R+4*j}:{R+4*j+3}], v{A64}, s[{SWS}:{SWS+3}], s{T2} offen offset:{j*2048} sc1' for j in range(2)],
              chk8b, 8, WR+112, range(8))
    elif tb2 is not None:
        twait('L_tw1', 0)
        if tpr: a(f's_mov_b32 s14, s{T6}')
    elif bo1 is not None:
        a(f'v_mov_b32 v{VC}, 0')
        a(f'ds_read_b32 v{VD}, v{VC} offset:{L_CNT+16}')
        if slp: a(f'ds_read_b32 v{U0}, v{VC} offset:{L_CNT+24}')
        a('s_waitcnt lgkmcnt(0)')
        a(f'v_readfirstlane_b32 s{T3}, v{VD}')
        if slp:
            a(f'v_readfirstlane_b32 s{T1}, v{U0}')
            a(f's_sub_u32 s{T1}, s{T3}, s{T1}')
            a(f's_min_i32 s{T1}, s{T1}, 80')
            a(f's_max_i32 s{T1}, s{T1}, -80')
            a(f's_mul_i32 s{T1}, s{T1}, {slp}')
            a(f's_ashr_i32 s{T1}, s{T1}, 4')
            a(f's_add_u32 s{T3}, s{T3}, s{T1}')
        a(f's_add_u32 s{T3}, s{T3}, {tsched(512) + bo1}')
        a(f's_mov_b32 s{SPIN}, 0')
        if dry: a(f's_andn2_b32 s{SPIN}, 64, s{DRY}')
        a.label('L_bo1', fence=not nf)
        a('s_memrealtime s[92:93]')
        a('s_waitcnt lgkmcnt(0)')
        a(f's_sub_u32 s92, s92, s{T3}')
        a('s_cmp_ge_i32 s92, 0')
        a('s_cbranch_scc1 L_bo1_ok')
        a(f's_add_u32 s{SPIN}, s{SPIN}, 1')
        a(f's_cmp_lt_u32 s{SPIN}, 64')
        a('s_cbranch_scc1 L_bo1')
        a.label('L_bo1_ok', fence=not nf)
        if tpr: a(f's_mov_b32 s14, s{T3}')
    if not mo:
        if not (p2 is not None and p2[0]): poll('L_poll_wop', loads, None, chk=chk8, fence=not nf)
        if tst: stamp(6); a(f's_mov_b32 s5, s{SPIN}')
        for r in range(8, 16): a(f'v_and_b32 v{r}, -16, v{r}')
        a('v_pk_add_f32 v[8:9], v[8:9], v[12:13]')
        a('v_pk_add_f32 v[10:11], v[10:11], v[14:15]')
        a('v_permlane32_swap_b32 v8, v10')
        a('v_permlane32_swap_b32 v9, v11')
        a('v_pk_add_f32 v[8:9], v[8:9], v[10:11]')
        a('v_mov_b32 v10, v8'); a('v_mov_b32 v11, v9')
        a('v_permlane16_swap_b32 v8, v10')
        a('v_permlane16_swap_b32 v9, v11')
        a('v_pk_add_f32 v[8:9], v[8:9], v[10:11]')
        for ctl_ in ('row_ror:4', 'row_ror:8'):
            for k in range(2): a(f'v_add_f32_dpp v{8+k}, v{8+k}, v{8+k} {ctl_} row_mask:0xf bank_mask:0xf')
        rnd2(8, 9, VD)
        modulate2(8, 9, GAP, XR1, U2, U3, VD, RD)
        a(f'v_mov_b32 v{RD+1}, s{TAG}')
        a(f's_lshl_b32 s{T2}, s{RW}, {xs}')
        a(f's_add_u32 s{T2}, s{T2}, {X1B}')
        if rep & 1:
            a(f's_add_u32 s{T3}, s{T2}, {4*XCS}')
            a(f'buffer_store_dwordx2 v[{RD}:{RD+1}], v{AQ}, s[{SWS}:{SWS+3}], s{T2} offen sc1')
            a(f'buffer_store_dwordx2 v[{RD}:{RD+1}], v{AQ}, s[{SWS}:{SWS+3}], s{T3} offen sc1')
        else:
            if xfl: ex_mask(dry, '0xff', '0xff')
            else: ex_mask(dry, '0xf', '0xf')
            a(f'buffer_store_dwordx2 v[{RD}:{RD+1}], v{AQ}, s[{SWS}:{SWS+3}], s{T2} offen sc1')
            ex_full(dry)
    else:
        assert rep & 1 and p2 is None
        a(f's_mov_b32 s{SPIN}, 0')
        a.label('L_poll_wop', fence=False)
        for l in loads: a(l)
        a(f's_lshl_b32 s{T1}, s{RW}, {xs}')
        a(f's_add_u32 s{T1}, s{T1}, {X1B}')
        a(f's_add_u32 s{T3}, s{T1}, {4*XCS}')
        a('s_waitcnt vmcnt(1)')
        for r in range(8, 12): a(f'v_xor_b32 v{r}, v{NC + (r & 3)}, v{r}')
        a(f'v_or3_b32 v{VD}, v8, v9, v10')
        a('s_waitcnt vmcnt(0)')
        for r in range(12, 16): a(f'v_xor_b32 v{r}, v{NC + (r & 3)}, v{r}')
        a(f'v_pk_add_f32 v[{WR}:{WR+1}], v[8:9], v[12:13]')
        a(f'v_pk_add_f32 v[{WR+2}:{WR+3}], v[10:11], v[14:15]')
        a(f'v_or3_b32 v{VD}, v{VD}, v11, v12')
        a(f'v_or3_b32 v{VD}, v{VD}, v13, v14')
        a(f'v_permlane32_swap_b32 v{WR}, v{WR+2}')
        a(f'v_permlane32_swap_b32 v{WR+1}, v{WR+3}')
        a(f'v_pk_add_f32 v[{WR}:{WR+1}], v[{WR}:{WR+1}], v[{WR+2}:{WR+3}]')
        a(f'v_mov_b32 v{WR+2}, v{WR}'); a(f'v_mov_b32 v{WR+3}, v{WR+1}')
        a(f'v_bitop3_b32 v{VD}, v{VD}, v15, 15 bitop3:0xa8')
        a(f'v_permlane16_swap_b32 v{WR}, v{WR+2}')
        a(f'v_permlane16_swap_b32 v{WR+1}, v{WR+3}')
        a(f'v_pk_add_f32 v[{WR}:{WR+1}], v[{WR}:{WR+1}], v[{WR+2}:{WR+3}]')
        a(f'v_cmp_ne_u32 vcc, 0, v{VD}')
        a('s_cbranch_vccnz L_wop_retry')
        a.label('L_poll_wop_ok', fence=False)
        if tst: stamp(6); a(f's_mov_b32 s5, s{SPIN}')
        for ctl_ in ('row_ror:4', 'row_ror:8'):
            for k in range(2): a(f'v_add_f32_dpp v{WR+k}, v{WR+k}, v{WR+k} {ctl_} row_mask:0xf bank_mask:0xf')
        rq(WR); rq(WR+1)
        a(f'v_pk_mul_f32 v[{WR}:{WR+1}], v[{WR}:{WR+1}], v[{GAU}:{GAU+1}]')
        rq(WR); rq(WR+1)
        a(f'v_pk_add_f32 v[{WR}:{WR+1}], v[{WR}:{WR+1}], v[{XRU}:{XRU+1}]')
        a(f'v_cvt_pk_bf16_f32 v{RD}, v{WR}, v{WR+1}')
        a(f'buffer_store_dwordx2 v[{RD}:{RD+1}], v{AQ}, s[{SWS}:{SWS+3}], s{T1} offen sc1')
        a(f'buffer_store_dwordx2 v[{RD}:{RD+1}], v{AQ}, s[{SWS}:{SWS+3}], s{T3} offen sc1')
    stamp(3)
    a.label('L_r1done', fence=not nf)
    if g1 and tb2 is None: tbar(dry)
    a(f's_cmp_lt_u32 s{F1T}, {NF1}')
    a('s_cbranch_scc0 L_notf1')
    if dfw: f1_tr()
    a(f's_lshl_b32 s{T2}, s{WV}, {xs+6}')
    a(f's_add_u32 s{T2}, s{T2}, {X1B}')
    XO = [T2, T3, T0, T1]
    for j in range(1, 4): a(f's_add_u32 s{XO[j]}, s{T2}, {(16*j) << xs}')
    a('s_mov_b32 s32, 0x11111111'); a('s_mov_b32 s33, 0x11111111')
    loads = [f'buffer_load_dwordx4 v[{8+4*j}:{8+4*j+3}], v{AX1}, s[{SWS}:{SWS+3}], s{XO[j]} offen sc1' for j in range(4)]
    if p2 is not None and p2[1]:
        poll2('L_poll_x1', tb2, p2[1], lambda R: [f'buffer_load_dwordx4 v[{R+4*j}:{R+4*j+3}], v{AX1}, s[{SWS}:{SWS+3}], s{XO[j]} offen sc1' for j in range(4)],
              lambda R: tagchk([R+1+2*k for k in range(8)]), 8, WR+96, range(0, 16, 2))
    elif mo:
        twait('L_tw2', tb2)
        a(f's_mov_b32 s{SPIN}, 0')
        a.label('L_poll_x1', fence=False)
        for l in loads: a(l)
        if tst: a('s_waitcnt vmcnt(0)')
    else:
        if tb2 is not None: twait('L_tw2', tb2)
        elif bo2: a(f's_sleep {bo2}')
        poll('L_poll_x1', loads[:exx], [9, 11, 13, 15, 17, 19, 21, 23][:2*exx], fence=not nf)
    if tst: stamp(7); a(f's_mov_b32 s15, s{SPIN}')
    tq = [9, 11, 13, 15, 17, 19, 21, 23] if mo else []
    def tg(n=1):
        for _ in range(n):
            if not tq: return
            t = tq.pop(0)
            a(f'v_xor_b32 v{VD}, s{TAG}, v{t}' if t == 9 else f'v_bitop3_b32 v{VD}, v{t}, s{TAG}, v{VD} bitop3:0xbe')
    XV = WR; DV = WR + 16; PS = WR + 32; X0V = WR + 44; TT = WR + 45; HO = WR + 48; AF = WR + 64
    def pr(r): return f'v[{r}:{r+1}]'
    BC = 'op_sel_hi:[1,0]'; NG = 'neg_lo:[0,1] neg_hi:[0,1]'
    for rr in range(2):
        for q in range(4):
            src = 8 + 4*(2*rr + q//2) + 2*(q % 2)
            if mo and q % 2 == 0: a(f's_waitcnt vmcnt({3 - (2*rr + q//2)})')
            unpack(XV + 8*rr + 2*q, XV + 8*rr + 2*q + 1, src)
            if q == 0: a(f'v_readfirstlane_b32 s{22+2*rr}, v{XV+8*rr}')
    for rr in range(2):
        for q in range(4):
            a(f'v_pk_add_f32 {pr(DV+8*rr+2*q)}, {pr(XV+8*rr+2*q)}, s[{22+2*rr}:{23+2*rr}] {BC} {NG}')
    a(f'v_mov_b32 v{X0V}, s24'); a(f'v_mov_b32 v{TT}, s22')
    a(f'v_cndmask_b32 v{X0V}, v{X0V}, v{TT}, s[{LO32}:{LO32+1}]')
    S_ = [PS, PS+2]; Q_ = [PS+4, PS+6]; Z_ = [PS+8, PS+10]
    for rr in range(2): a(f'v_pk_add_f32 {pr(S_[rr])}, {pr(DV+8*rr)}, {pr(DV+8*rr+2)}')
    for rr in range(2): a(f'v_pk_add_f32 {pr(Z_[rr])}, {pr(DV+8*rr+4)}, {pr(DV+8*rr+6)}')
    for rr in range(2): a(f'v_pk_mul_f32 {pr(Q_[rr])}, {pr(DV+8*rr)}, {pr(DV+8*rr)}')
    for rr in range(2): a(f'v_pk_add_f32 {pr(S_[rr])}, {pr(S_[rr])}, {pr(Z_[rr])}')
    for q in range(1, 4):
        for rr in range(2): a(f'v_pk_fma_f32 {pr(Q_[rr])}, {pr(DV+8*rr+2*q)}, {pr(DV+8*rr+2*q)}, {pr(Q_[rr])}')
    for r in S_ + Q_: a(f'v_add_f32 v{r}, v{r}, v{r+1}')
    a(f'v_permlane32_swap_b32 v{S_[0]}, v{S_[1]}')
    tg(1)
    a(f'v_permlane32_swap_b32 v{Q_[0]}, v{Q_[1]}')
    a(f'v_add_f32 v{S_[0]}, v{S_[0]}, v{S_[1]}')
    a(f'v_add_f32 v{Q_[0]}, v{Q_[0]}, v{Q_[1]}')
    tg(2)
    a(f'v_permlane16_swap_b32 v{S_[0]}, v{Q_[0]}')
    T_ = S_[0]; C_ = Q_[0]
    a(f'v_add_f32 v{T_}, v{S_[0]}, v{Q_[0]}')
    for n_, ctl_ in enumerate(('quad_perm:[1,0,3,2]', 'quad_perm:[2,3,0,1]', 'row_half_mirror', 'row_mirror')):
        tg(2)
        if mo and n_ == 3:
            a(f'v_cmp_ne_u32 vcc, 0, v{VD}')
            a('s_cbranch_vccnz L_x1_retry')
            a.label('L_poll_x1_ok', fence=False)
        a(f'v_add_f32_dpp v{T_}, v{T_}, v{T_} {ctl_} row_mask:0xf bank_mask:0xf')
    if mo:
        a(f'v_mul_f32 v{C_}, {f32(1/512)}, v{T_}')
        a(f'v_mul_f32 v{T_}, {f32(1/512)}, v{T_}')
    else:
        a(f'v_mul_f32 v{T_}, {f32(1/512)}, v{T_}')
        a(f'v_mov_b32 v{C_}, v{T_}')
    a(f'v_permlane16_swap_b32 v{T_}, v{C_}')
    a(f'v_add_f32 v{X0V}, v{X0V}, v{T_}')
    a(f'v_fma_f32 v{C_}, -v{T_}, v{T_}, v{C_}')
    if mo:
        rq(X0V)
        a(f'v_max_f32 v{C_}, 0, v{C_}')
        rq(C_)
    else:
        a(f'v_max_f32 v{C_}, 0, v{C_}')
        rnd2(X0V, C_, TT)
    a(f'v_add_f32 v{C_}, {f32(1e-5)}, v{C_}')
    a(f'v_readlane_b32 s22, v{X0V}, 0'); a(f'v_readlane_b32 s24, v{X0V}, 32')
    if mo: rq(C_)
    else: rnd1(C_, TT)
    a(f'v_sqrt_f32 v{C_}, v{C_}')
    P8 = [(rr, q) for rr in range(2) for q in range(4)]
    def X(rr, q): return XV + 8*rr + 2*q
    def rnd_all():
        if mo:
            for rr, q in P8: rq(X(rr,q)); rq(X(rr,q)+1)
            return
        for n_, (rr, q) in enumerate(P8): a(f'v_cvt_pk_bf16_f32 v{DV+n_}, v{X(rr,q)}, v{X(rr,q)+1}')
        for n_, (rr, q) in enumerate(P8):
            a(f'v_lshlrev_b32 v{X(rr,q)}, 16, v{DV+n_}')
            a(f'v_and_b32 v{X(rr,q)+1}, 0xffff0000, v{DV+n_}')
    for rr, q in P8[:2]: a(f'v_pk_add_f32 {pr(X(rr,q))}, {pr(X(rr,q))}, s[{22+2*rr}:{23+2*rr}] {BC} {NG}')
    if mo: rq(C_)
    else: rnd1(C_, TT)
    a(f'v_rcp_f32 v{C_}, v{C_}')
    for rr, q in P8[2:]: a(f'v_pk_add_f32 {pr(X(rr,q))}, {pr(X(rr,q))}, s[{22+2*rr}:{23+2*rr}] {BC} {NG}')
    a(f'v_readlane_b32 s26, v{C_}, 0'); a(f'v_readlane_b32 s28, v{C_}, 32')
    rnd_all()
    for rr, q in P8: a(f'v_pk_mul_f32 {pr(X(rr,q))}, {pr(X(rr,q))}, s[{26+2*rr}:{27+2*rr}] {BC}')
    rnd_all()
    for rr, q in P8: a(f'v_pk_mul_f32 {pr(X(rr,q))}, {pr(X(rr,q))}, {pr(C1F+8*rr+2*q)}')
    rnd_all()
    for rr, q in P8: a(f'v_pk_add_f32 {pr(X(rr,q))}, {pr(X(rr,q))}, {pr(SBF+8*rr+2*q)}')
    for rr in range(2):
        for hf in range(2):
            r = HO + 4*rr + 2*hf
            for k in range(2): a(f'v_cvt_pk_bf16_f32 v{r+k}, v{X(rr,2*hf+k)}, v{X(rr,2*hf+k)+1}')
            a(f'ds_write_b64 v{AH}, v[{r}:{r+1}] offset:{L_H2 + rr*H2S + hf*512}')
    a('s_waitcnt lgkmcnt(0)')
    if tst: stamp(9)
    tbar(dry)
    if tst: stamp(0)
    for s in range(8): a(f'ds_read_b128 v[{AF+4*s}:{AF+4*s+3}], v{AA} offset:{L_H2 + s*64}')
    a(f'v_mov_b32 v{RD+5}, s{TAG}'); a(f'v_mov_b32 v{RD+7}, s{TAG}')
    a('s_mov_b64 vcc, s[32:33]')
    for s in range(8):
        a(f's_waitcnt lgkmcnt({7-s})')
        mf(RD, AF+4*s, BF+4*s, s == 0)
    a(f'v_permlane32_swap_b32 v{RD}, v{RD+2}')
    a(f'v_permlane32_swap_b32 v{RD+1}, v{RD+3}')
    for k in range(2): a(f'v_add_f32_dpp v{RD+k}, v{RD+2+k}, v{RD+k} row_ror:8 row_mask:0xf bank_mask:0xf')
    if mo:
        rq(RD); rq(RD+1)
        E = [VB, VC]; R_ = [WR, WR+2]; M_ = [WR+1, WR+3]
        for k in range(2): a(f'v_mul_f32 v{E[k]}, {f32(-L2E)}, v{RD+k}')
        for k in range(2): a(f'v_exp_f32 v{E[k]}, v{E[k]}')
        for k in range(2): a(f'v_mov_b32_dpp v{U0+k}, v{RD+k} row_shl:4 row_mask:0xf bank_mask:0xf')
        for k in range(2): a(f'v_add_f32 v{E[k]}, 1.0, v{E[k]}')
        for k in range(2): a(f'v_min_f32 v{E[k]}, 0x7f7fffff, v{E[k]}')
        for k in range(2): a(f'v_rcp_f32 v{R_[k]}, v{E[k]}')
        for k in range(2): a(f'v_mul_f32 v{M_[k]}, v{RD+k}, v{R_[k]}')
        for k in range(2): a(f'v_fma_f32 v{RD+k}, -v{M_[k]}, v{E[k]}, v{RD+k}')
        for k in range(2): a(f'v_fma_f32 v{RD+k}, v{RD+k}, v{R_[k]}, v{M_[k]}')
        rq(RD); rq(RD+1)
    else:
        rnd2(RD, RD+1, VD)
        for k in range(2): a(f'v_mov_b32_dpp v{U0+k}, v{RD+k} row_shl:4 row_mask:0xf bank_mask:0xf')
        silu(RD, VB, WR, WR+1); silu(RD+1, VC, WR+2, WR+3)
        rnd2(RD, RD+1, VD)
    for k in range(2): a(f'v_mul_f32 v{RD+k}, v{RD+k}, v{U0+k}')
    for k in range(2): a(f'v_mov_b32_dpp v{U0+k}, v{RD+k} quad_perm:[1,0,3,2] row_mask:0xf bank_mask:0xf')
    for k in range(2): a(f'v_cvt_pk_bf16_f32 v{RD+k}, v{RD+k}, v{U0+k}')
    a(f'v_cndmask_b32_dpp v{RD+4}, v{RD+1}, v{RD}, vcc quad_perm:[0,0,0,0] row_mask:0xf bank_mask:0xf')
    a('s_not_b64 vcc, vcc')
    a(f'v_cndmask_b32_dpp v{RD+6}, v{RD}, v{RD+1}, vcc quad_perm:[2,2,2,2] row_mask:0xf bank_mask:0xf')
    if rep & 2:
        for k in (0, 2):
            a(f'v_mov_b32_dpp v{RD+k}, v{RD+4+k} row_newbcast:0 row_mask:0xf bank_mask:0x5')
        for k in (0, 2):
            a(f'v_mov_b32_dpp v{RD+k}, v{RD+4+k} row_newbcast:2 row_mask:0xf bank_mask:0xa')
        a(f'v_mov_b32 v{RD+1}, s{TAG}'); a(f'v_mov_b32 v{RD+3}, s{TAG}')
        a(f'buffer_store_dwordx4 v[{RD}:{RD+3}], v{AS}, s[{SWS}:{SWS+3}], s{T5} offen sc1')
    else:
        ex_mask(dry, '0x00050005', '0x00050005')
        a(f'buffer_store_dwordx4 v[{RD+4}:{RD+7}], v{AS}, s[{SWS}:{SWS+3}], s{T5} offen sc1')
    stamp(4)
    a('s_branch L_fin')
    if mo:
        for nm_, tgt in (('L_wop_retry', 'L_poll_wop'), ('L_x1_retry', 'L_poll_x1')):
            a.label(nm_, fence=False)
            a(f's_add_u32 s{SPIN}, s{SPIN}, 1')
            a(f's_cmp_lt_u32 s{SPIN}, {SPIN_MAX}')
            a(f's_cbranch_scc0 {tgt}_ok')
            a('s_sleep 1')
            a(f's_branch {tgt}')
    a.label('L_notf1')
    a(f's_mov_b32 s{T0}, s{F2T}')
    a(f's_cmp_lt_u32 s{T0}, 32')
    a('s_cbranch_scc0 L_fin')
    if dfw:
        for s in range(12): tr_read(BF + 4*s, AT2, s)
    a(f's_mov_b32 s{T2}, {ACTB}')
    a(f's_mov_b32 s30, {ACTB + (8 << acs)}')
    loads = []; tags = []
    for u in range(6):
        for k in range(2):
            r = WR + 8*u + 4*k
            loads.append(f'buffer_load_dwordx4 v[{r}:{r+3}], v{AD+u}, s[{SWS}:{SWS+3}], s{30 if k else T2} offen sc1')
            tags += [r+1, r+3]
    a(f's_lshl_b32 s{T1}, s{T0}, {xs}')
    a(f's_add_u32 s{T1}, s{T1}, {X1B}')
    X1R = WR + 48
    if tb2 is not None: twait('L_tw2b', tb2 + 20)
    elif bo2: a(f's_sleep {bo2}')
    poll('L_poll_x1b', [f'buffer_load_dwordx2 v[{X1R}:{X1R+1}], v{AX}, s[{SWS}:{SWS+3}], s{T1} offen sc1'], [X1R+1])
    GBU = ACC; X1U = ACC + 2; ARW = ACC + 4
    if mo:
        unpack(GBU, GBU+1, GBP); unpack(X1U, X1U+1, X1R)
        for w in range(4): a(f'v_add_u32 v{ARW+w}, {L_RED + 1024*w}, v{AR}')
    def gen_update(lab):
        a(f's_or_b32 s{T3}, s{T0}, s{WV}')
        a(f's_cmp_lg_u32 s{T3}, 0')
        a(f's_cbranch_scc1 {lab}')
        a(f's_sub_u32 s{T3}, s{TAG}, {TAGC - 0x11111111}')
        a(f'v_mov_b32 v{VB}, s{T3}')
        a(f'v_mov_b32 v{VA}, 0')
        ex_mask(dry, 1, 0)
        a(f'buffer_store_dword v{VB}, v{VA}, s[{SWS}:{SWS+3}], 0 offen offset:{WS_GEN} sc1')
        ex_full(dry)
    if gene:
        gen_update('L_gen_done'); a.label('L_gen_done')
    if tlbo >= 2:
        a(f's_lshl_b32 s{T3}, s{T0}, 5')
        a(f'buffer_load_dword v{X1R+2}, v{AO}, s[{SOUT}:{SOUT+3}], s{T3} offen {"sc1" if tlbo == 3 else ""}')
    if g2: poll('L_poll_act0', loads[:1], tags[:2])
    if p2 is not None and p2[2]:
        poll2('L_poll_act', tb3, p2[2], lambda R: [f'buffer_load_dwordx4 v[{R+8*u+4*k}:{R+8*u+4*k+3}], v{AD+u}, s[{SWS}:{SWS+3}], s{30 if k else T2} offen sc1' for u in range(6) for k in range(2)],
              lambda R: tagchk([R+1+2*k for k in range(24)]), WR, WR+64, range(0, 48, 2))
        AFS = [WR+112, WR+116, WR+120, WR+124, 8, 12]
    elif f2p:
        twait('L_tw3', tb3)
        AFS = [WR+64+4*u for u in range(6)]
        a(f's_mov_b32 s{SPIN}, 0')
        a.label('L_poll_act', fence=False)
        for l in loads: a(l)
        for u in range(6):
            a(f's_waitcnt vmcnt({10-2*u})')
            for k in range(4):
                a(f'v_and_b32 v{AFS[u]+k}, v{VM+u}, v{WR+8*u+2*k}')
            for k in range(2):
                t = WR+8*u+1+2*k
                a(f'v_xor_b32 v{VD}, s{TAG}, v{t}' if u == 0 and k == 0 else f'v_bitop3_b32 v{VD}, v{t}, s{TAG}, v{VD} bitop3:0xbe')
            mf(D1, AFS[u], BF+8*u, u == 0)
            for k in range(2, 4):
                a(f'v_bitop3_b32 v{VD}, v{WR+8*u+1+2*k}, s{TAG}, v{VD} bitop3:0xbe')
            mf(D2, AFS[u], BF+8*u+4, u == 0)
        a(f'v_cmp_ne_u32 vcc, 0, v{VD}')
        a('s_cbranch_vccz L_poll_act_ok')
        a(f's_add_u32 s{SPIN}, s{SPIN}, 1')
        a(f's_cmp_lt_u32 s{SPIN}, {SPIN_MAX}')
        a('s_cbranch_scc0 L_poll_act_ok')
        a('s_sleep 1')
        a('s_branch L_poll_act')
        a.label('L_poll_act_ok', fence=False)
        a('s_nop 5')
    else:
        if tb3 is not None: twait('L_tw3', tb3)
        elif bo3: a(f's_sleep {bo3}')
        poll('L_poll_act', loads[:exa], tags[:2*exa], fence=not nf)
        AFS = [WR+64+4*u for u in range(6)]
    if tst: stamp(7); a(f's_mov_b32 s15, s{SPIN}')
    if not f2p:
      a('s_waitcnt lgkmcnt(0)')
      for u in range(6):
        for k in range(4):
            a(f'v_and_b32 v{AFS[u]+k}, v{VM+u}, v{WR+8*u+2*k}')
        mf(D1, AFS[u], BF+8*u, u == 0); mf(D2, AFS[u], BF+8*u+4, u == 0)
    sel_halves(cv, RD, D1, D2)
    a(f'ds_write_b128 v{AW}, v[{RD}:{RD+3}] offset:{L_RED}')
    a('s_waitcnt lgkmcnt(0)')
    tbar(dry)
    if tst: stamp(10)
    a(f's_cmp_lg_u32 s{WV}, 0')
    a('s_cbranch_scc1 L_fin')
    if mo:
        for w in range(4):
            for hf in range(2):
                r = WR + 2*(2*w + hf)
                a(f'ds_read2_b32 v[{r}:{r+1}], v{ARW+w} offset0:{hf*128} offset1:{hf*128+4}')
        a(f's_lshl_b32 s{T2}, s{T0}, 5')
        for k in range(4):
            a(f's_waitcnt lgkmcnt({6-2*k})')
            a(f'v_pk_add_f32 v[{WR+4*k}:{WR+4*k+1}], v[{WR+4*k}:{WR+4*k+1}], v[{WR+4*k+2}:{WR+4*k+3}]')
            if k % 2: a(f'v_pk_add_f32 v[{WR+4*k}:{WR+4*k+1}], v[{WR+4*k}:{WR+4*k+1}], v[{WR+4*k-4}:{WR+4*k-3}]')
        a(f'v_pk_add_f32 v[{WR}:{WR+1}], v[{WR+4}:{WR+5}], v[{WR+12}:{WR+13}]')
        rq(WR); rq(WR+1)
        a(f'v_pk_mul_f32 v[{WR}:{WR+1}], v[{WR}:{WR+1}], v[{GBU}:{GBU+1}]')
        rq(WR); rq(WR+1)
        a(f'v_pk_add_f32 v[{WR}:{WR+1}], v[{WR}:{WR+1}], v[{X1U}:{X1U+1}]')
        a(f'v_cvt_pk_bf16_f32 v{RD}, v{WR}, v{WR+1}')
    else:
        red_sum(cv, U0, AR, L_RED, WR)
        rnd2(U0, U1, VD)
        modulate2(U0, U1, GBP, X1R, U2, U3, VD, RD)
        a(f's_lshl_b32 s{T2}, s{T0}, 5')
    a(f'buffer_store_dword v{RD}, v{AO}, s[{SOUT}:{SOUT+3}], s{T2} offen {opol}')
    stamp(5)
    if tst:
        a('s_waitcnt vmcnt(0)'); stamp(9)
    if not gene: gen_update('L_fin')
    if hold:
        a('s_waitcnt vmcnt(0)')
        a.label('L_hold')
        a('s_memrealtime s[92:93]')
        a('s_waitcnt lgkmcnt(0)')
        a('s_sub_u32 s92, s92, s94')
        a(f's_cmp_lt_u32 s92, {hold}')
        a('s_cbranch_scc1 L_hold')
    a.label('L_fin', fence=stamps)
    if dry: a('s_cbranch_execz L_real')
    if stamps: finish(SWS, 8)
    a.label('L_end', fence=False)
    a('s_endpgm')
    a.raw('.section .rodata,"a"')
    a.raw('.p2align 6')
    a.raw(f'.amdhsa_kernel {NAME}')
    a.raw('  .amdhsa_next_free_vgpr 256')
    a.raw('  .amdhsa_next_free_sgpr 96')
    a.raw('  .amdhsa_accum_offset 256')
    a.raw('  .amdhsa_group_segment_fixed_size 0')
    a.raw('  .amdhsa_kernarg_size 112')
    a.raw('  .amdhsa_user_sgpr_count 2')
    a.raw('  .amdhsa_user_sgpr_kernarg_segment_ptr 1')
    a.raw('  .amdhsa_system_sgpr_workgroup_id_x 1')
    a.raw('  .amdhsa_float_denorm_mode_32 3')
    a.raw('.end_amdhsa_kernel')
    return a.text()

if __name__ == '__main__':
    import json
    out = sys.argv[1] if len(sys.argv) > 1 else 'adaLN_cond__mha_block_cached__swiglu_ffn__decode.s'
    kw = json.loads(sys.argv[2]) if len(sys.argv) > 2 else {}
    open(out, 'w').write(gen(**kw))
    print('wrote', out)
```
